```python
import torch

def _softmax(x, axis=-1):
    return torch.softmax(x, dim=axis)
def _gelu(x):
    return torch.nn.functional.gelu(x, approximate="tanh")
def _silu(x):
    return torch.nn.functional.silu(x)
def _sigmoid(x):
    return torch.sigmoid(x)
def _layernorm(x, axis=-1, eps=1e-5):
    m = x.mean(dim=axis, keepdim=True)
    v = x.var(dim=axis, keepdim=True, unbiased=False)
    return (x - m) / torch.sqrt(v + eps)
def _scatter_add(tgt, idx, src, axis=0):
    return tgt.clone().index_add_(axis, idx, src)
def _segment_sum(src, seg, n):
    out = torch.zeros((n,) + src.shape[1:], dtype=src.dtype)
    return out.index_add_(0, seg, src)
def _pad(x, pw):
    flat = tuple(v for pair in reversed(pw) for v in pair)
    return torch.nn.functional.pad(x, flat)

kernel_name = 'standalone__gqa_softmax__near_ridge'

def setup_inputs():

    _w = (lambda a: (lambda t: t.to(torch.bfloat16) if t.is_floating_point() else t)(torch.as_tensor(a)))
    B, Hq, Hkv, Sq, Sk, D = 8, 32, 32, 384, 512, 192
    return {
        "q": _w((lambda *s: torch.randn(*s, dtype=torch.bfloat16) * 0.8)(B, Hq, Sq, D)),
        "k": _w((lambda *s: torch.randn(*s, dtype=torch.bfloat16) * 0.8)(B, Hkv, Sk, D)),
        "v": _w((lambda *s: torch.randn(*s, dtype=torch.bfloat16) * 0.05)(B, Hkv, Sk, D)),
    }

def reference(q, k, v):
    B, Hq, Sq, D = q.shape
    Hkv = k.shape[1]
    rep = Hq // Hkv
    k = (lambda x, n, axis: torch.repeat_interleave(x, n, dim=axis))(k, rep, axis=1)
    v = (lambda x, n, axis: torch.repeat_interleave(x, n, dim=axis))(v, rep, axis=1)
    scale = D ** -0.5
    scores = torch.einsum("bhqd,bhkd->bhqk", q, k) * scale
    p = _softmax(scores, axis=-1)
    return torch.einsum("bhqk,bhkd->bhqd", p, v)
```

```python
import re

def expand(tok):
    tok = tok.strip()
    neg = tok.lstrip("-")
    m = re.fullmatch(r"abs\((.*)\)", neg)
    if m: neg = m.group(1)
    m = re.fullmatch(r"\|(.*)\|", neg)
    if m: neg = m.group(1)
    m = re.fullmatch(r"([vas])\[(\d+):(\d+)\]", neg)
    if m: return ["%s%d" % (m.group(1), i) for i in range(int(m.group(2)), int(m.group(3)) + 1)]
    m = re.fullmatch(r"([vas])(\d+)", neg)
    if m: return [neg]
    if neg in ("vcc", "exec", "m0", "scc"): return [neg]
    return []

TRANS = ("v_exp_f32", "v_rcp_f32", "v_log_f32", "v_rsq_f32", "v_sqrt_f32")

class Ins:
    def __init__(self, text):
        self.text = text.strip()
        t = self.text.split(";")[0].strip()
        self.rd = set(); self.wr = set()
        self.srcc = set(); self.ab = set()
        if t.endswith(":") or t.startswith(".") or not t:
            self.op = ""; self.kind = "label"; return
        parts = t.split(None, 1)
        op = parts[0]; self.op = op
        rest = parts[1] if len(parts) > 1 else ""
        ops = [x.strip() for x in rest.split(",")] if rest else []
        mods = ""
        if ops:
            l = ops[-1].split()
        rest2 = re.sub(r"\b(op_sel|op_sel_hi|neg_lo|neg_hi):\[[^\]]*\]", "", rest)
        ops = [x.strip() for x in rest2.split(",")] if rest2.strip() else []
        if ops:
            l = ops[-1].split(); ops[-1] = l[0] if l else ""; mods = " ".join(l[1:])
        self.mods = mods
        E = expand
        if op.startswith("v_mfma"):
            self.kind = "mfma"
            self.wr |= set(E(ops[0])); self.ab |= set(E(ops[1])) | set(E(ops[2])); self.srcc |= set(E(ops[3]))
            self.rd |= self.ab | self.srcc
            self.passes = 4 if "16x16x32" in op else 8
        elif op.startswith("ds_read"):
            self.kind = "ds"; self.wr |= set(E(ops[0])); self.rd |= set(E(ops[1]))
        elif op.startswith("ds_write"):
            self.kind = "ds"
            for o in ops: self.rd |= set(E(o))
        elif op.startswith("buffer_load"):
            self.kind = "vmem"
            if "lds" in mods.split():
                for o in ops: self.rd |= set(E(o))
                self.rd.add("m0")
            else:
                self.wr |= set(E(ops[0]))
                for o in ops[1:]: self.rd |= set(E(o))
        elif op.startswith("buffer_store") or op.startswith("buffer_atomic"):
            self.kind = "vmem"; self.store_data = set(E(ops[0]))
            for o in ops: self.rd |= set(E(o))
        elif op.startswith("global_load"):
            self.kind = "vmem"; self.wr |= set(E(ops[0]))
            for o in ops[1:]: self.rd |= set(E(o))
        elif op.startswith("v_cmp"):
            self.kind = "valu"; self.wr |= set(E(ops[0]))
            for o in ops[1:]: self.rd |= set(E(o))
        elif op.startswith("v_permlane") and "swap" in op:
            self.kind = "valu"
            for o in ops: self.rd |= set(E(o)); self.wr |= set(E(o))
        elif op == "v_nop": self.kind = "valu"
        elif op.startswith("v_"):
            self.kind = "trans" if op.replace("_e32", "").replace("_e64", "") in TRANS else "valu"
            self.wr |= set(E(ops[0]))
            for o in ops[1:]: self.rd |= set(E(o))
            if op.startswith("v_fmac") or op.startswith("v_dot2c"): self.rd |= set(E(ops[0]))
            if op.startswith("v_cndmask") and len(ops) == 3: self.rd.add("vcc")
        elif op == "s_waitcnt": self.kind = "wait"
        elif op == "s_barrier": self.kind = "barrier"
        elif op == "s_nop": self.kind = "nop"; self.n = int(ops[0], 0) + 1
        elif op.startswith("s_cbranch") or op in ("s_branch", "s_setpc_b64", "s_swappc_b64", "s_call_b64", "s_endpgm"):
            self.kind = "branch"
            if "vcc" in op: self.rd.add("vcc")
            if "scc" in op: self.rd.add("scc")
            if op == "s_setpc_b64": self.rd |= set(E(ops[0]))
            if op == "s_call_b64": self.wr |= set(E(ops[0]))
        elif op.startswith("s_load") or op.startswith("s_mem"):
            self.kind = "smem"; self.wr |= set(E(ops[0]))
            for o in ops[1:]: self.rd |= set(E(o))
        elif op.startswith("s_cmp") or op.startswith("s_bitcmp"):
            self.kind = "salu"; self.wr.add("scc")
            for o in ops: self.rd |= set(E(o))
        elif op in ("s_setprio", "s_sleep"): self.kind = "salu"
        elif op.startswith("s_"):
            self.kind = "salu"; self.wr |= set(E(ops[0]))
            for o in ops[1:]: self.rd |= set(E(o))
            if op.startswith(("s_cselect", "s_addc", "s_subb")): self.rd.add("scc")
            if not op.startswith(("s_mov", "s_mul", "s_cselect", "s_getpc")): self.wr.add("scc")
        else:
            raise ValueError("unknown instr: " + text)
    def states(self):
        if self.kind == "label": return 0
        if self.kind == "nop": return self.n
        return 1
    def isvalu(self): return self.kind in ("valu", "trans")

def check_hazards(seq, name=""):
    errs = []
    n = len(seq)
    for i, c in enumerate(seq):
        if c.kind in ("label", "nop", "wait", "barrier"): continue
        dist = 0
        for k in range(i - 1, max(-1, i - 40), -1):
            p = seq[k]
            need = 0; why = ""
            def upd(v, w):
                nonlocal need, why
                if v > need: need, why = v, w
            if p.isvalu():
                vw = {r for r in p.wr if r[0] in "va" and r != "vcc"}
                sw = {r for r in p.wr if r[0] == "s" or r == "vcc"}
                if c.kind == "mfma" and vw & c.rd: upd(2, "valu->mfma")
                if p.kind == "trans" and c.kind == "valu" and vw & c.rd: upd(1, "trans->valu")
                if c.op.startswith("v_permlane") and vw & c.rd: upd(2, "valu->permlane")
                if c.op.startswith(("v_readfirstlane", "v_readlane")) and vw & c.rd: upd(1, "valu->readlane")
                if c.kind == "vmem" and sw & c.rd: upd(5, "valu sgpr->vmem")
                if c.isvalu() and sw & c.rd: upd(2, "valu sgpr->valu")
                if "dpp" in c.text and vw & c.rd: upd(2, "valu->dpp")
            if p.kind == "mfma":
                lat = {4: 8, 8: 12}[p.passes]
                if c.kind == "mfma":
                    if p.wr & c.ab: upd(lat, "mfma D->mfma AB")
                    if p.wr & c.srcc and not (p.wr == c.srcc and p.passes == c.passes): upd(lat - 2, "mfma D->mfma C overlap")
                elif c.isvalu() or c.kind in ("ds", "vmem"):
                    if p.wr & (c.rd | c.wr): upd(lat, "mfma D->valu/mem")
                    if c.isvalu() and p.srcc & c.wr: upd({4: 3, 8: 7}[p.passes], "mfma C WAR")
            if p.kind == "salu" and "m0" in p.wr and c.kind == "vmem" and "m0" in c.rd: upd(1, "m0->ldsdma")
            if p.kind == "vmem" and hasattr(p, "store_data") and len(p.store_data) >= 3 and p.store_data & c.wr:
                upd(2, "store data WAR")
            if need > dist:
                errs.append("%s: [%d] '%s' -> [%d] '%s' need %d have %d (%s)" % (name, k, p.text, i, c.text, need, dist, why))
            dist += p.states()
            if dist >= 20: break
    return errs

def check_waits(seq, name=""):
    errs = []
    ds = []; vm = []
    for i, c in enumerate(seq):
        if c.kind == "wait":
            m = re.search(r"lgkmcnt\((\d+)\)", c.text)
            if m:
                k = int(m.group(1)); ds = ds[len(ds) - k:] if k < len(ds) and k > 0 else ([] if k == 0 else ds)
            m = re.search(r"vmcnt\((\d+)\)", c.text)
            if m:
                k = int(m.group(1)); vm = vm[len(vm) - k:] if k < len(vm) and k > 0 else ([] if k == 0 else vm)
            continue
        for q, nm in ((ds, "ds"), (vm, "vm")):
            for w in q:
                if w & (c.rd | c.wr):
                    errs.append("%s: [%d] '%s' touches regs of outstanding %s load %s" % (name, i, c.text, nm, sorted(w & (c.rd | c.wr))))
        if c.kind in ("ds", "smem"): ds.append(set(c.wr))
        if c.kind == "vmem": vm.append(set(c.wr))
        if len(vm) > 63: errs.append("%s: [%d] vmcnt overflow" % (name, i))
    return errs
```

```python
import sys, math, struct
from asmlib import *

opts = dict(a.split("=") for a in sys.argv[2:])
STAMP = int(opts.get("stamp", 0))
KN = "standalone__gqa_softmax__near_ridge_kernel"
def f2u(x): return struct.unpack("<I", struct.pack("<f", x))[0]
CSCALE = f2u(math.log2(math.e) / math.sqrt(192.0))
THR = f2u(float(opts.get("thr", 8.0)))

KRING = 0; VRING = 49152; QLDS = 98304; SLOT = 12288
LDS_BYTES = 147456
def V(i, n=1): return "v%d" % i if n == 1 else "v[%d:%d]" % (i, i + n - 1)
def Ac(i, n=1): return "a%d" % i if n == 1 else "a[%d:%d]" % (i, i + n - 1)
vKA = [0, 1]; vVA = [2, 3, 4, 5]; vQA = 6; vDMA = 7
vMC = [8 + i for i in range(6)]; vL = [14 + i for i in range(6)]
vXM = 20; vT = [21, 22, 23]
FB = [Ac(96, 4), Ac(100, 4), Ac(104, 4)]
FBh = [(Ac(96, 2), Ac(98, 2)), (Ac(100, 2), Ac(102, 2)), (Ac(104, 2), Ac(106, 2))]
FQ = {4: Ac(108, 4), 5: V(24, 4)}
EARLY = [3, 4, 5]; LATE = [0, 1, 2]
G = {}; X = {}
r = 28
for rb in LATE:
    G[rb] = [r, r + 4]; X[rb] = [r + 8, r + 12]; r += 16
for rb in EARLY:
    G[rb] = [r, r + 4]; X[rb] = [r + 8, r + 8]; r += 12
assert r == 112
def Oreg(rb, db):
    return ("v", 112 + rb * 48 + db * 4) if rb < 3 else ("a", 112 + (rb - 3) * 48 + db * 4)
def O4(rb, db):
    f, i = Oreg(rb, db); return "%s[%d:%d]" % (f, i, i + 3)
def Qf(rb, ks): return Ac(rb * 24 + ks * 4, 4) if rb < 4 else FQ[rb]
sQ = "s[20:23]"; sK = "s[24:27]"; sV = "s[28:31]"; sO = "s[32:35]"; sW = "s[36:39]"
sC = "s40"; sTH = "s41"; sIT = "s42"; sKoff = "s43"; sVoff = "s44"; sKm = "s45"; sVm = "s46"; sWave = "s47"
sTmp = "s48"; sTmp2 = "s49"; sKend = "s50"; sVend = "s51"; sKbeg = "s52"; sVbeg = "s53"
MF = "v_mfma_f32_16x16x32_bf16"

def k_read(buf, tile_par, ks, hf):
    return "ds_read_b128 %s, %s offset:%d" % (FB[buf], V(vKA[ks & 1]), tile_par * SLOT + (ks >> 1) * 4096 + hf * 2048)
def v_read(buf, tile_par, db):
    return ["ds_read_b64_tr_b16 %s, %s offset:%d" % (FBh[buf][i], V(vVA[db & 3]), tile_par * SLOT + (db >> 2) * 4096 + i * 2048) for i in range(2)]
def q_read(rb, ks):
    return "ds_read_b128 %s, %s offset:%d" % (FQ[rb], V(vQA), (rb - 4) * 6144 + ks * 1024)
def qk_mfmas(par):
    out = []
    for ks in range(6):
        for hf in range(2):
            for rb in (range(6) if hf == 0 else range(5, -1, -1)):
                d = V((G[rb][par] if hf == 0 else X[rb][par]), 4)
                out.append("%s %s, %s, %s, %s" % (MF, d, FB[(2 * ks + hf) % 3], Qf(rb, ks), "0" if ks == 0 else d))
    return out
def pv_mfmas(par):
    out = []
    for db in range(12):
        for rb in EARLY + LATE:
            out.append("%s %s, %s, %s, %s" % (MF, O4(rb, db), FB[db % 3], V(G[rb][par], 4), O4(rb, db)))
    return out
def sregs(rb, par): return [G[rb][par] + i for i in range(4)] + [X[rb][par] + i for i in range(4)]
def sm_pre(group, par):
    ops = []; first = True
    for rb in group:
        s = sregs(rb, par)
        for i in range(0, 8, 2):
            for k in (i, i + 1):
                ops.append("v_fma_f32 %s, %s, %s, -%s" % (V(s[k]), V(s[k]), sC, V(vMC[rb])))
            if first: ops.append("v_max_f32 %s, %s, %s" % (V(vXM), V(s[i]), V(s[i + 1]))); first = False
            else: ops.append("v_max3_f32 %s, %s, %s, %s" % (V(vXM), V(s[i]), V(s[i + 1]), V(vXM)))
    ops.append("v_cmp_lt_f32 vcc, %s, %s" % (sTH, V(vXM)))
    return ops
def sm_post(group, par):
    ops = []
    for rb in group:
        s = sregs(rb, par)
        for i in range(0, 8, 2):
            ops.append("v_exp_f32 %s, %s" % (V(s[i]), V(s[i])))
            ops.append("v_exp_f32 %s, %s" % (V(s[i + 1]), V(s[i + 1])))
            ops.append("v_add_f32 %s, %s, %s" % (V(vL[rb]), V(vL[rb]), V(s[i])))
            ops.append("v_add_f32 %s, %s, %s" % (V(vL[rb]), V(vL[rb]), V(s[i + 1])))
            ops.append("v_cvt_pk_bf16_f32 %s, %s, %s" % (V(G[rb][par] + i // 2), V(s[i]), V(s[i + 1])))
    return ops

class Op:
    def __init__(self, text, ming=0, dead=10 ** 9, fence=None):
        self.i = Ins(text); self.ming = ming; self.dead = dead; self.fence = fence
        self.cost = 2 if self.i.kind == "trans" else 1

def schedule(mf, pinned, scal, stream, ds_in, name):
    n = len(mf)
    mfi = [Ins(t) for t in mf]
    waits = {}
    q = list(ds_in)
    pre_wait = None
    for g in range(n):
        need = None
        for k, w in enumerate(q):
            if w & mfi[g].rd: need = len(q) - 1 - k
        if g > 0:
            for t in pinned.get(g - 1, []):
                ii = Ins(t)
                if ii.kind == "ds": assert not (ii.wr & mfi[g].rd), "ds read consumed by the very next MFMA"
        if need is not None:
            if g == 0: pre_wait = need
            else: waits[g - 1] = need
            q = q[len(q) - need:] if need > 0 else []
        if g > 0:
            for t in pinned.get(g - 1, []):
                ii = Ins(t)
                if ii.kind == "ds": q.append(set(ii.wr))
    for t in pinned.get(n - 1, []):
        ii = Ins(t)
        if ii.kind == "ds": q.append(set(ii.wr))
    sc = {g: ["s_waitcnt lgkmcnt(%d)" % k] for g, k in waits.items()}
    for g, texts, hard in scal:
        for t in texts:
            while (g in sc) and not hard and g < n - 1: g += 1
            sc.setdefault(g, []).append(t); g += 0 if hard else 1
    for extra in range(0, 80):
        over = set(int((k + 0.5) * n / extra) for k in range(extra)) if extra else set()
        sc2 = {g: list(v) for g, v in sc.items()}
        place = {g: [] for g in range(n)}
        done = [False] * len(stream); where = [None] * len(stream)
        ok = True
        for g in range(n):
            cap = 2 - len(pinned.get(g, [])) + (1 if g in over else 0)
            for idx, o in enumerate(stream):
                if done[idx]: continue
                if o.fence is not None and all(done[:idx]) and (idx == 0 or where[idx - 1] < g - 1 or True) and max([w for w in where[:idx]] + [-9]) < g - 0 and g not in sc2:
                    if where[idx - 1] <= g - 2:
                        sc2[g] = [o.i.text, o.fence]; done[idx] = True; where[idx] = g
                break
            look = 0
            for idx, o in enumerate(stream):
                if done[idx]: continue
                if o.fence is not None: break
                look += 1
                if look > 14 or cap <= 0: break
                if o.ming > g or o.cost > cap: continue
                dep = False
                for k in range(idx):
                    p = stream[k]
                    if not done[k]:
                        if (p.i.wr & (o.i.rd | o.i.wr)) or (p.i.rd & o.i.wr): dep = True; break
                    elif where[k] == g and p.i.kind == "trans" and (p.i.wr & o.i.rd): dep = True; break
                if dep: continue
                place[g].append(o); done[idx] = True; where[idx] = g; cap -= o.cost
        ok = all(done) and all(where[k] <= stream[k].dead for k in range(len(stream)))
        if ok: break
    assert ok, "schedule failed " + name
    out = []
    if pre_wait is not None: out.append("s_waitcnt lgkmcnt(%d)" % pre_wait)
    cyc = 0
    for g in range(n):
        out.append(mf[g])
        out += sc2.get(g, [])
        out += pinned.get(g, [])
        out += [o.i.text for o in place[g]]
        ns = len([t for t in sc2.get(g, []) if not t.endswith(":")])
        cyc += max(16, 8 + 4 * (max(0, ns - 1) + len(pinned.get(g, [])) + sum(o.cost for o in place[g])))
    sys.stderr.write("%s: extra=%d est cycles=%d (ideal %d)\n" % (name, extra, cyc, 16 * n))
    return out, q

def dma(srd, soff, smbase, cb):
    return ("s_add_u32 m0, %s, %d" % (smbase, cb * (4096 - 128)),
            "buffer_load_dwordx4 %s, %s, %s offen offset:%d nt lds" % (V(vDMA), srd, soff, cb * 128))

def body(par, ds_in):
    np_ = par ^ 1
    mf = qk_mfmas(np_) + pv_mfmas(par)
    pinned = {}
    def pin(g, t): pinned.setdefault(g, []).append(t)
    for n in range(24):
        m = n + 2
        if m < 12: pin(6 * n, k_read(m % 3, np_, m >> 1, m & 1))
        elif m < 24:
            for t in v_read(m % 3, par, m - 12): pin(6 * n, t)
        else: pin(6 * n, k_read(m % 3, par, 0, m - 24))
    for ks in range(6):
        pin(12 * ks + 7, q_read(5, (ks + 1) % 6)); pin(12 * ks + 8, q_read(4, (ks + 1) % 6))
    scal = []
    scal.append((55, ["s_waitcnt vmcnt(9)", "s_barrier"], False))
    dg = [64, 76, 88, 100, 112, 124]
    for i in range(6):
        a, b = dma(sK, sKoff, sKm, i) if i < 3 else dma(sV, sVoff, sVm, i - 3)
        scal.append((dg[i] - 1, [a], True)); pin(dg[i], b)
    scal.append((90, ["s_add_u32 %s, %s, %d" % (sKoff, sKoff, SLOT), "s_add_u32 %s, %s, %d" % (sKm, sKm, SLOT),
                      "s_cmp_eq_u32 %s, %s" % (sKm, sKend), "s_cselect_b32 %s, %s, %s" % (sKm, sKbeg, sKm)], False))
    scal.append((126, ["s_add_u32 %s, %s, %d" % (sVoff, sVoff, SLOT), "s_add_u32 %s, %s, %d" % (sVm, sVm, SLOT),
                       "s_cmp_eq_u32 %s, %s" % (sVm, sVend), "s_cselect_b32 %s, %s, %s" % (sVm, sVbeg, sVm)], False))
    if par == 0:
        scal.append((138, ["s_add_u32 %s, %s, 1" % (sIT, sIT), "s_cmp_eq_u32 %s, 8" % sIT], False))
    st = []
    if par == 0:
        st += [Op("v_xor_b32 %s, 0x1e000, %s" % (V(a), V(a)), 0, 58) for a in vVA]
    st += [Op(t) for t in sm_pre(LATE, par)]
    st.append(Op("s_cbranch_vccnz L_rare_late%d" % par, fence="L_back_late%d:" % par))
    st += [Op(t, 0, 73) for t in sm_post(LATE, par)]
    pre = sm_pre(EARLY, np_)
    st += [Op(t, 71) for t in pre]
    st.append(Op("s_cbranch_vccnz L_rare_early%d" % np_, fence="L_back_early%d:" % np_))
    if par == 0:
        st += [Op("v_xor_b32 %s, 0x6000, %s" % (V(a), V(a)), 60, 130) for a in vKA]
    st += [Op(t) for t in sm_post(EARLY, np_)]
    return schedule(mf, pinned, scal, st, ds_in, "body%d" % par)

def rowmax(dst, tmp, regs):
    o = ["v_max3_f32 %s, %s, %s, %s" % (V(dst), V(regs[0]), V(regs[1]), V(regs[2])),
         "v_max3_f32 %s, %s, %s, %s" % (V(dst), V(regs[3]), V(regs[4]), V(dst)),
         "v_max3_f32 %s, %s, %s, %s" % (V(dst), V(regs[5]), V(regs[6]), V(dst)),
         "v_max_f32 %s, %s, %s" % (V(dst), V(regs[7]), V(dst))]
    return o + xlane(dst, tmp, "v_max_f32")
def xlane(dst, tmp, op):
    o = []
    for sw in ("v_permlane32_swap_b32", "v_permlane16_swap_b32"):
        o += ["v_mov_b32 %s, %s" % (V(tmp), V(dst)), "s_nop 1", "%s %s, %s" % (sw, V(dst), V(tmp)),
              "%s %s, %s, %s" % (op, V(dst), V(dst), V(tmp))]
    return o

def rare(kind, par, back, pend):
    group = EARLY if kind == "early" else LATE
    o = ["s_nop 15"]
    k = vXM; f = vT[0]; t1 = vT[1]; t2 = vT[2]
    for rb in group:
        s = sregs(rb, par)
        o += rowmax(k, f, s)
        o += ["v_ceil_f32 %s, %s" % (V(k), V(k)), "v_max_f32 %s, 0, %s" % (V(k), V(k)),
              "v_sub_f32 %s, 0, %s" % (V(f), V(k)), "v_exp_f32 %s, %s" % (V(f), V(f)),
              "v_add_f32 %s, %s, %s" % (V(vMC[rb]), V(vMC[rb]), V(k))]
        o += ["v_sub_f32 %s, %s, %s" % (V(x), V(x), V(k)) for x in s]
        o += ["v_mul_f32 %s, %s, %s" % (V(vL[rb]), V(vL[rb]), V(f))]
        for db in range(12):
            fl, i0 = Oreg(rb, db)
            for i in range(i0, i0 + 4):
                if fl == "v": o.append("v_mul_f32 %s, %s, %s" % (V(i), V(i), V(f)))
                else: o += ["v_accvgpr_read_b32 %s, %s" % (V(t1), Ac(i)), "v_mul_f32 %s, %s, %s" % (V(t1), V(t1), V(f)),
                            "v_accvgpr_write_b32 %s, %s" % (Ac(i), V(t1))]
        if pend is not None:
            for i in range(4):
                p = G[rb][pend] + i
                o += ["v_lshlrev_b32 %s, 16, %s" % (V(t1), V(p)), "v_and_b32 %s, 0xffff0000, %s" % (V(t2), V(p)),
                      "v_mul_f32 %s, %s, %s" % (V(t1), V(t1), V(f)), "v_mul_f32 %s, %s, %s" % (V(t2), V(t2), V(f)),
                      "v_cvt_pk_bf16_f32 %s, %s, %s" % (V(p), V(t1), V(t2))]
    o += ["s_nop 1", "s_branch %s" % back]
    return o

def stamp(i):
    return ["s_memrealtime s[%d:%d]" % (60 + 2 * i, 61 + 2 * i)] if STAMP else []

P = []
A = P.append
A("s_cmp_ge_u32 s2, 256")
A("s_cbranch_scc1 L_end")
A("s_load_dwordx4 s[4:7], s[0:1], 0")
A("s_load_dwordx4 s[8:11], s[0:1], 16")
if STAMP: A("s_load_dwordx2 s[12:13], s[0:1], 40")
P += stamp(0)
t0, t1, t2, t3, t4 = 28, 29, 30, 31, 32
A("v_lshrrev_b32 v%d, 6, v0" % t0)
A("v_and_b32 v%d, 63, v0" % t1)
A("s_mul_i32 s14, s2, 147456")
A("v_readfirstlane_b32 %s, v%d" % (sWave, t0))
A("s_mul_i32 s15, s2, 196608")
A("v_lshrrev_b32 v%d, 3, v%d" % (t2, t1))
A("v_mul_u32_u24 v%d, 384, v%d" % (t2, t2))
A("v_lshrrev_b32 v%d, 4, v%d" % (t3, t1))
A("v_lshlrev_b32 v%d, 1, v%d" % (t4, t3))
A("v_xor_b32 v%d, v%d, v%d" % (t4, t4, t1))
A("v_and_b32 v%d, 7, v%d" % (t4, t4))
A("v_lshl_add_u32 v%d, v%d, 4, v%d" % (vDMA, t4, t2))
A("s_mul_i32 %s, %s, 3072" % (sTmp, sWave))
A("v_add_u32 v%d, %s, v%d" % (vDMA, sTmp, vDMA))
A("v_and_b32 v%d, 15, v%d" % (t2, t1))
A("v_mul_u32_u24 v%d, 384, v%d" % (t0, t2))
A("v_lshl_add_u32 v%d, v%d, 4, v%d" % (t0, t3, t0))
A("s_mul_i32 %s, %s, 36864" % (sTmp2, sWave))
A("v_add_u32 v%d, %s, v%d" % (t0, sTmp2, t0))
A("s_lshl_b32 %s, %s, 10" % (sKbeg, sWave))
A("s_add_u32 %s, %s, %d" % (sVbeg, sKbeg, VRING))
A("s_add_u32 %s, %s, %d" % (sKend, sKbeg, 4 * SLOT))
A("s_add_u32 %s, %s, %d" % (sVend, sVbeg, 4 * SLOT))
A("s_waitcnt lgkmcnt(0)")
for base, src, off, size in ((24, 6, "s15", 196608), (20, 4, "s14", 147456), (28, 8, "s15", 196608), (32, 10, "s14", 147456)):
    A("s_add_u32 s%d, s%d, %s" % (base, src, off))
    A("s_addc_u32 s%d, s%d, 0" % (base + 1, src + 1))
    A("s_mov_b32 s%d, %d" % (base + 2, size))
    A("s_mov_b32 s%d, 0x20000" % (base + 3))
if STAMP:
    A("s_mov_b32 s36, s12"); A("s_mov_b32 s37, s13"); A("s_mov_b32 s38, 0x100000"); A("s_mov_b32 s39, 0x20000")
def pro_tile(srd, beg, tile):
    A("s_mov_b32 %s, %d" % (sTmp, tile * SLOT))
    for cb in range(3):
        A("s_add_u32 m0, %s, %d" % (beg, tile * SLOT + cb * (4096 - 128)))
        A("s_nop 0")
        A("buffer_load_dwordx4 %s, %s, %s offen offset:%d nt lds" % (V(vDMA), srd, sTmp, cb * 128))
pro_tile(sK, sKbeg, 0)
A("s_mul_i32 s16, %s, 12288" % sWave)
A("s_add_u32 s16, s16, %d" % QLDS)
for rb in range(1, 6): A("s_mov_b32 s%d, %d" % (54 + rb, rb * 6144))
for p in range(3):
    for rb in range(6):
        so = "0" if rb == 0 else "s%d" % (54 + rb)
        for ks in (2 * p, 2 * p + 1):
            if rb < 4:
                A("buffer_load_dwordx4 %s, v%d, %s, %s offen offset:%d nt" % (Qf(rb, ks), t0, sQ, so, ks * 64))
            else:
                A("s_add_u32 m0, s16, %d" % ((rb - 4) * 6144 + ks * 1024 - ks * 64))
                A("s_nop 0")
                A("buffer_load_dwordx4 v%d, %s, %s offen offset:%d nt lds" % (t0, sQ, so, ks * 64))
for t in range(3):
    pro_tile(sK, sKbeg, t + 1); pro_tile(sV, sVbeg, t)
A("v_and_b32 v%d, 6, v%d" % (t4, t1))
A("v_xor_b32 v%d, v%d, v%d" % (t4, t4, t3))
A("v_lshlrev_b32 v%d, 4, v%d" % (t4, t4))
A("v_lshl_add_u32 v%d, v%d, 7, v%d" % (vKA[0], t2, t4))
A("v_xor_b32 v%d, 64, v%d" % (vKA[1], vKA[0]))
A("v_lshrrev_b32 v%d, 2, v%d" % (t4, t1))
A("v_lshlrev_b32 v%d, 7, v%d" % (t4, t4))
A("v_and_b32 v%d, 3, v%d" % (t2, t1))
A("v_lshl_add_u32 v%d, v%d, 3, v%d" % (t4, t2, t4))
A("v_bfe_u32 v%d, v%d, 3, 2" % (t2, t1))
A("v_lshl_add_u32 v%d, v%d, 5, v%d" % (t4, t2, t4))
A("v_add_u32 v%d, %d, v%d" % (vVA[0], VRING + 2 * SLOT, t4))
for x in range(1, 4): A("v_xor_b32 v%d, %d, v%d" % (vVA[x], 32 * x, vVA[0]))
A("v_lshlrev_b32 v%d, 4, v%d" % (vQA, t1))
A("v_add_u32 v%d, s16, v%d" % (vQA, vQA))
A("s_mov_b32 %s, 0x%x" % (sC, CSCALE))
A("s_mov_b32 %s, 0x%x" % (sTH, THR))
A("s_mov_b32 %s, 0" % sIT)
A("s_mov_b32 %s, %d" % (sKoff, 4 * SLOT))
A("s_mov_b32 %s, %d" % (sVoff, 3 * SLOT))
A("s_mov_b32 %s, %s" % (sKm, sKbeg))
A("s_add_u32 %s, %s, %d" % (sVm, sVbeg, 3 * SLOT))
for i in range(112, 256): A("v_mov_b32 v%d, 0" % i)
for i in range(112, 256): A("v_accvgpr_write_b32 a%d, 0" % i)
for i in vL: A("v_mov_b32 v%d, 0" % i)
A("s_waitcnt vmcnt(54)")
A("s_barrier")
mf0 = qk_mfmas(0)
A(k_read(0, 0, 0, 0)); A(k_read(1, 0, 0, 1))
for ks in range(6):
    if ks % 2 == 0:
        A("s_waitcnt vmcnt(%d)" % (18 + 12 * (2 - ks // 2)))
        if ks == 4: P += stamp(1)
    A(q_read(4, ks)); A(q_read(5, ks))
    for hf in range(2):
        n = 2 * ks + hf
        if n + 2 < 12: A(k_read((n + 2) % 3, 0, (n + 2) >> 1, (n + 2) & 1)) if False else None
        A("s_waitcnt lgkmcnt(0)")
        for i in range(6):
            A(mf0[6 * n + i])
            if i == 0 and n + 2 < 12: A(k_read((n + 2) % 3, 0, (n + 2) >> 1, (n + 2) & 1))
A("s_waitcnt vmcnt(15)")
A("s_barrier")
A(q_read(5, 0)); A(q_read(4, 0)); A(k_read(0, 1, 0, 0)); A(k_read(1, 1, 0, 1))
A("s_nop 7")
for rb in EARLY + LATE:
    P += rowmax(vMC[rb], vT[0], sregs(rb, 0))
    A("v_mul_f32 %s, %s, %s" % (V(vMC[rb]), sC, V(vMC[rb])))
    A("v_ceil_f32 %s, %s" % (V(vMC[rb]), V(vMC[rb])))
P += [t for t in sm_pre(EARLY, 0) if t.startswith("v_fma")]
post = sm_post(EARLY, 0)
P += [t for t in post if t.startswith("v_exp")] + ["s_nop 0"] + [t for t in post if not t.startswith("v_exp")]
A("s_waitcnt lgkmcnt(0)")
P += stamp(2)

ds0 = [set(expand(FQ[5])), set(expand(FQ[4])), set(expand(FB[0])), set(expand(FB[1]))]
B0, q0 = body(0, ds0)
B1, q1 = body(1, q0)
B0b, q0b = body(0, q1)
assert B0 == B0b or True
B0 = B0b

T = []
A = T.append
T += stamp(3)
A("s_waitcnt vmcnt(0) lgkmcnt(0)")
A("s_barrier")
for t in v_read(0, 1, 0) + v_read(1, 1, 1): A(t)
T += sm_pre(LATE, 1)
A("s_cbranch_vccnz L_rare_tail")
A("L_back_tail:")
post = sm_post(LATE, 1)
T += [t for t in post if t.startswith("v_exp")] + ["s_nop 0"] + [t for t in post if not t.startswith("v_exp")]
pinned = {}
for db in range(10): pinned[6 * db] = v_read((db + 2) % 3, 1, db + 2)
dsT = [set(expand(FBh[0][0])), set(expand(FBh[0][1])), set(expand(FBh[1][0])), set(expand(FBh[1][1]))]
st = []
for rb in range(6):
    st += [Op(t) for t in ["v_mov_b32 %s, %s" % (V(X[rb][0]), V(vL[rb]))]]
A("s_nop 1")
PVT, _ = schedule(pv_mfmas(1), pinned, [], [], dsT, "tailpv")
T += PVT
T += stamp(4)
for rb in range(6):
    T += xlane(vL[rb], vT[0], "v_add_f32")
    A("v_rcp_f32 %s, %s" % (V(vL[rb]), V(vL[rb])))
e0, e1, e2 = 0, 1, 2
A("v_mbcnt_lo_u32_b32 v%d, -1, 0" % e0)
A("v_mbcnt_hi_u32_b32 v%d, -1, v%d" % (e0, e0))
A("v_and_b32 v%d, 15, v%d" % (e1, e0))
A("v_mul_u32_u24 v%d, 384, v%d" % (e1, e1))
A("v_bfe_u32 v%d, v%d, 4, 1" % (e2, e0))
A("v_lshl_add_u32 v%d, v%d, 5, v%d" % (e1, e2, e1))
A("v_lshrrev_b32 v%d, 5, v%d" % (e2, e0))
A("v_lshl_add_u32 v%d, v%d, 4, v%d" % (e1, e2, e1))
A("v_add_u32 v%d, %s, v%d" % (e1, sTmp2, e1))
cnt = 0
for rb in range(6):
    so = "0" if rb == 0 else "s%d" % (54 + rb)
    lp = vL[rb] & ~1; sel = vL[rb] & 1
    for p in range(6):
        w = 28 + (cnt % 6) * 12; cnt += 1
        fl, i0 = Oreg(rb, 2 * p)
        if fl == "a":
            for i in range(8): A("v_accvgpr_read_b32 %s, %s" % (V(w + i), Ac(i0 + i)))
            src = w
        else: src = i0
        for i in range(0, 8, 2):
            A("v_pk_mul_f32 %s, %s, %s op_sel:[0,%d] op_sel_hi:[1,%d]" % (V(w + i, 2), V(src + i, 2), V(lp, 2), sel, sel))
        for i in range(4):
            A("v_cvt_pk_bf16_f32 %s, %s, %s" % (V(w + 8 + i), V(w + 2 * i), V(w + 2 * i + 1)))
        A("s_nop 1")
        A("v_permlane16_swap_b32 %s, %s" % (V(w + 8), V(w + 10)))
        A("v_permlane16_swap_b32 %s, %s" % (V(w + 9), V(w + 11)))
        A("buffer_store_dwordx4 %s, v%d, %s, %s offen offset:%d" % (V(w + 8, 4), e1, sO, so, 64 * p))
if STAMP:
    T += stamp(5)
    A("s_waitcnt vmcnt(0)")
    T += stamp(6)
    A("s_waitcnt lgkmcnt(0)")
    A("s_lshl_b32 s3, s2, 2"); A("s_add_u32 s3, s3, %s" % sWave); A("s_lshl_b32 s3, s3, 6")
    A("v_mov_b32 v10, s3")
    for i in range(16): A("v_mov_b32 v%d, s%d" % (12 + i, 60 + i))
    for i in range(4): A("buffer_store_dwordx4 v[%d:%d], v10, %s, 0 offen offset:%d" % (12 + 4 * i, 15 + 4 * i, sW, 16 * i))
A("L_end:")
A("s_endpgm")

R = []
for kind, par, lab, back, pend in (("late", 0, "L_rare_late0", "L_back_late0", None), ("late", 1, "L_rare_late1", "L_back_late1", None),
                                   ("early", 0, "L_rare_early0", "L_back_early0", 1), ("early", 1, "L_rare_early1", "L_back_early1", 0),
                                   ("late", 1, "L_rare_tail", "L_back_tail", None)):
    R.append(lab + ":"); R += rare(kind, par, back, pend)

def I(l): return [Ins(t) for t in l]
seq = I(P) + I(B0) + I(["s_cbranch_scc1 L_tail"]) + I(B1) + I(["s_branch L_loop"]) + I(B0) + I(["s_cbranch_scc1 L_tail"]) + I(T)
errs = check_hazards(seq, "main") + check_waits(seq, "main") + check_hazards(I(R), "rare")
for e in errs: sys.stderr.write(e + "\n")
if errs: sys.stderr.write("!!! %d hazard problems\n" % len(errs))

hdr = open("standalone__gqa_softmax__near_ridge.s.ref").read().split("; Override")[0]
out = [hdr.rstrip(), "; @launch grid=(256,1,1) block=(256,1,1) lds=%d" % LDS_BYTES,
       '.amdgcn_target "amdgcn-amd-amdhsa--gfx950"', ".text", ".globl %s" % KN, ".p2align 8", ".type %s,@function" % KN, "%s:" % KN]
def emit(l):
    for t in l: out.append(t if t.endswith(":") or t.startswith(".") else "    " + t)
emit(P); emit([".p2align 6", "L_loop:"]); emit(B0); emit(["s_cbranch_scc1 L_tail"]); emit(B1); emit(["s_branch L_loop", "L_tail:"]); emit(T); emit(R)
out += ['.section .rodata,"a"', ".p2align 6", ".amdhsa_kernel %s" % KN, "  .amdhsa_next_free_vgpr 512", "  .amdhsa_next_free_sgpr 96",
        "  .amdhsa_accum_offset 256", "  .amdhsa_group_segment_fixed_size 0", "  .amdhsa_kernarg_size 48", "  .amdhsa_user_sgpr_count 2",
        "  .amdhsa_user_sgpr_kernarg_segment_ptr 1", "  .amdhsa_system_sgpr_workgroup_id_x 1", ".end_amdhsa_kernel", ""]
open(sys.argv[1], "w").write("\n".join(out))
```

```python
import sys, math, struct
from asmlib import *

opts = dict(a.split("=") for a in sys.argv[2:])
STAMP = int(opts.get("stamp", 0))
KN = "standalone__gqa_softmax__near_ridge_kernel"
def f2u(x): return struct.unpack("<I", struct.pack("<f", x))[0]
CSCALE = f2u(math.log2(math.e) / math.sqrt(192.0))
THR = f2u(float(opts.get("thr", 8.0)))

KRING = 0; VRING = 49152; QLDS = 98304; SLOT = 12288
LDS_BYTES = 147456
def V(i, n=1): return "v%d" % i if n == 1 else "v[%d:%d]" % (i, i + n - 1)
def Ac(i, n=1): return "a%d" % i if n == 1 else "a[%d:%d]" % (i, i + n - 1)
vKA = [0, 1]; vVA = [2, 3, 4, 5]; vQA = 6; vDMA = 7
vMC = [8 + i for i in range(6)]; vL = [14 + i for i in range(6)]
vXM = 20; vT = [21, 22, 23]
FB = [Ac(96, 4), Ac(100, 4), Ac(104, 4)]
FBh = [(Ac(96, 2), Ac(98, 2)), (Ac(100, 2), Ac(102, 2)), (Ac(104, 2), Ac(106, 2))]
FQ = {4: Ac(108, 4), 5: V(24, 4)}
EARLY = [3, 4, 5]; LATE = [0, 1, 2]
G = {}; X = {}
r = 28
for rb in LATE:
    G[rb] = [r, r + 4]; X[rb] = [r + 8, r + 12]; r += 16
for rb in EARLY:
    G[rb] = [r, r + 4]; X[rb] = [r + 8, r + 8]; r += 12
assert r == 112
def Oreg(rb, db):
    return ("v", 112 + rb * 48 + db * 4) if rb < 3 else ("a", 112 + (rb - 3) * 48 + db * 4)
def O4(rb, db):
    f, i = Oreg(rb, db); return "%s[%d:%d]" % (f, i, i + 3)
def Qf(rb, ks): return Ac(rb * 24 + ks * 4, 4) if rb < 4 else FQ[rb]
sQ = "s[20:23]"; sK = "s[24:27]"; sV = "s[28:31]"; sO = "s[32:35]"; sW = "s[36:39]"
sC = "s40"; sTH = "s41"; sIT = "s42"; sKoff = "s43"; sVoff = "s44"; sKm = "s45"; sVm = "s46"; sWave = "s47"
sTmp = "s48"; sTmp2 = "s49"; sKend = "s50"; sVend = "s51"; sKbeg = "s52"; sVbeg = "s53"
MF = "v_mfma_f32_16x16x32_bf16"

def k_read(buf, tile_par, ks, hf):
    return "ds_read_b128 %s, %s offset:%d" % (FB[buf], V(vKA[ks & 1]), tile_par * SLOT + (ks >> 1) * 4096 + hf * 2048)
def v_read(buf, tile_par, db):
    return ["ds_read_b64_tr_b16 %s, %s offset:%d" % (FBh[buf][i], V(vVA[db & 3]), tile_par * SLOT + (db >> 2) * 4096 + i * 2048) for i in range(2)]
def q_read(rb, ks):
    return "ds_read_b128 %s, %s offset:%d" % (FQ[rb], V(vQA), (rb - 4) * 6144 + ks * 1024)
def qk_mfmas(par):
    out = []
    for ks in range(6):
        for hf in range(2):
            for rb in (range(6) if hf == 0 else range(5, -1, -1)):
                d = V((G[rb][par] if hf == 0 else X[rb][par]), 4)
                out.append("%s %s, %s, %s, %s" % (MF, d, FB[(2 * ks + hf) % 3], Qf(rb, ks), "0" if ks == 0 else d))
    return out
def pv_mfmas(par):
    out = []
    for db in range(12):
        for rb in EARLY + LATE:
            out.append("%s %s, %s, %s, %s" % (MF, O4(rb, db), FB[db % 3], V(G[rb][par], 4), O4(rb, db)))
    return out
def sregs(rb, par): return [G[rb][par] + i for i in range(4)] + [X[rb][par] + i for i in range(4)]
def sm_pre(group, par):
    ops = []; first = True
    for rb in group:
        s = sregs(rb, par)
        for i in range(0, 8, 2):
            for k in (i, i + 1):
                ops.append("v_fma_f32 %s, %s, %s, -%s" % (V(s[k]), V(s[k]), sC, V(vMC[rb])))
            if first: ops.append("v_max_f32 %s, %s, %s" % (V(vXM), V(s[i]), V(s[i + 1]))); first = False
            else: ops.append("v_max3_f32 %s, %s, %s, %s" % (V(vXM), V(s[i]), V(s[i + 1]), V(vXM)))
    ops.append("v_cmp_lt_f32 vcc, %s, %s" % (sTH, V(vXM)))
    return ops
def sm_post(group, par):
    ops = []
    for rb in group:
        s = sregs(rb, par)
        for i in range(0, 8, 2):
            ops.append("v_exp_f32 %s, %s" % (V(s[i]), V(s[i])))
            ops.append("v_exp_f32 %s, %s" % (V(s[i + 1]), V(s[i + 1])))
            ops.append("v_add_f32 %s, %s, %s" % (V(vL[rb]), V(vL[rb]), V(s[i])))
            ops.append("v_add_f32 %s, %s, %s" % (V(vL[rb]), V(vL[rb]), V(s[i + 1])))
            ops.append("v_cvt_pk_bf16_f32 %s, %s, %s" % (V(G[rb][par] + i // 2), V(s[i]), V(s[i + 1])))
    return ops

class Op:
    def __init__(self, text, ming=0, dead=10 ** 9, fence=None):
        self.i = Ins(text); self.ming = ming; self.dead = dead; self.fence = fence
        self.cost = 2 if self.i.kind == "trans" else 1

def schedule(mf, pinned, scal, stream, ds_in, name):
    n = len(mf)
    mfi = [Ins(t) for t in mf]
    waits = {}
    q = list(ds_in)
    pre_wait = None
    for g in range(n):
        need = None
        for k, w in enumerate(q):
            if w & mfi[g].rd: need = len(q) - 1 - k
        if g > 0:
            for t in pinned.get(g - 1, []):
                ii = Ins(t)
                if ii.kind == "ds": assert not (ii.wr & mfi[g].rd), "ds read consumed by the very next MFMA"
        if need is not None:
            if g == 0: pre_wait = need
            else: waits[g - 1] = need
            q = q[len(q) - need:] if need > 0 else []
        if g > 0:
            for t in pinned.get(g - 1, []):
                ii = Ins(t)
                if ii.kind == "ds": q.append(set(ii.wr))
    for t in pinned.get(n - 1, []):
        ii = Ins(t)
        if ii.kind == "ds": q.append(set(ii.wr))
    sc = {g: ["s_waitcnt lgkmcnt(%d)" % k] for g, k in waits.items()}
    for g, texts, hard in scal:
        for t in texts:
            while (g in sc) and not hard and g < n - 1: g += 1
            sc.setdefault(g, []).append(t); g += 0 if hard else 1
    for extra in range(0, 80):
        over = set(int((k + 0.5) * n / extra) for k in range(extra)) if extra else set()
        sc2 = {g: list(v) for g, v in sc.items()}
        place = {g: [] for g in range(n)}
        done = [False] * len(stream); where = [None] * len(stream)
        ok = True
        for g in range(n):
            cap = 2 - len(pinned.get(g, [])) + (1 if g in over else 0)
            for idx, o in enumerate(stream):
                if done[idx]: continue
                if o.fence is not None and all(done[:idx]) and (idx == 0 or where[idx - 1] < g - 1 or True) and max([w for w in where[:idx]] + [-9]) < g - 0 and g not in sc2:
                    if where[idx - 1] <= g - 2:
                        sc2[g] = [o.i.text, o.fence]; done[idx] = True; where[idx] = g
                break
            look = 0
            for idx, o in enumerate(stream):
                if done[idx]: continue
                if o.fence is not None: break
                look += 1
                if look > 14 or cap <= 0: break
                if o.ming > g or o.cost > cap: continue
                dep = False
                for k in range(idx):
                    p = stream[k]
                    if not done[k]:
                        if (p.i.wr & (o.i.rd | o.i.wr)) or (p.i.rd & o.i.wr): dep = True; break
                    elif where[k] == g and p.i.kind == "trans" and (p.i.wr & o.i.rd): dep = True; break
                if dep: continue
                place[g].append(o); done[idx] = True; where[idx] = g; cap -= o.cost
        ok = all(done) and all(where[k] <= stream[k].dead for k in range(len(stream)))
        if ok: break
    assert ok, "schedule failed " + name
    out = []
    if pre_wait is not None: out.append("s_waitcnt lgkmcnt(%d)" % pre_wait)
    cyc = 0
    for g in range(n):
        out.append(mf[g])
        out += sc2.get(g, [])
        out += pinned.get(g, [])
        out += [o.i.text for o in place[g]]
        ns = len([t for t in sc2.get(g, []) if not t.endswith(":")])
        cyc += max(16, 8 + 4 * (max(0, ns - 1) + len(pinned.get(g, [])) + sum(o.cost for o in place[g])))
    sys.stderr.write("%s: extra=%d est cycles=%d (ideal %d)\n" % (name, extra, cyc, 16 * n))
    return out, q

def dma(srd, soff, smbase, cb):
    return ("s_add_u32 m0, %s, %d" % (smbase, cb * (4096 - 128)),
            "buffer_load_dwordx4 %s, %s, %s offen offset:%d nt lds" % (V(vDMA), srd, soff, cb * 128))

def body(par, ds_in):
    np_ = par ^ 1
    mf = qk_mfmas(np_) + pv_mfmas(par)
    pinned = {}
    def pin(g, t): pinned.setdefault(g, []).append(t)
    for n in range(24):
        m = n + 2
        if m < 12: pin(6 * n, k_read(m % 3, np_, m >> 1, m & 1))
        elif m < 24:
            for t in v_read(m % 3, par, m - 12): pin(6 * n, t)
        else: pin(6 * n, k_read(m % 3, par, 0, m - 24))
    for ks in range(6):
        pin(12 * ks + 7, q_read(5, (ks + 1) % 6)); pin(12 * ks + 8, q_read(4, (ks + 1) % 6))
    scal = []
    scal.append((55, ["s_waitcnt vmcnt(9)", "s_barrier"], False))
    dg = [64, 76, 88, 100, 112, 124]
    for i in range(6):
        a, b = dma(sK, sKoff, sKm, i) if i < 3 else dma(sV, sVoff, sVm, i - 3)
        scal.append((dg[i] - 1, [a], True)); pin(dg[i], b)
    scal.append((90, ["s_add_u32 %s, %s, %d" % (sKoff, sKoff, SLOT), "s_add_u32 %s, %s, %d" % (sKm, sKm, SLOT),
                      "s_cmp_eq_u32 %s, %s" % (sKm, sKend), "s_cselect_b32 %s, %s, %s" % (sKm, sKbeg, sKm)], False))
    scal.append((126, ["s_add_u32 %s, %s, %d" % (sVoff, sVoff, SLOT), "s_add_u32 %s, %s, %d" % (sVm, sVm, SLOT),
                       "s_cmp_eq_u32 %s, %s" % (sVm, sVend), "s_cselect_b32 %s, %s, %s" % (sVm, sVbeg, sVm)], False))
    if par == 0:
        scal.append((138, ["s_add_u32 %s, %s, 1" % (sIT, sIT), "s_cmp_eq_u32 %s, 8" % sIT], False))
    st = []
    if par == 0:
        st += [Op("v_xor_b32 %s, 0x1e000, %s" % (V(a), V(a)), 0, 58) for a in vVA]
    st += [Op(t) for t in sm_pre(LATE, par)]
    st.append(Op("s_cbranch_vccnz L_rare_late%d" % par, fence="L_back_late%d:" % par))
    st += [Op(t, 0, 73) for t in sm_post(LATE, par)]
    pre = sm_pre(EARLY, np_)
    st += [Op(t, 71) for t in pre]
    st.append(Op("s_cbranch_vccnz L_rare_early%d" % np_, fence="L_back_early%d:" % np_))
    if par == 0:
        st += [Op("v_xor_b32 %s, 0x6000, %s" % (V(a), V(a)), 60, 130) for a in vKA]
    st += [Op(t) for t in sm_post(EARLY, np_)]
    return schedule(mf, pinned, scal, st, ds_in, "body%d" % par)

def rowmax(dst, tmp, regs):
    o = ["v_max3_f32 %s, %s, %s, %s" % (V(dst), V(regs[0]), V(regs[1]), V(regs[2])),
         "v_max3_f32 %s, %s, %s, %s" % (V(dst), V(regs[3]), V(regs[4]), V(dst)),
         "v_max3_f32 %s, %s, %s, %s" % (V(dst), V(regs[5]), V(regs[6]), V(dst)),
         "v_max_f32 %s, %s, %s" % (V(dst), V(regs[7]), V(dst))]
    return o + xlane(dst, tmp, "v_max_f32")
def xlane(dst, tmp, op):
    o = []
    for sw in ("v_permlane32_swap_b32", "v_permlane16_swap_b32"):
        o += ["v_mov_b32 %s, %s" % (V(tmp), V(dst)), "s_nop 1", "%s %s, %s" % (sw, V(dst), V(tmp)),
              "%s %s, %s, %s" % (op, V(dst), V(dst), V(tmp))]
    return o

def rare(kind, par, back, pend):
    group = EARLY if kind == "early" else LATE
    o = ["s_nop 15"]
    k = vXM; f = vT[0]; t1 = vT[1]; t2 = vT[2]
    for rb in group:
        s = sregs(rb, par)
        o += rowmax(k, f, s)
        o += ["v_ceil_f32 %s, %s" % (V(k), V(k)), "v_max_f32 %s, 0, %s" % (V(k), V(k)),
              "v_sub_f32 %s, 0, %s" % (V(f), V(k)), "v_exp_f32 %s, %s" % (V(f), V(f)),
              "v_add_f32 %s, %s, %s" % (V(vMC[rb]), V(vMC[rb]), V(k))]
        o += ["v_sub_f32 %s, %s, %s" % (V(x), V(x), V(k)) for x in s]
        o += ["v_mul_f32 %s, %s, %s" % (V(vL[rb]), V(vL[rb]), V(f))]
        for db in range(12):
            fl, i0 = Oreg(rb, db)
            for i in range(i0, i0 + 4):
                if fl == "v": o.append("v_mul_f32 %s, %s, %s" % (V(i), V(i), V(f)))
                else: o += ["v_accvgpr_read_b32 %s, %s" % (V(t1), Ac(i)), "v_mul_f32 %s, %s, %s" % (V(t1), V(t1), V(f)),
                            "v_accvgpr_write_b32 %s, %s" % (Ac(i), V(t1))]
        if pend is not None:
            for i in range(4):
                p = G[rb][pend] + i
                o += ["v_lshlrev_b32 %s, 16, %s" % (V(t1), V(p)), "v_and_b32 %s, 0xffff0000, %s" % (V(t2), V(p)),
                      "v_mul_f32 %s, %s, %s" % (V(t1), V(t1), V(f)), "v_mul_f32 %s, %s, %s" % (V(t2), V(t2), V(f)),
                      "v_cvt_pk_bf16_f32 %s, %s, %s" % (V(p), V(t1), V(t2))]
    o += ["s_nop 1", "s_branch %s" % back]
    return o

def stamp(i):
    return ["s_memrealtime s[%d:%d]" % (60 + 2 * i, 61 + 2 * i)] if STAMP else []

P = []
A = P.append
A("s_cmp_ge_u32 s2, 256")
A("s_cbranch_scc1 L_end")
A("s_load_dwordx4 s[4:7], s[0:1], 0")
A("s_load_dwordx4 s[8:11], s[0:1], 16")
if STAMP: A("s_load_dwordx2 s[12:13], s[0:1], %d" % (32 if STAMP == 2 else 40))
P += stamp(0)
t0, t1, t2, t3, t4 = 28, 29, 30, 31, 32
A("v_lshrrev_b32 v%d, 6, v0" % t0)
A("v_and_b32 v%d, 63, v0" % t1)
A("s_mul_i32 s14, s2, 147456")
A("v_readfirstlane_b32 %s, v%d" % (sWave, t0))
A("s_mul_i32 s15, s2, 196608")
A("v_lshrrev_b32 v%d, 3, v%d" % (t2, t1))
A("v_mul_u32_u24 v%d, 384, v%d" % (t2, t2))
A("v_lshrrev_b32 v%d, 4, v%d" % (t3, t1))
A("v_lshlrev_b32 v%d, 1, v%d" % (t4, t3))
A("v_xor_b32 v%d, v%d, v%d" % (t4, t4, t1))
A("v_and_b32 v%d, 7, v%d" % (t4, t4))
A("v_lshl_add_u32 v%d, v%d, 4, v%d" % (vDMA, t4, t2))
A("s_mul_i32 %s, %s, 3072" % (sTmp, sWave))
A("v_add_u32 v%d, %s, v%d" % (vDMA, sTmp, vDMA))
A("v_and_b32 v%d, 15, v%d" % (t2, t1))
A("v_mul_u32_u24 v%d, 384, v%d" % (t0, t2))
A("v_lshl_add_u32 v%d, v%d, 4, v%d" % (t0, t3, t0))
A("s_mul_i32 %s, %s, 36864" % (sTmp2, sWave))
A("v_add_u32 v%d, %s, v%d" % (t0, sTmp2, t0))
A("s_lshl_b32 %s, %s, 10" % (sKbeg, sWave))
A("s_add_u32 %s, %s, %d" % (sVbeg, sKbeg, VRING))
A("s_add_u32 %s, %s, %d" % (sKend, sKbeg, 4 * SLOT))
A("s_add_u32 %s, %s, %d" % (sVend, sVbeg, 4 * SLOT))
A("s_waitcnt lgkmcnt(0)")
for base, src, off, size in ((24, 6, "s15", 196608), (20, 4, "s14", 147456), (28, 8, "s15", 196608), (32, 10, "s14", 147456)):
    A("s_add_u32 s%d, s%d, %s" % (base, src, off))
    A("s_addc_u32 s%d, s%d, 0" % (base + 1, src + 1))
    A("s_mov_b32 s%d, %d" % (base + 2, size))
    A("s_mov_b32 s%d, 0x20000" % (base + 3))
if STAMP:
    A("s_mov_b32 s36, s12"); A("s_mov_b32 s37, s13"); A("s_mov_b32 s38, %s" % ("256" if STAMP == 2 else "0x100000")); A("s_mov_b32 s39, 0x20000")
def pro_tile(srd, beg, tile):
    A("s_mov_b32 %s, %d" % (sTmp, tile * SLOT))
    for cb in range(3):
        A("s_add_u32 m0, %s, %d" % (beg, tile * SLOT + cb * (4096 - 128)))
        A("s_nop 0")
        A("buffer_load_dwordx4 %s, %s, %s offen offset:%d nt lds" % (V(vDMA), srd, sTmp, cb * 128))
pro_tile(sK, sKbeg, 0)
A("s_mul_i32 s16, %s, 12288" % sWave)
A("s_add_u32 s16, s16, %d" % QLDS)
for rb in range(1, 6): A("s_mov_b32 s%d, %d" % (54 + rb, rb * 6144))
for p in range(3):
    for rb in range(6):
        so = "0" if rb == 0 else "s%d" % (54 + rb)
        for ks in (2 * p, 2 * p + 1):
            if rb < 4:
                A("buffer_load_dwordx4 %s, v%d, %s, %s offen offset:%d nt" % (Qf(rb, ks), t0, sQ, so, ks * 64))
            else:
                A("s_add_u32 m0, s16, %d" % ((rb - 4) * 6144 + ks * 1024 - ks * 64))
                A("s_nop 0")
                A("buffer_load_dwordx4 v%d, %s, %s offen offset:%d nt lds" % (t0, sQ, so, ks * 64))
for t in range(3):
    pro_tile(sK, sKbeg, t + 1); pro_tile(sV, sVbeg, t)
A("v_and_b32 v%d, 6, v%d" % (t4, t1))
A("v_xor_b32 v%d, v%d, v%d" % (t4, t4, t3))
A("v_lshlrev_b32 v%d, 4, v%d" % (t4, t4))
A("v_lshl_add_u32 v%d, v%d, 7, v%d" % (vKA[0], t2, t4))
A("v_xor_b32 v%d, 64, v%d" % (vKA[1], vKA[0]))
A("v_lshrrev_b32 v%d, 2, v%d" % (t4, t1))
A("v_lshlrev_b32 v%d, 7, v%d" % (t4, t4))
A("v_and_b32 v%d, 3, v%d" % (t2, t1))
A("v_lshl_add_u32 v%d, v%d, 3, v%d" % (t4, t2, t4))
A("v_bfe_u32 v%d, v%d, 3, 2" % (t2, t1))
A("v_lshl_add_u32 v%d, v%d, 5, v%d" % (t4, t2, t4))
A("v_add_u32 v%d, %d, v%d" % (vVA[0], VRING + 2 * SLOT, t4))
for x in range(1, 4): A("v_xor_b32 v%d, %d, v%d" % (vVA[x], 32 * x, vVA[0]))
A("v_lshlrev_b32 v%d, 4, v%d" % (vQA, t1))
A("v_add_u32 v%d, s16, v%d" % (vQA, vQA))
A("s_mov_b32 %s, 0x%x" % (sC, CSCALE))
A("s_mov_b32 %s, 0x%x" % (sTH, THR))
A("s_mov_b32 %s, 0" % sIT)
A("s_mov_b32 %s, %d" % (sKoff, 4 * SLOT))
A("s_mov_b32 %s, %d" % (sVoff, 3 * SLOT))
A("s_mov_b32 %s, %s" % (sKm, sKbeg))
A("s_add_u32 %s, %s, %d" % (sVm, sVbeg, 3 * SLOT))
for i in range(112, 256): A("v_mov_b32 v%d, 0" % i)
for i in range(112, 256): A("v_accvgpr_write_b32 a%d, 0" % i)
for i in vL: A("v_mov_b32 v%d, 0" % i)
A("s_waitcnt vmcnt(54)")
A("s_barrier")
mf0 = qk_mfmas(0)
A(k_read(0, 0, 0, 0)); A(k_read(1, 0, 0, 1))
for ks in range(6):
    if ks % 2 == 0:
        A("s_waitcnt vmcnt(%d)" % (18 + 12 * (2 - ks // 2)))
        if ks == 4: P += stamp(1)
    A(q_read(4, ks)); A(q_read(5, ks))
    for hf in range(2):
        n = 2 * ks + hf
        if n + 2 < 12: A(k_read((n + 2) % 3, 0, (n + 2) >> 1, (n + 2) & 1)) if False else None
        A("s_waitcnt lgkmcnt(0)")
        for i in range(6):
            A(mf0[6 * n + i])
            if i == 0 and n + 2 < 12: A(k_read((n + 2) % 3, 0, (n + 2) >> 1, (n + 2) & 1))
A("s_waitcnt vmcnt(15)")
A("s_barrier")
A(q_read(5, 0)); A(q_read(4, 0)); A(k_read(0, 1, 0, 0)); A(k_read(1, 1, 0, 1))
A("s_nop 7")
for rb in EARLY + LATE:
    P += rowmax(vMC[rb], vT[0], sregs(rb, 0))
    A("v_mul_f32 %s, %s, %s" % (V(vMC[rb]), sC, V(vMC[rb])))
    A("v_ceil_f32 %s, %s" % (V(vMC[rb]), V(vMC[rb])))
P += [t for t in sm_pre(EARLY, 0) if t.startswith("v_fma")]
post = sm_post(EARLY, 0)
P += [t for t in post if t.startswith("v_exp")] + ["s_nop 0"] + [t for t in post if not t.startswith("v_exp")]
A("s_waitcnt lgkmcnt(0)")
P += stamp(2)

ds0 = [set(expand(FQ[5])), set(expand(FQ[4])), set(expand(FB[0])), set(expand(FB[1]))]
B0, q0 = body(0, ds0)
B1, q1 = body(1, q0)
B0b, q0b = body(0, q1)
assert B0 == B0b or True
B0 = B0b

T = []
A = T.append
T += stamp(3)
A("s_waitcnt vmcnt(0) lgkmcnt(0)")
A("s_barrier")
for t in v_read(0, 1, 0) + v_read(1, 1, 1): A(t)
T += sm_pre(LATE, 1)
A("s_cbranch_vccnz L_rare_tail")
A("L_back_tail:")
post = sm_post(LATE, 1)
T += [t for t in post if t.startswith("v_exp")] + ["s_nop 0"] + [t for t in post if not t.startswith("v_exp")]
pinned = {}
for db in range(10): pinned[6 * db] = v_read((db + 2) % 3, 1, db + 2)
dsT = [set(expand(FBh[0][0])), set(expand(FBh[0][1])), set(expand(FBh[1][0])), set(expand(FBh[1][1]))]
st = []
for rb in range(6):
    st += [Op(t) for t in ["v_mov_b32 %s, %s" % (V(X[rb][0]), V(vL[rb]))]]
A("s_nop 1")
PVT, _ = schedule(pv_mfmas(1), pinned, [], [], dsT, "tailpv")
T += PVT
T += stamp(4)
for rb in range(6):
    T += xlane(vL[rb], vT[0], "v_add_f32")
    A("v_rcp_f32 %s, %s" % (V(vL[rb]), V(vL[rb])))
e0, e1, e2 = 0, 1, 2
A("v_mbcnt_lo_u32_b32 v%d, -1, 0" % e0)
A("v_mbcnt_hi_u32_b32 v%d, -1, v%d" % (e0, e0))
A("v_and_b32 v%d, 15, v%d" % (e1, e0))
A("v_mul_u32_u24 v%d, 384, v%d" % (e1, e1))
A("v_bfe_u32 v%d, v%d, 4, 1" % (e2, e0))
A("v_lshl_add_u32 v%d, v%d, 5, v%d" % (e1, e2, e1))
A("v_lshrrev_b32 v%d, 5, v%d" % (e2, e0))
A("v_lshl_add_u32 v%d, v%d, 4, v%d" % (e1, e2, e1))
A("v_add_u32 v%d, %s, v%d" % (e1, sTmp2, e1))
cnt = 0
for rb in range(6):
    so = "0" if rb == 0 else "s%d" % (54 + rb)
    lp = vL[rb] & ~1; sel = vL[rb] & 1
    for p in range(6):
        w = 28 + (cnt % 6) * 12; cnt += 1
        fl, i0 = Oreg(rb, 2 * p)
        if fl == "a":
            for i in range(8): A("v_accvgpr_read_b32 %s, %s" % (V(w + i), Ac(i0 + i)))
            src = w
        else: src = i0
        for i in range(0, 8, 2):
            A("v_pk_mul_f32 %s, %s, %s op_sel:[0,%d] op_sel_hi:[1,%d]" % (V(w + i, 2), V(src + i, 2), V(lp, 2), sel, sel))
        for i in range(4):
            A("v_cvt_pk_bf16_f32 %s, %s, %s" % (V(w + 8 + i), V(w + 2 * i), V(w + 2 * i + 1)))
        A("s_nop 1")
        A("v_permlane16_swap_b32 %s, %s" % (V(w + 8), V(w + 10)))
        A("v_permlane16_swap_b32 %s, %s" % (V(w + 9), V(w + 11)))
        A("buffer_store_dwordx4 %s, v%d, %s, %s offen offset:%d" % (V(w + 8, 4), e1, sO, so, 64 * p))
if STAMP:
    T += stamp(5)
    A("s_waitcnt vmcnt(0)")
    T += stamp(6)
    A("s_waitcnt lgkmcnt(0)")
    if STAMP == 2:
        A("v_mov_b32 v10, 0")
        A("s_mov_b64 exec, 1")
        for i in range(7):
            A("v_mov_b32 v%d, s%d" % (12 + 2 * i, 60 + 2 * i))
            A("v_not_b32 v%d, v%d" % (13 + 2 * i, 12 + 2 * i))
            A("buffer_atomic_umax v%d, v10, %s, 0 offen offset:%d" % (12 + 2 * i, sW, 8 * i))
            A("buffer_atomic_umax v%d, v10, %s, 0 offen offset:%d" % (13 + 2 * i, sW, 8 * i + 4))
        A("s_endpgm")
    A("s_lshl_b32 s3, s2, 2"); A("s_add_u32 s3, s3, %s" % sWave); A("s_lshl_b32 s3, s3, 6")
    A("v_mov_b32 v10, s3")
    for i in range(16): A("v_mov_b32 v%d, s%d" % (12 + i, 60 + i))
    for i in range(4): A("buffer_store_dwordx4 v[%d:%d], v10, %s, 0 offen offset:%d" % (12 + 4 * i, 15 + 4 * i, sW, 16 * i))
A("L_end:")
A("s_endpgm")

R = []
for kind, par, lab, back, pend in (("late", 0, "L_rare_late0", "L_back_late0", None), ("late", 1, "L_rare_late1", "L_back_late1", None),
                                   ("early", 0, "L_rare_early0", "L_back_early0", 1), ("early", 1, "L_rare_early1", "L_back_early1", 0),
                                   ("late", 1, "L_rare_tail", "L_back_tail", None)):
    R.append(lab + ":"); R += rare(kind, par, back, pend)

def I(l): return [Ins(t) for t in l]
seq = I(P) + I(B0) + I(["s_cbranch_scc1 L_tail"]) + I(B1) + I(["s_branch L_loop"]) + I(B0) + I(["s_cbranch_scc1 L_tail"]) + I(T)
errs = check_hazards(seq, "main") + check_waits(seq, "main") + check_hazards(I(R), "rare")
for e in errs: sys.stderr.write(e + "\n")
if errs: sys.stderr.write("!!! %d hazard problems\n" % len(errs))

hdr = open("standalone__gqa_softmax__near_ridge.s.ref").read().split("; Override")[0]
out = [hdr.rstrip(), "; @launch grid=(256,1,1) block=(256,1,1) lds=%d" % LDS_BYTES,
       '.amdgcn_target "amdgcn-amd-amdhsa--gfx950"', ".text", ".globl %s" % KN, ".p2align 8", ".type %s,@function" % KN, "%s:" % KN]
def emit(l):
    for t in l: out.append(t if t.endswith(":") or t.startswith(".") else "    " + t)
emit(P); emit([".p2align 6", "L_loop:"]); emit(B0); emit(["s_cbranch_scc1 L_tail"]); emit(B1); emit(["s_branch L_loop", "L_tail:"]); emit(T); emit(R)
out += ['.section .rodata,"a"', ".p2align 6", ".amdhsa_kernel %s" % KN, "  .amdhsa_next_free_vgpr 512", "  .amdhsa_next_free_sgpr 96",
        "  .amdhsa_accum_offset 256", "  .amdhsa_group_segment_fixed_size 0", "  .amdhsa_kernarg_size 48", "  .amdhsa_user_sgpr_count 2",
        "  .amdhsa_user_sgpr_kernarg_segment_ptr 1", "  .amdhsa_system_sgpr_workgroup_id_x 1", ".end_amdhsa_kernel", ""]
open(sys.argv[1], "w").write("\n".join(out))
```

```python
import sys
from asmlib import *

class Op:
    def __init__(self, text, ming=0, dead=10 ** 9, fence=None, free=False):
        self.i = Ins(text); self.ming = ming; self.dead = dead; self.fence = fence
        self.cost = 2 if self.i.kind == "trans" else 1
        self.free = free

def schedule(mf, pinned, scal, stream, ds_in, name, next_first=None, verbose=True):
    n = len(mf)
    mfi = [Ins(t) for t in mf] + ([Ins(next_first)] if next_first else [])
    waits = {}; q = list(ds_in); pre_wait = None
    for g in range(len(mfi)):
        need = None
        for k, w in enumerate(q):
            if w & mfi[g].rd: need = len(q) - 1 - k
        if g > 0:
            for t in pinned.get(g - 1, []):
                ii = Ins(t)
                if ii.kind == "ds": assert not (ii.wr & mfi[g].rd), "ds read consumed by the very next MFMA"
        if need is not None:
            if g == 0: pre_wait = need
            else: waits[g - 1] = need
            q = q[len(q) - need:] if need > 0 else []
        if g > 0:
            for t in pinned.get(g - 1, []):
                ii = Ins(t)
                if ii.kind == "ds": q.append(set(ii.wr))
    if not next_first:
        for t in pinned.get(n - 1, []):
            ii = Ins(t)
            if ii.kind == "ds": q.append(set(ii.wr))
    sc = {g: ["s_waitcnt lgkmcnt(%d)" % k] for g, k in waits.items()}
    for g, texts, hard in scal:
        if hard:
            for t in texts: sc.setdefault(g, []).append(t)
    for g, texts, hard in scal:
        if hard: continue
        for t in texts:
            while (g in sc) and g < n - 1: g += 1
            sc.setdefault(g, []).append(t); g += 1
    N = len(stream)
    deps = [[] for _ in range(N)]
    for i, o in enumerate(stream):
        for k in range(i):
            p = stream[k]
            if o.fence is not None:
                if p.fence is not None or (p.i.wr | p.i.rd) & o.guard or "vcc" in p.i.wr: deps[i].append(k)
            elif p.fence is not None:
                if (o.i.wr | o.i.rd) & p.guard or "vcc" in o.i.wr: deps[i].append(k)
            elif (p.i.wr & (o.i.rd | o.i.wr)) or (p.i.rd & o.i.wr): deps[i].append(k)
    base_cap = [2 - len(pinned.get(g, [])) for g in range(n)]
    def attempt(over):
        sc2 = {g: list(v) for g, v in sc.items()}
        place = {g: [] for g in range(n)}
        where = [None] * N
        for g in range(n):
            cap = base_cap[g] + over.get(g, 0)
            def ready(i, samegap_ok=True):
                o = stream[i]
                if o.ming > g: return False
                for k in deps[i]:
                    if where[k] is None: return False
                    if where[k] == g and stream[k].i.kind == "trans": return False
                    if o.fence is not None and where[k] > g - (2 if "vcc" in stream[k].i.wr else 1): return False
                return True
            for i in range(N):
                if where[i] is None and stream[i].fence is not None and g not in sc2 and ready(i):
                    sc2[g] = [stream[i].i.text, stream[i].fence]; where[i] = g - 0.5
            while cap > 0:
                cand = [i for i in range(N) if where[i] is None and stream[i].fence is None and ready(i)]
                first = next((i for i in range(N) if where[i] is None), None)
                if first is None: break
                cand = [i for i in cand if i < first + 40]
                ones = [i for i in cand if stream[i].cost == 1]; twos = [i for i in cand if stream[i].cost == 2]
                pick = None
                if cap >= 2 and twos:
                    urgent = [i for i in ones if stream[i].dead <= g + 2]
                    if urgent: pick = urgent[0]
                    elif len([i for i in ones if i < twos[0]]) >= 4 and cap % 2 == 0: pick = ones[0]
                    else: pick = twos[0]
                elif ones: pick = ones[0]
                if pick is None: break
                place[g].append(stream[pick]); where[pick] = g; cap -= stream[pick].cost
        bad = [i for i in range(N) if where[i] is None or where[i] > stream[i].dead]
        return bad, sc2, place, where
    over = {}
    for it in range(200):
        bad, sc2, place, where = attempt(over)
        if not bad: break
        d = min(min(stream[i].dead for i in bad), n - 1)
        lo = max([stream[i].ming for i in bad if stream[i].dead == min(stream[k].dead for k in bad)] + [0])
        lo = max(lo, d - 70)
        cands = [g for g in range(lo, d + 1) if g not in over and sum(o.cost for o in place[g]) >= base_cap[g] and base_cap[g] != 0]
        if not cands: cands = [g for g in range(lo, d + 1)]
        best = max(cands, key=lambda g: min([abs(g - h) for h in over] + [1000 - abs(g - (lo + d) // 2)]))
        over[best] = over.get(best, 0) + 1
    assert not bad, "schedule failed " + name
    out = []
    if pre_wait is not None: out.append("s_waitcnt lgkmcnt(%d)" % pre_wait)
    cyc = 0; wasted = 0
    for g in range(n):
        out.append(mf[g]); out += sc2.get(g, []); out += pinned.get(g, [])
        pl = place[g]
        out += [o.i.text for o in pl]
        ns = len([t for t in sc2.get(g, []) if not t.endswith(":")])
        used = max(0, ns - 1) + len(pinned.get(g, [])) + sum(o.cost for o in pl)
        cyc += max(16, 8 + 4 * used); wasted += max(0, 2 - used)
    if verbose: sys.stderr.write("%s: overflow=%d empty slots=%d est cycles=%d (ideal %d)\n" % (name, sum(over.values()), wasted, cyc, 16 * n))
    return out, q

def Fence(branch, label, guard):
    o = Op(branch, fence=label); o.guard = set(guard); return o
```

```python
import sys, math, struct
from asmlib import *
from sched import *
import sched

opts = dict(a.split("=") for a in sys.argv[2:])
STAMP = int(opts.get("stamp", 0))
NT = opts.get("nt", "nt")
SPOL = opts.get("spol", "sc1").replace("+", " ")
QD = int(opts.get("qd", 6))
KN = "standalone__gqa_softmax__near_ridge_kernel"
def f2u(x): return struct.unpack("<I", struct.pack("<f", x))[0]
CSCALE = f2u(math.log2(math.e) / math.sqrt(192.0))
THR = f2u(float(opts.get("thr", 8.0)))

KRING = 0; VRING = 49152; QLDS = 98304; SLOT = 12288
QKS = 1088; QRB = 6 * QKS; QWAVE = 2 * QRB
LDS_BYTES = QLDS + 4 * QWAVE
def V(i, n=1): return "v%d" % i if n == 1 else "v[%d:%d]" % (i, i + n - 1)
def Ac(i, n=1): return "a%d" % i if n == 1 else "a[%d:%d]" % (i, i + n - 1)
vKA = [0, 1]; vVA = [2, 3, 4, 5]; vQA = 6; vDMA = 7
vMC = [8 + i for i in range(6)]; vL = [14 + i for i in range(6)]
vXM = 20; vT = [21, 22, 23]
FB = [Ac(96, 4), Ac(100, 4), Ac(104, 4)]
FBh = [(Ac(96, 2), Ac(98, 2)), (Ac(100, 2), Ac(102, 2)), (Ac(104, 2), Ac(106, 2))]
FQ = {4: Ac(108, 4), 5: V(24, 4)}
EARLY = [0, 1, 2]; LATE = [3, 4, 5]
G = {}; X = {}
r = 28
for rb in LATE:
    G[rb] = [r, r + 4]; X[rb] = [r + 8, r + 12]; r += 16
for rb in EARLY:
    G[rb] = [r, r + 4]; X[rb] = [r + 8, r + 8]; r += 12
assert r == 112
def Oreg(rb, db): return ("v", 112 + rb * 48 + db * 4) if rb < 3 else ("a", 112 + (rb - 3) * 48 + db * 4)
def O4(rb, db):
    f, i = Oreg(rb, db); return "%s[%d:%d]" % (f, i, i + 3)
def Qf(rb, ks): return Ac(rb * 24 + ks * 4, 4) if rb < 4 else FQ[rb]
sQ = "s[20:23]"; sK = "s[24:27]"; sV = "s[28:31]"; sO = "s[32:35]"; sW = "s[36:39]"
sC = "s40"; sTH = "s41"; sIT = "s42"; sKoff = "s43"; sVoff = "s44"; sKm = "s45"; sVm = "s46"; sWave = "s47"
sTmp = "s48"; sRow = "s49"; sKend = "s50"; sVend = "s51"; sKbeg = "s52"; sVbeg = "s53"; sQL = "s16"
def sRB(rb): return "0" if rb == 0 else "s%d" % (54 + rb)
MF = "v_mfma_f32_16x16x32_bf16"

def k_read(dst, tile_par, ks, hf):
    return "ds_read_b128 %s, %s offset:%d" % (dst, V(vKA[ks & 1]), tile_par * SLOT + (ks >> 1) * 4096 + hf * 2048)
def v_read(buf, tile_par, db):
    return ["ds_read_b64_tr_b16 %s, %s offset:%d" % (FBh[buf][i], V(vVA[db & 3]), tile_par * SLOT + (db >> 2) * 4096 + i * 2048) for i in range(2)]
def q_read(dst, area, ks):
    return "ds_read_b128 %s, %s offset:%d" % (dst, V(vQA), area * QRB + ks * QKS)
def qk_mfmas(par):
    out = []
    for ks in range(6):
        for hf in range(2):
            for rb in (range(6) if (hf == 0 or ks == 5) else range(5, -1, -1)):
                d = V((G[rb][par] if hf == 0 else X[rb][par]), 4)
                out.append("%s %s, %s, %s, %s" % (MF, d, FB[(2 * ks + hf) % 3], Qf(rb, ks), "0" if ks == 0 else d))
    return out
def pv_mfmas(par):
    return ["%s %s, %s, %s, %s" % (MF, O4(rb, db), FB[db % 3], V(G[rb][par], 4), O4(rb, db)) for db in range(12) for rb in range(6)]
def sregs(rb, par): return [G[rb][par] + i for i in range(4)] + [X[rb][par] + i for i in range(4)]
def sm_pre(group, par):
    ops = []; first = True
    for half in range(2):
        for rb in group:
            s = sregs(rb, par)
            for i in (4 * half, 4 * half + 2):
                for k in (i, i + 1):
                    ops.append("v_fma_f32 %s, %s, %s, -%s" % (V(s[k]), V(s[k]), sC, V(vMC[rb])))
                if first: ops.append("v_max_f32 %s, %s, %s" % (V(vXM), V(s[i]), V(s[i + 1]))); first = False
                else: ops.append("v_max3_f32 %s, %s, %s, %s" % (V(vXM), V(s[i]), V(s[i + 1]), V(vXM)))
    ops.append("v_cmp_lt_f32 vcc, %s, %s" % (sTH, V(vXM)))
    return ops
def sm_post(group, par):
    ops = []
    for rb in group:
        s = sregs(rb, par)
        for i in range(0, 8, 2):
            ops.append("v_exp_f32 %s, %s" % (V(s[i]), V(s[i])))
            ops.append("v_exp_f32 %s, %s" % (V(s[i + 1]), V(s[i + 1])))
            ops.append("v_add_f32 %s, %s, %s" % (V(vL[rb]), V(vL[rb]), V(s[i])))
            ops.append("v_add_f32 %s, %s, %s" % (V(vL[rb]), V(vL[rb]), V(s[i + 1])))
            ops.append("v_cvt_pk_bf16_f32 %s, %s, %s" % (V(G[rb][par] + i // 2), V(s[i]), V(s[i + 1])))
    return ops
def guard(group, par):
    g = [vXM] + vT
    for rb in group: g += sregs(rb, par) + [vMC[rb], vL[rb]] + [G[rb][par ^ 1] + i for i in range(4)]
    return [V(x) for x in g]
def dma(srd, soff, smbase, cb):
    return ("s_add_u32 m0, %s, %d" % (smbase, cb * (4096 - 128)),
            "buffer_load_dwordx4 %s, %s, %s offen offset:%d %s lds" % (V(vDMA), srd, soff, cb * 128, NT))

def body(par, ds_in):
    np_ = par ^ 1
    mf = qk_mfmas(np_) + pv_mfmas(par)
    pinned = {}
    def pin(g, t): pinned.setdefault(g, []).append(t)
    for n in range(24):
        m = n + 2
        if m < 12: pin(6 * n, k_read(FB[m % 3], np_, m >> 1, m & 1))
        elif m < 24:
            for t in v_read(m % 3, par, m - 12): pin(6 * n, t)
        else: pin(6 * n, k_read(FB[m % 3], par, 0, m - 24))
    for ks in range(5):
        pin(12 * ks + 6, q_read(FQ[5], 1, ks + 1)); pin(12 * ks + 8, q_read(FQ[4], 0, ks + 1))
    pin(132, q_read(FQ[4], 0, 0)); pin(138, q_read(FQ[5], 1, 0))
    scal = []
    scal.append((55, ["s_waitcnt vmcnt(9)", "s_barrier"], False))
    dg = [int(x) for x in opts.get("dg", "62,74,86,98,110,122").split(",")]
    for i in range(6):
        a, b = dma(sK, sKoff, sKm, i) if i < 3 else dma(sV, sVoff, sVm, i - 3)
        scal.append((dg[i] - 1, [a], True)); pin(dg[i], b)
    scal.append((dg[2] + 1, ["s_add_u32 %s, %s, %d" % (sKoff, sKoff, SLOT), "s_add_u32 %s, %s, %d" % (sKm, sKm, SLOT),
                      "s_cmp_eq_u32 %s, %s" % (sKm, sKend), "s_cselect_b32 %s, %s, %s" % (sKm, sKbeg, sKm)], False))
    scal.append((dg[5] + 1, ["s_add_u32 %s, %s, %d" % (sVoff, sVoff, SLOT), "s_add_u32 %s, %s, %d" % (sVm, sVm, SLOT),
                       "s_cmp_eq_u32 %s, %s" % (sVm, sVend), "s_cselect_b32 %s, %s, %s" % (sVm, sVbeg, sVm)], False))
    if par == 0:
        scal.append((138, ["s_add_u32 %s, %s, 1" % (sIT, sIT), "s_cmp_eq_u32 %s, 8" % sIT], False))
    st = []
    st += [Op(t) for t in sm_pre(LATE, par)]
    st.append(Fence("s_cbranch_vccnz L_rare_late%d" % par, "L_back_late%d:" % par, guard(LATE, par)))
    if par == 0:
        st += [Op("v_xor_b32 %s, 0x1e000, %s" % (V(a), V(a)), 12, 58) for a in vVA]
    for rb in LATE: st += [Op(t, 0, 72 + rb - 2) for t in sm_post([rb], par)]
    for t in sm_pre(EARLY, np_):
        o = Op(t, 66)
        if any(("v%d" % (X[rb][np_] + i)) in (o.i.rd | o.i.wr) for rb in EARLY for i in range(4)): o.ming = 72
        st.append(o)
    st.append(Fence("s_cbranch_vccnz L_rare_early%d" % np_, "L_back_early%d:" % np_, guard(EARLY, np_)))
    if par == 0:
        st += [Op("v_xor_b32 %s, 0x6000, %s" % (V(a), V(a)), 80, 130) for a in vKA]
    st += [Op(t) for t in sm_post(EARLY, np_)]
    return schedule(mf, pinned, scal, st, ds_in, "body%d" % par, next_first=qk_mfmas(par)[0])

def rowmax(dst, tmp, regs):
    o = ["v_max3_f32 %s, %s, %s, %s" % (V(dst), V(regs[0]), V(regs[1]), V(regs[2])),
         "v_max3_f32 %s, %s, %s, %s" % (V(dst), V(regs[3]), V(regs[4]), V(dst)),
         "v_max3_f32 %s, %s, %s, %s" % (V(dst), V(regs[5]), V(regs[6]), V(dst)),
         "v_max_f32 %s, %s, %s" % (V(dst), V(regs[7]), V(dst))]
    return o + xlane(dst, tmp, "v_max_f32")
def xlane(dst, tmp, op):
    o = []
    for sw in ("v_permlane32_swap_b32", "v_permlane16_swap_b32"):
        o += ["v_mov_b32 %s, %s" % (V(tmp), V(dst)), "s_nop 1", "%s %s, %s" % (sw, V(dst), V(tmp)),
              "%s %s, %s, %s" % (op, V(dst), V(dst), V(tmp))]
    return o
def rare(group, par, back, pend):
    o = ["s_nop 15"]
    k = vXM; f = vT[0]; t1 = vT[1]; t2 = vT[2]
    for rb in group:
        s = sregs(rb, par)
        o += rowmax(k, f, s)
        o += ["v_ceil_f32 %s, %s" % (V(k), V(k)), "v_max_f32 %s, 0, %s" % (V(k), V(k)),
              "v_sub_f32 %s, 0, %s" % (V(f), V(k)), "v_exp_f32 %s, %s" % (V(f), V(f)),
              "v_add_f32 %s, %s, %s" % (V(vMC[rb]), V(vMC[rb]), V(k))]
        o += ["v_sub_f32 %s, %s, %s" % (V(x), V(x), V(k)) for x in s]
        o += ["v_mul_f32 %s, %s, %s" % (V(vL[rb]), V(vL[rb]), V(f))]
        for db in range(12):
            fl, i0 = Oreg(rb, db)
            for i in range(i0, i0 + 4):
                if fl == "v": o.append("v_mul_f32 %s, %s, %s" % (V(i), V(i), V(f)))
                else: o += ["v_accvgpr_read_b32 %s, %s" % (V(t1), Ac(i)), "v_mul_f32 %s, %s, %s" % (V(t1), V(t1), V(f)),
                            "v_accvgpr_write_b32 %s, %s" % (Ac(i), V(t1))]
        if pend is not None:
            for i in range(4):
                p = G[rb][pend] + i
                o += ["v_lshlrev_b32 %s, 16, %s" % (V(t1), V(p)), "v_and_b32 %s, 0xffff0000, %s" % (V(t2), V(p)),
                      "v_mul_f32 %s, %s, %s" % (V(t1), V(t1), V(f)), "v_mul_f32 %s, %s, %s" % (V(t2), V(t2), V(f)),
                      "v_cvt_pk_bf16_f32 %s, %s, %s" % (V(p), V(t1), V(t2))]
    o += ["s_nop 1", "s_branch %s" % back]
    return o
def stamp(i): return ["s_memrealtime s[%d:%d]" % (60 + 2 * i, 61 + 2 * i)] if STAMP else []

P = []
A = P.append
A("s_cmp_ge_u32 s2, 256")
A("s_cbranch_scc1 L_end")
A("s_load_dwordx4 s[4:7], s[0:1], 0")
A("s_load_dwordx4 s[8:11], s[0:1], 16")
if STAMP: A("s_load_dwordx2 s[12:13], s[0:1], 40")
P += stamp(0)
vLN = vXM; vQG = vT[1]; vQW = vT[2]; t2 = 8; t3 = 9; t4 = 10; t5 = 11
A("v_lshrrev_b32 v%d, 6, v0" % t2)
A("v_and_b32 v%d, 63, v0" % vLN)
A("s_mul_i32 s14, s2, 147456")
A("v_readfirstlane_b32 %s, v%d" % (sWave, t2))
A("s_mul_i32 s15, s2, 196608")
A("v_lshrrev_b32 v%d, 3, v%d" % (t5, vLN))
A("v_mul_u32_u24 v%d, 384, v%d" % (t2, t5))
A("v_lshrrev_b32 v%d, 4, v%d" % (t3, vLN))
A("v_lshlrev_b32 v%d, 1, v%d" % (t4, t3))
A("v_xor_b32 v%d, v%d, v%d" % (t4, t4, vLN))
A("v_and_b32 v%d, 7, v%d" % (t4, t4))
A("v_lshl_add_u32 v%d, v%d, 4, v%d" % (vDMA, t4, t2))
A("s_mul_i32 %s, %s, 3072" % (sTmp, sWave))
A("v_add_u32 v%d, %s, v%d" % (vDMA, sTmp, vDMA))
A("v_and_b32 v%d, 7, v%d" % (t4, vLN))
A("v_lshl_add_u32 v%d, v%d, 4, v%d" % (vQG, t4, t2))
A("s_mul_i32 %s, %s, 36864" % (sRow, sWave))
A("v_add_u32 v%d, %s, v%d" % (vQG, sRow, vQG))
A("s_lshl_b32 %s, %s, 10" % (sKbeg, sWave))
A("s_add_u32 %s, %s, %d" % (sVbeg, sKbeg, VRING))
for rb in range(1, 6): A("s_mov_b32 %s, %d" % (sRB(rb), rb * 6144))
A("s_waitcnt lgkmcnt(0)")
def srd(base, src, off, size):
    A("s_add_u32 s%d, s%d, %s" % (base, src, off)); A("s_addc_u32 s%d, s%d, 0" % (base + 1, src + 1))
    A("s_mov_b32 s%d, %d" % (base + 2, size)); A("s_mov_b32 s%d, 0x20000" % (base + 3))
vm = []
def pro_tile(name, tile):
    srd_, beg = (sK, sKbeg) if name == "K" else (sV, sVbeg)
    A("s_mov_b32 %s, %d" % (sTmp, tile * SLOT))
    for cb in range(3):
        A("s_add_u32 m0, %s, %d" % (beg, tile * SLOT + cb * (4096 - 128)))
        A("s_nop 0")
        A("buffer_load_dwordx4 %s, %s, %s offen offset:%d %s lds" % (V(vDMA), srd_, sTmp, cb * 128, NT))
        vm.append("%s%d" % (name, tile))
def raw(rb, i): return 112 + rb * 24 + i * 4
def q_issue(rb):
    for rh in range(2):
        for cb in range(3):
            A("buffer_load_dwordx4 %s, v%d, %s, %s offen offset:%d %s" % (V(raw(rb, rh * 3 + cb), 4), vQG, sQ, sRB(rb), rh * 3072 + cb * 128, NT))
            vm.append("Q%d" % rb)
def vwait(name):
    last = max(i for i, x in enumerate(vm) if x == name)
    A("s_waitcnt vmcnt(%d)" % (len(vm) - 1 - last))
srd(24, 6, "s15", 196608)
pro_tile("K", 0)
srd(20, 4, "s14", 147456)
for rb in range(QD): q_issue(rb)
srd(28, 8, "s15", 196608); srd(32, 10, "s14", 147456)
kvq = [("K", 1), ("V", 0), ("K", 2), ("V", 1), ("K", 3), ("V", 2)]
KVUP = int(opts.get("kvup", 0))
if QD == 6:
    for _ in range(KVUP): pro_tile(*kvq.pop(0))
if STAMP:
    A("s_mov_b32 s36, s12"); A("s_mov_b32 s37, s13"); A("s_mov_b32 s38, 0x100000"); A("s_mov_b32 s39, 0x20000")
A("s_add_u32 %s, %s, %d" % (sKend, sKbeg, 4 * SLOT))
A("s_add_u32 %s, %s, %d" % (sVend, sVbeg, 4 * SLOT))
A("s_mul_i32 %s, %s, %d" % (sQL, sWave, QWAVE))
A("s_add_u32 %s, %s, %d" % (sQL, sQL, QLDS))
A("v_and_b32 v%d, 3, v%d" % (t4, vLN))
A("v_xor_b32 v%d, v%d, v%d" % (t2, t5, t4))
A("v_lshlrev_b32 v%d, 4, v%d" % (t2, t2))
A("v_lshl_add_u32 v%d, v%d, 8, v%d" % (t2, t4, t2))
A("v_bfe_u32 v%d, v%d, 2, 1" % (t4, vLN))
A("v_mul_u32_u24 v%d, %d, v%d" % (t4, QKS, t4))
A("v_add3_u32 v%d, v%d, v%d, %s" % (vQW, t2, t4, sQL))
A("v_and_b32 v%d, 15, v%d" % (t2, vLN))
A("v_xor_b32 v%d, v%d, v%d" % (t4, t2, t3))
A("v_lshlrev_b32 v%d, 4, v%d" % (t4, t4))
A("v_lshl_add_u32 v%d, v%d, 8, v%d" % (t4, t3, t4))
A("v_add_u32 v%d, %s, v%d" % (vQA, sQL, t4))
A("v_and_b32 v%d, 6, v%d" % (t4, vLN))
A("v_xor_b32 v%d, v%d, v%d" % (t4, t4, t3))
A("v_lshlrev_b32 v%d, 4, v%d" % (t4, t4))
A("v_lshl_add_u32 v%d, v%d, 7, v%d" % (vKA[0], t2, t4))
A("v_xor_b32 v%d, 64, v%d" % (vKA[1], vKA[0]))
A("v_lshrrev_b32 v%d, 2, v%d" % (t4, vLN))
A("v_lshlrev_b32 v%d, 7, v%d" % (t4, t4))
A("v_and_b32 v%d, 3, v%d" % (t2, vLN))
A("v_lshl_add_u32 v%d, v%d, 3, v%d" % (t4, t2, t4))
A("v_bfe_u32 v%d, v%d, 3, 2" % (t2, vLN))
A("v_lshl_add_u32 v%d, v%d, 5, v%d" % (t4, t2, t4))
A("v_add_u32 v%d, %d, v%d" % (vVA[0], VRING + 2 * SLOT, t4))
for x in range(1, 4): A("v_xor_b32 v%d, %d, v%d" % (vVA[x], 32 * x, vVA[0]))
A("s_mov_b32 %s, 0x%x" % (sC, CSCALE))
A("s_mov_b32 %s, 0x%x" % (sTH, THR))
A("s_mov_b32 %s, 0" % sIT)
A("s_mov_b32 %s, %d" % (sKoff, 4 * SLOT))
A("s_mov_b32 %s, %d" % (sVoff, 3 * SLOT))
A("s_mov_b32 %s, %s" % (sKm, sKbeg))
A("s_add_u32 %s, %s, %d" % (sVm, sVbeg, 3 * SLOT))
for i in range(112, 256): A("v_accvgpr_write_b32 a%d, 0" % i)
for i in vL: A("v_mov_b32 v%d, 0" % i)
vwait("K0")
A("s_barrier")
K0F = [V(G[rb][1], 4) for rb in range(6)] + [V(X[rb][1], 4) for rb in LATE] + FB
for n in range(12): A(k_read(K0F[n], 0, n >> 1, n & 1))
for rb in range(6):
    vwait("Q%d" % rb)
    if rb == 5: P += stamp(1)
    area = rb & 1
    for rh in range(2):
        for cb in range(3):
            A("ds_write_b128 v%d, %s offset:%d" % (vQW, V(raw(rb, rh * 3 + cb), 4), area * QRB + cb * 2 * QKS + rh * 128))
    if rb + QD < 6: q_issue(rb + QD)
    else:
        left = 6 - rb
        n_now = -(-len(kvq) // left) if rb < 5 else len(kvq)
        if rb + QD == 6 or True:
            for _ in range(min(n_now, len(kvq))): pro_tile(*kvq.pop(0))
    A("s_waitcnt lgkmcnt(0)")
    qd_ = [Ac(rb * 24 + ks * 4, 4) if rb < 4 else V(raw(rb, ks), 4) for ks in range(6)]
    for ks in range(6): A(q_read(qd_[ks], area, ks))
    if rb < 4:
        for i in range(24): A("v_mov_b32 v%d, 0" % (raw(rb, 0) + i))
    for ks in range(6):
        A("s_waitcnt lgkmcnt(%d)" % (5 - ks))
        for hf in range(2):
            d = V((G[rb][0] if hf == 0 else X[rb][0]), 4)
            A("%s %s, %s, %s, %s" % (MF, d, K0F[2 * ks + hf], qd_[ks], "0" if ks == 0 else d))
    if rb == 5:
        vwait("K1")
        A("s_barrier")
        A(k_read(FB[0], 1, 0, 0)); A(q_read(FQ[4], 0, 0)); A(k_read(FB[1], 1, 0, 1)); A(q_read(FQ[5], 1, 0))
    if rb >= 4:
        for i in range(24): A("v_mov_b32 v%d, 0" % (raw(rb, 0) + i))
    else: A("s_nop 7")
    P += rowmax(vMC[rb], vT[0], sregs(rb, 0))
    A("v_mul_f32 %s, %s, %s" % (V(vMC[rb]), sC, V(vMC[rb])))
    A("v_ceil_f32 %s, %s" % (V(vMC[rb]), V(vMC[rb])))
    if rb in EARLY:
        P += [t for t in sm_pre([rb], 0) if t.startswith("v_fma")]
        post = sm_post([rb], 0)
        P += [t for t in post if t.startswith("v_exp")] + ["s_nop 0"] + [t for t in post if not t.startswith("v_exp")]
assert not kvq and vm[-18:] == ["K1"] * 3 + ["V0"] * 3 + ["K2"] * 3 + ["V1"] * 3 + ["K3"] * 3 + ["V2"] * 3, vm
A("s_waitcnt lgkmcnt(0)")
P += stamp(2)

B0, q0 = body(0, [])
B1, q1 = body(1, q0)
B0, q0b = body(0, q1)
assert q0 == q0b

T = []
A = T.append
T += stamp(3)
A("s_waitcnt vmcnt(0) lgkmcnt(0)")
A("s_barrier")
for t in v_read(0, 1, 0) + v_read(1, 1, 1): A(t)
T += sm_pre(LATE, 1)
A("s_cbranch_vccnz L_rare_tail")
A("L_back_tail:")
post = sm_post(LATE, 1)
T += [t for t in post if t.startswith("v_exp")] + ["s_nop 0"] + [t for t in post if not t.startswith("v_exp")]
pinned = {}
for db in range(10): pinned[6 * db] = v_read((db + 2) % 3, 1, db + 2)
dsT = [set(expand(FBh[0][0])), set(expand(FBh[0][1])), set(expand(FBh[1][0])), set(expand(FBh[1][1]))]
st = []
tmp = [G[rb][0] for rb in range(6)]
for stage, sw in enumerate(("v_permlane32_swap_b32", "v_permlane16_swap_b32")):
    st += [Op("v_mov_b32 %s, %s" % (V(tmp[rb]), V(vL[rb])), 12 * stage) for rb in range(6)]
    st += [Op("%s %s, %s" % (sw, V(vL[rb]), V(tmp[rb])), 12 * stage + 5) for rb in range(6)]
    st += [Op("v_add_f32 %s, %s, %s" % (V(vL[rb]), V(vL[rb]), V(tmp[rb])), 12 * stage + 5) for rb in range(6)]
st += [Op("v_rcp_f32 %s, %s" % (V(vL[rb]), V(vL[rb]))) for rb in range(6)]
eLN = vXM; eW = vMC[0:4]; eR = vMC[4]; eS = vMC[5]; e1 = vT[0]; e2 = vT[1]; e3 = vT[2]
for t in ["v_mbcnt_lo_u32_b32 v%d, -1, 0" % eLN, "v_mbcnt_hi_u32_b32 v%d, -1, v%d" % (eLN, eLN),
          "v_and_b32 v%d, 15, v%d" % (e1, eLN), "v_mul_u32_u24 v%d, 384, v%d" % (e1, e1),
          "v_bfe_u32 v%d, v%d, 4, 1" % (e2, eLN), "v_lshl_add_u32 v%d, v%d, 3, v%d" % (e1, e2, e1),
          "v_lshrrev_b32 v%d, 5, v%d" % (e2, eLN), "v_xor_b32 v%d, v%d, v%d" % (e2, e2, eLN), "v_and_b32 v%d, 7, v%d" % (e2, e2),
          "v_add_u32 v%d, %s, v%d" % (e1, sQL, e1)] + \
         sum([["v_xor_b32 v%d, %d, v%d" % (e3, 2 * x, e2), "v_lshl_add_u32 v%d, v%d, 4, v%d" % (eW[x], e3, e1)] for x in range(4)], []) + \
         ["v_lshrrev_b32 v%d, 3, v%d" % (e1, eLN), "v_xor_b32 v%d, v%d, v%d" % (e2, e1, eLN), "v_and_b32 v%d, 7, v%d" % (e2, e2),
          "v_mul_u32_u24 v%d, 384, v%d" % (e1, e1), "v_lshl_add_u32 v%d, v%d, 4, v%d" % (eR, e2, e1), "v_add_u32 v%d, %s, v%d" % (eR, sQL, eR),
          "v_and_b32 v%d, 7, v%d" % (e2, eLN), "v_lshl_add_u32 v%d, v%d, 4, v%d" % (eS, e2, e1), "v_add_u32 v%d, %s, v%d" % (eS, sRow, eS)]:
    st.append(Op(t))
A("s_nop 1")
PVT, _ = schedule(pv_mfmas(1), pinned, [], st, dsT, "tailpv")
T += PVT
T += stamp(4)
def ep_convert(rb):
    lp = vL[rb] & ~1; sel = vL[rb] & 1; area = rb & 1
    for db in range(12):
        w = 28 + (db % 6) * 6
        fl, i0 = Oreg(rb, db)
        if fl == "a":
            for i in range(4): A("v_accvgpr_read_b32 %s, %s" % (V(w + i), Ac(i0 + i)))
            src = w
        else: src = i0
        for i in (0, 2):
            A("v_pk_mul_f32 %s, %s, %s op_sel:[0,%d] op_sel_hi:[1,%d]" % (V(w + i, 2), V(src + i, 2), V(lp, 2), sel, sel))
        for i in range(2):
            A("v_cvt_pk_bf16_f32 %s, %s, %s" % (V(w + 4 + i), V(w + 2 * i), V(w + 2 * i + 1)))
        A("ds_write_b64 v%d, %s offset:%d" % (eW[db & 3], V(w + 4, 2), area * QRB + (db >> 2) * 128))
def ep_read(rb):
    for i in range(6):
        A("ds_read_b128 %s, v%d offset:%d" % (V(64 + (rb & 1) * 24 + 4 * i, 4), eR, (rb & 1) * QRB + (i // 3) * 3072 + (i % 3) * 128))
def ep_store(rb):
    for i in range(6):
        A("buffer_store_dwordx4 %s, v%d, %s, %s offen offset:%d %s" % (V(64 + (rb & 1) * 24 + 4 * i, 4), eS, sO, sRB(rb), (i // 3) * 3072 + (i % 3) * 128, SPOL))
A("s_nop 7")
for rb in range(7):
    if rb < 6: ep_convert(rb)
    if rb >= 1:
        A("s_waitcnt lgkmcnt(%d)" % (12 if rb < 6 else 0))
        ep_store(rb - 1)
    if rb < 6:
        ep_read(rb)
if STAMP:
    T += stamp(5)
    A("s_waitcnt vmcnt(0)")
    T += stamp(6)
    A("s_waitcnt lgkmcnt(0)")
    A("s_lshl_b32 s3, s2, 2"); A("s_add_u32 s3, s3, %s" % sWave); A("s_lshl_b32 s3, s3, 6")
    A("v_mov_b32 v10, s3")
    for i in range(16): A("v_mov_b32 v%d, s%d" % (12 + i, 60 + i))
    for i in range(4): A("buffer_store_dwordx4 v[%d:%d], v10, %s, 0 offen offset:%d" % (12 + 4 * i, 15 + 4 * i, sW, 16 * i))
A("L_end:")
A("s_endpgm")

R = []
for group, par, lab, back, pend in ((LATE, 0, "L_rare_late0", "L_back_late0", None), (LATE, 1, "L_rare_late1", "L_back_late1", None),
                                    (EARLY, 0, "L_rare_early0", "L_back_early0", 1), (EARLY, 1, "L_rare_early1", "L_back_early1", 0),
                                    (LATE, 1, "L_rare_tail", "L_back_tail", None)):
    R.append(lab + ":"); R += rare(group, par, back, pend)

def I(l): return [Ins(t) for t in l]
seq = I(P) + I(B0) + I(["s_cbranch_scc1 L_tail"]) + I(B1) + I(["s_branch L_loop"]) + I(B0) + I(["s_cbranch_scc1 L_tail"]) + I(T)
errs = check_hazards(seq, "main") + check_waits(seq, "main") + check_hazards(I(R), "rare")
for e in errs[:30]: sys.stderr.write(e + "\n")
if errs: sys.stderr.write("!!! %d hazard problems\n" % len(errs))

hdr = open("standalone__gqa_softmax__near_ridge.s.ref").read().split("; Override")[0]
out = [hdr.rstrip(), "; @launch grid=(256,1,1) block=(256,1,1) lds=%d" % LDS_BYTES,
       '.amdgcn_target "amdgcn-amd-amdhsa--gfx950"', ".text", ".globl %s" % KN, ".p2align 8", ".type %s,@function" % KN, "%s:" % KN]
def emit(l):
    for t in l: out.append(t if t.endswith(":") or t.startswith(".") else "    " + t)
emit(P); emit([".p2align 6", "L_loop:"]); emit(B0); emit(["s_cbranch_scc1 L_tail"]); emit(B1); emit(["s_branch L_loop", "L_tail:"]); emit(T); emit(R)
out += ['.section .rodata,"a"', ".p2align 6", ".amdhsa_kernel %s" % KN, "  .amdhsa_next_free_vgpr 512", "  .amdhsa_next_free_sgpr 96",
        "  .amdhsa_accum_offset 256", "  .amdhsa_group_segment_fixed_size 0", "  .amdhsa_kernarg_size 48", "  .amdhsa_user_sgpr_count 2",
        "  .amdhsa_user_sgpr_kernarg_segment_ptr 1", "  .amdhsa_system_sgpr_workgroup_id_x 1", ".end_amdhsa_kernel", ""]
open(sys.argv[1], "w").write("\n".join(out))
```

```python
import sys, math, struct
from asmlib import *
from sched import *
import sched

opts = dict(a.split("=") for a in sys.argv[2:])
STAMP = int(opts.get("stamp", 0))
NT = opts.get("nt", "nt")
SPOL = opts.get("spol", "sc1").replace("+", " ")
QD = int(opts.get("qd", 6))
STG = [int(x) for x in opts["stg"].split(",")] if "stg" in opts else None
KN = "standalone__gqa_softmax__near_ridge_kernel"
def f2u(x): return struct.unpack("<I", struct.pack("<f", x))[0]
CSCALE = f2u(math.log2(math.e) / math.sqrt(192.0))
THR = f2u(float(opts.get("thr", 8.0)))

KRING = 0; VRING = 49152; QLDS = 98304; SLOT = 12288
QKS = 1088; QRB = 6 * QKS; QWAVE = 2 * QRB
LDS_BYTES = QLDS + 4 * QWAVE
def V(i, n=1): return "v%d" % i if n == 1 else "v[%d:%d]" % (i, i + n - 1)
def Ac(i, n=1): return "a%d" % i if n == 1 else "a[%d:%d]" % (i, i + n - 1)
vKA = [0, 1]; vVA = [2, 3, 4, 5]; vQA = 6; vDMA = 7
vMC = [8 + i for i in range(6)]; vL = [14 + i for i in range(6)]
vXM = 20; vT = [21, 22, 23]
FB = [Ac(96, 4), Ac(100, 4), Ac(104, 4)]
FBh = [(Ac(96, 2), Ac(98, 2)), (Ac(100, 2), Ac(102, 2)), (Ac(104, 2), Ac(106, 2))]
FQ = {4: Ac(108, 4), 5: V(24, 4)}
EARLY = [0, 1, 2]; LATE = [3, 4, 5]
G = {}; X = {}
r = 28
for rb in LATE:
    G[rb] = [r, r + 4]; X[rb] = [r + 8, r + 12]; r += 16
for rb in EARLY:
    G[rb] = [r, r + 4]; X[rb] = [r + 8, r + 8]; r += 12
assert r == 112
def Oreg(rb, db): return ("v", 112 + rb * 48 + db * 4) if rb < 3 else ("a", 112 + (rb - 3) * 48 + db * 4)
def O4(rb, db):
    f, i = Oreg(rb, db); return "%s[%d:%d]" % (f, i, i + 3)
def Qf(rb, ks): return Ac(rb * 24 + ks * 4, 4) if rb < 4 else FQ[rb]
sQ = "s[20:23]"; sK = "s[24:27]"; sV = "s[28:31]"; sO = "s[32:35]"; sW = "s[36:39]"
sC = "s40"; sTH = "s41"; sIT = "s42"; sKoff = "s43"; sVoff = "s44"; sKm = "s45"; sVm = "s46"; sWave = "s47"
sTmp = "s48"; sRow = "s49"; sKend = "s50"; sVend = "s51"; sKbeg = "s52"; sVbeg = "s53"; sQL = "s16"
def sRB(rb): return "0" if rb == 0 else "s%d" % (54 + rb)
MF = "v_mfma_f32_16x16x32_bf16"

def k_read(dst, tile_par, ks, hf):
    return "ds_read_b128 %s, %s offset:%d" % (dst, V(vKA[ks & 1]), tile_par * SLOT + (ks >> 1) * 4096 + hf * 2048)
def v_read(buf, tile_par, db):
    return ["ds_read_b64_tr_b16 %s, %s offset:%d" % (FBh[buf][i], V(vVA[db & 3]), tile_par * SLOT + (db >> 2) * 4096 + i * 2048) for i in range(2)]
def q_read(dst, area, ks):
    return "ds_read_b128 %s, %s offset:%d" % (dst, V(vQA), area * QRB + ks * QKS)
def qk_mfmas(par):
    out = []
    for ks in range(6):
        for hf in range(2):
            for rb in (range(6) if (hf == 0 or ks == 5) else range(5, -1, -1)):
                d = V((G[rb][par] if hf == 0 else X[rb][par]), 4)
                out.append("%s %s, %s, %s, %s" % (MF, d, FB[(2 * ks + hf) % 3], Qf(rb, ks), "0" if ks == 0 else d))
    return out
def pv_mfmas(par):
    return ["%s %s, %s, %s, %s" % (MF, O4(rb, db), FB[db % 3], V(G[rb][par], 4), O4(rb, db)) for db in range(12) for rb in range(6)]
def sregs(rb, par): return [G[rb][par] + i for i in range(4)] + [X[rb][par] + i for i in range(4)]
def sm_pre(group, par):
    ops = []; first = True
    for half in range(2):
        for rb in group:
            s = sregs(rb, par)
            for i in (4 * half, 4 * half + 2):
                for k in (i, i + 1):
                    ops.append("v_fma_f32 %s, %s, %s, -%s" % (V(s[k]), V(s[k]), sC, V(vMC[rb])))
                if first: ops.append("v_max_f32 %s, %s, %s" % (V(vXM), V(s[i]), V(s[i + 1]))); first = False
                else: ops.append("v_max3_f32 %s, %s, %s, %s" % (V(vXM), V(s[i]), V(s[i + 1]), V(vXM)))
    ops.append("v_cmp_lt_f32 vcc, %s, %s" % (sTH, V(vXM)))
    return ops
def sm_post(group, par):
    ops = []
    for rb in group:
        s = sregs(rb, par)
        for i in range(0, 8, 2):
            ops.append("v_exp_f32 %s, %s" % (V(s[i]), V(s[i])))
            ops.append("v_exp_f32 %s, %s" % (V(s[i + 1]), V(s[i + 1])))
            ops.append("v_add_f32 %s, %s, %s" % (V(vL[rb]), V(vL[rb]), V(s[i])))
            ops.append("v_add_f32 %s, %s, %s" % (V(vL[rb]), V(vL[rb]), V(s[i + 1])))
            ops.append("v_cvt_pk_bf16_f32 %s, %s, %s" % (V(G[rb][par] + i // 2), V(s[i]), V(s[i + 1])))
    return ops
def guard(group, par):
    g = [vXM] + vT
    for rb in group: g += sregs(rb, par) + [vMC[rb], vL[rb]] + [G[rb][par ^ 1] + i for i in range(4)]
    return [V(x) for x in g]
def dma(srd, soff, smbase, cb):
    return ("s_add_u32 m0, %s, %d" % (smbase, cb * (4096 - 128)),
            "buffer_load_dwordx4 %s, %s, %s offen offset:%d %s lds" % (V(vDMA), srd, soff, cb * 128, NT))

def body(par, ds_in):
    np_ = par ^ 1
    mf = qk_mfmas(np_) + pv_mfmas(par)
    pinned = {}
    def pin(g, t): pinned.setdefault(g, []).append(t)
    for n in range(24):
        m = n + 2
        if m < 12: pin(6 * n, k_read(FB[m % 3], np_, m >> 1, m & 1))
        elif m < 24:
            for t in v_read(m % 3, par, m - 12): pin(6 * n, t)
        else: pin(6 * n, k_read(FB[m % 3], par, 0, m - 24))
    for ks in range(5):
        pin(12 * ks + 6, q_read(FQ[5], 1, ks + 1)); pin(12 * ks + 8, q_read(FQ[4], 0, ks + 1))
    pin(132, q_read(FQ[4], 0, 0)); pin(138, q_read(FQ[5], 1, 0))
    scal = []
    scal.append((55, ["s_waitcnt vmcnt(9)", "s_barrier"], False))
    dg = [int(x) for x in opts.get("dg", "62,74,86,98,110,122").split(",")]
    for i in range(6):
        a, b = dma(sK, sKoff, sKm, i) if i < 3 else dma(sV, sVoff, sVm, i - 3)
        scal.append((dg[i] - 1, [a], True)); pin(dg[i], b)
    scal.append((dg[2] + 1, ["s_add_u32 %s, %s, %d" % (sKoff, sKoff, SLOT), "s_add_u32 %s, %s, %d" % (sKm, sKm, SLOT),
                      "s_cmp_eq_u32 %s, %s" % (sKm, sKend), "s_cselect_b32 %s, %s, %s" % (sKm, sKbeg, sKm)], False))
    scal.append((dg[5] + 1, ["s_add_u32 %s, %s, %d" % (sVoff, sVoff, SLOT), "s_add_u32 %s, %s, %d" % (sVm, sVm, SLOT),
                       "s_cmp_eq_u32 %s, %s" % (sVm, sVend), "s_cselect_b32 %s, %s, %s" % (sVm, sVbeg, sVm)], False))
    if par == 0:
        scal.append((138, ["s_add_u32 %s, %s, 1" % (sIT, sIT), "s_cmp_eq_u32 %s, 8" % sIT], False))
    st = []
    st += [Op(t) for t in sm_pre(LATE, par)]
    st.append(Fence("s_cbranch_vccnz L_rare_late%d" % par, "L_back_late%d:" % par, guard(LATE, par)))
    if par == 0:
        st += [Op("v_xor_b32 %s, 0x1e000, %s" % (V(a), V(a)), 12, 58) for a in vVA]
    for rb in LATE: st += [Op(t, 0, 72 + rb - 2) for t in sm_post([rb], par)]
    for t in sm_pre(EARLY, np_):
        o = Op(t, 66)
        if any(("v%d" % (X[rb][np_] + i)) in (o.i.rd | o.i.wr) for rb in EARLY for i in range(4)): o.ming = 72
        st.append(o)
    st.append(Fence("s_cbranch_vccnz L_rare_early%d" % np_, "L_back_early%d:" % np_, guard(EARLY, np_)))
    if par == 0:
        st += [Op("v_xor_b32 %s, 0x6000, %s" % (V(a), V(a)), 80, 130) for a in vKA]
    st += [Op(t) for t in sm_post(EARLY, np_)]
    return schedule(mf, pinned, scal, st, ds_in, "body%d" % par, next_first=qk_mfmas(par)[0])

def rowmax(dst, tmp, regs):
    o = ["v_max3_f32 %s, %s, %s, %s" % (V(dst), V(regs[0]), V(regs[1]), V(regs[2])),
         "v_max3_f32 %s, %s, %s, %s" % (V(dst), V(regs[3]), V(regs[4]), V(dst)),
         "v_max3_f32 %s, %s, %s, %s" % (V(dst), V(regs[5]), V(regs[6]), V(dst)),
         "v_max_f32 %s, %s, %s" % (V(dst), V(regs[7]), V(dst))]
    return o + xlane(dst, tmp, "v_max_f32")
def xlane(dst, tmp, op):
    o = []
    for sw in ("v_permlane32_swap_b32", "v_permlane16_swap_b32"):
        o += ["v_mov_b32 %s, %s" % (V(tmp), V(dst)), "s_nop 1", "%s %s, %s" % (sw, V(dst), V(tmp)),
              "%s %s, %s, %s" % (op, V(dst), V(dst), V(tmp))]
    return o
def rare(group, par, back, pend):
    o = ["s_nop 15"]
    k = vXM; f = vT[0]; t1 = vT[1]; t2 = vT[2]
    for rb in group:
        s = sregs(rb, par)
        o += rowmax(k, f, s)
        o += ["v_ceil_f32 %s, %s" % (V(k), V(k)), "v_max_f32 %s, 0, %s" % (V(k), V(k)),
              "v_sub_f32 %s, 0, %s" % (V(f), V(k)), "v_exp_f32 %s, %s" % (V(f), V(f)),
              "v_add_f32 %s, %s, %s" % (V(vMC[rb]), V(vMC[rb]), V(k))]
        o += ["v_sub_f32 %s, %s, %s" % (V(x), V(x), V(k)) for x in s]
        o += ["v_mul_f32 %s, %s, %s" % (V(vL[rb]), V(vL[rb]), V(f))]
        for db in range(12):
            fl, i0 = Oreg(rb, db)
            for i in range(i0, i0 + 4):
                if fl == "v": o.append("v_mul_f32 %s, %s, %s" % (V(i), V(i), V(f)))
                else: o += ["v_accvgpr_read_b32 %s, %s" % (V(t1), Ac(i)), "v_mul_f32 %s, %s, %s" % (V(t1), V(t1), V(f)),
                            "v_accvgpr_write_b32 %s, %s" % (Ac(i), V(t1))]
        if pend is not None:
            for i in range(4):
                p = G[rb][pend] + i
                o += ["v_lshlrev_b32 %s, 16, %s" % (V(t1), V(p)), "v_and_b32 %s, 0xffff0000, %s" % (V(t2), V(p)),
                      "v_mul_f32 %s, %s, %s" % (V(t1), V(t1), V(f)), "v_mul_f32 %s, %s, %s" % (V(t2), V(t2), V(f)),
                      "v_cvt_pk_bf16_f32 %s, %s, %s" % (V(p), V(t1), V(t2))]
    o += ["s_nop 1", "s_branch %s" % back]
    return o
def stamp(i): return ["s_memrealtime s[%d:%d]" % (60 + 2 * i, 61 + 2 * i)] if STAMP else []

P = []
A = P.append
A("s_cmp_ge_u32 s2, 256")
A("s_cbranch_scc1 L_end")
A("s_load_dwordx4 s[4:7], s[0:1], 0")
A("s_load_dwordx4 s[8:11], s[0:1], 16")
if STAMP: A("s_load_dwordx2 s[12:13], s[0:1], 40")
P += stamp(0)
CPF = int(opts.get("cpf", 0))
if CPF:
    A("s_getpc_b64 s[18:19]")
    A("v_lshlrev_b32 v28, 7, v0")
    A("v_min_u32 v28, 0x4600, v28")
    A("global_load_dword v29, v28, s[18:19]")
vLN = vXM; vQG = vT[1]; vQW = vT[2]; t2 = 8; t3 = 9; t4 = 10; t5 = 11
A("v_lshrrev_b32 v%d, 6, v0" % t2)
A("v_and_b32 v%d, 63, v0" % vLN)
A("s_mul_i32 s14, s2, 147456")
A("v_readfirstlane_b32 %s, v%d" % (sWave, t2))
A("s_mul_i32 s15, s2, 196608")
A("s_bfe_u32 s17, s2, 0x30003")
A("v_lshrrev_b32 v%d, 3, v%d" % (t5, vLN))
A("v_mul_u32_u24 v%d, 384, v%d" % (t2, t5))
A("v_lshrrev_b32 v%d, 4, v%d" % (t3, vLN))
A("v_lshlrev_b32 v%d, 1, v%d" % (t4, t3))
A("v_xor_b32 v%d, v%d, v%d" % (t4, t4, vLN))
A("v_and_b32 v%d, 7, v%d" % (t4, t4))
A("v_lshl_add_u32 v%d, v%d, 4, v%d" % (vDMA, t4, t2))
A("s_mul_i32 %s, %s, 3072" % (sTmp, sWave))
A("v_add_u32 v%d, %s, v%d" % (vDMA, sTmp, vDMA))
A("v_and_b32 v%d, 7, v%d" % (t4, vLN))
A("v_lshl_add_u32 v%d, v%d, 4, v%d" % (vQG, t4, t2))
A("s_mul_i32 %s, %s, 36864" % (sRow, sWave))
A("v_add_u32 v%d, %s, v%d" % (vQG, sRow, vQG))
A("s_lshl_b32 %s, %s, 10" % (sKbeg, sWave))
A("s_add_u32 %s, %s, %d" % (sVbeg, sKbeg, VRING))
for rb in range(1, 6): A("s_mov_b32 %s, %d" % (sRB(rb), rb * 6144))
A("s_waitcnt lgkmcnt(0)")
def srd(base, src, off, size):
    A("s_add_u32 s%d, s%d, %s" % (base, src, off)); A("s_addc_u32 s%d, s%d, 0" % (base + 1, src + 1))
    A("s_mov_b32 s%d, %d" % (base + 2, size)); A("s_mov_b32 s%d, 0x20000" % (base + 3))
vm = []
def stg_point():
    n = len(vm) - 1
    if STG and n < len(STG) and STG[n] < 8:
        A("s_cmp_lt_u32 s17, %d" % STG[n])
        A("s_cbranch_scc1 L_stg%d" % n)
        A("s_waitcnt vmcnt(0)")
        A("L_stg%d:" % n)
def pro_tile(name, tile):
    srd_, beg = (sK, sKbeg) if name == "K" else (sV, sVbeg)
    A("s_mov_b32 %s, %d" % (sTmp, tile * SLOT))
    for cb in range(3):
        A("s_add_u32 m0, %s, %d" % (beg, tile * SLOT + cb * (4096 - 128)))
        A("s_nop 0")
        A("buffer_load_dwordx4 %s, %s, %s offen offset:%d %s lds" % (V(vDMA), srd_, sTmp, cb * 128, NT))
        vm.append("%s%d" % (name, tile))
        stg_point()
def raw(rb, i): return 112 + rb * 24 + i * 4
def q_issue(rb):
    for rh in range(2):
        for cb in range(3):
            A("buffer_load_dwordx4 %s, v%d, %s, %s offen offset:%d %s" % (V(raw(rb, rh * 3 + cb), 4), vQG, sQ, sRB(rb), rh * 3072 + cb * 128, NT))
            vm.append("Q%d" % rb)
            stg_point()
def vwait(name):
    last = max(i for i, x in enumerate(vm) if x == name)
    A("s_waitcnt vmcnt(%d)" % (len(vm) - 1 - last))
srd(24, 6, "s15", 196608)
pro_tile("K", 0)
srd(20, 4, "s14", 147456)
for rb in range(QD): q_issue(rb)
srd(28, 8, "s15", 196608); srd(32, 10, "s14", 147456)
kvq = [("K", 1), ("V", 0), ("K", 2), ("V", 1), ("K", 3), ("V", 2)]
KVUP = int(opts.get("kvup", 0))
if QD == 6:
    for _ in range(KVUP): pro_tile(*kvq.pop(0))
if STAMP:
    A("s_mov_b32 s36, s12"); A("s_mov_b32 s37, s13"); A("s_mov_b32 s38, 0x100000"); A("s_mov_b32 s39, 0x20000")
A("s_add_u32 %s, %s, %d" % (sKend, sKbeg, 4 * SLOT))
A("s_add_u32 %s, %s, %d" % (sVend, sVbeg, 4 * SLOT))
A("s_mul_i32 %s, %s, %d" % (sQL, sWave, QWAVE))
A("s_add_u32 %s, %s, %d" % (sQL, sQL, QLDS))
A("v_and_b32 v%d, 3, v%d" % (t4, vLN))
A("v_xor_b32 v%d, v%d, v%d" % (t2, t5, t4))
A("v_lshlrev_b32 v%d, 4, v%d" % (t2, t2))
A("v_lshl_add_u32 v%d, v%d, 8, v%d" % (t2, t4, t2))
A("v_bfe_u32 v%d, v%d, 2, 1" % (t4, vLN))
A("v_mul_u32_u24 v%d, %d, v%d" % (t4, QKS, t4))
A("v_add3_u32 v%d, v%d, v%d, %s" % (vQW, t2, t4, sQL))
A("v_and_b32 v%d, 15, v%d" % (t2, vLN))
A("v_xor_b32 v%d, v%d, v%d" % (t4, t2, t3))
A("v_lshlrev_b32 v%d, 4, v%d" % (t4, t4))
A("v_lshl_add_u32 v%d, v%d, 8, v%d" % (t4, t3, t4))
A("v_add_u32 v%d, %s, v%d" % (vQA, sQL, t4))
A("v_and_b32 v%d, 6, v%d" % (t4, vLN))
A("v_xor_b32 v%d, v%d, v%d" % (t4, t4, t3))
A("v_lshlrev_b32 v%d, 4, v%d" % (t4, t4))
A("v_lshl_add_u32 v%d, v%d, 7, v%d" % (vKA[0], t2, t4))
A("v_xor_b32 v%d, 64, v%d" % (vKA[1], vKA[0]))
A("v_lshrrev_b32 v%d, 2, v%d" % (t4, vLN))
A("v_lshlrev_b32 v%d, 7, v%d" % (t4, t4))
A("v_and_b32 v%d, 3, v%d" % (t2, vLN))
A("v_lshl_add_u32 v%d, v%d, 3, v%d" % (t4, t2, t4))
A("v_bfe_u32 v%d, v%d, 3, 2" % (t2, vLN))
A("v_lshl_add_u32 v%d, v%d, 5, v%d" % (t4, t2, t4))
A("v_add_u32 v%d, %d, v%d" % (vVA[0], VRING + 2 * SLOT, t4))
for x in range(1, 4): A("v_xor_b32 v%d, %d, v%d" % (vVA[x], 32 * x, vVA[0]))
A("s_mov_b32 %s, 0x%x" % (sC, CSCALE))
A("s_mov_b32 %s, 0x%x" % (sTH, THR))
A("s_mov_b32 %s, 0" % sIT)
A("s_mov_b32 %s, %d" % (sKoff, 4 * SLOT))
A("s_mov_b32 %s, %d" % (sVoff, 3 * SLOT))
A("s_mov_b32 %s, %s" % (sKm, sKbeg))
A("s_add_u32 %s, %s, %d" % (sVm, sVbeg, 3 * SLOT))
for i in range(112, 256): A("v_accvgpr_write_b32 a%d, 0" % i)
for i in vL: A("v_mov_b32 v%d, 0" % i)
vwait("K0")
A("s_barrier")
K0F = [V(G[rb][1], 4) for rb in range(6)] + [V(X[rb][1], 4) for rb in LATE] + FB
for n in range(12): A(k_read(K0F[n], 0, n >> 1, n & 1))
for rb in range(6):
    vwait("Q%d" % rb)
    if rb == 5: P += stamp(1)
    area = rb & 1
    for rh in range(2):
        for cb in range(3):
            A("ds_write_b128 v%d, %s offset:%d" % (vQW, V(raw(rb, rh * 3 + cb), 4), area * QRB + cb * 2 * QKS + rh * 128))
    if rb + QD < 6: q_issue(rb + QD)
    else:
        left = 6 - rb
        n_now = -(-len(kvq) // left) if rb < 5 else len(kvq)
        if rb + QD == 6 or True:
            for _ in range(min(n_now, len(kvq))): pro_tile(*kvq.pop(0))
    A("s_waitcnt lgkmcnt(0)")
    qd_ = [Ac(rb * 24 + ks * 4, 4) if rb < 4 else V(raw(rb, ks), 4) for ks in range(6)]
    for ks in range(6): A(q_read(qd_[ks], area, ks))
    if rb < 4:
        for i in range(24): A("v_mov_b32 v%d, 0" % (raw(rb, 0) + i))
    for ks in range(6):
        A("s_waitcnt lgkmcnt(%d)" % (5 - ks))
        for hf in range(2):
            d = V((G[rb][0] if hf == 0 else X[rb][0]), 4)
            A("%s %s, %s, %s, %s" % (MF, d, K0F[2 * ks + hf], qd_[ks], "0" if ks == 0 else d))
    if rb == 5:
        vwait("K1")
        A("s_barrier")
        A(k_read(FB[0], 1, 0, 0)); A(q_read(FQ[4], 0, 0)); A(k_read(FB[1], 1, 0, 1)); A(q_read(FQ[5], 1, 0))
    if rb >= 4:
        for i in range(24): A("v_mov_b32 v%d, 0" % (raw(rb, 0) + i))
    else: A("s_nop 7")
    P += rowmax(vMC[rb], vT[0], sregs(rb, 0))
    A("v_mul_f32 %s, %s, %s" % (V(vMC[rb]), sC, V(vMC[rb])))
    A("v_ceil_f32 %s, %s" % (V(vMC[rb]), V(vMC[rb])))
    if rb in EARLY:
        P += [t for t in sm_pre([rb], 0) if t.startswith("v_fma")]
        post = sm_post([rb], 0)
        P += [t for t in post if t.startswith("v_exp")] + ["s_nop 0"] + [t for t in post if not t.startswith("v_exp")]
assert not kvq and vm[-18:] == ["K1"] * 3 + ["V0"] * 3 + ["K2"] * 3 + ["V1"] * 3 + ["K3"] * 3 + ["V2"] * 3, vm
A("s_waitcnt lgkmcnt(0)")
P += stamp(2)

B0, q0 = body(0, [])
B1, q1 = body(1, q0)
B0, q0b = body(0, q1)
assert q0 == q0b

T = []
A = T.append
T += stamp(3)
A("s_waitcnt vmcnt(0) lgkmcnt(0)")
A("s_barrier")
for t in v_read(0, 1, 0) + v_read(1, 1, 1): A(t)
T += sm_pre(LATE, 1)
A("s_cbranch_vccnz L_rare_tail")
A("L_back_tail:")
post = sm_post(LATE, 1)
T += [t for t in post if t.startswith("v_exp")] + ["s_nop 0"] + [t for t in post if not t.startswith("v_exp")]
pinned = {}
for db in range(10): pinned[6 * db] = v_read((db + 2) % 3, 1, db + 2)
dsT = [set(expand(FBh[0][0])), set(expand(FBh[0][1])), set(expand(FBh[1][0])), set(expand(FBh[1][1]))]
st = []
tmp = [G[rb][0] for rb in range(6)]
for stage, sw in enumerate(("v_permlane32_swap_b32", "v_permlane16_swap_b32")):
    st += [Op("v_mov_b32 %s, %s" % (V(tmp[rb]), V(vL[rb])), 12 * stage) for rb in range(6)]
    st += [Op("%s %s, %s" % (sw, V(vL[rb]), V(tmp[rb])), 12 * stage + 5) for rb in range(6)]
    st += [Op("v_add_f32 %s, %s, %s" % (V(vL[rb]), V(vL[rb]), V(tmp[rb])), 12 * stage + 5) for rb in range(6)]
st += [Op("v_rcp_f32 %s, %s" % (V(vL[rb]), V(vL[rb]))) for rb in range(6)]
eLN = vXM; eW = vMC[0:4]; eR = vMC[4]; eS = vMC[5]; e1 = vT[0]; e2 = vT[1]; e3 = vT[2]
for t in ["v_mbcnt_lo_u32_b32 v%d, -1, 0" % eLN, "v_mbcnt_hi_u32_b32 v%d, -1, v%d" % (eLN, eLN),
          "v_and_b32 v%d, 15, v%d" % (e1, eLN), "v_mul_u32_u24 v%d, 384, v%d" % (e1, e1),
          "v_bfe_u32 v%d, v%d, 4, 1" % (e2, eLN), "v_lshl_add_u32 v%d, v%d, 3, v%d" % (e1, e2, e1),
          "v_lshrrev_b32 v%d, 5, v%d" % (e2, eLN), "v_xor_b32 v%d, v%d, v%d" % (e2, e2, eLN), "v_and_b32 v%d, 7, v%d" % (e2, e2),
          "v_add_u32 v%d, %s, v%d" % (e1, sQL, e1)] + \
         sum([["v_xor_b32 v%d, %d, v%d" % (e3, 2 * x, e2), "v_lshl_add_u32 v%d, v%d, 4, v%d" % (eW[x], e3, e1)] for x in range(4)], []) + \
         ["v_lshrrev_b32 v%d, 3, v%d" % (e1, eLN), "v_xor_b32 v%d, v%d, v%d" % (e2, e1, eLN), "v_and_b32 v%d, 7, v%d" % (e2, e2),
          "v_mul_u32_u24 v%d, 384, v%d" % (e1, e1), "v_lshl_add_u32 v%d, v%d, 4, v%d" % (eR, e2, e1), "v_add_u32 v%d, %s, v%d" % (eR, sQL, eR),
          "v_and_b32 v%d, 7, v%d" % (e2, eLN), "v_lshl_add_u32 v%d, v%d, 4, v%d" % (eS, e2, e1), "v_add_u32 v%d, %s, v%d" % (eS, sRow, eS)]:
    st.append(Op(t))
A("s_nop 1")
PVT, _ = schedule(pv_mfmas(1), pinned, [], st, dsT, "tailpv")
T += PVT
T += stamp(4)
def ep_convert(rb):
    lp = vL[rb] & ~1; sel = vL[rb] & 1; area = rb & 1
    for db in range(12):
        w = 28 + (db % 6) * 6
        fl, i0 = Oreg(rb, db)
        if fl == "a":
            for i in range(4): A("v_accvgpr_read_b32 %s, %s" % (V(w + i), Ac(i0 + i)))
            src = w
        else: src = i0
        for i in (0, 2):
            A("v_pk_mul_f32 %s, %s, %s op_sel:[0,%d] op_sel_hi:[1,%d]" % (V(w + i, 2), V(src + i, 2), V(lp, 2), sel, sel))
        for i in range(2):
            A("v_cvt_pk_bf16_f32 %s, %s, %s" % (V(w + 4 + i), V(w + 2 * i), V(w + 2 * i + 1)))
        A("ds_write_b64 v%d, %s offset:%d" % (eW[db & 3], V(w + 4, 2), area * QRB + (db >> 2) * 128))
def ep_read(rb):
    for i in range(6):
        A("ds_read_b128 %s, v%d offset:%d" % (V(64 + (rb & 1) * 24 + 4 * i, 4), eR, (rb & 1) * QRB + (i // 3) * 3072 + (i % 3) * 128))
def ep_store(rb):
    for i in range(6):
        A("buffer_store_dwordx4 %s, v%d, %s, %s offen offset:%d %s" % (V(64 + (rb & 1) * 24 + 4 * i, 4), eS, sO, sRB(rb), (i // 3) * 3072 + (i % 3) * 128, SPOL))
A("s_nop 7")
for rb in range(7):
    if rb < 6: ep_convert(rb)
    if rb >= 1:
        A("s_waitcnt lgkmcnt(%d)" % (12 if rb < 6 else 0))
        ep_store(rb - 1)
    if rb < 6:
        ep_read(rb)
if STAMP:
    T += stamp(5)
    A("s_waitcnt vmcnt(0)")
    T += stamp(6)
    A("s_waitcnt lgkmcnt(0)")
    A("s_lshl_b32 s3, s2, 2"); A("s_add_u32 s3, s3, %s" % sWave); A("s_lshl_b32 s3, s3, 6")
    A("v_mov_b32 v10, s3")
    for i in range(16): A("v_mov_b32 v%d, s%d" % (12 + i, 60 + i))
    for i in range(4): A("buffer_store_dwordx4 v[%d:%d], v10, %s, 0 offen offset:%d" % (12 + 4 * i, 15 + 4 * i, sW, 16 * i))
A("L_end:")
A("s_endpgm")

R = []
for group, par, lab, back, pend in ((LATE, 0, "L_rare_late0", "L_back_late0", None), (LATE, 1, "L_rare_late1", "L_back_late1", None),
                                    (EARLY, 0, "L_rare_early0", "L_back_early0", 1), (EARLY, 1, "L_rare_early1", "L_back_early1", 0),
                                    (LATE, 1, "L_rare_tail", "L_back_tail", None)):
    R.append(lab + ":"); R += rare(group, par, back, pend)

def I(l): return [Ins(t) for t in l]
seq = I(P) + I(B0) + I(["s_cbranch_scc1 L_tail"]) + I(B1) + I(["s_branch L_loop"]) + I(B0) + I(["s_cbranch_scc1 L_tail"]) + I(T)
errs = check_hazards(seq, "main") + check_waits(seq, "main") + check_hazards(I(R), "rare")
for e in errs[:30]: sys.stderr.write(e + "\n")
if errs: sys.stderr.write("!!! %d hazard problems\n" % len(errs))

hdr = open("standalone__gqa_softmax__near_ridge.s.ref").read().split("; Override")[0]
out = [hdr.rstrip(), "; @launch grid=(256,1,1) block=(256,1,1) lds=%d" % LDS_BYTES,
       '.amdgcn_target "amdgcn-amd-amdhsa--gfx950"', ".text", ".globl %s" % KN, ".p2align 8", ".type %s,@function" % KN, "%s:" % KN]
def emit(l):
    for t in l: out.append(t if t.endswith(":") or t.startswith(".") else "    " + t)
emit(P); emit([".p2align 6", "L_loop:"]); emit(B0); emit(["s_cbranch_scc1 L_tail"]); emit(B1); emit(["s_branch L_loop", "L_tail:"]); emit(T); emit(R)
out += ['.section .rodata,"a"', ".p2align 6", ".amdhsa_kernel %s" % KN, "  .amdhsa_next_free_vgpr 512", "  .amdhsa_next_free_sgpr 96",
        "  .amdhsa_accum_offset 256", "  .amdhsa_group_segment_fixed_size 0", "  .amdhsa_kernarg_size 48", "  .amdhsa_user_sgpr_count 2",
        "  .amdhsa_user_sgpr_kernarg_segment_ptr 1", "  .amdhsa_system_sgpr_workgroup_id_x 1", ".end_amdhsa_kernel", ""]
open(sys.argv[1], "w").write("\n".join(out))
```

```python
import sys, math, struct
from asmlib import *
from sched import *
import sched

def build_safe(opts):
    STAMP = int(opts.get("stamp", 0))
    NT = opts.get("nt", "nt")
    SPOL = opts.get("spol", "sc1").replace("+", " ")
    QD = int(opts.get("qd", 6))
    STG = [int(x) for x in opts["stg"].split(",")] if "stg" in opts else None
    KN = "standalone__gqa_softmax__near_ridge_kernel"
    def f2u(x): return struct.unpack("<I", struct.pack("<f", x))[0]
    CSCALE = f2u(math.log2(math.e) / math.sqrt(192.0))
    THR = f2u(float(opts.get("thr", 8.0)))

    KRING = 0; VRING = 49152; QLDS = 98304; SLOT = 12288
    QKS = 1088; QRB = 6 * QKS; QWAVE = 2 * QRB
    LDS_BYTES = QLDS + 4 * QWAVE
    def V(i, n=1): return "v%d" % i if n == 1 else "v[%d:%d]" % (i, i + n - 1)
    def Ac(i, n=1): return "a%d" % i if n == 1 else "a[%d:%d]" % (i, i + n - 1)
    vKA = [0, 1]; vVA = [2, 3, 4, 5]; vQA = 6; vDMA = 7
    vMC = [8 + i for i in range(6)]; vL = [14 + i for i in range(6)]
    vXM = 20; vT = [21, 22, 23]
    FB = [Ac(96, 4), Ac(100, 4), Ac(104, 4)]
    FBh = [(Ac(96, 2), Ac(98, 2)), (Ac(100, 2), Ac(102, 2)), (Ac(104, 2), Ac(106, 2))]
    FQ = {4: Ac(108, 4), 5: V(24, 4)}
    EARLY = [0, 1, 2]; LATE = [3, 4, 5]
    G = {}; X = {}
    r = 28
    for rb in LATE:
        G[rb] = [r, r + 4]; X[rb] = [r + 8, r + 12]; r += 16
    for rb in EARLY:
        G[rb] = [r, r + 4]; X[rb] = [r + 8, r + 8]; r += 12
    assert r == 112
    def Oreg(rb, db): return ("v", 112 + rb * 48 + db * 4) if rb < 3 else ("a", 112 + (rb - 3) * 48 + db * 4)
    def O4(rb, db):
        f, i = Oreg(rb, db); return "%s[%d:%d]" % (f, i, i + 3)
    def Qf(rb, ks): return Ac(rb * 24 + ks * 4, 4) if rb < 4 else FQ[rb]
    sQ = "s[20:23]"; sK = "s[24:27]"; sV = "s[28:31]"; sO = "s[32:35]"; sW = "s[36:39]"
    sC = "s40"; sTH = "s41"; sIT = "s42"; sKoff = "s43"; sVoff = "s44"; sKm = "s45"; sVm = "s46"; sWave = "s47"
    sTmp = "s48"; sRow = "s49"; sKend = "s50"; sVend = "s51"; sKbeg = "s52"; sVbeg = "s53"; sQL = "s16"
    def sRB(rb): return "0" if rb == 0 else "s%d" % (54 + rb)
    MF = "v_mfma_f32_16x16x32_bf16"

    def k_read(dst, tile_par, ks, hf):
        return "ds_read_b128 %s, %s offset:%d" % (dst, V(vKA[ks & 1]), tile_par * SLOT + (ks >> 1) * 4096 + hf * 2048)
    def v_read(buf, tile_par, db):
        return ["ds_read_b64_tr_b16 %s, %s offset:%d" % (FBh[buf][i], V(vVA[db & 3]), tile_par * SLOT + (db >> 2) * 4096 + i * 2048) for i in range(2)]
    def q_read(dst, area, ks):
        return "ds_read_b128 %s, %s offset:%d" % (dst, V(vQA), area * QRB + ks * QKS)
    def qk_mfmas(par):
        out = []
        for ks in range(6):
            for hf in range(2):
                for rb in (range(6) if (hf == 0 or ks == 5) else range(5, -1, -1)):
                    d = V((G[rb][par] if hf == 0 else X[rb][par]), 4)
                    out.append("%s %s, %s, %s, %s" % (MF, d, FB[(2 * ks + hf) % 3], Qf(rb, ks), "0" if ks == 0 else d))
        return out
    def pv_mfmas(par):
        return ["%s %s, %s, %s, %s" % (MF, O4(rb, db), FB[db % 3], V(G[rb][par], 4), O4(rb, db)) for db in range(12) for rb in range(6)]
    def sregs(rb, par): return [G[rb][par] + i for i in range(4)] + [X[rb][par] + i for i in range(4)]
    def sm_pre(group, par):
        ops = []; first = True
        for half in range(2):
            for rb in group:
                s = sregs(rb, par)
                for i in (4 * half, 4 * half + 2):
                    for k in (i, i + 1):
                        ops.append("v_fma_f32 %s, %s, %s, -%s" % (V(s[k]), V(s[k]), sC, V(vMC[rb])))
                    if first: ops.append("v_max_f32 %s, %s, %s" % (V(vXM), V(s[i]), V(s[i + 1]))); first = False
                    else: ops.append("v_max3_f32 %s, %s, %s, %s" % (V(vXM), V(s[i]), V(s[i + 1]), V(vXM)))
        ops.append("v_cmp_lt_f32 vcc, %s, %s" % (sTH, V(vXM)))
        return ops
    def sm_post(group, par):
        ops = []
        for rb in group:
            s = sregs(rb, par)
            for i in range(0, 8, 2):
                ops.append("v_exp_f32 %s, %s" % (V(s[i]), V(s[i])))
                ops.append("v_exp_f32 %s, %s" % (V(s[i + 1]), V(s[i + 1])))
                ops.append("v_add_f32 %s, %s, %s" % (V(vL[rb]), V(vL[rb]), V(s[i])))
                ops.append("v_add_f32 %s, %s, %s" % (V(vL[rb]), V(vL[rb]), V(s[i + 1])))
                ops.append("v_cvt_pk_bf16_f32 %s, %s, %s" % (V(G[rb][par] + i // 2), V(s[i]), V(s[i + 1])))
        return ops
    def guard(group, par):
        g = [vXM] + vT
        for rb in group: g += sregs(rb, par) + [vMC[rb], vL[rb]] + [G[rb][par ^ 1] + i for i in range(4)]
        return [V(x) for x in g]
    def dma(srd, soff, smbase, cb):
        return ("s_add_u32 m0, %s, %d" % (smbase, cb * (4096 - 128)),
                "buffer_load_dwordx4 %s, %s, %s offen offset:%d %s lds" % (V(vDMA), srd, soff, cb * 128, NT))

    def body(par, ds_in):
        np_ = par ^ 1
        mf = qk_mfmas(np_) + pv_mfmas(par)
        pinned = {}
        def pin(g, t): pinned.setdefault(g, []).append(t)
        for n in range(24):
            m = n + 2
            if m < 12: pin(6 * n, k_read(FB[m % 3], np_, m >> 1, m & 1))
            elif m < 24:
                for t in v_read(m % 3, par, m - 12): pin(6 * n, t)
            else: pin(6 * n, k_read(FB[m % 3], par, 0, m - 24))
        for ks in range(5):
            pin(12 * ks + 6, q_read(FQ[5], 1, ks + 1)); pin(12 * ks + 8, q_read(FQ[4], 0, ks + 1))
        pin(132, q_read(FQ[4], 0, 0)); pin(138, q_read(FQ[5], 1, 0))
        scal = []
        scal.append((55, ["s_waitcnt vmcnt(9)", "s_barrier"], False))
        dg = [int(x) for x in opts.get("dg", "62,74,86,98,110,122").split(",")]
        for i in range(6):
            a, b = dma(sK, sKoff, sKm, i) if i < 3 else dma(sV, sVoff, sVm, i - 3)
            scal.append((dg[i] - 1, [a], True)); pin(dg[i], b)
        scal.append((dg[2] + 1, ["s_add_u32 %s, %s, %d" % (sKoff, sKoff, SLOT), "s_add_u32 %s, %s, %d" % (sKm, sKm, SLOT),
                          "s_cmp_eq_u32 %s, %s" % (sKm, sKend), "s_cselect_b32 %s, %s, %s" % (sKm, sKbeg, sKm)], False))
        scal.append((dg[5] + 1, ["s_add_u32 %s, %s, %d" % (sVoff, sVoff, SLOT), "s_add_u32 %s, %s, %d" % (sVm, sVm, SLOT),
                           "s_cmp_eq_u32 %s, %s" % (sVm, sVend), "s_cselect_b32 %s, %s, %s" % (sVm, sVbeg, sVm)], False))
        if par == 0:
            scal.append((138, ["s_add_u32 %s, %s, 1" % (sIT, sIT), "s_cmp_eq_u32 %s, 8" % sIT], False))
        st = []
        st += [Op(t) for t in sm_pre(LATE, par)]
        st.append(Fence("s_cbranch_vccnz L_rare_late%d" % par, "L_back_late%d:" % par, guard(LATE, par)))
        if par == 0:
            st += [Op("v_xor_b32 %s, 0x1e000, %s" % (V(a), V(a)), 12, 58) for a in vVA]
        for rb in LATE: st += [Op(t, 0, 72 + rb - 2) for t in sm_post([rb], par)]
        for t in sm_pre(EARLY, np_):
            o = Op(t, 66)
            if any(("v%d" % (X[rb][np_] + i)) in (o.i.rd | o.i.wr) for rb in EARLY for i in range(4)): o.ming = 72
            st.append(o)
        st.append(Fence("s_cbranch_vccnz L_rare_early%d" % np_, "L_back_early%d:" % np_, guard(EARLY, np_)))
        if par == 0:
            st += [Op("v_xor_b32 %s, 0x6000, %s" % (V(a), V(a)), 80, 130) for a in vKA]
        st += [Op(t) for t in sm_post(EARLY, np_)]
        return schedule(mf, pinned, scal, st, ds_in, "body%d" % par, next_first=qk_mfmas(par)[0])

    def rowmax(dst, tmp, regs):
        o = ["v_max3_f32 %s, %s, %s, %s" % (V(dst), V(regs[0]), V(regs[1]), V(regs[2])),
             "v_max3_f32 %s, %s, %s, %s" % (V(dst), V(regs[3]), V(regs[4]), V(dst)),
             "v_max3_f32 %s, %s, %s, %s" % (V(dst), V(regs[5]), V(regs[6]), V(dst)),
             "v_max_f32 %s, %s, %s" % (V(dst), V(regs[7]), V(dst))]
        return o + xlane(dst, tmp, "v_max_f32")
    def xlane(dst, tmp, op):
        o = []
        for sw in ("v_permlane32_swap_b32", "v_permlane16_swap_b32"):
            o += ["v_mov_b32 %s, %s" % (V(tmp), V(dst)), "s_nop 1", "%s %s, %s" % (sw, V(dst), V(tmp)),
                  "%s %s, %s, %s" % (op, V(dst), V(dst), V(tmp))]
        return o
    def rare(group, par, back, pend):
        o = ["s_nop 15"]
        k = vXM; f = vT[0]; t1 = vT[1]; t2 = vT[2]
        for rb in group:
            s = sregs(rb, par)
            o += rowmax(k, f, s)
            o += ["v_ceil_f32 %s, %s" % (V(k), V(k)), "v_max_f32 %s, 0, %s" % (V(k), V(k)),
                  "v_sub_f32 %s, 0, %s" % (V(f), V(k)), "v_exp_f32 %s, %s" % (V(f), V(f)),
                  "v_add_f32 %s, %s, %s" % (V(vMC[rb]), V(vMC[rb]), V(k))]
            o += ["v_sub_f32 %s, %s, %s" % (V(x), V(x), V(k)) for x in s]
            o += ["v_mul_f32 %s, %s, %s" % (V(vL[rb]), V(vL[rb]), V(f))]
            for db in range(12):
                fl, i0 = Oreg(rb, db)
                for i in range(i0, i0 + 4):
                    if fl == "v": o.append("v_mul_f32 %s, %s, %s" % (V(i), V(i), V(f)))
                    else: o += ["v_accvgpr_read_b32 %s, %s" % (V(t1), Ac(i)), "v_mul_f32 %s, %s, %s" % (V(t1), V(t1), V(f)),
                                "v_accvgpr_write_b32 %s, %s" % (Ac(i), V(t1))]
            if pend is not None:
                for i in range(4):
                    p = G[rb][pend] + i
                    o += ["v_lshlrev_b32 %s, 16, %s" % (V(t1), V(p)), "v_and_b32 %s, 0xffff0000, %s" % (V(t2), V(p)),
                          "v_mul_f32 %s, %s, %s" % (V(t1), V(t1), V(f)), "v_mul_f32 %s, %s, %s" % (V(t2), V(t2), V(f)),
                          "v_cvt_pk_bf16_f32 %s, %s, %s" % (V(p), V(t1), V(t2))]
        o += ["s_nop 1", "s_branch %s" % back]
        return o
    def stamp(i): return ["s_memrealtime s[%d:%d]" % (60 + 2 * i, 61 + 2 * i)] if STAMP else []

    P = []
    cur = [P]
    def A(t): cur[0].append(t)
    A("s_load_dwordx4 s[4:7], s[0:1], 0")
    A("s_load_dwordx4 s[8:11], s[0:1], 16")
    if STAMP: A("s_load_dwordx2 s[12:13], s[0:1], 40")
    P += stamp(0)
    CPF = int(opts.get("cpf", 0))
    if CPF:
        A("s_getpc_b64 s[18:19]")
        A("v_lshlrev_b32 v28, 7, v0")
        A("v_min_u32 v28, 0x4600, v28")
        A("global_load_dword v29, v28, s[18:19]")
    vLN = vXM; vQG = vT[1]; vQW = vT[2]; t2 = 8; t3 = 9; t4 = 10; t5 = 11
    A("v_lshrrev_b32 v%d, 6, v0" % t2)
    A("v_and_b32 v%d, 63, v0" % vLN)
    A("s_mul_i32 s14, s2, 147456")
    A("v_readfirstlane_b32 %s, v%d" % (sWave, t2))
    A("s_mul_i32 s15, s2, 196608")
    A("s_bfe_u32 s17, s2, 0x30003")
    A("v_lshrrev_b32 v%d, 3, v%d" % (t5, vLN))
    A("v_mul_u32_u24 v%d, 384, v%d" % (t2, t5))
    A("v_lshrrev_b32 v%d, 4, v%d" % (t3, vLN))
    A("v_lshlrev_b32 v%d, 1, v%d" % (t4, t3))
    A("v_xor_b32 v%d, v%d, v%d" % (t4, t4, vLN))
    A("v_and_b32 v%d, 7, v%d" % (t4, t4))
    A("v_lshl_add_u32 v%d, v%d, 4, v%d" % (vDMA, t4, t2))
    A("s_mul_i32 %s, %s, 3072" % (sTmp, sWave))
    A("v_add_u32 v%d, %s, v%d" % (vDMA, sTmp, vDMA))
    A("v_and_b32 v%d, 7, v%d" % (t4, vLN))
    A("v_lshl_add_u32 v%d, v%d, 4, v%d" % (vQG, t4, t2))
    A("s_mul_i32 %s, %s, 36864" % (sRow, sWave))
    A("v_add_u32 v%d, %s, v%d" % (vQG, sRow, vQG))
    A("s_lshl_b32 %s, %s, 10" % (sKbeg, sWave))
    A("s_add_u32 %s, %s, %d" % (sVbeg, sKbeg, VRING))
    for rb in range(1, 6): A("s_mov_b32 %s, %d" % (sRB(rb), rb * 6144))
    A("s_waitcnt lgkmcnt(0)")
    def srd(base, src, off, size):
        A("s_add_u32 s%d, s%d, %s" % (base, src, off)); A("s_addc_u32 s%d, s%d, 0" % (base + 1, src + 1))
        A("s_mov_b32 s%d, %d" % (base + 2, size)); A("s_mov_b32 s%d, 0x20000" % (base + 3))
    vm = []
    def stg_point():
        n = len(vm) - 1
        if STG and n < len(STG) and STG[n] < 8:
            A("s_cmp_lt_u32 s17, %d" % STG[n])
            A("s_cbranch_scc1 L_stg%d" % n)
            A("s_waitcnt vmcnt(0)")
            A("L_stg%d:" % n)
    def pro_tile(name, tile):
        srd_, beg = (sK, sKbeg) if name == "K" else (sV, sVbeg)
        A("s_mov_b32 %s, %d" % (sTmp, tile * SLOT))
        for cb in range(3):
            A("s_add_u32 m0, %s, %d" % (beg, tile * SLOT + cb * (4096 - 128)))
            A("s_nop 0")
            A("buffer_load_dwordx4 %s, %s, %s offen offset:%d %s lds" % (V(vDMA), srd_, sTmp, cb * 128, NT))
            vm.append("%s%d" % (name, tile))
            stg_point()
    def raw(rb, i): return 112 + rb * 24 + i * 4
    def q_issue(rb):
        for rh in range(2):
            for cb in range(3):
                A("buffer_load_dwordx4 %s, v%d, %s, %s offen offset:%d %s" % (V(raw(rb, rh * 3 + cb), 4), vQG, sQ, sRB(rb), rh * 3072 + cb * 128, NT))
                vm.append("Q%d" % rb)
                stg_point()
    def vwait(name):
        last = max(i for i, x in enumerate(vm) if x == name)
        A("s_waitcnt vmcnt(%d)" % (len(vm) - 1 - last))
    srd(24, 6, "s15", 196608)
    pro_tile("K", 0)
    srd(20, 4, "s14", 147456)
    for rb in range(QD): q_issue(rb)
    srd(28, 8, "s15", 196608); srd(32, 10, "s14", 147456)
    kvq = [("K", 1), ("V", 0), ("K", 2), ("V", 1), ("K", 3), ("V", 2)]
    KVUP = int(opts.get("kvup", 0))
    if QD == 6:
        for _ in range(KVUP): pro_tile(*kvq.pop(0))
    if STAMP:
        A("s_mov_b32 s36, s12"); A("s_mov_b32 s37, s13"); A("s_mov_b32 s38, 0x100000"); A("s_mov_b32 s39, 0x20000")
    A("s_add_u32 %s, %s, %d" % (sKend, sKbeg, 4 * SLOT))
    A("s_add_u32 %s, %s, %d" % (sVend, sVbeg, 4 * SLOT))
    A("s_mul_i32 %s, %s, %d" % (sQL, sWave, QWAVE))
    A("s_add_u32 %s, %s, %d" % (sQL, sQL, QLDS))
    A("v_and_b32 v%d, 3, v%d" % (t4, vLN))
    A("v_xor_b32 v%d, v%d, v%d" % (t2, t5, t4))
    A("v_lshlrev_b32 v%d, 4, v%d" % (t2, t2))
    A("v_lshl_add_u32 v%d, v%d, 8, v%d" % (t2, t4, t2))
    A("v_bfe_u32 v%d, v%d, 2, 1" % (t4, vLN))
    A("v_mul_u32_u24 v%d, %d, v%d" % (t4, QKS, t4))
    A("v_add3_u32 v%d, v%d, v%d, %s" % (vQW, t2, t4, sQL))
    A("v_and_b32 v%d, 15, v%d" % (t2, vLN))
    A("v_xor_b32 v%d, v%d, v%d" % (t4, t2, t3))
    A("v_lshlrev_b32 v%d, 4, v%d" % (t4, t4))
    A("v_lshl_add_u32 v%d, v%d, 8, v%d" % (t4, t3, t4))
    A("v_add_u32 v%d, %s, v%d" % (vQA, sQL, t4))
    A("v_and_b32 v%d, 6, v%d" % (t4, vLN))
    A("v_xor_b32 v%d, v%d, v%d" % (t4, t4, t3))
    A("v_lshlrev_b32 v%d, 4, v%d" % (t4, t4))
    A("v_lshl_add_u32 v%d, v%d, 7, v%d" % (vKA[0], t2, t4))
    A("v_xor_b32 v%d, 64, v%d" % (vKA[1], vKA[0]))
    A("v_lshrrev_b32 v%d, 2, v%d" % (t4, vLN))
    A("v_lshlrev_b32 v%d, 7, v%d" % (t4, t4))
    A("v_and_b32 v%d, 3, v%d" % (t2, vLN))
    A("v_lshl_add_u32 v%d, v%d, 3, v%d" % (t4, t2, t4))
    A("v_bfe_u32 v%d, v%d, 3, 2" % (t2, vLN))
    A("v_lshl_add_u32 v%d, v%d, 5, v%d" % (t4, t2, t4))
    A("v_add_u32 v%d, %d, v%d" % (vVA[0], VRING + 2 * SLOT, t4))
    for x in range(1, 4): A("v_xor_b32 v%d, %d, v%d" % (vVA[x], 32 * x, vVA[0]))
    A("s_mov_b32 %s, 0x%x" % (sC, CSCALE))
    A("s_mov_b32 %s, 0x%x" % (sTH, THR))
    A("s_mov_b32 %s, 0" % sIT)
    A("s_mov_b32 %s, %d" % (sKoff, 4 * SLOT))
    A("s_mov_b32 %s, %d" % (sVoff, 3 * SLOT))
    A("s_mov_b32 %s, %s" % (sKm, sKbeg))
    A("s_add_u32 %s, %s, %d" % (sVm, sVbeg, 3 * SLOT))
    for i in range(112, 256): A("v_accvgpr_write_b32 a%d, 0" % i)
    for i in vL: A("v_mov_b32 v%d, 0" % i)
    vwait("K0")
    A("s_barrier")
    K0F = [V(G[rb][1], 4) for rb in range(6)] + [V(X[rb][1], 4) for rb in LATE] + FB
    for n in range(12): A(k_read(K0F[n], 0, n >> 1, n & 1))
    for rb in range(6):
        vwait("Q%d" % rb)
        if rb == 5: P += stamp(1)
        area = rb & 1
        for rh in range(2):
            for cb in range(3):
                A("ds_write_b128 v%d, %s offset:%d" % (vQW, V(raw(rb, rh * 3 + cb), 4), area * QRB + cb * 2 * QKS + rh * 128))
        if rb + QD < 6: q_issue(rb + QD)
        else:
            left = 6 - rb
            n_now = -(-len(kvq) // left) if rb < 5 else len(kvq)
            if rb + QD == 6 or True:
                for _ in range(min(n_now, len(kvq))): pro_tile(*kvq.pop(0))
        A("s_waitcnt lgkmcnt(0)")
        qd_ = [Ac(rb * 24 + ks * 4, 4) if rb < 4 else V(raw(rb, ks), 4) for ks in range(6)]
        for ks in range(6): A(q_read(qd_[ks], area, ks))
        if rb < 4:
            for i in range(24): A("v_mov_b32 v%d, 0" % (raw(rb, 0) + i))
        for ks in range(6):
            A("s_waitcnt lgkmcnt(%d)" % (5 - ks))
            for hf in range(2):
                d = V((G[rb][0] if hf == 0 else X[rb][0]), 4)
                A("%s %s, %s, %s, %s" % (MF, d, K0F[2 * ks + hf], qd_[ks], "0" if ks == 0 else d))
        if rb == 5:
            vwait("K1")
            A("s_barrier")
            A(k_read(FB[0], 1, 0, 0)); A(q_read(FQ[4], 0, 0)); A(k_read(FB[1], 1, 0, 1)); A(q_read(FQ[5], 1, 0))
        if rb >= 4:
            for i in range(24): A("v_mov_b32 v%d, 0" % (raw(rb, 0) + i))
        else: A("s_nop 7")
        P += rowmax(vMC[rb], vT[0], sregs(rb, 0))
        A("v_mul_f32 %s, %s, %s" % (V(vMC[rb]), sC, V(vMC[rb])))
        A("v_ceil_f32 %s, %s" % (V(vMC[rb]), V(vMC[rb])))
        if rb in EARLY:
            P += [t for t in sm_pre([rb], 0) if t.startswith("v_fma")]
            post = sm_post([rb], 0)
            P += [t for t in post if t.startswith("v_exp")] + ["s_nop 0"] + [t for t in post if not t.startswith("v_exp")]
    assert not kvq and vm[-18:] == ["K1"] * 3 + ["V0"] * 3 + ["K2"] * 3 + ["V1"] * 3 + ["K3"] * 3 + ["V2"] * 3, vm
    A("s_waitcnt lgkmcnt(0)")
    P += stamp(2)

    B0, q0 = body(0, [])
    B1, q1 = body(1, q0)
    B0, q0b = body(0, q1)
    assert q0 == q0b

    def strip(B):
        o = []
        for t in B:
            if "nobar" in opts and (t == "s_barrier" or "vmcnt" in t): continue
            if "nodma" in opts and (t.startswith("buffer_load") or "vmcnt" in t): continue
            if "nobr" in opts and t.startswith("s_cbranch_vcc"): continue
            if "nolds" in opts and (t.startswith("ds_read") or "lgkmcnt" in t): continue
            if "nowait" in opts and "lgkmcnt" in t: continue
            if "nomax" in opts and (t.startswith("v_max") or t.startswith("v_cmp") or t.startswith("s_cbranch_vcc")): continue
            o.append(t)
        return o
    B0 = strip(B0); B1 = strip(B1)
    if STAMP == 3:
        pre = ["s_mov_b32 m0, s84", "s_nop 0", "v_writelane_b32 v23, s80, m0", "v_writelane_b32 v22, s82, m0", "s_add_u32 s84, s84, 1", "s_memrealtime s[80:81]", "s_memtime s[82:83]"]
        B0 = pre + B0; B1 = pre + B1
        P += ["s_mov_b32 s84, 0", "s_mov_b32 s80, 0", "s_mov_b32 s82, 0"]
    T = []
    cur[0] = T
    T += stamp(3)
    if STAMP == 3:
        T += pre + ["s_waitcnt lgkmcnt(0)"] + pre[:4]
        A("v_mbcnt_lo_u32_b32 v21, -1, 0"); A("v_mbcnt_hi_u32_b32 v21, -1, v21"); A("v_lshlrev_b32 v21, 3, v21")
        A("s_lshl_b32 s3, s2, 2"); A("s_add_u32 s3, s3, %s" % sWave); A("s_lshl_b32 s3, s3, 9"); A("s_add_u32 s3, s3, 65536")
        A("buffer_store_dwordx2 v[22:23], v21, %s, s3 offen" % sW)
    A("s_waitcnt vmcnt(0) lgkmcnt(0)")
    A("s_barrier")
    for t in v_read(0, 1, 0) + v_read(1, 1, 1): A(t)
    T += sm_pre(LATE, 1)
    A("s_cbranch_vccnz L_rare_tail")
    A("L_back_tail:")
    post = sm_post(LATE, 1)
    T += [t for t in post if t.startswith("v_exp")] + ["s_nop 0"] + [t for t in post if not t.startswith("v_exp")]
    pinned = {}
    for db in range(10): pinned[6 * db] = v_read((db + 2) % 3, 1, db + 2)
    dsT = [set(expand(FBh[0][0])), set(expand(FBh[0][1])), set(expand(FBh[1][0])), set(expand(FBh[1][1]))]
    st = []
    tmp = [G[rb][0] for rb in range(6)]
    for stage, sw in enumerate(("v_permlane32_swap_b32", "v_permlane16_swap_b32")):
        st += [Op("v_mov_b32 %s, %s" % (V(tmp[rb]), V(vL[rb])), 12 * stage) for rb in range(6)]
        st += [Op("%s %s, %s" % (sw, V(vL[rb]), V(tmp[rb])), 12 * stage + 5) for rb in range(6)]
        st += [Op("v_add_f32 %s, %s, %s" % (V(vL[rb]), V(vL[rb]), V(tmp[rb])), 12 * stage + 5) for rb in range(6)]
    st += [Op("v_rcp_f32 %s, %s" % (V(vL[rb]), V(vL[rb]))) for rb in range(6)]
    eLN = vXM; eW = vMC[0:4]; eR = vMC[4]; eS = vMC[5]; e1 = vT[0]; e2 = vT[1]; e3 = vT[2]
    for t in ["v_mbcnt_lo_u32_b32 v%d, -1, 0" % eLN, "v_mbcnt_hi_u32_b32 v%d, -1, v%d" % (eLN, eLN),
              "v_and_b32 v%d, 15, v%d" % (e1, eLN), "v_mul_u32_u24 v%d, 384, v%d" % (e1, e1),
              "v_bfe_u32 v%d, v%d, 4, 1" % (e2, eLN), "v_lshl_add_u32 v%d, v%d, 3, v%d" % (e1, e2, e1),
              "v_lshrrev_b32 v%d, 5, v%d" % (e2, eLN), "v_xor_b32 v%d, v%d, v%d" % (e2, e2, eLN), "v_and_b32 v%d, 7, v%d" % (e2, e2),
              "v_add_u32 v%d, %s, v%d" % (e1, sQL, e1)] + \
             sum([["v_xor_b32 v%d, %d, v%d" % (e3, 2 * x, e2), "v_lshl_add_u32 v%d, v%d, 4, v%d" % (eW[x], e3, e1)] for x in range(4)], []) + \
             ["v_lshrrev_b32 v%d, 3, v%d" % (e1, eLN), "v_xor_b32 v%d, v%d, v%d" % (e2, e1, eLN), "v_and_b32 v%d, 7, v%d" % (e2, e2),
              "v_mul_u32_u24 v%d, 384, v%d" % (e1, e1), "v_lshl_add_u32 v%d, v%d, 4, v%d" % (eR, e2, e1), "v_add_u32 v%d, %s, v%d" % (eR, sQL, eR),
              "v_and_b32 v%d, 7, v%d" % (e2, eLN), "v_lshl_add_u32 v%d, v%d, 4, v%d" % (eS, e2, e1), "v_add_u32 v%d, %s, v%d" % (eS, sRow, eS)]:
        st.append(Op(t))
    A("s_nop 1")
    PVT, _ = schedule(pv_mfmas(1), pinned, [], st, dsT, "tailpv")
    T += PVT
    T += stamp(4)
    def ep_convert(rb):
        lp = vL[rb] & ~1; sel = vL[rb] & 1; area = rb & 1
        for db in range(12):
            w = 28 + (db % 6) * 6
            fl, i0 = Oreg(rb, db)
            if fl == "a":
                for i in range(4): A("v_accvgpr_read_b32 %s, %s" % (V(w + i), Ac(i0 + i)))
                src = w
            else: src = i0
            for i in (0, 2):
                A("v_pk_mul_f32 %s, %s, %s op_sel:[0,%d] op_sel_hi:[1,%d]" % (V(w + i, 2), V(src + i, 2), V(lp, 2), sel, sel))
            for i in range(2):
                A("v_cvt_pk_bf16_f32 %s, %s, %s" % (V(w + 4 + i), V(w + 2 * i), V(w + 2 * i + 1)))
            A("ds_write_b64 v%d, %s offset:%d" % (eW[db & 3], V(w + 4, 2), area * QRB + (db >> 2) * 128))
    def ep_read(rb):
        for i in range(6):
            A("ds_read_b128 %s, v%d offset:%d" % (V(64 + (rb & 1) * 24 + 4 * i, 4), eR, (rb & 1) * QRB + (i // 3) * 3072 + (i % 3) * 128))
    def ep_store(rb):
        for i in range(6):
            A("buffer_store_dwordx4 %s, v%d, %s, %s offen offset:%d %s" % (V(64 + (rb & 1) * 24 + 4 * i, 4), eS, sO, sRB(rb), (i // 3) * 3072 + (i % 3) * 128, SPOL))
    A("s_nop 7")
    for rb in range(7):
        if rb < 6: ep_convert(rb)
        if rb >= 1:
            A("s_waitcnt lgkmcnt(%d)" % (12 if rb < 6 else 0))
            ep_store(rb - 1)
        if rb < 6:
            ep_read(rb)
    if STAMP:
        T += stamp(5)
        A("s_waitcnt vmcnt(0)")
        T += stamp(6)
        A("s_waitcnt lgkmcnt(0)")
        A("s_lshl_b32 s3, s2, 2"); A("s_add_u32 s3, s3, %s" % sWave); A("s_lshl_b32 s3, s3, 6")
        A("v_mov_b32 v10, s3")
        for i in range(16): A("v_mov_b32 v%d, s%d" % (12 + i, 60 + i))
        for i in range(4): A("buffer_store_dwordx4 v[%d:%d], v10, %s, 0 offen offset:%d" % (12 + 4 * i, 15 + 4 * i, sW, 16 * i))
    A("L_end:")
    A("s_endpgm")

    R = []
    for group, par, lab, back, pend in ((LATE, 0, "L_rare_late0", "L_back_late0", None), (LATE, 1, "L_rare_late1", "L_back_late1", None),
                                        (EARLY, 0, "L_rare_early0", "L_back_early0", 1), (EARLY, 1, "L_rare_early1", "L_back_early1", 0),
                                        (LATE, 1, "L_rare_tail", "L_back_tail", None)):
        R.append(lab + ":"); R += rare(group, par, back, pend)

    def I(l): return [Ins(t) for t in l]
    seq = I(P) + I(B0) + I(["s_cbranch_scc1 L_tail"]) + I(B1) + I(["s_branch L_loop"]) + I(B0) + I(["s_cbranch_scc1 L_tail"]) + I(T)
    errs = check_hazards(seq, "main") + check_waits(seq, "main") + check_hazards(I(R), "rare")
    for e in errs[:30]: sys.stderr.write(e + "\n")
    if errs: sys.stderr.write("!!! %d hazard problems\n" % len(errs))


    code = P + [".p2align 6", "L_loop:"] + B0 + ["s_cbranch_scc1 L_tail"] + B1 + ["s_branch L_loop", "L_tail:"] + T + R
    code = [t.replace("L_", "S_") for t in code]
    return code, LDS_BYTES, len(errs)
```

```python
import sys, math, struct
from asmlib import *
from sched import *
import gen_safe

opts = dict(a.split("=") for a in sys.argv[2:])
STAMP = int(opts.get("stamp", 0))
NT = opts.get("nt", "nt")
SPOL = opts.get("spol", "sc1").replace("+", " ")
QD = int(opts.get("qd", 4))
STG = [int(x) for x in opts["stg"].split(",")] if "stg" in opts else None
CHAIN = int(opts.get("chain", 1))
KN = "standalone__gqa_softmax__near_ridge_kernel"
def f2u(x): return struct.unpack("<I", struct.pack("<f", x))[0]
CSCALE = f2u(math.log2(math.e) / math.sqrt(192.0))

KRING = 0; VRING = 49152; QLDS = 98304; SLOT = 12288
QKS = 1088; QRB = 6 * QKS; QWAVE = 2 * QRB
FLAG = QLDS + 4 * QWAVE
LDS_BYTES = FLAG + 64
def V(i, n=1): return "v%d" % i if n == 1 else "v[%d:%d]" % (i, i + n - 1)
def Ac(i, n=1): return "a%d" % i if n == 1 else "a[%d:%d]" % (i, i + n - 1)
vKA = [0, 1]; vVA = [2, 3, 4, 5]; vQA = 6; vDMA = 7
vL = [8 + i for i in range(6)]; vT = [14, 15]
FB = [Ac(96 + 4 * i, 4) for i in range(4)]
FBh = [(Ac(96 + 4 * i, 2), Ac(98 + 4 * i, 2)) for i in range(4)]
FQ = {4: [Ac(112, 4), Ac(116, 4)], 5: [Ac(120, 4), Ac(124, 4)]}
EARLY = [0, 1, 2, 3]; LATE = [4, 5]
G = {}; X = {}
r = 16
for rb in LATE:
    G[rb] = [r, r + 4]; X[rb] = [r + 8, r + 12]; r += 16
for rb in EARLY:
    G[rb] = [r, r + 4]; X[rb] = [r + 8, r + 8]; r += 12
assert r == 96
def Oreg(rb, db):
    b = rb * 12 + db
    return ("v", 96 + 4 * b) if b < 40 else ("a", 128 + 4 * (b - 40))
def O4(rb, db):
    f, i = Oreg(rb, db); return "%s[%d:%d]" % (f, i, i + 3)
def Qf(rb, ks): return Ac(rb * 24 + ks * 4, 4) if rb < 4 else FQ[rb][ks & 1]
sQ = "s[20:23]"; sK = "s[24:27]"; sV = "s[28:31]"; sO = "s[32:35]"; sW = "s[36:39]"
sC2 = "s[40:41]"; sIT = "s42"; sKoff = "s43"; sVoff = "s44"; sKm = "s45"; sVm = "s46"; sWave = "s47"
sTmp = "s48"; sRow = "s49"; sKend = "s50"; sVend = "s51"; sKbeg = "s52"; sVbeg = "s53"; sQL = "s16"; sCls = "s17"
sLo = "s76"; sHi = "s77"; sBad = "s[78:79]"
def sRB(rb): return "0" if rb == 0 else "s%d" % (54 + rb)
MF = "v_mfma_f32_16x16x32_bf16"

def k_read(dst, tile_par, ks, hf):
    return "ds_read_b128 %s, %s offset:%d" % (dst, V(vKA[ks & 1]), tile_par * SLOT + (ks >> 1) * 4096 + hf * 2048)
def v_read(buf, tile_par, db):
    return ["ds_read_b64_tr_b16 %s, %s offset:%d" % (FBh[buf][i], V(vVA[db & 3]), tile_par * SLOT + (db >> 2) * 4096 + i * 2048) for i in range(2)]
def q_read(dst, area, ks):
    return "ds_read_b128 %s, %s offset:%d" % (dst, V(vQA), area * QRB + ks * QKS)
def qk_mfmas(par):
    out = []
    for p in range(3):
        for hf in range(2):
            g = 2 * p + hf
            order = list(range(6)) if hf == 0 else list(range(5, -1, -1))
            seq = [(rb, k) for rb in order for k in range(2)] if CHAIN else [(rb, k) for k in range(2) for rb in order]
            for rb, k in seq:
                ks = 2 * p + k
                d = V((G[rb][par] if hf == 0 else X[rb][par]), 4)
                out.append("%s %s, %s, %s, %s" % (MF, d, FB[(2 * g + k) % 4], Qf(rb, ks), "0" if ks == 0 else d))
    return out
def pv_mfmas(par, rbs=range(6), b0=0):
    return ["%s %s, %s, %s, %s" % (MF, O4(rb, db), FB[(b0 + db) % 4], V(G[rb][par], 4), O4(rb, db)) for db in range(12) for rb in rbs]
def sregs(rb, par): return [G[rb][par] + i for i in range(4)] + [X[rb][par] + i for i in range(4)]
def sm(rb, par, half):
    ops = []; s = sregs(rb, par)
    for i in (4 * half, 4 * half + 2):
        ops.append("v_exp_f32 %s, %s" % (V(s[i]), V(s[i])))
        ops.append("v_exp_f32 %s, %s" % (V(s[i + 1]), V(s[i + 1])))
        ops.append("v_add_f32 %s, %s, %s" % (V(vL[rb]), V(vL[rb]), V(s[i])))
        ops.append("v_add_f32 %s, %s, %s" % (V(vL[rb]), V(vL[rb]), V(s[i + 1])))
        ops.append("v_cvt_pk_bf16_f32 %s, %s, %s" % (V(G[rb][par] + i // 2), V(s[i]), V(s[i + 1])))
    return ops
def dma(srd, soff, smbase, cb):
    return ("s_add_u32 m0, %s, %d" % (smbase, cb * (4096 - 128)),
            "buffer_load_dwordx4 %s, %s, %s offen offset:%d %s lds" % (V(vDMA), srd, soff, cb * 128, NT))
def last_write_slot(mf, reg):
    return max(g for g, t in enumerate(mf) if reg in Ins(t).wr)
def paced(ops, g0, g1, floor=0, dead=10 ** 9):
    os_ = [Op(t) for t in ops]; tot = sum(o.cost for o in os_); acc = 0
    for o in os_:
        o.ming = max(floor, int(g0 + (g1 - g0) * acc / tot)); o.dead = dead; acc += o.cost
    return os_

def body(par, ds_in):
    np_ = par ^ 1
    qk = qk_mfmas(np_)
    mf = qk + pv_mfmas(par)
    pinned = {}
    def pin(g, t): pinned.setdefault(g, []).append(t)
    for g in range(1, 6):
        for k in range(2): pin(12 * (g - 1) + int(opts.get("ksp", 2)) * k, k_read(FB[(2 * g + k) % 4], np_, 2 * (g >> 1) + k, g & 1))
    for db in range(12):
        gp = {0: 60, 1: 63, 2: 72, 3: 75}.get(db, 72 + 6 * (db - 3))
        for t in v_read(db % 4, par, db): pin(gp, t)
    pin(127, k_read(FB[0], par, 0, 0)); pin(133, k_read(FB[1], par, 1, 0))
    lastq = {}
    for g, t in enumerate(qk):
        for rb in LATE:
            for k in range(2):
                if FQ[rb][k] in t: lastq[(g // 24, rb, k)] = g
    for p in range(3):
        gs = sorted((lastq[(p, rb, k)], rb, k) for rb in LATE for k in range(2))
        g = gs[-1][0] + 1 if not CHAIN else 0
        for (lg, rb, k) in gs:
            g = max(g, lg + 1)
            while g in pinned: g += 1
            pin(g, q_read(FQ[rb][k], rb - 4, (2 * p + 2 + k) % 6)); g += int(opts.get("qsp", 1))
    scal = []
    scal.append((54, ["s_waitcnt vmcnt(9)", "s_barrier"], False))
    dg = [int(x) for x in opts.get("dg", "70,81,93,105,117,130").split(",")]
    for i in range(6):
        a, b = dma(sK, sKoff, sKm, i) if i < 3 else dma(sV, sVoff, sVm, i - 3)
        assert dg[i] not in pinned, dg[i]
        scal.append((dg[i] - 1, [a], True)); pin(dg[i], b)
    scal.append((dg[2] + 1, ["s_add_u32 %s, %s, %d" % (sKoff, sKoff, SLOT), "s_add_u32 %s, %s, %d" % (sKm, sKm, SLOT),
                      "s_cmp_eq_u32 %s, %s" % (sKm, sKend), "s_cselect_b32 %s, %s, %s" % (sKm, sKbeg, sKm)], False))
    scal.append((dg[5] + 1, ["s_add_u32 %s, %s, %d" % (sVoff, sVoff, SLOT), "s_add_u32 %s, %s, %d" % (sVm, sVm, SLOT),
                       "s_cmp_eq_u32 %s, %s" % (sVm, sVend), "s_cselect_b32 %s, %s, %s" % (sVm, sVbeg, sVm)], False))
    if par == 0:
        scal.append((139, ["s_add_u32 %s, %s, 1" % (sIT, sIT), "s_cmp_eq_u32 %s, 8" % sIT], False))
    st = []
    st += paced(sum([sm(rb, par, h) for rb in LATE for h in range(2)], []), 0, 50, dead=70)
    if par == 0:
        st += [Op("v_xor_b32 %s, 0x1e000, %s" % (V(a), V(a)), 44, 58) for a in vVA]
        st += [Op("v_xor_b32 %s, 0x6000, %s" % (V(a), V(a)), 52, 125) for a in vKA]
    seq = [(0, 0), (1, 0), (2, 0), (3, 0), (3, 1), (2, 1), (1, 1), (0, 1)]
    E0 = int(opts.get("e0", 56)); E1 = int(opts.get("e1", 140))
    for n, (rb, h) in enumerate(seq):
        ready = last_write_slot(qk, "v%d" % sregs(rb, np_)[4 * h]) + 5
        st += paced(sm(rb, np_, h), E0 + (E1 - E0) * n / 8, E0 + (E1 - E0) * (n + 1) / 8, floor=ready)
    return schedule(mf, pinned, scal, st, ds_in, "body%d" % par, next_first=qk_mfmas(par)[0])

def stamp(i): return ["s_memrealtime s[%d:%d]" % (60 + 2 * i, 61 + 2 * i)] if STAMP else []

P = []
A = P.append
A("s_cmp_ge_u32 s2, 256")
A("s_cbranch_scc1 L_end")
A("s_load_dwordx4 s[4:7], s[0:1], 0")
A("s_load_dwordx4 s[8:11], s[0:1], 16")
if STAMP: A("s_load_dwordx2 s[12:13], s[0:1], 40")
P += stamp(0)
vJ = 240
if int(opts.get("cpf", 1)):
    A("s_getpc_b64 s[18:19]")
    A("v_lshlrev_b32 v%d, 7, v0" % vJ)
    A("v_min_u32 v%d, CODE_HOT_BYTES, v%d" % (vJ, vJ))
    A("global_load_dword v%d, v%d, s[18:19]" % (vJ + 1, vJ))
vLN = 242; vQG = vT[0]; vQW = vT[1]; t2 = 243; t3 = 244; t4 = 245; t5 = 246
A("v_lshrrev_b32 v%d, 6, v0" % t2)
A("v_and_b32 v%d, 63, v0" % vLN)
A("s_mul_i32 s14, s2, 147456")
A("v_readfirstlane_b32 %s, v%d" % (sWave, t2))
A("s_mul_i32 s15, s2, 196608")
A("s_bfe_u32 %s, s2, 0x30003" % sCls)
A("v_lshrrev_b32 v%d, 3, v%d" % (t5, vLN))
A("v_mul_u32_u24 v%d, 384, v%d" % (t2, t5))
A("v_lshrrev_b32 v%d, 4, v%d" % (t3, vLN))
A("v_lshlrev_b32 v%d, 1, v%d" % (t4, t3))
A("v_xor_b32 v%d, v%d, v%d" % (t4, t4, vLN))
A("v_and_b32 v%d, 7, v%d" % (t4, t4))
A("v_lshl_add_u32 v%d, v%d, 4, v%d" % (vDMA, t4, t2))
A("s_mul_i32 %s, %s, 3072" % (sTmp, sWave))
A("v_add_u32 v%d, %s, v%d" % (vDMA, sTmp, vDMA))
A("v_and_b32 v%d, 7, v%d" % (t4, vLN))
A("v_lshl_add_u32 v%d, v%d, 4, v%d" % (vQG, t4, t2))
A("s_mul_i32 %s, %s, 36864" % (sRow, sWave))
A("v_add_u32 v%d, %s, v%d" % (vQG, sRow, vQG))
A("s_lshl_b32 %s, %s, 10" % (sKbeg, sWave))
A("s_add_u32 %s, %s, %d" % (sVbeg, sKbeg, VRING))
for rb in range(1, 6): A("s_mov_b32 %s, %d" % (sRB(rb), rb * 6144))
A("s_waitcnt lgkmcnt(0)")
def srd(base, src, off, size):
    A("s_add_u32 s%d, s%d, %s" % (base, src, off)); A("s_addc_u32 s%d, s%d, 0" % (base + 1, src + 1))
    A("s_mov_b32 s%d, %d" % (base + 2, size)); A("s_mov_b32 s%d, 0x20000" % (base + 3))
vm = []
def stg_point():
    n = len(vm) - 1
    if STG and n < len(STG) and STG[n] < 8:
        A("s_cmp_lt_u32 %s, %d" % (sCls, STG[n]))
        A("s_cbranch_scc1 L_stg%d" % n)
        A("s_waitcnt vmcnt(0)")
        A("L_stg%d:" % n)
def pro_tile(name, tile):
    srd_, beg = (sK, sKbeg) if name == "K" else (sV, sVbeg)
    A("s_mov_b32 %s, %d" % (sTmp, tile * SLOT))
    for cb in range(3):
        A("s_add_u32 m0, %s, %d" % (beg, tile * SLOT + cb * (4096 - 128)))
        A("s_nop 0")
        A("buffer_load_dwordx4 %s, %s, %s offen offset:%d %s lds" % (V(vDMA), srd_, sTmp, cb * 128, NT))
        vm.append("%s%d" % (name, tile)); stg_point()
def raw(rb, i): return 96 + rb * 24 + i * 4
def q_issue(rb):
    for i in range(6):
        A("buffer_load_dwordx4 %s, v%d, %s, %s offen offset:%d %s" % (V(raw(rb, i), 4), vQG, sQ, sRB(rb), (i // 3) * 3072 + (i % 3) * 128, NT))
        vm.append("Q%d.%d" % (rb, i)); stg_point()
def vwait(name):
    last = max(i for i, x in enumerate(vm) if x == name)
    A("s_waitcnt vmcnt(%d)" % (len(vm) - 1 - last))
srd(24, 6, "s15", 196608)
pro_tile("K", 0)
srd(20, 4, "s14", 147456)
for rb in range(QD): q_issue(rb)
srd(28, 8, "s15", 196608); srd(32, 10, "s14", 147456)
if int(opts.get("tlb", 0)):
    A("buffer_load_dword a112, v%d, %s, 0 offen nt" % (vQG, sO)); vm.append("tlb")
kvq = [("K", 1), ("V", 0), ("K", 2), ("V", 1), ("K", 3), ("V", 2)]
if STAMP:
    A("s_mov_b32 s36, s12"); A("s_mov_b32 s37, s13"); A("s_mov_b32 s38, 0x100000"); A("s_mov_b32 s39, 0x20000")
A("s_add_u32 %s, %s, %d" % (sKend, sKbeg, 4 * SLOT))
A("s_add_u32 %s, %s, %d" % (sVend, sVbeg, 4 * SLOT))
A("s_mul_i32 %s, %s, %d" % (sQL, sWave, QWAVE))
A("s_add_u32 %s, %s, %d" % (sQL, sQL, QLDS))
A("v_and_b32 v%d, 3, v%d" % (t4, vLN))
A("v_xor_b32 v%d, v%d, v%d" % (t2, t5, t4))
A("v_lshlrev_b32 v%d, 4, v%d" % (t2, t2))
A("v_lshl_add_u32 v%d, v%d, 8, v%d" % (t2, t4, t2))
A("v_bfe_u32 v%d, v%d, 2, 1" % (t4, vLN))
A("v_mul_u32_u24 v%d, %d, v%d" % (t4, QKS, t4))
A("v_add3_u32 v%d, v%d, v%d, %s" % (vQW, t2, t4, sQL))
A("v_and_b32 v%d, 15, v%d" % (t2, vLN))
A("v_xor_b32 v%d, v%d, v%d" % (t4, t2, t3))
A("v_lshlrev_b32 v%d, 4, v%d" % (t4, t4))
A("v_lshl_add_u32 v%d, v%d, 8, v%d" % (t4, t3, t4))
A("v_add_u32 v%d, %s, v%d" % (vQA, sQL, t4))
A("v_and_b32 v%d, 6, v%d" % (t4, vLN))
A("v_xor_b32 v%d, v%d, v%d" % (t4, t4, t3))
A("v_lshlrev_b32 v%d, 4, v%d" % (t4, t4))
A("v_lshl_add_u32 v%d, v%d, 7, v%d" % (vKA[0], t2, t4))
A("v_xor_b32 v%d, 64, v%d" % (vKA[1], vKA[0]))
A("v_lshrrev_b32 v%d, 2, v%d" % (t4, vLN))
A("v_lshlrev_b32 v%d, 7, v%d" % (t4, t4))
A("v_and_b32 v%d, 3, v%d" % (t2, vLN))
A("v_lshl_add_u32 v%d, v%d, 3, v%d" % (t4, t2, t4))
A("v_bfe_u32 v%d, v%d, 3, 2" % (t2, vLN))
A("v_lshl_add_u32 v%d, v%d, 5, v%d" % (t4, t2, t4))
A("v_add_u32 v%d, %d, v%d" % (vVA[0], VRING + 2 * SLOT, t4))
for x in range(1, 4): A("v_xor_b32 v%d, %d, v%d" % (vVA[x], 32 * x, vVA[0]))
A("s_mov_b32 s40, 0x%x" % CSCALE); A("s_mov_b32 s41, 0x%x" % CSCALE)
A("s_mov_b32 %s, 0" % sIT)
A("s_mov_b32 %s, %d" % (sKoff, 4 * SLOT))
A("s_mov_b32 %s, %d" % (sVoff, 3 * SLOT))
A("s_mov_b32 %s, %s" % (sKm, sKbeg))
A("s_add_u32 %s, %s, %d" % (sVm, sVbeg, 3 * SLOT))
A("s_mov_b32 %s, 0x%x" % (sLo, f2u(2.0 ** float(opts.get("llo", -20)))))
A("s_mov_b32 %s, 0x%x" % (sHi, f2u(2.0 ** float(opts.get("lhi", 24)))))
for i in vL: A("v_mov_b32 v%d, 0" % i)
ZR = FQ[5][1]
for i in range(4): A("v_accvgpr_write_b32 a%d, 0" % (124 + i))
A("v_mov_b32 v%d, %d" % (t2, FLAG))
A("ds_write_b32 v%d, v%d" % (t2, vL[0]))
def zero16(f, i): A("v_mfma_f32_32x32x16_bf16 %s[%d:%d], %s, %s, 0" % (f, i, i + 15, ZR, ZR))
for i in range(128, 256, 16): zero16("a", i)
vwait("K0")
A("s_waitcnt lgkmcnt(0)")
A("s_barrier")
K0F = [V(G[rb][1], 4) for rb in range(6)] + [V(X[rb][1], 4) for rb in LATE] + FB
for n in range(12): A(k_read(K0F[n], 0, n >> 1, n & 1))
def pro_sm(rb):
    ops = sm(rb, 0, 0) + sm(rb, 0, 1)
    for t in [t for t in ops if t.startswith("v_exp")] + ["s_nop 0"] + [t for t in ops if not t.startswith("v_exp")]: A(t)
for rb in range(6):
    area = rb & 1
    for i in range(6):
        vwait("Q%d.%d" % (rb, i))
        if rb == 5 and i == 5: P += stamp(1)
        r0 = raw(rb, i)
        for k in range(4):
            t = 240 + 2 * k + 8 * (i & 1)
            A("v_lshlrev_b32 v%d, 16, v%d" % (t, r0 + k)); A("v_and_b32 v%d, 0xffff0000, v%d" % (t + 1, r0 + k))
        for k in range(4):
            t = 240 + 2 * k + 8 * (i & 1)
            A("v_pk_mul_f32 %s, %s, %s" % (V(t, 2), V(t, 2), sC2))
        for k in range(4):
            t = 240 + 2 * k + 8 * (i & 1)
            A("v_cvt_pk_bf16_f32 v%d, v%d, v%d" % (r0 + k, t, t + 1))
        A("ds_write_b128 v%d, %s offset:%d" % (vQW, V(r0, 4), area * QRB + (i % 3) * 2 * QKS + (i // 3) * 128))
    if rb >= 4: A("s_waitcnt lgkmcnt(0)")
    qd_ = [Ac(rb * 24 + ks * 4, 4) if rb < 4 else V(raw(rb, ks), 4) for ks in range(6)]
    for ks in range(6): A(q_read(qd_[ks], area, ks))
    if rb + QD < 6: q_issue(rb + QD)
    else:
        n_now = -(-len(kvq) // (6 - rb))
        for _ in range(min(n_now, len(kvq))): pro_tile(*kvq.pop(0))
    if rb >= 1 and rb - 1 in EARLY: pro_sm(rb - 1)
    if rb in (2, 4, 5):
        for i in {2: (96, 112, 128), 4: (144, 160, 176), 5: (192,)}[rb]: zero16("v", i)
    for ks in range(6):
        A("s_waitcnt lgkmcnt(%d)" % (5 - ks))
        for hf in range(2):
            d = V((G[rb][0] if hf == 0 else X[rb][0]), 4)
            A("%s %s, %s, %s, %s" % (MF, d, K0F[2 * ks + hf], qd_[ks], "0" if ks == 0 else d))
for i in (208, 224, 240): zero16("v", i)
vwait("K1")
A("s_barrier")
A(k_read(FB[0], 1, 0, 0)); A(k_read(FB[1], 1, 1, 0))
for rb in LATE:
    for k in range(2): A(q_read(FQ[rb][k], rb - 4, k))
assert not kvq and vm[-18:] == ["K1"] * 3 + ["V0"] * 3 + ["K2"] * 3 + ["V1"] * 3 + ["K3"] * 3 + ["V2"] * 3, vm
A("s_waitcnt lgkmcnt(0)")
P += stamp(2)

B0, q0 = body(0, [])
B1, q1 = body(1, q0)
B0, q0b = body(0, q1)
assert q0 == q0b
def strip(B):
    o = []
    for t in B:
        if "nobar" in opts and (t == "s_barrier" or "vmcnt" in t): continue
        if "nodma" in opts and (t.startswith("buffer_load") or "vmcnt" in t): continue
        if "nolds" in opts and (t.startswith("ds_read") or "lgkmcnt" in t): continue
        if "nowait" in opts and "lgkmcnt" in t: continue
        if "novalu" in opts and t.startswith("v_") and not t.startswith("v_mfma"): continue
        o.append(t)
    return o
B0 = strip(B0); B1 = strip(B1)
if STAMP == 3:
    pre = ["s_mov_b32 m0, s84", "s_nop 0", "v_writelane_b32 v15, s80, m0", "v_writelane_b32 v14, s82, m0", "s_add_u32 s84, s84, 1", "s_memrealtime s[80:81]", "s_memtime s[82:83]"]
    B0 = pre + B0; B1 = pre + B1
    P += ["s_mov_b32 s84, 0", "s_mov_b32 s80, 0", "s_mov_b32 s82, 0"]

T = []
A = T.append
T += stamp(3)
if STAMP == 3:
    T += pre + ["s_waitcnt lgkmcnt(0)"] + pre[:4]
    A("v_mbcnt_lo_u32_b32 v0, -1, 0"); A("v_mbcnt_hi_u32_b32 v0, -1, v0"); A("v_lshlrev_b32 v0, 3, v0")
    A("s_lshl_b32 s3, s2, 2"); A("s_add_u32 s3, s3, %s" % sWave); A("s_lshl_b32 s3, s3, 9"); A("s_add_u32 s3, s3, 65536")
    A("buffer_store_dwordx2 v[14:15], v0, %s, s3 offen" % sW)
A("s_waitcnt vmcnt(0) lgkmcnt(0)")
A("s_barrier")
for db in range(3):
    for t in v_read(db, 1, db): A(t)
mf = pv_mfmas(1, EARLY) + pv_mfmas(1, LATE)
pinned = {}
for n in range(3, 24):
    m = n - 4
    g = 0 if m < 0 else (4 * m + 4 if m < 12 else 48 + 2 * (m - 12) + 2)
    g = min(g, 71)
    pinned.setdefault(g, []).extend(v_read(n % 4, 1, n % 12))
dsT = [set(expand(FBh[b][i])) for b in range(3) for i in range(2)]
st = [Op(t, 0, 45) for rb in LATE for h in range(2) for t in sm(rb, 1, h)]
tmp = [G[rb][0] for rb in range(6)]
def lred(rbs, g0):
    o = []
    for stage, sw in enumerate(("v_permlane32_swap_b32", "v_permlane16_swap_b32")):
        o += [Op("v_mov_b32 %s, %s" % (V(tmp[rb]), V(vL[rb])), g0) for rb in rbs]
        o += [Op("v_nop", g0), Op("v_nop", g0)]
        o += [Op("%s %s, %s" % (sw, V(vL[rb]), V(tmp[rb])), g0) for rb in rbs]
        o += [Op("v_add_f32 %s, %s, %s" % (V(vL[rb]), V(vL[rb]), V(tmp[rb])), g0) for rb in rbs]
    return o
eLN = G[0][0] + 1; eW = [vKA[0], vKA[1], vQA, vDMA]; eR = vT[0]; eS = vT[1]; e1 = G[1][0] + 1; e2 = G[2][0] + 1; e3 = G[3][0] + 1
addr = ["v_mbcnt_lo_u32_b32 v%d, -1, 0" % eLN, "v_mbcnt_hi_u32_b32 v%d, -1, v%d" % (eLN, eLN),
        "v_and_b32 v%d, 15, v%d" % (e1, eLN), "v_mul_u32_u24 v%d, 384, v%d" % (e1, e1),
        "v_bfe_u32 v%d, v%d, 4, 1" % (e2, eLN), "v_lshl_add_u32 v%d, v%d, 3, v%d" % (e1, e2, e1),
        "v_lshrrev_b32 v%d, 5, v%d" % (e2, eLN), "v_xor_b32 v%d, v%d, v%d" % (e2, e2, eLN), "v_and_b32 v%d, 7, v%d" % (e2, e2),
        "v_add_u32 v%d, %s, v%d" % (e1, sQL, e1)] + \
       sum([["v_xor_b32 v%d, %d, v%d" % (e3, 2 * x, e2), "v_lshl_add_u32 v%d, v%d, 4, v%d" % (eW[x], e3, e1)] for x in range(4)], []) + \
       ["v_lshrrev_b32 v%d, 3, v%d" % (e1, eLN), "v_xor_b32 v%d, v%d, v%d" % (e2, e1, eLN), "v_and_b32 v%d, 7, v%d" % (e2, e2),
        "v_mul_u32_u24 v%d, 384, v%d" % (e1, e1), "v_lshl_add_u32 v%d, v%d, 4, v%d" % (eR, e2, e1), "v_add_u32 v%d, %s, v%d" % (eR, sQL, eR),
        "v_and_b32 v%d, 7, v%d" % (e2, eLN), "v_lshl_add_u32 v%d, v%d, 4, v%d" % (eS, e2, e1), "v_add_u32 v%d, %s, v%d" % (eS, sRow, eS)]
for t in addr: A(t)
PVT, _ = schedule(mf, pinned, [], st, dsT, "tailpv")
T += PVT
T += stamp(4)
for o in lred(range(6), 0): A(o.i.text)
mn = tmp[0]; mx = tmp[1]
A("v_min3_f32 v%d, v%d, v%d, v%d" % (mn, vL[0], vL[1], vL[2])); A("v_min3_f32 v%d, v%d, v%d, v%d" % (mn, vL[3], vL[4], mn)); A("v_min_f32 v%d, v%d, v%d" % (mn, vL[5], mn))
A("v_add_f32 v%d, v%d, v%d" % (mx, vL[0], vL[1]))
for i in range(2, 6): A("v_add_f32 v%d, v%d, v%d" % (mx, mx, vL[i]))
A("v_cmp_nle_f32 vcc, %s, v%d" % (sLo, mn))
A("v_cmp_nge_f32 %s, %s, v%d" % (sBad, sHi, mx))
for rb in range(6): A("v_rcp_f32 %s, %s" % (V(vL[rb]), V(vL[rb])))
A("s_or_b64 %s, %s, vcc" % (sBad, sBad))
A("s_cbranch_scc0 L_good")
A("v_mov_b32 v%d, %d" % (mn, FLAG)); A("v_mov_b32 v%d, 1" % mx)
A("ds_write_b32 v%d, v%d" % (mn, mx))
A("L_good:")
def ep_convert(rb):
    lp = vL[rb] & ~1; sel = vL[rb] & 1; area = rb & 1
    for db in range(12):
        w = 16 + (db % 5) * 6
        fl, i0 = Oreg(rb, db)
        if fl == "a":
            for i in range(4): A("v_accvgpr_read_b32 %s, %s" % (V(w + i), Ac(i0 + i)))
            src = w
        else: src = i0
        for i in (0, 2):
            A("v_pk_mul_f32 %s, %s, %s op_sel:[0,%d] op_sel_hi:[1,%d]" % (V(w + i, 2), V(src + i, 2), V(lp, 2), sel, sel))
        for i in range(2):
            A("v_cvt_pk_bf16_f32 %s, %s, %s" % (V(w + 4 + i), V(w + 2 * i), V(w + 2 * i + 1)))
        A("ds_write_b64 v%d, %s offset:%d" % (eW[db & 3], V(w + 4, 2), area * QRB + (db >> 2) * 128))
        if rb >= 1 and db == 2:
            A("s_waitcnt lgkmcnt(3)"); ep_store(rb - 1)
def ep_read(rb):
    for i in range(6):
        A("ds_read_b128 %s, v%d offset:%d" % (V(48 + (rb & 1) * 24 + 4 * i, 4), eR, (rb & 1) * QRB + (i // 3) * 3072 + (i % 3) * 128))
def ep_store(rb):
    for i in range(6):
        A("buffer_store_dwordx4 %s, v%d, %s, %s offen offset:%d %s" % (V(48 + (rb & 1) * 24 + 4 * i, 4), eS, sO, sRB(rb), (i // 3) * 3072 + (i % 3) * 128, SPOL))
for rb in range(6):
    ep_convert(rb); ep_read(rb)
A("s_waitcnt lgkmcnt(0)")
ep_store(5)
if STAMP:
    T += stamp(5)
    A("s_waitcnt vmcnt(0)")
    T += stamp(6)
    A("s_waitcnt lgkmcnt(0)")
    A("s_lshl_b32 s3, s2, 2"); A("s_add_u32 s3, s3, %s" % sWave); A("s_lshl_b32 s3, s3, 6")
    A("v_mov_b32 v10, s3")
    for i in range(16): A("v_mov_b32 v%d, s%d" % (12 + i, 60 + i))
    for i in range(4): A("buffer_store_dwordx4 v[%d:%d], v10, %s, 0 offen offset:%d" % (12 + 4 * i, 15 + 4 * i, sW, 16 * i))
A("s_barrier")
A("v_mov_b32 v0, %d" % FLAG)
A("ds_read_b32 v0, v0")
A("s_waitcnt lgkmcnt(0)")
A("v_readfirstlane_b32 %s, v0" % sTmp)
A("s_cmp_eq_u32 %s, 0" % sTmp)
A("s_cbranch_scc0 L_redo")
A("L_end:")
A("s_endpgm")
A("L_redo:")
A("s_waitcnt vmcnt(0)")
A("s_barrier")
A("v_mbcnt_lo_u32_b32 v0, -1, 0"); A("v_mbcnt_hi_u32_b32 v0, -1, v0")
A("s_lshl_b32 %s, %s, 6" % (sTmp, sWave))
A("v_add_u32 v0, %s, v0" % sTmp)

def I(l): return [Ins(t) for t in l]
seq = I(P) + I(B0) + I(["s_cbranch_scc1 L_tail"]) + I(B1) + I(["s_branch L_loop"]) + I(B0) + I(["s_cbranch_scc1 L_tail"]) + I(T)
errs = check_hazards(seq, "main") + check_waits(seq, "main")
for e in errs[:30]: sys.stderr.write(e + "\n")
if errs and not any(k.startswith("no") for k in opts):
    print("!!! %d hazard problems" % len(errs)); sys.exit(1)
S, lds2, e2_ = gen_safe.build_safe({"qd": "3", "nt": NT})
assert lds2 <= LDS_BYTES and e2_ == 0

hdr = open("standalone__gqa_softmax__near_ridge.s.ref").read().split("; Override")[0]
out = [hdr.rstrip(), "; @launch grid=(256,1,1) block=(256,1,1) lds=%d" % LDS_BYTES,
       '.amdgcn_target "amdgcn-amd-amdhsa--gfx950"', ".text", ".globl %s" % KN, ".p2align 8", ".type %s,@function" % KN, "%s:" % KN, "L_start:"]
def emit(l):
    for t in l: out.append(t if t.endswith(":") or t.startswith(".") else "    " + t)
emit(P); emit([".p2align 6", "L_loop:"]); emit(B0); emit(["s_cbranch_scc1 L_tail"]); emit(B1); emit(["s_branch L_loop", "L_tail:"]); emit(T); emit(S)
out = [t.replace("CODE_HOT_BYTES", "L_end-L_start") for t in out]
out += ['.section .rodata,"a"', ".p2align 6", ".amdhsa_kernel %s" % KN, "  .amdhsa_next_free_vgpr 512", "  .amdhsa_next_free_sgpr 96",
        "  .amdhsa_accum_offset 256", "  .amdhsa_group_segment_fixed_size 0", "  .amdhsa_kernarg_size 48", "  .amdhsa_user_sgpr_count 2",
        "  .amdhsa_user_sgpr_kernarg_segment_ptr 1", "  .amdhsa_system_sgpr_workgroup_id_x 1", ".end_amdhsa_kernel", ""]
open(sys.argv[1], "w").write("\n".join(out))
```

```python
import sys, math, struct
from asmlib import *
from sched import *
import gen_safe

opts = dict(a.split("=") for a in sys.argv[2:])
STAMP = int(opts.get("stamp", 0))
NT = opts.get("nt", "nt")
SPOL = opts.get("spol", "sc1").replace("+", " ")
QD = int(opts.get("qd", 4))
STG = [int(x) for x in opts["stg"].split(",")] if "stg" in opts else None
CHAIN = int(opts.get("chain", 1))
KN = "standalone__gqa_softmax__near_ridge_kernel"
def f2u(x): return struct.unpack("<I", struct.pack("<f", x))[0]
CSCALE = f2u(math.log2(math.e) / math.sqrt(192.0))

KRING = 0; VRING = 49152; QLDS = 98304; SLOT = 12288
QKS = 1088; QRB = 6 * QKS; QWAVE = 2 * QRB
FLAG = QLDS + 4 * QWAVE
LDS_BYTES = FLAG + 64
def V(i, n=1): return "v%d" % i if n == 1 else "v[%d:%d]" % (i, i + n - 1)
def Ac(i, n=1): return "a%d" % i if n == 1 else "a[%d:%d]" % (i, i + n - 1)
vKA = [0, 1]; vVA = [2, 3, 4, 5]; vQA = 6; vDMA = 7
vL = [8 + i for i in range(6)]; vT = [14, 15]
FB = [Ac(96 + 4 * i, 4) for i in range(4)]
FBh = [(Ac(96 + 4 * i, 2), Ac(98 + 4 * i, 2)) for i in range(4)]
FQ = {4: [Ac(112, 4), Ac(116, 4)], 5: [Ac(120, 4), Ac(124, 4)]}
EARLY = [0, 1, 2, 3]; LATE = [4, 5]
G = {}; X = {}
r = 16
for rb in LATE:
    G[rb] = [r, r + 4]; X[rb] = [r + 8, r + 12]; r += 16
for rb in EARLY:
    G[rb] = [r, r + 4]; X[rb] = [r + 8, r + 8]; r += 12
assert r == 96
def Oreg(rb, db):
    b = rb * 12 + db
    return ("v", 96 + 4 * b) if b < 40 else ("a", 128 + 4 * (b - 40))
def O4(rb, db):
    f, i = Oreg(rb, db); return "%s[%d:%d]" % (f, i, i + 3)
def Qf(rb, ks): return Ac(rb * 24 + ks * 4, 4) if rb < 4 else FQ[rb][ks & 1]
sQ = "s[20:23]"; sK = "s[24:27]"; sV = "s[28:31]"; sO = "s[32:35]"; sW = "s[36:39]"
sC2 = "s[40:41]"; sIT = "s42"; sKoff = "s43"; sVoff = "s44"; sKm = "s45"; sVm = "s46"; sWave = "s47"
sTmp = "s48"; sRow = "s49"; sKend = "s50"; sVend = "s51"; sKbeg = "s52"; sVbeg = "s53"; sQL = "s16"; sCls = "s17"
sLo = "s76"; sHi = "s77"; sBad = "s[78:79]"
def sRB(rb): return "0" if rb == 0 else "s%d" % (54 + rb)
MF = "v_mfma_f32_16x16x32_bf16"

def k_read(dst, tile_par, ks, hf):
    return "ds_read_b128 %s, %s offset:%d" % (dst, V(vKA[ks & 1]), tile_par * SLOT + (ks >> 1) * 4096 + hf * 2048)
def v_read(buf, tile_par, db):
    return ["ds_read_b64_tr_b16 %s, %s offset:%d" % (FBh[buf][i], V(vVA[db & 3]), tile_par * SLOT + (db >> 2) * 4096 + i * 2048) for i in range(2)]
def q_read(dst, area, ks):
    return "ds_read_b128 %s, %s offset:%d" % (dst, V(vQA), area * QRB + ks * QKS)
def qk_mfmas(par):
    out = []
    for p in range(3):
        for hf in range(2):
            g = 2 * p + hf
            order = list(range(6)) if hf == 0 else list(range(5, -1, -1))
            seq = [(rb, k) for rb in order for k in range(2)] if CHAIN else [(rb, k) for k in range(2) for rb in order]
            for rb, k in seq:
                ks = 2 * p + k
                d = V((G[rb][par] if hf == 0 else X[rb][par]), 4)
                out.append("%s %s, %s, %s, %s" % (MF, d, FB[(2 * g + k) % 4], Qf(rb, ks), "0" if ks == 0 else d))
    return out
def pv_mfmas(par, rbs=range(6), b0=0):
    return ["%s %s, %s, %s, %s" % (MF, O4(rb, db), FB[(b0 + db) % 4], V(G[rb][par], 4), O4(rb, db)) for db in range(12) for rb in rbs]
def sregs(rb, par): return [G[rb][par] + i for i in range(4)] + [X[rb][par] + i for i in range(4)]
def sm(rb, par, half):
    ops = []; s = sregs(rb, par)
    for i in (4 * half, 4 * half + 2):
        ops.append("v_exp_f32 %s, %s" % (V(s[i]), V(s[i])))
        ops.append("v_exp_f32 %s, %s" % (V(s[i + 1]), V(s[i + 1])))
        ops.append("v_add_f32 %s, %s, %s" % (V(vL[rb]), V(vL[rb]), V(s[i])))
        ops.append("v_add_f32 %s, %s, %s" % (V(vL[rb]), V(vL[rb]), V(s[i + 1])))
        ops.append("v_cvt_pk_bf16_f32 %s, %s, %s" % (V(G[rb][par] + i // 2), V(s[i]), V(s[i + 1])))
    return ops
def dma(srd, soff, smbase, cb):
    return ("s_add_u32 m0, %s, %d" % (smbase, cb * (4096 - 128)),
            "buffer_load_dwordx4 %s, %s, %s offen offset:%d %s lds" % (V(vDMA), srd, soff, cb * 128, NT))
def last_write_slot(mf, reg):
    return max(g for g, t in enumerate(mf) if reg in Ins(t).wr)
def paced(ops, g0, g1, floor=0, dead=10 ** 9):
    os_ = [Op(t) for t in ops]; tot = sum(o.cost for o in os_); acc = 0
    for o in os_:
        o.ming = max(floor, int(g0 + (g1 - g0) * acc / tot)); o.dead = dead; acc += o.cost
    return os_

def body(par, ds_in):
    np_ = par ^ 1
    qk = qk_mfmas(np_)
    mf = qk + pv_mfmas(par)
    pinned = {}
    def pin(g, t): pinned.setdefault(g, []).append(t)
    for g in range(1, 6):
        for k in range(2): pin(12 * (g - 1) + int(opts.get("ksp", 2)) * k, k_read(FB[(2 * g + k) % 4], np_, 2 * (g >> 1) + k, g & 1))
    for db in range(12):
        gp = {0: 60, 1: 63, 2: 72, 3: 75}.get(db, 72 + 6 * (db - 3))
        for t in v_read(db % 4, par, db): pin(gp, t)
    pin(127, k_read(FB[0], par, 0, 0)); pin(133, k_read(FB[1], par, 1, 0))
    lastq = {}
    for g, t in enumerate(qk):
        for rb in LATE:
            for k in range(2):
                if FQ[rb][k] in t: lastq[(g // 24, rb, k)] = g
    for p in range(3):
        gs = sorted((lastq[(p, rb, k)], rb, k) for rb in LATE for k in range(2))
        g = gs[-1][0] + 1 if not CHAIN else 0
        for (lg, rb, k) in gs:
            g = max(g, lg + 1)
            while g in pinned: g += 1
            pin(g, q_read(FQ[rb][k], rb - 4, (2 * p + 2 + k) % 6)); g += int(opts.get("qsp", 1))
    scal = []
    if par == 0:
        scal.append((50, ["s_cmp_eq_u32 %s, 7" % sIT], True))
        scal.append((51, ["s_cbranch_scc1 L_lastw", "L_lastback:"], True))
    scal.append((54, ["s_waitcnt vmcnt(9)", "s_barrier"], False))
    dg = [int(x) for x in opts.get("dg", "70,81,93,105,117,130").split(",")]
    for i in range(6):
        a, b = dma(sK, sKoff, sKm, i) if i < 3 else dma(sV, sVoff, sVm, i - 3)
        assert dg[i] not in pinned, dg[i]
        scal.append((dg[i] - 1, [a], True)); pin(dg[i], b)
    scal.append((dg[2] + 1, ["s_add_u32 %s, %s, %d" % (sKoff, sKoff, SLOT), "s_add_u32 %s, %s, %d" % (sKm, sKm, SLOT),
                      "s_cmp_eq_u32 %s, %s" % (sKm, sKend), "s_cselect_b32 %s, %s, %s" % (sKm, sKbeg, sKm)], False))
    scal.append((dg[5] + 1, ["s_add_u32 %s, %s, %d" % (sVoff, sVoff, SLOT), "s_add_u32 %s, %s, %d" % (sVm, sVm, SLOT),
                       "s_cmp_eq_u32 %s, %s" % (sVm, sVend), "s_cselect_b32 %s, %s, %s" % (sVm, sVbeg, sVm)], False))
    if par == 0:
        scal.append((139, ["s_add_u32 %s, %s, 1" % (sIT, sIT), "s_cmp_eq_u32 %s, 8" % sIT], False))
    st = []
    st += paced(sum([sm(rb, par, h) for rb in LATE for h in range(2)], []), 0, 50, dead=70)
    if par == 0:
        st += [Op("v_xor_b32 %s, 0x1e000, %s" % (V(a), V(a)), 44, 58) for a in vVA]
        st += [Op("v_xor_b32 %s, 0x6000, %s" % (V(a), V(a)), 52, 125) for a in vKA]
    seq = [(0, 0), (1, 0), (2, 0), (3, 0), (3, 1), (2, 1), (1, 1), (0, 1)]
    E0 = int(opts.get("e0", 56)); E1 = int(opts.get("e1", 140))
    for n, (rb, h) in enumerate(seq):
        ready = last_write_slot(qk, "v%d" % sregs(rb, np_)[4 * h]) + 5
        st += paced(sm(rb, np_, h), E0 + (E1 - E0) * n / 8, E0 + (E1 - E0) * (n + 1) / 8, floor=ready)
    return schedule(mf, pinned, scal, st, ds_in, "body%d" % par, next_first=qk_mfmas(par)[0])

def stamp(i): return ["s_memrealtime s[%d:%d]" % (60 + 2 * i, 61 + 2 * i)] if STAMP and STAMP != 4 else []
def cstamp(i): return ["s_memtime s[%d:%d]" % (60 + 2 * i, 61 + 2 * i)] if STAMP == 4 else []

P = []
A = P.append
A("s_cmp_ge_u32 s2, 256")
A("s_cbranch_scc1 L_end")
A("s_load_dwordx4 s[4:7], s[0:1], 0")
A("s_load_dwordx4 s[8:11], s[0:1], 16")
if STAMP: A("s_load_dwordx2 s[12:13], s[0:1], %d" % (32 if "skew" in opts else 40))
P += stamp(0)
vJ = 240
if int(opts.get("cpf", 1)):
    A("s_getpc_b64 s[18:19]")
    A("v_lshlrev_b32 v%d, 7, v0" % vJ)
    A("v_min_u32 v%d, CODE_HOT_BYTES, v%d" % (vJ, vJ))
    A("global_load_dword v%d, v%d, s[18:19]" % (vJ + 1, vJ))
vLN = 242; vQG = vT[0]; vQW = vT[1]; t2 = 243; t3 = 244; t4 = 245; t5 = 246
A("v_lshrrev_b32 v%d, 6, v0" % t2)
A("v_and_b32 v%d, 63, v0" % vLN)
A("s_mul_i32 s14, s2, 147456")
A("v_readfirstlane_b32 %s, v%d" % (sWave, t2))
A("s_mul_i32 s15, s2, 196608")
A("s_bfe_u32 %s, s2, 0x30003" % sCls)
A("v_lshrrev_b32 v%d, 3, v%d" % (t5, vLN))
A("v_mul_u32_u24 v%d, 384, v%d" % (t2, t5))
A("v_lshrrev_b32 v%d, 4, v%d" % (t3, vLN))
A("v_lshlrev_b32 v%d, 1, v%d" % (t4, t3))
A("v_xor_b32 v%d, v%d, v%d" % (t4, t4, vLN))
A("v_and_b32 v%d, 7, v%d" % (t4, t4))
A("v_lshl_add_u32 v%d, v%d, 4, v%d" % (vDMA, t4, t2))
A("s_mul_i32 %s, %s, 3072" % (sTmp, sWave))
A("v_add_u32 v%d, %s, v%d" % (vDMA, sTmp, vDMA))
A("v_and_b32 v%d, 7, v%d" % (t4, vLN))
A("v_lshl_add_u32 v%d, v%d, 4, v%d" % (vQG, t4, t2))
A("s_mul_i32 %s, %s, 36864" % (sRow, sWave))
A("v_add_u32 v%d, %s, v%d" % (vQG, sRow, vQG))
A("s_lshl_b32 %s, %s, 10" % (sKbeg, sWave))
A("s_add_u32 %s, %s, %d" % (sVbeg, sKbeg, VRING))
for rb in range(1, 6): A("s_mov_b32 %s, %d" % (sRB(rb), rb * 6144))
A("s_waitcnt lgkmcnt(0)")
def srd(base, src, off, size):
    A("s_add_u32 s%d, s%d, %s" % (base, src, off)); A("s_addc_u32 s%d, s%d, 0" % (base + 1, src + 1))
    A("s_mov_b32 s%d, %d" % (base + 2, size)); A("s_mov_b32 s%d, 0x20000" % (base + 3))
vm = []
def stg_point():
    n = len(vm) - 1
    if STG and n < len(STG) and STG[n] < 8:
        A("s_cmp_lt_u32 %s, %d" % (sCls, STG[n]))
        A("s_cbranch_scc1 L_stg%d" % n)
        A("s_waitcnt vmcnt(0)")
        A("L_stg%d:" % n)
def pro_tile(name, tile):
    srd_, beg = (sK, sKbeg) if name == "K" else (sV, sVbeg)
    A("s_mov_b32 %s, %d" % (sTmp, tile * SLOT))
    for cb in range(3):
        A("s_add_u32 m0, %s, %d" % (beg, tile * SLOT + cb * (4096 - 128)))
        A("s_nop 0")
        A("buffer_load_dwordx4 %s, %s, %s offen offset:%d %s lds" % (V(vDMA), srd_, sTmp, cb * 128, NT))
        vm.append("%s%d" % (name, tile)); stg_point()
def raw(rb, i): return 96 + rb * 24 + i * 4
def q_issue(rb):
    for i in range(6):
        A("buffer_load_dwordx4 %s, v%d, %s, %s offen offset:%d %s" % (V(raw(rb, i), 4), vQG, sQ, sRB(rb), (i // 3) * 3072 + (i % 3) * 128, NT))
        vm.append("Q%d.%d" % (rb, i)); stg_point()
def vwait(name):
    last = max(i for i, x in enumerate(vm) if x == name)
    A("s_waitcnt vmcnt(%d)" % (len(vm) - 1 - last))
srd(24, 6, "s15", 196608)
pro_tile("K", 0)
K1E = int(opts.get("k1e", 1))
if K1E == 1: pro_tile("K", 1)
srd(20, 4, "s14", 147456)
for rb in range(QD): q_issue(rb)
srd(28, 8, "s15", 196608); srd(32, 10, "s14", 147456)
if int(opts.get("tlb", 0)):
    A("buffer_load_dword a112, v%d, %s, 0 offen nt" % (vQG, sO)); vm.append("tlb")
kvq = [("K", 1), ("V", 0), ("K", 2), ("V", 1), ("K", 3), ("V", 2)][(1 if K1E else 0):]
if STAMP:
    A("s_mov_b32 s36, s12"); A("s_mov_b32 s37, s13"); A("s_mov_b32 s38, %s" % ("64" if "skew" in opts else "0x100000")); A("s_mov_b32 s39, 0x20000")
    if "skew" in opts:
        A("s_not_b32 s80, s60"); A("v_mov_b32 v250, s80"); A("v_mov_b32 v251, 0"); A("s_mov_b64 exec, 1")
        A("buffer_atomic_umax v250, v251, %s, 0 offen" % sW); vm.append("skew"); A("s_mov_b64 exec, -1")
A("s_add_u32 %s, %s, %d" % (sKend, sKbeg, 4 * SLOT))
A("s_add_u32 %s, %s, %d" % (sVend, sVbeg, 4 * SLOT))
A("s_mul_i32 %s, %s, %d" % (sQL, sWave, QWAVE))
A("s_add_u32 %s, %s, %d" % (sQL, sQL, QLDS))
A("v_and_b32 v%d, 3, v%d" % (t4, vLN))
A("v_xor_b32 v%d, v%d, v%d" % (t2, t5, t4))
A("v_lshlrev_b32 v%d, 4, v%d" % (t2, t2))
A("v_lshl_add_u32 v%d, v%d, 8, v%d" % (t2, t4, t2))
A("v_bfe_u32 v%d, v%d, 2, 1" % (t4, vLN))
A("v_mul_u32_u24 v%d, %d, v%d" % (t4, QKS, t4))
A("v_add3_u32 v%d, v%d, v%d, %s" % (vQW, t2, t4, sQL))
A("v_and_b32 v%d, 15, v%d" % (t2, vLN))
A("v_xor_b32 v%d, v%d, v%d" % (t4, t2, t3))
A("v_lshlrev_b32 v%d, 4, v%d" % (t4, t4))
A("v_lshl_add_u32 v%d, v%d, 8, v%d" % (t4, t3, t4))
A("v_add_u32 v%d, %s, v%d" % (vQA, sQL, t4))
A("v_and_b32 v%d, 6, v%d" % (t4, vLN))
A("v_xor_b32 v%d, v%d, v%d" % (t4, t4, t3))
A("v_lshlrev_b32 v%d, 4, v%d" % (t4, t4))
A("v_lshl_add_u32 v%d, v%d, 7, v%d" % (vKA[0], t2, t4))
A("v_xor_b32 v%d, 64, v%d" % (vKA[1], vKA[0]))
A("v_lshrrev_b32 v%d, 2, v%d" % (t4, vLN))
A("v_lshlrev_b32 v%d, 7, v%d" % (t4, t4))
A("v_and_b32 v%d, 3, v%d" % (t2, vLN))
A("v_lshl_add_u32 v%d, v%d, 3, v%d" % (t4, t2, t4))
A("v_bfe_u32 v%d, v%d, 3, 2" % (t2, vLN))
A("v_lshl_add_u32 v%d, v%d, 5, v%d" % (t4, t2, t4))
A("v_add_u32 v%d, %d, v%d" % (vVA[0], VRING + 2 * SLOT, t4))
for x in range(1, 4): A("v_xor_b32 v%d, %d, v%d" % (vVA[x], 32 * x, vVA[0]))
A("s_mov_b32 s40, 0x%x" % CSCALE); A("s_mov_b32 s41, 0x%x" % CSCALE)
A("s_mov_b32 %s, 0" % sIT)
A("s_mov_b32 %s, %d" % (sKoff, 4 * SLOT))
A("s_mov_b32 %s, %d" % (sVoff, 3 * SLOT))
A("s_mov_b32 %s, %s" % (sKm, sKbeg))
A("s_add_u32 %s, %s, %d" % (sVm, sVbeg, 3 * SLOT))
A("s_mov_b32 %s, 0x%x" % (sLo, f2u(2.0 ** float(opts.get("llo", -20)))))
A("s_mov_b32 %s, 0x%x" % (sHi, f2u(2.0 ** float(opts.get("lhi", 24)))))
for i in vL: A("v_mov_b32 v%d, 0" % i)
ZR = FQ[5][1]
for i in range(4): A("v_accvgpr_write_b32 a%d, 0" % (124 + i))
A("v_mov_b32 v%d, %d" % (t2, FLAG))
A("ds_write_b32 v%d, v%d" % (t2, vL[0]))
def zero16(f, i): A("v_mfma_f32_32x32x16_bf16 %s[%d:%d], %s, %s, 0" % (f, i, i + 15, ZR, ZR))
for i in range(128, 256, 16): zero16("a", i)
WARM = int(opts.get("warm", 0))
if WARM:
    A("s_mov_b64 exec, 0")
    if WARM == 2:
        for w in range(1, 4):
            A("s_cmp_eq_u32 %s, %d" % (sWave, w)); A("s_cbranch_scc1 L_wseg%d" % w)
    A("s_branch L_epi")
    A("L_warm_back:")
    A("s_mov_b64 exec, -1")
    for i in vL: A("v_mov_b32 v%d, 0" % i)
vwait("K1" if K1E == 1 else "K0")
A("s_waitcnt lgkmcnt(0)")
A("s_barrier")
K0F = [V(G[rb][1], 4) for rb in range(6)] + [V(X[rb][1], 4) for rb in LATE] + FB
for n in range(12): A(k_read(K0F[n], 0, n >> 1, n & 1))
def pro_sm(rb):
    ops = sm(rb, 0, 0) + sm(rb, 0, 1)
    for t in [t for t in ops if t.startswith("v_exp")] + ["s_nop 0"] + [t for t in ops if not t.startswith("v_exp")]: A(t)
for rb in range(6):
    area = rb & 1
    for i in range(6):
        vwait("Q%d.%d" % (rb, i))
        if rb == 5 and i == 5: P += stamp(1)
        r0 = raw(rb, i)
        for k in range(4):
            t = 240 + 2 * k + 8 * (i & 1)
            A("v_lshlrev_b32 v%d, 16, v%d" % (t, r0 + k)); A("v_and_b32 v%d, 0xffff0000, v%d" % (t + 1, r0 + k))
        for k in range(4):
            t = 240 + 2 * k + 8 * (i & 1)
            A("v_pk_mul_f32 %s, %s, %s" % (V(t, 2), V(t, 2), sC2))
        for k in range(4):
            t = 240 + 2 * k + 8 * (i & 1)
            A("v_cvt_pk_bf16_f32 v%d, v%d, v%d" % (r0 + k, t, t + 1))
        A("ds_write_b128 v%d, %s offset:%d" % (vQW, V(r0, 4), area * QRB + (i % 3) * 2 * QKS + (i // 3) * 128))
    if rb >= 4: A("s_waitcnt lgkmcnt(0)")
    qd_ = [Ac(rb * 24 + ks * 4, 4) if rb < 4 else V(raw(rb, ks), 4) for ks in range(6)]
    for ks in range(6): A(q_read(qd_[ks], area, ks))
    if rb + QD < 6: q_issue(rb + QD)
    else:
        n_now = -(-len(kvq) // (6 - rb))
        for _ in range(min(n_now, len(kvq))): pro_tile(*kvq.pop(0))
    if rb >= 1 and rb - 1 in EARLY: pro_sm(rb - 1)
    if rb in (2, 4, 5):
        for i in {2: (96, 112, 128), 4: (144, 160, 176), 5: (192,)}[rb]: zero16("v", i)
    for ks in range(6):
        A("s_waitcnt lgkmcnt(%d)" % (5 - ks))
        for hf in range(2):
            d = V((G[rb][0] if hf == 0 else X[rb][0]), 4)
            A("%s %s, %s, %s, %s" % (MF, d, K0F[2 * ks + hf], qd_[ks], "0" if ks == 0 else d))
for i in (208, 224, 240): zero16("v", i)
if not K1E:
    vwait("K1")
    A("s_barrier")
A(k_read(FB[0], 1, 0, 0)); A(k_read(FB[1], 1, 1, 0))
for rb in LATE:
    for k in range(2): A(q_read(FQ[rb][k], rb - 4, k))
assert not kvq and vm[-15:] == ["V0"] * 3 + ["K2"] * 3 + ["V1"] * 3 + ["K3"] * 3 + ["V2"] * 3, vm
A("s_waitcnt lgkmcnt(0)")
P += stamp(2)

B0, q0 = body(0, [])
B1, q1 = body(1, q0)
B0, q0b = body(0, q1)
assert q0 == q0b
def strip(B):
    o = []
    for t in B:
        if "nobar" in opts and (t == "s_barrier" or "vmcnt" in t): continue
        if "nodma" in opts and (t.startswith("buffer_load") or "vmcnt" in t): continue
        if "nolds" in opts and (t.startswith("ds_read") or "lgkmcnt" in t): continue
        if "nowait" in opts and "lgkmcnt" in t: continue
        if "novalu" in opts and t.startswith("v_") and not t.startswith("v_mfma"): continue
        o.append(t)
    return o
B0 = strip(B0); B1 = strip(B1)
if STAMP == 3:
    pre = ["s_mov_b32 m0, s84", "s_nop 0", "v_writelane_b32 v15, s80, m0", "v_writelane_b32 v14, s82, m0", "s_add_u32 s84, s84, 1", "s_memrealtime s[80:81]", "s_memtime s[82:83]"]
    B0 = pre + B0; B1 = pre + B1
    P += ["s_mov_b32 s84, 0", "s_mov_b32 s80, 0", "s_mov_b32 s82, 0"]

T = []
A = T.append
T += stamp(3) + cstamp(0)
if STAMP == 3:
    T += pre + ["s_waitcnt lgkmcnt(0)"] + pre[:4]
    A("v_mbcnt_lo_u32_b32 v0, -1, 0"); A("v_mbcnt_hi_u32_b32 v0, -1, v0"); A("v_lshlrev_b32 v0, 3, v0")
    A("s_lshl_b32 s3, s2, 2"); A("s_add_u32 s3, s3, %s" % sWave); A("s_lshl_b32 s3, s3, 9"); A("s_add_u32 s3, s3, 65536")
    A("buffer_store_dwordx2 v[14:15], v0, %s, s3 offen" % sW)
A("s_waitcnt lgkmcnt(0)")
for db in range(3):
    for t in v_read(db, 1, db): A(t)
mf = pv_mfmas(1, EARLY) + pv_mfmas(1, LATE)
pinned = {}
for n in range(3, 24):
    m = n - 4
    g = 0 if m < 0 else (4 * m + 4 if m < 12 else 48 + 2 * (m - 12) + 2)
    g = min(g, 71)
    pinned.setdefault(g, []).extend(v_read(n % 4, 1, n % 12))
dsT = [set(expand(FBh[b][i])) for b in range(3) for i in range(2)]
st = [Op(t, 0, 45) for rb in LATE for h in range(2) for t in sm(rb, 1, h)]
tmp = [G[rb][0] for rb in range(6)]
def lred(rbs, g0):
    o = []
    for stage, sw in enumerate(("v_permlane32_swap_b32", "v_permlane16_swap_b32")):
        o += [Op("v_mov_b32 %s, %s" % (V(tmp[rb]), V(vL[rb])), g0) for rb in rbs]
        o += [Op("v_nop", g0), Op("v_nop", g0)]
        o += [Op("%s %s, %s" % (sw, V(vL[rb]), V(tmp[rb])), g0) for rb in rbs]
        o += [Op("v_add_f32 %s, %s, %s" % (V(vL[rb]), V(vL[rb]), V(tmp[rb])), g0) for rb in rbs]
    return o
ESH = int(opts.get("esh", 0))
eLN = G[0][0] + 1; eW = [vKA[0], vKA[1], vQA, vDMA]; eR = vT[0]; eS = vT[1]; e1 = G[1][0] + 1; e2 = G[2][0] + 1; e3 = G[3][0] + 1
addr = ["v_mbcnt_lo_u32_b32 v%d, -1, 0" % eLN, "v_mbcnt_hi_u32_b32 v%d, -1, v%d" % (eLN, eLN),
        "v_and_b32 v%d, 15, v%d" % (e1, eLN), "v_mul_u32_u24 v%d, 384, v%d" % (e1, e1),
        "v_bfe_u32 v%d, v%d, 4, 1" % (e2, eLN), "v_lshl_add_u32 v%d, v%d, 3, v%d" % (e1, e2, e1),
        "v_lshrrev_b32 v%d, 5, v%d" % (e2, eLN), "v_xor_b32 v%d, v%d, v%d" % (e2, e2, eLN), "v_and_b32 v%d, 7, v%d" % (e2, e2),
        "v_add_u32 v%d, %s, v%d" % (e1, sQL, e1)] + \
       (["v_and_b32 v%d, 8, v%d" % (e3, eLN), "v_add_u32 v%d, v%d, v%d" % (e1, e1, e3)] if ESH else []) + \
       sum([["v_xor_b32 v%d, %d, v%d" % (e3, 2 * x, e2), "v_lshl_add_u32 v%d, v%d, 4, v%d" % (eW[x], e3, e1)] for x in range(4)], []) + \
       ["v_lshrrev_b32 v%d, 3, v%d" % (e1, eLN), "v_xor_b32 v%d, v%d, v%d" % (e2, e1, eLN), "v_and_b32 v%d, 7, v%d" % (e2, e2),
        "v_mul_u32_u24 v%d, 384, v%d" % (e1, e1), "v_lshl_add_u32 v%d, v%d, 4, v%d" % (eR, e2, e1), "v_add_u32 v%d, %s, v%d" % (eR, sQL, eR),
        "v_and_b32 v%d, 7, v%d" % (e2, eLN), "v_lshl_add_u32 v%d, v%d, 4, v%d" % (eS, e2, e1), "v_add_u32 v%d, %s, v%d" % (eS, sRow, eS)]
for t in addr: A(t)
PVT, _ = schedule(mf, pinned, [], st, dsT, "tailpv")
T += PVT
T += stamp(4) + cstamp(1)
A("L_epi:")
for o in lred(range(6), 0): A(o.i.text)
mn = tmp[0]; mx = tmp[1]
A("v_min3_f32 v%d, v%d, v%d, v%d" % (mn, vL[0], vL[1], vL[2])); A("v_min3_f32 v%d, v%d, v%d, v%d" % (mn, vL[3], vL[4], mn)); A("v_min_f32 v%d, v%d, v%d" % (mn, vL[5], mn))
A("v_add_f32 v%d, v%d, v%d" % (mx, vL[0], vL[1]))
for i in range(2, 6): A("v_add_f32 v%d, v%d, v%d" % (mx, mx, vL[i]))
A("v_cmp_nle_f32 vcc, %s, v%d" % (sLo, mn))
A("v_cmp_nge_f32 %s, %s, v%d" % (sBad, sHi, mx))
for rb in range(6): A("v_rcp_f32 %s, %s" % (V(vL[rb]), V(vL[rb])))
A("s_or_b64 %s, %s, vcc" % (sBad, sBad))
A("s_cbranch_scc0 L_good")
A("v_mov_b32 v%d, %d" % (mn, FLAG)); A("v_mov_b32 v%d, 1" % mx)
A("ds_write_b32 v%d, v%d" % (mn, mx))
A("L_good:")
def ep_st(n, rh):
    rb, cb = n // 3, n % 3
    if "nost" in opts: return
    A("buffer_store_dwordx4 %s, v%d, %s, %s offen offset:%d %s" % (V(48 + 8 * (n % 6) + 4 * rh, 4), eS, sO, sRB(rb), rh * 3072 + cb * 128, SPOL))
def ep_rd(n):
    rb, cb = n // 3, n % 3; area = rb & 1
    for rh in range(2):
        if ESH == 2 and rh == 1:
            for k in range(2): A("ds_read_b64 %s, v%d offset:%d" % (V(48 + 8 * (n % 6) + 4 + 2 * k, 2), eR, area * QRB + 3080 + 8 * k + cb * 128))
        else: A("ds_read_b128 %s, v%d offset:%d" % (V(48 + 8 * (n % 6) + 4 * rh, 4), eR, area * QRB + rh * 3072 + cb * 128))
RD = int(opts.get("rd", 1))
for n in range(18 + RD + 1):
    if n == 0: T += cstamp(2)
    if n == 5: T += cstamp(3)
    if n == 10: T += cstamp(4)
    rb, cb = n // 3, n % 3
    m = n - RD - 1
    if n < 18:
        lp = vL[rb] & ~1; sel = vL[rb] & 1; area = rb & 1
        pk = 16 + 8 * (n & 1)
        fl, i0 = Oreg(rb, 4 * cb)
        w = 32
        if fl == "a":
            for i in range(16): A("v_accvgpr_read_b32 %s, %s" % (V(w + i), Ac(i0 + i)))
            src = w
        else: src = i0
        for i in range(0, 16, 2):
            A("v_pk_mul_f32 %s, %s, %s op_sel:[0,%d] op_sel_hi:[1,%d]" % (V(w + i, 2), V(src + i, 2), V(lp, 2), sel, sel))
    if m >= 0:
        A("s_waitcnt lgkmcnt(%d)" % (4 if n - 1 < 18 else 0))
        ep_st(m, 0)
    if n < 18:
        for i in range(8):
            A("v_cvt_pk_bf16_f32 %s, %s, %s" % (V(pk + i), V(w + 2 * i), V(w + 2 * i + 1)))
    if m >= 0: ep_st(m, 1)
    if 0 <= n - RD < 18: ep_rd(n - RD)
    if n < 18:
        for x in range(4):
            A("ds_write_b64 v%d, %s offset:%d" % (eW[x], V(pk + 2 * x, 2), area * QRB + cb * 128))
if STAMP:
    T += stamp(5) + cstamp(5)
    A("s_waitcnt vmcnt(0)")
    T += stamp(6) + cstamp(6)
    A("s_waitcnt lgkmcnt(0)")
    if "probe" in opts:
        pi, pj = [int(x) for x in opts["probe"].split(",")]
        if "skew" in opts:
            A("v_mov_b32 v10, 0"); A("buffer_load_dword v11, v10, %s, 0 offen sc0 sc1" % sW); A("s_waitcnt vmcnt(0)")
            A("v_readfirstlane_b32 s%d, v11" % (60 + 2 * pi)); A("s_not_b32 s%d, s%d" % (60 + 2 * pi, 60 + 2 * pi))
        A("s_sub_u32 s80, s%d, s%d" % (60 + 2 * pj, 60 + 2 * pi))
        A("s_min_u32 s80, s80, 10000")
        A("s_lshl_b32 s80, s80, 2")
        A("L_spin:")
        A("s_sleep 2")
        A("s_memrealtime s[82:83]")
        A("s_waitcnt lgkmcnt(0)")
        A("s_sub_u32 s81, s82, s72")
        A("s_cmp_lt_u32 s81, s80")
        A("s_cbranch_scc1 L_spin")
    A("s_lshl_b32 s3, s2, 2"); A("s_add_u32 s3, s3, %s" % sWave); A("s_lshl_b32 s3, s3, 6")
    A("v_mov_b32 v10, s3")
    for i in range(16): A("v_mov_b32 v%d, s%d" % (12 + i, 60 + i))
    for i in range(4 if "skew" not in opts else 0): A("buffer_store_dwordx4 v[%d:%d], v10, %s, 0 offen offset:%d" % (12 + 4 * i, 15 + 4 * i, sW, 16 * i))
A("s_barrier")
A("v_mov_b32 v0, %d" % FLAG)
A("ds_read_b32 v0, v0")
A("s_waitcnt lgkmcnt(0)")
A("v_readfirstlane_b32 %s, v0" % sTmp)
A("s_cmp_eq_u32 %s, 0" % sTmp)
A("s_cbranch_scc0 L_redo")
A("L_end:")
A("s_endpgm")
A("L_lastw:")
A("s_waitcnt vmcnt(6)")
A("s_branch L_lastback")
A("L_redo:")
A("s_waitcnt vmcnt(0)")
A("s_barrier")
A("v_mbcnt_lo_u32_b32 v0, -1, 0"); A("v_mbcnt_hi_u32_b32 v0, -1, v0")
A("s_lshl_b32 %s, %s, 6" % (sTmp, sWave))
A("v_add_u32 v0, %s, v0" % sTmp)

def I(l): return [Ins(t) for t in l]
seq = I(P) + I(B0) + I(["s_cbranch_scc1 L_tail"]) + I(B1) + I(["s_branch L_loop"]) + I(B0) + I(["s_cbranch_scc1 L_tail"]) + I(T)
errs = check_hazards(seq, "main") + check_waits(seq, "main")
for e in errs[:30]: sys.stderr.write(e + "\n")
if errs and not any(k.startswith("no") for k in opts):
    print("!!! %d hazard problems" % len(errs)); sys.exit(1)
S, lds2, e2_ = gen_safe.build_safe({"qd": "3", "nt": NT})
assert lds2 <= LDS_BYTES and e2_ == 0

hdr = open("standalone__gqa_softmax__near_ridge.s.ref").read().split("; Override")[0]
out = [hdr.rstrip(), "; @launch grid=(256,1,1) block=(256,1,1) lds=%d" % LDS_BYTES,
       '.amdgcn_target "amdgcn-amd-amdhsa--gfx950"', ".text", ".globl %s" % KN, ".p2align 8", ".type %s,@function" % KN, "%s:" % KN, "L_start:"]
def emit(l):
    for t in l: out.append(t if t.endswith(":") or t.startswith(".") else "    " + t)
emit(P); emit([".p2align 6", "L_loop:"]); emit(B0); emit(["s_cbranch_scc1 L_tail"]); emit(B1); emit(["s_branch L_loop", "L_tail:"]); emit(T); emit(S if 'nosafe' not in opts else ['s_endpgm'])
out = [t.replace("CODE_HOT_BYTES", "L_end-L_start") for t in out]
out += ['.section .rodata,"a"', ".p2align 6", ".amdhsa_kernel %s" % KN, "  .amdhsa_next_free_vgpr 512", "  .amdhsa_next_free_sgpr 96",
        "  .amdhsa_accum_offset 256", "  .amdhsa_group_segment_fixed_size 0", "  .amdhsa_kernarg_size 48", "  .amdhsa_user_sgpr_count 2",
        "  .amdhsa_user_sgpr_kernarg_segment_ptr 1", "  .amdhsa_system_sgpr_workgroup_id_x 1", ".end_amdhsa_kernel", ""]
open(sys.argv[1], "w").write("\n".join(out))
```

```python
import sys
from asmlib import *

class Op:
    def __init__(self, text, ming=0, dead=10 ** 9, fence=None, free=False):
        self.i = Ins(text); self.ming = ming; self.dead = dead; self.fence = fence
        self.cost = 2 if self.i.kind == "trans" else 1
        self.free = free
        self.lag = 2 if self.i.op.startswith("v_permlane") else 0

def schedule(mf, pinned, scal, stream, ds_in, name, next_first=None, verbose=True, novv=False, excl=False, capf=None):
    n = len(mf)
    mfi = [Ins(t) for t in mf] + ([Ins(next_first)] if next_first else [])
    waits = {}; q = list(ds_in); pre_wait = None
    for g in range(len(mfi)):
        need = None
        for k, w in enumerate(q):
            if w & mfi[g].rd: need = len(q) - 1 - k
        if g > 0:
            for t in pinned.get(g - 1, []):
                ii = Ins(t)
                if ii.kind == "ds": assert not (ii.wr & mfi[g].rd), "ds read consumed by the very next MFMA"
        if need is not None:
            need = min(need, 12)
            if g == 0: pre_wait = need
            else: waits[g - 1] = need
            q = q[len(q) - need:] if need > 0 else []
        if g > 0:
            for t in pinned.get(g - 1, []):
                ii = Ins(t)
                if ii.kind == "ds": q.append(set(ii.wr))
    if not next_first:
        for t in pinned.get(n - 1, []):
            ii = Ins(t)
            if ii.kind == "ds": q.append(set(ii.wr))
    sc = {g: ["s_waitcnt lgkmcnt(%d)" % k] for g, k in waits.items()}
    for g, texts, hard in scal:
        if hard:
            for t in texts: sc.setdefault(g, []).append(t)
    for g, texts, hard in scal:
        if hard: continue
        for t in texts:
            while (g in sc) and g < n - 1: g += 1
            sc.setdefault(g, []).append(t); g += 1
    N = len(stream)
    deps = [[] for _ in range(N)]
    for i, o in enumerate(stream):
        for k in range(i):
            p = stream[k]
            if o.fence is not None:
                if p.fence is not None or (p.i.wr | p.i.rd) & o.guard or "vcc" in p.i.wr: deps[i].append(k)
            elif p.fence is not None:
                if (o.i.wr | o.i.rd) & p.guard or "vcc" in o.i.wr: deps[i].append(k)
            elif (p.i.wr & (o.i.rd | o.i.wr)) or (p.i.rd & o.i.wr): deps[i].append(k)
    base_cap = [2 - len(pinned.get(g, [])) for g in range(n)]
    if excl:
        for g in range(n):
            if any(t.startswith("buffer_") for t in pinned.get(g, [])): base_cap[g] = 0
    if capf: capf(base_cap, sc, pinned)
    def attempt(over):
        sc2 = {g: list(v) for g, v in sc.items()}
        place = {g: [] for g in range(n)}
        where = [None] * N
        for g in range(n):
            cap = base_cap[g] + (over.get(g, 0) if not novv else max(0, over.get(g, 0) - 1))
            def ready(i, samegap_ok=True):
                o = stream[i]
                if o.ming > g: return False
                for k in deps[i]:
                    if where[k] is None: return False
                    if where[k] == g and stream[k].i.kind == "trans": return False
                    if where[k] + o.lag > g: return False
                    if o.fence is not None and where[k] > g - (2 if "vcc" in stream[k].i.wr else 1): return False
                return True
            for i in range(N):
                if where[i] is None and stream[i].fence is not None and g not in sc2 and ready(i):
                    sc2[g] = [stream[i].i.text, stream[i].fence]; where[i] = g - 0.5
            while cap > 0:
                cand = [i for i in range(N) if where[i] is None and stream[i].fence is None and ready(i)]
                first = next((i for i in range(N) if where[i] is None), None)
                if first is None: break
                cand = [i for i in cand if i < first + 40]
                ones = [i for i in cand if stream[i].cost == 1]; twos = [i for i in cand if stream[i].cost == 2]
                pick = None
                if cap >= 2 and twos:
                    urgent = [i for i in ones if stream[i].dead <= g + 2]
                    if urgent: pick = urgent[0]
                    elif len([i for i in ones if i < twos[0]]) >= (2 if novv else 4) and cap % 2 == 0: pick = ones[0]
                    else: pick = twos[0]
                elif ones: pick = ones[0]
                if pick is None: break
                place[g].append(stream[pick]); where[pick] = g; cap -= stream[pick].cost
                if novv and g not in over: break
        bad = [i for i in range(N) if where[i] is None or where[i] > stream[i].dead]
        return bad, sc2, place, where
    over = {}
    for it in range(200):
        bad, sc2, place, where = attempt(over)
        if not bad: break
        d = min(min(stream[i].dead for i in bad), n - 1)
        lo = max([stream[i].ming for i in bad if stream[i].dead == min(stream[k].dead for k in bad)] + [0])
        lo = max(lo, d - 70)
        cands = [g for g in range(lo, d + 1) if g not in over and sum(o.cost for o in place[g]) >= base_cap[g] and base_cap[g] != 0]
        if novv: cands = [g for g in range(lo, d + 1) if g not in over and base_cap[g] == 2 and sum(o.cost for o in place[g]) == 1]
        if not cands: cands = [g for g in range(lo, d + 1)]
        best = max(cands, key=lambda g: min([abs(g - h) for h in over] + [1000 - abs(g - (lo + d) // 2)]))
        over[best] = over.get(best, 0) + 1
    assert not bad, "schedule failed " + name
    out = []
    if pre_wait is not None: out.append("s_waitcnt lgkmcnt(%d)" % pre_wait)
    cyc = 0; wasted = 0
    for g in range(n):
        out.append(mf[g]); out += sc2.get(g, []); out += pinned.get(g, [])
        pl = place[g]
        out += [o.i.text for o in pl]
        ns = len([t for t in sc2.get(g, []) if not t.endswith(":")])
        used = max(0, ns - 1) + len(pinned.get(g, [])) + sum(o.cost for o in pl)
        cyc += max(16, 8 + 4 * used); wasted += max(0, 2 - used)
    if verbose: sys.stderr.write("%s: overflow=%d empty slots=%d est cycles=%d (ideal %d)\n" % (name, sum(over.values()), wasted, cyc, 16 * n))
    return out, q

def Fence(branch, label, guard):
    o = Op(branch, fence=label); o.guard = set(guard); return o
```

```python
import sys, math, struct
from asmlib import *
from sched import *
import gen_safe

opts = dict(a.split("=") for a in sys.argv[2:])
STAMP = int(opts.get("stamp", 0))
NT = opts.get("nt", "nt").replace("+", " ")
SPOL = opts.get("spol", "sc1").replace("+", " ")
QD = int(opts.get("qd", 4))
STG = [int(x) for x in opts["stg"].split(",")] if "stg" in opts else None
CHAIN = int(opts.get("chain", 1))
KN = "standalone__gqa_softmax__near_ridge_kernel"
def f2u(x): return struct.unpack("<I", struct.pack("<f", x))[0]
CSCALE = f2u(math.log2(math.e) / math.sqrt(192.0))

KRING = 0; VRING = 49152; QLDS = 98304; SLOT = 12288
QKS = 1088; QRB = 6 * QKS; QWAVE = 2 * QRB
FLAG = QLDS + 4 * QWAVE
LDS_BYTES = FLAG + 64
def V(i, n=1): return "v%d" % i if n == 1 else "v[%d:%d]" % (i, i + n - 1)
def Ac(i, n=1): return "a%d" % i if n == 1 else "a[%d:%d]" % (i, i + n - 1)
vKA = [0, 1]; vVA = [2, 3, 4, 5]; vQA = 6; vDMA = 7
vL = [8 + i for i in range(6)]; vT = [14, 15]
FB = [Ac(96 + 4 * i, 4) for i in range(4)]
FBh = [(Ac(96 + 4 * i, 2), Ac(98 + 4 * i, 2)) for i in range(4)]
FQ = {4: [Ac(112, 4), Ac(116, 4)], 5: [Ac(120, 4), Ac(124, 4)]}
EARLY = [0, 1, 2, 3]; LATE = [4, 5]
G = {}; X = {}
r = 16
for rb in LATE:
    G[rb] = [r, r + 4]; X[rb] = [r + 8, r + 12]; r += 16
for rb in EARLY:
    G[rb] = [r, r + 4]; X[rb] = [r + 8, r + 8]; r += 12
assert r == 96
def Oreg(rb, db):
    b = rb * 12 + db
    return ("v", 96 + 4 * b) if b < 40 else ("a", 128 + 4 * (b - 40))
def O4(rb, db):
    f, i = Oreg(rb, db); return "%s[%d:%d]" % (f, i, i + 3)
def Qf(rb, ks): return Ac(rb * 24 + ks * 4, 4) if rb < 4 else FQ[rb][ks & 1]
sQ = "s[20:23]"; sK = "s[24:27]"; sV = "s[28:31]"; sO = "s[32:35]"; sW = "s[36:39]"
sC2 = "s[40:41]"; sIT = "s42"; sKoff = "s43"; sVoff = "s44"; sKm = "s45"; sVm = "s46"; sWave = "s47"
sTmp = "s48"; sRow = "s49"; sKend = "s50"; sVend = "s51"; sKbeg = "s52"; sVbeg = "s53"; sQL = "s16"; sCls = "s17"
sLo = "s76"; sHi = "s77"; sBad = "s[78:79]"
def sRB(rb): return "0" if rb == 0 else "s%d" % (54 + rb)
MF = "v_mfma_f32_16x16x32_bf16"

def k_read(dst, tile_par, ks, hf):
    return "ds_read_b128 %s, %s offset:%d" % (dst, V(vKA[ks & 1]), tile_par * SLOT + (ks >> 1) * 4096 + hf * 2048)
def v_read(buf, tile_par, db):
    return ["ds_read_b64_tr_b16 %s, %s offset:%d" % (FBh[buf][i], V(vVA[db & 3]), tile_par * SLOT + (db >> 2) * 4096 + i * 2048) for i in range(2)]
def q_read(dst, area, ks):
    return "ds_read_b128 %s, %s offset:%d" % (dst, V(vQA), area * QRB + ks * QKS)
def qk_mfmas(par):
    out = []
    for p in range(3):
        for hf in range(2):
            g = 2 * p + hf
            order = list(range(6)) if hf == 0 else list(range(5, -1, -1))
            seq = [(rb, k) for rb in order for k in range(2)] if CHAIN else [(rb, k) for k in range(2) for rb in order]
            for rb, k in seq:
                ks = 2 * p + k
                d = V((G[rb][par] if hf == 0 else X[rb][par]), 4)
                out.append("%s %s, %s, %s, %s" % (MF, d, FB[(2 * g + k) % 4], Qf(rb, ks), "0" if ks == 0 else d))
    return out
def pv_mfmas(par, rbs=range(6), b0=0):
    return ["%s %s, %s, %s, %s" % (MF, O4(rb, db), FB[(b0 + db) % 4], V(G[rb][par], 4), O4(rb, db)) for db in range(12) for rb in rbs]
def sregs(rb, par): return [G[rb][par] + i for i in range(4)] + [X[rb][par] + i for i in range(4)]
def sm(rb, par, half):
    ops = []; s = sregs(rb, par)
    for i in (4 * half, 4 * half + 2):
        ops.append("v_exp_f32 %s, %s" % (V(s[i]), V(s[i])))
        ops.append("v_exp_f32 %s, %s" % (V(s[i + 1]), V(s[i + 1])))
        ops.append("v_add_f32 %s, %s, %s" % (V(vL[rb]), V(vL[rb]), V(s[i])))
        ops.append("v_add_f32 %s, %s, %s" % (V(vL[rb]), V(vL[rb]), V(s[i + 1])))
        ops.append("v_cvt_pk_bf16_f32 %s, %s, %s" % (V(G[rb][par] + i // 2), V(s[i]), V(s[i + 1])))
    return ops
def dma(srd, soff, smbase, cb):
    return ("s_add_u32 m0, %s, %d" % (smbase, cb * (4096 - 128)),
            "buffer_load_dwordx4 %s, %s, %s offen offset:%d %s lds" % (V(vDMA), srd, soff, cb * 128, NT))
def last_write_slot(mf, reg):
    return max(g for g, t in enumerate(mf) if reg in Ins(t).wr)
def paced(ops, g0, g1, floor=0, dead=10 ** 9):
    os_ = [Op(t) for t in ops]; tot = sum(o.cost for o in os_); acc = 0
    for o in os_:
        o.ming = max(floor, int(g0 + (g1 - g0) * acc / tot)); o.dead = dead; acc += o.cost
    return os_

def body(par, ds_in):
    np_ = par ^ 1
    qk = qk_mfmas(np_)
    mf = qk + pv_mfmas(par)
    pinned = {}
    def pin(g, t): pinned.setdefault(g, []).append(t)
    for g in range(1, 6):
        for k in range(2): pin(12 * (g - 1) + int(opts.get("ksp", 2)) * k, k_read(FB[(2 * g + k) % 4], np_, 2 * (g >> 1) + k, g & 1))
    for db in range(12):
        gp = {0: 60, 1: 63, 2: 72, 3: 75}.get(db, 72 + 6 * (db - 3))
        for t in v_read(db % 4, par, db): pin(gp, t)
    pin(127, k_read(FB[0], par, 0, 0)); pin(133, k_read(FB[1], par, 1, 0))
    lastq = {}
    for g, t in enumerate(qk):
        for rb in LATE:
            for k in range(2):
                if FQ[rb][k] in t: lastq[(g // 24, rb, k)] = g
    for p in range(3):
        gs = sorted((lastq[(p, rb, k)], rb, k) for rb in LATE for k in range(2))
        g = gs[-1][0] + 1 if not CHAIN else 0
        for (lg, rb, k) in gs:
            g = max(g, lg + 1)
            while g in pinned: g += 1
            pin(g, q_read(FQ[rb][k], rb - 4, (2 * p + 2 + k) % 6)); g += int(opts.get("qsp", 1))
    scal = []
    if par == 0:
        scal.append((50, ["s_cmp_eq_u32 %s, 7" % sIT], True))
        scal.append((51, ["s_cbranch_scc1 L_lastw", "L_lastback:"], True))
    scal.append((int(opts.get("bg", 54)), ["s_waitcnt vmcnt(9)", "s_barrier"], False))
    dg = [int(x) for x in opts.get("dg", "70,81,93,105,117,130").split(",")]
    for i in range(6):
        a, b = dma(sK, sKoff, sKm, i) if i < 3 else dma(sV, sVoff, sVm, i - 3)
        assert dg[i] not in pinned, dg[i]
        scal.append((dg[i] - 1, [a], True)); pin(dg[i], b)
    scal.append((dg[2] + 1, ["s_add_u32 %s, %s, %d" % (sKoff, sKoff, SLOT), "s_add_u32 %s, %s, %d" % (sKm, sKm, SLOT),
                      "s_cmp_eq_u32 %s, %s" % (sKm, sKend), "s_cselect_b32 %s, %s, %s" % (sKm, sKbeg, sKm)], False))
    scal.append((dg[5] + 1, ["s_add_u32 %s, %s, %d" % (sVoff, sVoff, SLOT), "s_add_u32 %s, %s, %d" % (sVm, sVm, SLOT),
                       "s_cmp_eq_u32 %s, %s" % (sVm, sVend), "s_cselect_b32 %s, %s, %s" % (sVm, sVbeg, sVm)], False))
    if par == 0:
        scal.append((139, ["s_add_u32 %s, %s, 1" % (sIT, sIT), "s_cmp_eq_u32 %s, 8" % sIT], False))
    st = []
    st += paced(sum([sm(rb, par, h) for rb in LATE for h in range(2)], []), 0, int(opts.get("l1", 50)), dead=70)
    if par == 0:
        st += [Op("v_xor_b32 %s, 0x1e000, %s" % (V(a), V(a)), 44, 58) for a in vVA]
        st += [Op("v_xor_b32 %s, 0x6000, %s" % (V(a), V(a)), 52, 125) for a in vKA]
    seq = [(0, 0), (1, 0), (2, 0), (3, 0), (3, 1), (2, 1), (1, 1), (0, 1)]
    E0 = int(opts.get("e0", 56)); E1 = int(opts.get("e1", 140))
    for n, (rb, h) in enumerate(seq):
        ready = last_write_slot(qk, "v%d" % sregs(rb, np_)[4 * h]) + 5
        st += paced(sm(rb, np_, h), E0 + (E1 - E0) * n / 8, E0 + (E1 - E0) * (n + 1) / 8, floor=ready)
    def capf(cap, sc, pin_):
        for g_ in range(144):
            if "s_barrier" in sc.get(g_, []):
                for k in range(int(opts.get("xb0", 0)), int(opts.get("xb1", 0))): cap[g_ + k] = 0
            if any(t.startswith("buffer_") for t in pin_.get(g_, [])):
                if int(opts.get("xd", 0)) & 1: cap[g_ + 1] = min(cap[g_ + 1], 1)
                if int(opts.get("xd", 0)) & 2: cap[g_ - 1] = min(cap[g_ - 1], 1)
                if int(opts.get("xd", 0)) & 4: cap[g_ + 1] = 0
    return schedule(mf, pinned, scal, st, ds_in, "body%d" % par, capf=capf, next_first=qk_mfmas(par)[0], novv=int(opts.get("xvv", 0)), excl=int(opts.get("excl", 0)))

def stamp(i): return ["s_memrealtime s[%d:%d]" % (60 + 2 * i, 61 + 2 * i)] if STAMP and STAMP != 4 and (STAMP != 5 or i in (0,)) else []
def pstamp(i): return ["s_memrealtime s[%d:%d]" % (60 + 2 * i, 61 + 2 * i)] if STAMP == 5 else []
def cstamp(i): return ["s_memtime s[%d:%d]" % (60 + 2 * i, 61 + 2 * i)] if STAMP == 4 else []
if STAMP == 6:
    def stamp(i): return ["s_memtime s[%d:%d]" % (60 + 2 * i, 61 + 2 * i)]

P = []
A = P.append
A("s_cmp_ge_u32 s2, 256")
A("s_cbranch_scc1 L_end")
A("s_load_dwordx4 s[4:7], s[0:1], 0")
A("s_load_dwordx4 s[8:11], s[0:1], 16")
if STAMP: A("s_load_dwordx2 s[12:13], s[0:1], %d" % (32 if "skew" in opts else 40))
P += stamp(0)
vJ = 240
if int(opts.get("cpf", 1)):
    A("s_getpc_b64 s[18:19]")
    A("v_lshlrev_b32 v%d, 7, v0" % vJ)
    A("v_min_u32 v%d, CODE_HOT_BYTES, v%d" % (vJ, vJ))
    A("global_load_dword v%d, v%d, s[18:19]" % (vJ + 1, vJ))
vLN = 242; vQG = vT[0]; vQW = vT[1]; t2 = 243; t3 = 244; t4 = 245; t5 = 246
A("v_lshrrev_b32 v%d, 6, v0" % t2)
A("v_and_b32 v%d, 63, v0" % vLN)
A("s_mul_i32 s14, s2, 147456")
A("v_readfirstlane_b32 %s, v%d" % (sWave, t2))
A("s_mul_i32 s15, s2, 196608")
A("s_bfe_u32 %s, s2, 0x30003" % sCls)
A("v_lshrrev_b32 v%d, 3, v%d" % (t5, vLN))
A("v_mul_u32_u24 v%d, 384, v%d" % (t2, t5))
A("v_lshrrev_b32 v%d, 4, v%d" % (t3, vLN))
A("v_lshlrev_b32 v%d, 1, v%d" % (t4, t3))
A("v_xor_b32 v%d, v%d, v%d" % (t4, t4, vLN))
A("v_and_b32 v%d, 7, v%d" % (t4, t4))
A("v_lshl_add_u32 v%d, v%d, 4, v%d" % (vDMA, t4, t2))
A("s_mul_i32 %s, %s, 3072" % (sTmp, sWave))
A("v_add_u32 v%d, %s, v%d" % (vDMA, sTmp, vDMA))
A("v_and_b32 v%d, 7, v%d" % (t4, vLN))
A("v_lshl_add_u32 v%d, v%d, 4, v%d" % (vQG, t4, t2))
A("s_mul_i32 %s, %s, 36864" % (sRow, sWave))
A("v_add_u32 v%d, %s, v%d" % (vQG, sRow, vQG))
A("s_lshl_b32 %s, %s, 10" % (sKbeg, sWave))
A("s_add_u32 %s, %s, %d" % (sVbeg, sKbeg, VRING))
for rb in range(1, 6): A("s_mov_b32 %s, %d" % (sRB(rb), rb * 6144))
A("s_waitcnt lgkmcnt(0)")
P += pstamp(1)
def srd(base, src, off, size):
    A("s_add_u32 s%d, s%d, %s" % (base, src, off)); A("s_addc_u32 s%d, s%d, 0" % (base + 1, src + 1))
    A("s_mov_b32 s%d, %d" % (base + 2, size)); A("s_mov_b32 s%d, 0x20000" % (base + 3))
vm = []
def stg_point():
    n = len(vm) - 1
    if STG and n < len(STG) and STG[n] < 8:
        A("s_cmp_lt_u32 %s, %d" % (sCls, STG[n]))
        A("s_cbranch_scc1 L_stg%d" % n)
        A("s_waitcnt vmcnt(0)")
        A("L_stg%d:" % n)
def pro_tile(name, tile):
    srd_, beg = (sK, sKbeg) if name == "K" else (sV, sVbeg)
    A("s_mov_b32 %s, %d" % (sTmp, tile * SLOT))
    for cb in range(3):
        A("s_add_u32 m0, %s, %d" % (beg, tile * SLOT + cb * (4096 - 128)))
        A("s_nop 0")
        A("buffer_load_dwordx4 %s, %s, %s offen offset:%d %s lds" % (V(vDMA), srd_, sTmp, cb * 128, NT))
        vm.append("%s%d" % (name, tile)); stg_point()
def raw(rb, i): return 96 + rb * 24 + i * 4
def q_issue(rb):
    for i in range(6):
        A("buffer_load_dwordx4 %s, v%d, %s, %s offen offset:%d %s" % (V(raw(rb, i), 4), vQG, sQ, sRB(rb), (i & 1) * 3072 + (i >> 1) * 128, NT))
        vm.append("Q%d.%d" % (rb, i)); stg_point()
def vwait(name):
    last = max(i for i, x in enumerate(vm) if x == name)
    A("s_waitcnt vmcnt(%d)" % (len(vm) - 1 - last))
srd(24, 6, "s15", 196608)
pro_tile("K", 0)
K1E = int(opts.get("k1e", 1))
if K1E == 1: pro_tile("K", 1)
srd(20, 4, "s14", 147456)
for rb in range(QD): q_issue(rb)
P += pstamp(2)
srd(28, 8, "s15", 196608); srd(32, 10, "s14", 147456)
if int(opts.get("tlb", 0)):
    A("buffer_load_dword a112, v%d, %s, 0 offen nt" % (vQG, sO)); vm.append("tlb")
kvq = [("K", 1), ("V", 0), ("K", 2), ("V", 1), ("K", 3), ("V", 2)][(1 if K1E else 0):]
if STAMP:
    A("s_mov_b32 s36, s12"); A("s_mov_b32 s37, s13"); A("s_mov_b32 s38, %s" % ("64" if "skew" in opts else "0x100000")); A("s_mov_b32 s39, 0x20000")
    if "skew" in opts:
        A("s_not_b32 s80, s60"); A("v_mov_b32 v250, s80"); A("v_mov_b32 v251, 0"); A("s_mov_b64 exec, 1")
        A("buffer_atomic_umax v250, v251, %s, 0 offen" % sW); vm.append("skew"); A("s_mov_b64 exec, -1")
A("s_add_u32 %s, %s, %d" % (sKend, sKbeg, 4 * SLOT))
A("s_add_u32 %s, %s, %d" % (sVend, sVbeg, 4 * SLOT))
A("s_mul_i32 %s, %s, %d" % (sQL, sWave, QWAVE))
A("s_add_u32 %s, %s, %d" % (sQL, sQL, QLDS))
A("v_and_b32 v%d, 3, v%d" % (t4, vLN))
A("v_xor_b32 v%d, v%d, v%d" % (t2, t5, t4))
A("v_lshlrev_b32 v%d, 4, v%d" % (t2, t2))
A("v_lshl_add_u32 v%d, v%d, 8, v%d" % (t2, t4, t2))
A("v_bfe_u32 v%d, v%d, 2, 1" % (t4, vLN))
A("v_mul_u32_u24 v%d, %d, v%d" % (t4, QKS, t4))
A("v_add3_u32 v%d, v%d, v%d, %s" % (vQW, t2, t4, sQL))
A("v_and_b32 v%d, 15, v%d" % (t2, vLN))
A("v_xor_b32 v%d, v%d, v%d" % (t4, t2, t3))
A("v_lshlrev_b32 v%d, 4, v%d" % (t4, t4))
A("v_lshl_add_u32 v%d, v%d, 8, v%d" % (t4, t3, t4))
A("v_add_u32 v%d, %s, v%d" % (vQA, sQL, t4))
A("v_and_b32 v%d, 6, v%d" % (t4, vLN))
A("v_xor_b32 v%d, v%d, v%d" % (t4, t4, t3))
A("v_lshlrev_b32 v%d, 4, v%d" % (t4, t4))
A("v_lshl_add_u32 v%d, v%d, 7, v%d" % (vKA[0], t2, t4))
A("v_xor_b32 v%d, 64, v%d" % (vKA[1], vKA[0]))
A("v_lshrrev_b32 v%d, 2, v%d" % (t4, vLN))
A("v_lshlrev_b32 v%d, 7, v%d" % (t4, t4))
A("v_and_b32 v%d, 3, v%d" % (t2, vLN))
A("v_lshl_add_u32 v%d, v%d, 3, v%d" % (t4, t2, t4))
A("v_bfe_u32 v%d, v%d, 3, 2" % (t2, vLN))
A("v_lshl_add_u32 v%d, v%d, 5, v%d" % (t4, t2, t4))
A("v_add_u32 v%d, %d, v%d" % (vVA[0], VRING + 2 * SLOT, t4))
for x in range(1, 4): A("v_xor_b32 v%d, %d, v%d" % (vVA[x], 32 * x, vVA[0]))
A("s_mov_b32 s40, 0x%x" % CSCALE); A("s_mov_b32 s41, 0x%x" % CSCALE)
A("s_mov_b32 %s, 0" % sIT)
A("s_mov_b32 %s, %d" % (sKoff, 4 * SLOT))
A("s_mov_b32 %s, %d" % (sVoff, 3 * SLOT))
A("s_mov_b32 %s, %s" % (sKm, sKbeg))
A("s_add_u32 %s, %s, %d" % (sVm, sVbeg, 3 * SLOT))
A("s_mov_b32 %s, 0x%x" % (sLo, f2u(2.0 ** float(opts.get("llo", -20)))))
A("s_mov_b32 %s, 0x%x" % (sHi, f2u(2.0 ** float(opts.get("lhi", 24)))))
for i in vL: A("v_mov_b32 v%d, 0" % i)
ZR = FQ[5][1]
for i in range(4): A("v_accvgpr_write_b32 a%d, 0" % (124 + i))
A("v_mov_b32 v%d, %d" % (t2, FLAG))
A("ds_write_b32 v%d, v%d" % (t2, vL[0]))
def zero16(f, i): A("v_mfma_f32_32x32x16_bf16 %s[%d:%d], %s, %s, 0" % (f, i, i + 15, ZR, ZR))
for i in range(128, 256, 16): zero16("a", i)
WARM = int(opts.get("warm", 0))
if WARM:
    A("s_mov_b64 exec, 0")
    if WARM == 2:
        for w in range(1, 4):
            A("s_cmp_eq_u32 %s, %d" % (sWave, w)); A("s_cbranch_scc1 L_wseg%d" % w)
    A("s_branch L_epi")
    A("L_warm_back:")
    A("s_mov_b64 exec, -1")
    for i in vL: A("v_mov_b32 v%d, 0" % i)
vwait("K1" if K1E == 1 else "K0")
A("s_waitcnt lgkmcnt(0)")
P += pstamp(3)
A("s_barrier")
K0F = [V(G[rb][1], 4) for rb in range(6)] + [V(X[rb][1], 4) for rb in LATE] + FB
for n in range(12): A(k_read(K0F[n], 0, n >> 1, n & 1))
def pro_sm(rb):
    ops = sm(rb, 0, 0) + sm(rb, 0, 1)
    for t in [t for t in ops if t.startswith("v_exp")] + ["s_nop 0"] + [t for t in ops if not t.startswith("v_exp")]: A(t)
pend = []
for rb in range(QD, 6): pend += [("Q", rb, i) for i in range(6)]
for name, tile in kvq: pend += [(name, tile, cb) for cb in range(3)]
kvq = []
DEF = int(opts.get("defer", 0))
deferred = pend[len(pend) - 3 * DEF:] if DEF else []
if DEF: pend = pend[:len(pend) - 3 * DEF]
KVLATE = int(opts.get("kvlate", 0))
def issue_one():
    if not pend: return
    k, x, i = pend.pop(0)
    if k == "Q":
        A("buffer_load_dwordx4 %s, v%d, %s, %s offen offset:%d %s" % (V(raw(x, i), 4), vQG, sQ, sRB(x), (i & 1) * 3072 + (i >> 1) * 128, NT))
        vm.append("Q%d.%d" % (x, i))
    else:
        srd_, beg = (sK, sKbeg) if k == "K" else (sV, sVbeg)
        A("s_add_u32 m0, %s, %d" % (beg, x * SLOT + i * (4096 - 128)))
        A("s_mov_b32 %s, %d" % (sTmp, x * SLOT))
        A("buffer_load_dwordx4 %s, %s, %s offen offset:%d %s lds" % (V(vDMA), srd_, sTmp, i * 128, NT))
        vm.append("%s%d" % (k, x))
def qdst(rb, ks): return Ac(rb * 24 + ks * 4, 4) if rb < 4 else V(raw(rb, ks), 4)
def st_read(st_):
    rb, cb = divmod(st_, 3)
    for ks in (2 * cb, 2 * cb + 1): A(q_read(qdst(rb, ks), rb & 1, ks))
def st_mfma(st_):
    rb, cb = divmod(st_, 3)
    for hf in range(2):
        for ks in (2 * cb, 2 * cb + 1):
            d = V((G[rb][0] if hf == 0 else X[rb][0]), 4)
            A("%s %s, %s, %s, %s" % (MF, d, K0F[2 * ks + hf], qdst(rb, ks), "0" if ks == 0 else d))
nleft = 36
for st_ in range(18):
    rb, cb = divmod(st_, 3)
    for rh in range(2):
        i = 2 * cb + rh
        vwait("Q%d.%d" % (rb, i))
        if rb == 5 and i == 5: P += stamp(1) + pstamp(5)
        if rb == 2 and i == 5: P += pstamp(4)
        r0 = raw(rb, i)
        for k in range(4):
            t = 240 + 2 * k + 8 * rh
            A("v_lshlrev_b32 v%d, 16, v%d" % (t, r0 + k)); A("v_and_b32 v%d, 0xffff0000, v%d" % (t + 1, r0 + k))
        for k in range(4):
            t = 240 + 2 * k + 8 * rh
            A("v_pk_mul_f32 %s, %s, %s" % (V(t, 2), V(t, 2), sC2))
        for k in range(4):
            t = 240 + 2 * k + 8 * rh
            A("v_cvt_pk_bf16_f32 v%d, v%d, v%d" % (r0 + k, t, t + 1))
        if rh == 0 and st_ >= 1: st_read(st_ - 1)
        A("ds_write_b128 v%d, %s offset:%d" % (vQW, V(r0, 4), (rb & 1) * QRB + cb * 2 * QKS + rh * 128))
        if st_ == 17 and rh == 1: st_read(17)
        if pend and (pend[0][0] == "Q" or not KVLATE or len(pend) >= nleft - KVLATE):
            for _ in range(-(-len(pend) // nleft)): issue_one()
        nleft -= 1
        if nleft == 0:
            pend += deferred[:3]; deferred = deferred[3:]
            while pend: issue_one()
    if st_ >= 1:
        A("s_waitcnt lgkmcnt(%d)" % (2 if st_ < 17 else 4)); st_mfma(st_ - 1)
    if cb == 1 and rb >= 1 and rb - 1 in EARLY: pro_sm(rb - 1)
    for i in {7: (96, 112, 128), 13: (144, 160, 176), 16: (192, 208)}.get(st_, ()): zero16("v", i)
A("s_waitcnt lgkmcnt(0)")
st_mfma(17)
for i in (240, 224): zero16("v", i)
pend += deferred
while pend: issue_one()
if not K1E:
    vwait("K1")
    A("s_barrier")
A(k_read(FB[0], 1, 0, 0)); A(k_read(FB[1], 1, 1, 0))
for rb in LATE:
    for k in range(2): A(q_read(FQ[rb][k], rb - 4, k))
assert not kvq and vm[-15:] == ["V0"] * 3 + ["K2"] * 3 + ["V1"] * 3 + ["K3"] * 3 + ["V2"] * 3, vm
A("s_waitcnt lgkmcnt(0)")
P += stamp(2) + pstamp(6)

B0, q0 = body(0, [])
B1, q1 = body(1, q0)
B0, q0b = body(0, q1)
assert q0 == q0b
def strip(B):
    o = []
    for t in B:
        if "nobar" in opts and (t == "s_barrier" or "vmcnt" in t): continue
        if "nodma" in opts and (t.startswith("buffer_load") or "vmcnt" in t): continue
        if "nolds" in opts and (t.startswith("ds_read") or "lgkmcnt" in t): continue
        if "nowait" in opts and "lgkmcnt" in t: continue
        if "novalu" in opts and t.startswith("v_") and not t.startswith("v_mfma"): continue
        o.append(t)
    return o
B0 = strip(B0); B1 = strip(B1)
ROT = int(opts.get("rot", 1))
def split_last(B):
    i = max(k for k, t in enumerate(B) if t.startswith("v_mfma"))
    return B[:i + 1], B[i + 1:]
TAILPRE = []
if ROT:
    B0, r0_ = split_last(B0); B1, r1_ = split_last(B1)
    assert all(t.startswith("s_waitcnt") for t in r1_), r1_
    B1 = r0_ + B1; B0 = r1_ + B0; TAILPRE = r0_
if STAMP == 3:
    pre = ["s_mov_b32 m0, s84", "s_nop 0", "v_writelane_b32 v15, s80, m0", "v_writelane_b32 v14, s82, m0", "s_add_u32 s84, s84, 1", "s_memrealtime s[80:81]", "s_memtime s[82:83]"]
    B0 = pre + B0; B1 = pre + B1
    P += ["s_mov_b32 s84, 0", "s_mov_b32 s80, 0", "s_mov_b32 s82, 0"]

T = []
A = T.append
T += TAILPRE + stamp(3) + cstamp(0)
if STAMP == 3:
    T += pre + ["s_waitcnt lgkmcnt(0)"] + pre[:4]
    A("v_mbcnt_lo_u32_b32 v0, -1, 0"); A("v_mbcnt_hi_u32_b32 v0, -1, v0"); A("v_lshlrev_b32 v0, 3, v0")
    A("s_lshl_b32 s3, s2, 2"); A("s_add_u32 s3, s3, %s" % sWave); A("s_lshl_b32 s3, s3, 9"); A("s_add_u32 s3, s3, 65536")
    A("buffer_store_dwordx2 v[14:15], v0, %s, s3 offen" % sW)
def vt_read(db): return [t.replace(FBh[0][i], Ac(4 * db + 2 * i, 2)) for i, t in enumerate(v_read(0, 1, db))]
for db in range(3):
    for t in vt_read(db): A(t)
mf = ["%s %s, %s, %s, %s" % (MF, O4(rb, db), Ac(4 * db, 4), V(G[rb][1], 4), O4(rb, db)) for grp in (EARLY, LATE) for db in range(12) for rb in grp]
pinned = {3 * (db - 3): vt_read(db) for db in range(3, 12)}
dsT = q0 + [set(expand(Ac(4 * db + 2 * i, 2))) for db in range(3) for i in range(2)]
late_ops = [t for rb in LATE for h in range(2) for t in sm(rb, 1, h)]
head = [t for t in late_ops if t.startswith("v_exp")][:10]
for t in head: A(t)
st = [Op(t, 0, 45) for t in late_ops if t not in head]
tmp = [G[rb][0] for rb in range(6)]
def lred(rbs, g0):
    o = []
    for stage, sw in enumerate(("v_permlane32_swap_b32", "v_permlane16_swap_b32")):
        o += [Op("v_mov_b32 %s, %s" % (V(tmp[rb]), V(vL[rb])), g0) for rb in rbs]
        o += [Op("%s %s, %s" % (sw, V(vL[rb]), V(tmp[rb])), g0) for rb in rbs]
        o += [Op("v_add_f32 %s, %s, %s" % (V(vL[rb]), V(vL[rb]), V(tmp[rb])), g0) for rb in rbs]
    return o
ESH = int(opts.get("esh", 0))
eLN = G[0][0] + 1; eW = [vKA[0], vKA[1], vQA, vDMA]; eR = vT[0]; eS = vT[1]; e1 = G[1][0] + 1; e2 = G[2][0] + 1; e3 = G[3][0] + 1
addr = ["v_mbcnt_lo_u32_b32 v%d, -1, 0" % eLN, "v_mbcnt_hi_u32_b32 v%d, -1, v%d" % (eLN, eLN),
        "v_and_b32 v%d, 15, v%d" % (e1, eLN), "v_mul_u32_u24 v%d, 384, v%d" % (e1, e1),
        "v_bfe_u32 v%d, v%d, 4, 1" % (e2, eLN), "v_lshl_add_u32 v%d, v%d, 3, v%d" % (e1, e2, e1),
        "v_lshrrev_b32 v%d, 5, v%d" % (e2, eLN), "v_xor_b32 v%d, v%d, v%d" % (e2, e2, eLN), "v_and_b32 v%d, 7, v%d" % (e2, e2),
        "v_add_u32 v%d, %s, v%d" % (e1, sQL, e1)] + \
       (["v_and_b32 v%d, 8, v%d" % (e3, eLN), "v_add_u32 v%d, v%d, v%d" % (e1, e1, e3)] if ESH else []) + \
       sum([["v_xor_b32 v%d, %d, v%d" % (e3, 2 * x, e2), "v_lshl_add_u32 v%d, v%d, 4, v%d" % (eW[x], e3, e1)] for x in range(4)], []) + \
       ["v_lshrrev_b32 v%d, 3, v%d" % (e1, eLN), "v_xor_b32 v%d, v%d, v%d" % (e2, e1, eLN), "v_and_b32 v%d, 7, v%d" % (e2, e2),
        "v_mul_u32_u24 v%d, 384, v%d" % (e1, e1), "v_lshl_add_u32 v%d, v%d, 4, v%d" % (eR, e2, e1), "v_add_u32 v%d, %s, v%d" % (eR, sQL, eR),
        "v_and_b32 v%d, 7, v%d" % (e2, eLN), "v_lshl_add_u32 v%d, v%d, 4, v%d" % (eS, e2, e1), "v_add_u32 v%d, %s, v%d" % (eS, sRow, eS)]
mn = X[0][0]; mx = X[1][0]
st += lred(EARLY, 0) + lred(LATE, 0)
chk = ["v_min3_f32 v%d, v%d, v%d, v%d" % (mn, vL[0], vL[1], vL[2]), "v_min3_f32 v%d, v%d, v%d, v%d" % (mn, vL[3], vL[4], mn), "v_min_f32 v%d, v%d, v%d" % (mn, vL[5], mn),
       "v_add_f32 v%d, v%d, v%d" % (mx, vL[0], vL[1])] + ["v_add_f32 v%d, v%d, v%d" % (mx, mx, vL[i]) for i in range(2, 6)]
chk += ["v_cmp_nle_f32 vcc, %s, v%d" % (sLo, mn), "v_cmp_nge_f32 %s, %s, v%d" % (sBad, sHi, mx)]
chk += ["v_rcp_f32 %s, %s" % (V(vL[rb]), V(vL[rb])) for rb in range(6)]
st += [Op(t) for t in addr] + [Op(t) for t in chk]
PVT, _ = schedule(mf, pinned, [], st, dsT, "tailpv")
T += PVT
T += stamp(4) + cstamp(1)
A("s_or_b64 %s, %s, vcc" % (sBad, sBad))
A("s_cbranch_scc0 L_good")
A("v_mov_b32 v%d, %d" % (mn, FLAG)); A("v_mov_b32 v%d, 1" % mx)
A("ds_write_b32 v%d, v%d" % (mn, mx))
A("L_good:")
def ep_st(n, rh):
    rb, cb = n // 3, n % 3
    if "nost" in opts: return
    A("buffer_store_dwordx4 %s, v%d, %s, %s offen offset:%d %s" % (V(48 + 8 * (n % 6) + 4 * rh, 4), eS, sO, sRB(rb), rh * 3072 + cb * 128, SPOL))
def ep_rd(n):
    rb, cb = n // 3, n % 3; area = rb & 1
    for rh in range(2):
        if ESH == 2 and rh == 1:
            for k in range(2): A("ds_read_b64 %s, v%d offset:%d" % (V(48 + 8 * (n % 6) + 4 + 2 * k, 2), eR, area * QRB + 3080 + 8 * k + cb * 128))
        else: A("ds_read_b128 %s, v%d offset:%d" % (V(48 + 8 * (n % 6) + 4 * rh, 4), eR, area * QRB + rh * 3072 + cb * 128))
RD = int(opts.get("rd", 1))
for n in range(18 + RD + 1):
    if n == 0: T += cstamp(2)
    if n == 5: T += cstamp(3)
    if n == 10: T += cstamp(4)
    rb, cb = n // 3, n % 3
    m = n - RD - 1
    if n < 18:
        lp = vL[rb] & ~1; sel = vL[rb] & 1; area = rb & 1
        pk = 16 + 8 * (n & 1)
        fl, i0 = Oreg(rb, 4 * cb)
        w = 32
        if fl == "a":
            for i in range(16): A("v_accvgpr_read_b32 %s, %s" % (V(w + i), Ac(i0 + i)))
            src = w
        else: src = i0
        for i in range(0, 16, 2):
            A("v_pk_mul_f32 %s, %s, %s op_sel:[0,%d] op_sel_hi:[1,%d]" % (V(w + i, 2), V(src + i, 2), V(lp, 2), sel, sel))
    if m >= 0:
        A("s_waitcnt lgkmcnt(%d)" % (4 if n - 1 < 18 else 0))
        ep_st(m, 0)
    if n < 18:
        for i in range(8):
            A("v_cvt_pk_bf16_f32 %s, %s, %s" % (V(pk + i), V(w + 2 * i), V(w + 2 * i + 1)))
    if m >= 0: ep_st(m, 1)
    if 0 <= n - RD < 18: ep_rd(n - RD)
    if n < 18:
        for x in range(4):
            A("ds_write_b64 v%d, %s offset:%d" % (eW[x], V(pk + 2 * x, 2), area * QRB + cb * 128))
if STAMP:
    T += stamp(5) + cstamp(5)
    A("s_waitcnt vmcnt(0)")
    T += stamp(6) + cstamp(6)
    A("s_waitcnt lgkmcnt(0)")
    if "probe" in opts:
        pi, pj = [int(x) for x in opts["probe"].split(",")]
        if "skew" in opts:
            A("v_mov_b32 v10, 0"); A("buffer_load_dword v11, v10, %s, 0 offen sc0 sc1" % sW); A("s_waitcnt vmcnt(0)")
            A("v_readfirstlane_b32 s%d, v11" % (60 + 2 * pi)); A("s_not_b32 s%d, s%d" % (60 + 2 * pi, 60 + 2 * pi))
        A("s_sub_u32 s80, s%d, s%d" % (60 + 2 * pj, 60 + 2 * pi))
        A("s_min_u32 s80, s80, 10000")
        A("s_lshl_b32 s80, s80, 2")
        A("L_spin:")
        A("s_sleep 2")
        A("s_memrealtime s[82:83]")
        A("s_waitcnt lgkmcnt(0)")
        A("s_sub_u32 s81, s82, s72")
        A("s_cmp_lt_u32 s81, s80")
        A("s_cbranch_scc1 L_spin")
    A("s_lshl_b32 s3, s2, 2"); A("s_add_u32 s3, s3, %s" % sWave); A("s_lshl_b32 s3, s3, 6")
    A("v_mov_b32 v10, s3")
    for i in range(16): A("v_mov_b32 v%d, s%d" % (12 + i, 60 + i))
    for i in range(4 if "skew" not in opts else 0): A("buffer_store_dwordx4 v[%d:%d], v10, %s, 0 offen offset:%d" % (12 + 4 * i, 15 + 4 * i, sW, 16 * i))
A("s_barrier")
A("v_mov_b32 v0, %d" % FLAG)
A("ds_read_b32 v0, v0")
A("s_waitcnt lgkmcnt(0)")
A("v_readfirstlane_b32 %s, v0" % sTmp)
A("s_cmp_eq_u32 %s, 0" % sTmp)
A("s_cbranch_scc0 L_redo")
A("L_end:")
A("s_endpgm")
A("L_redo:")
A("s_waitcnt vmcnt(0)")
A("s_barrier")
A("v_mbcnt_lo_u32_b32 v0, -1, 0"); A("v_mbcnt_hi_u32_b32 v0, -1, v0")
A("s_lshl_b32 %s, %s, 6" % (sTmp, sWave))
A("v_add_u32 v0, %s, v0" % sTmp)

def I(l): return [Ins(t) for t in l]
seq = I(P) + I(B0) + I(["s_cbranch_scc1 L_tail"]) + I(B1) + I(["s_branch L_loop"]) + I(B0) + I(["s_cbranch_scc1 L_tail"]) + I(T)
errs = check_hazards(seq, "main") + check_waits(seq, "main")
for e in errs[:30]: sys.stderr.write(e + "\n")
if errs and not any(k.startswith("no") for k in opts):
    print("!!! %d hazard problems" % len(errs)); sys.exit(1)
S, lds2, e2_ = gen_safe.build_safe({"qd": "3", "nt": NT})
assert lds2 <= LDS_BYTES and e2_ == 0

hdr = open("standalone__gqa_softmax__near_ridge.s.ref").read().split("; Override")[0]
out = [hdr.rstrip(), "; @launch grid=(256,1,1) block=(256,1,1) lds=%d" % LDS_BYTES,
       '.amdgcn_target "amdgcn-amd-amdhsa--gfx950"', ".text", ".globl %s" % KN, ".p2align 8", ".type %s,@function" % KN, "%s:" % KN, "L_start:"]
def emit(l):
    for t in l: out.append(t if t.endswith(":") or t.startswith(".") else "    " + t)
emit(P); emit([".p2align 6", "L_loop:"]); emit(B0); emit(["s_cbranch_scc1 L_tail"]); emit(B1); emit(["s_branch L_loop", "L_lastw:", "s_waitcnt vmcnt(6)", "s_branch L_lastback", "L_tail:"]); emit(T); emit(S if 'nosafe' not in opts else ['s_endpgm'])
out = [t.replace("CODE_HOT_BYTES", "L_end-L_start") for t in out]
out += ['.section .rodata,"a"', ".p2align 6", ".amdhsa_kernel %s" % KN, "  .amdhsa_next_free_vgpr 512", "  .amdhsa_next_free_sgpr 96",
        "  .amdhsa_accum_offset 256", "  .amdhsa_group_segment_fixed_size 0", "  .amdhsa_kernarg_size 48", "  .amdhsa_user_sgpr_count 2",
        "  .amdhsa_user_sgpr_kernarg_segment_ptr 1", "  .amdhsa_system_sgpr_workgroup_id_x 1", ".end_amdhsa_kernel", ""]
open(sys.argv[1], "w").write("\n".join(out))
```

```python
import sys, math, struct
from asmlib import *
from sched import *
import gen_safe

opts = dict(a.split("=") for a in sys.argv[2:])
STAMP = int(opts.get("stamp", 0))
NT = opts.get("nt", "nt").replace("+", " ")
SPOL = opts.get("spol", "sc1").replace("+", " ")
QD = int(opts.get("qd", 4))
STG = [int(x) for x in opts["stg"].split(",")] if "stg" in opts else None
CHAIN = int(opts.get("chain", 1))
KN = "standalone__gqa_softmax__near_ridge_kernel"
def f2u(x): return struct.unpack("<I", struct.pack("<f", x))[0]
CSCALE = f2u(math.log2(math.e) / math.sqrt(192.0))

KRING = 0; VRING = 49152; QLDS = 98304; SLOT = 12288
QKS = 1088; QRB = 6 * QKS; QWAVE = 2 * QRB
FLAG = QLDS + 4 * QWAVE
LDS_BYTES = FLAG + 64
def V(i, n=1): return "v%d" % i if n == 1 else "v[%d:%d]" % (i, i + n - 1)
def Ac(i, n=1): return "a%d" % i if n == 1 else "a[%d:%d]" % (i, i + n - 1)
vKA = [0, 1]; vVA = [2, 3, 4, 5]; vQA = 6; vDMA = 7
vL = [8 + i for i in range(6)]; vT = [14, 15]
FB = [Ac(96 + 4 * i, 4) for i in range(4)]
FBh = [(Ac(96 + 4 * i, 2), Ac(98 + 4 * i, 2)) for i in range(4)]
FQ = {4: [Ac(112, 4), Ac(116, 4)], 5: [Ac(120, 4), Ac(124, 4)]}
EARLY = [0, 1, 2, 3]; LATE = [4, 5]
G = {}; X = {}
r = 16
for rb in LATE:
    G[rb] = [r, r + 4]; X[rb] = [r + 8, r + 12]; r += 16
for rb in EARLY:
    G[rb] = [r, r + 4]; X[rb] = [r + 8, r + 8]; r += 12
assert r == 96
def Oreg(rb, db):
    b = rb * 12 + db
    return ("v", 96 + 4 * b) if b < 40 else ("a", 128 + 4 * (b - 40))
def O4(rb, db):
    f, i = Oreg(rb, db); return "%s[%d:%d]" % (f, i, i + 3)
def Qf(rb, ks): return Ac(rb * 24 + ks * 4, 4) if rb < 4 else FQ[rb][ks & 1]
sQ = "s[20:23]"; sK = "s[24:27]"; sV = "s[28:31]"; sO = "s[32:35]"; sW = "s[36:39]"
sC2 = "s[40:41]"; sIT = "s42"; sKoff = "s43"; sVoff = "s44"; sKm = "s45"; sVm = "s46"; sWave = "s47"
sTmp = "s48"; sRow = "s49"; sKend = "s50"; sVend = "s51"; sKbeg = "s52"; sVbeg = "s53"; sQL = "s16"; sCls = "s17"
sLo = "s76"; sHi = "s77"; sBad = "s[78:79]"
def sRB(rb): return "0" if rb == 0 else "s%d" % (54 + rb)
MF = "v_mfma_f32_16x16x32_bf16"

def k_read(dst, tile_par, ks, hf):
    return "ds_read_b128 %s, %s offset:%d" % (dst, V(vKA[ks & 1]), tile_par * SLOT + (ks >> 1) * 4096 + hf * 2048)
def v_read(buf, tile_par, db):
    return ["ds_read_b64_tr_b16 %s, %s offset:%d" % (FBh[buf][i], V(vVA[db & 3]), tile_par * SLOT + (db >> 2) * 4096 + i * 2048) for i in range(2)]
def q_read(dst, area, ks):
    return "ds_read_b128 %s, %s offset:%d" % (dst, V(vQA), area * QRB + ks * QKS)
def qk_mfmas(par):
    out = []
    for p in range(3):
        for hf in range(2):
            g = 2 * p + hf
            order = list(range(6)) if hf == 0 else list(range(5, -1, -1))
            seq = [(rb, k) for rb in order for k in range(2)] if CHAIN else [(rb, k) for k in range(2) for rb in order]
            for rb, k in seq:
                ks = 2 * p + k
                d = V((G[rb][par] if hf == 0 else X[rb][par]), 4)
                out.append("%s %s, %s, %s, %s" % (MF, d, FB[(2 * g + k) % 4], Qf(rb, ks), "0" if ks == 0 else d))
    return out
def pv_mfmas(par, rbs=range(6), b0=0):
    return ["%s %s, %s, %s, %s" % (MF, O4(rb, db), FB[(b0 + db) % 4], V(G[rb][par], 4), O4(rb, db)) for db in range(12) for rb in rbs]
def sregs(rb, par): return [G[rb][par] + i for i in range(4)] + [X[rb][par] + i for i in range(4)]
def sm(rb, par, half):
    ops = []; s = sregs(rb, par)
    for i in (4 * half, 4 * half + 2):
        ops.append("v_exp_f32 %s, %s" % (V(s[i]), V(s[i])))
        ops.append("v_exp_f32 %s, %s" % (V(s[i + 1]), V(s[i + 1])))
        ops.append("v_add_f32 %s, %s, %s" % (V(vL[rb]), V(vL[rb]), V(s[i])))
        ops.append("v_add_f32 %s, %s, %s" % (V(vL[rb]), V(vL[rb]), V(s[i + 1])))
        ops.append("v_cvt_pk_bf16_f32 %s, %s, %s" % (V(G[rb][par] + i // 2), V(s[i]), V(s[i + 1])))
    return ops
def dma(srd, soff, smbase, cb):
    return ("s_add_u32 m0, %s, %d" % (smbase, cb * (4096 - 128)),
            "buffer_load_dwordx4 %s, %s, %s offen offset:%d %s lds" % (V(vDMA), srd, soff, cb * 128, NT))
def last_write_slot(mf, reg):
    return max(g for g, t in enumerate(mf) if reg in Ins(t).wr)
def paced(ops, g0, g1, floor=0, dead=10 ** 9):
    os_ = [Op(t) for t in ops]; tot = sum(o.cost for o in os_); acc = 0
    for o in os_:
        o.ming = max(floor, int(g0 + (g1 - g0) * acc / tot)); o.dead = dead; acc += o.cost
    return os_

def body(par, ds_in):
    np_ = par ^ 1
    qk = qk_mfmas(np_)
    mf = qk + pv_mfmas(par)
    pinned = {}
    def pin(g, t): pinned.setdefault(g, []).append(t)
    for g in range(1, 6):
        for k in range(2): pin(12 * (g - 1) + int(opts.get("ksp", 2)) * k, k_read(FB[(2 * g + k) % 4], np_, 2 * (g >> 1) + k, g & 1))
    for db in range(12):
        gp = {0: 60, 1: 63, 2: 72, 3: 75}.get(db, 72 + 6 * (db - 3))
        for t in v_read(db % 4, par, db): pin(gp, t)
    pin(127, k_read(FB[0], par, 0, 0)); pin(133, k_read(FB[1], par, 1, 0))
    lastq = {}
    for g, t in enumerate(qk):
        for rb in LATE:
            for k in range(2):
                if FQ[rb][k] in t: lastq[(g // 24, rb, k)] = g
    for p in range(3):
        gs = sorted((lastq[(p, rb, k)], rb, k) for rb in LATE for k in range(2))
        g = gs[-1][0] + 1 if not CHAIN else 0
        for (lg, rb, k) in gs:
            g = max(g, lg + 1)
            while g in pinned: g += 1
            pin(g, q_read(FQ[rb][k], rb - 4, (2 * p + 2 + k) % 6)); g += int(opts.get("qsp", 1))
    scal = []
    if par == 0:
        scal.append((50, ["s_cmp_eq_u32 %s, 7" % sIT], True))
        scal.append((51, ["s_cbranch_scc1 L_lastw", "L_lastback:"], True))
    scal.append((int(opts.get("bg", 54)), ["s_waitcnt vmcnt(9)", "s_barrier"], False))
    dg = [int(x) for x in opts.get("dg", "70,81,93,105,117,130").split(",")]
    for i in range(6):
        a, b = dma(sK, sKoff, sKm, i) if i < 3 else dma(sV, sVoff, sVm, i - 3)
        assert dg[i] not in pinned, dg[i]
        scal.append((dg[i] - 1, [a], True)); pin(dg[i], b)
    scal.append((dg[2] + 1, ["s_add_u32 %s, %s, %d" % (sKoff, sKoff, SLOT), "s_add_u32 %s, %s, %d" % (sKm, sKm, SLOT),
                      "s_cmp_eq_u32 %s, %s" % (sKm, sKend), "s_cselect_b32 %s, %s, %s" % (sKm, sKbeg, sKm)], False))
    scal.append((dg[5] + 1, ["s_add_u32 %s, %s, %d" % (sVoff, sVoff, SLOT), "s_add_u32 %s, %s, %d" % (sVm, sVm, SLOT),
                       "s_cmp_eq_u32 %s, %s" % (sVm, sVend), "s_cselect_b32 %s, %s, %s" % (sVm, sVbeg, sVm)], False))
    if par == 0:
        scal.append((139, ["s_add_u32 %s, %s, 1" % (sIT, sIT), "s_cmp_eq_u32 %s, 8" % sIT], False))
    st = []
    st += paced(sum([sm(rb, par, h) for rb in LATE for h in range(2)], []), 0, int(opts.get("l1", 50)), dead=70)
    if par == 0:
        st += [Op("v_xor_b32 %s, 0x1e000, %s" % (V(a), V(a)), 44, 58) for a in vVA]
        st += [Op("v_xor_b32 %s, 0x6000, %s" % (V(a), V(a)), 52, 125) for a in vKA]
    seq = [(0, 0), (1, 0), (2, 0), (3, 0), (3, 1), (2, 1), (1, 1), (0, 1)]
    E0 = int(opts.get("e0", 56)); E1 = int(opts.get("e1", 140))
    for n, (rb, h) in enumerate(seq):
        ready = last_write_slot(qk, "v%d" % sregs(rb, np_)[4 * h]) + 5
        st += paced(sm(rb, np_, h), E0 + (E1 - E0) * n / 8, E0 + (E1 - E0) * (n + 1) / 8, floor=ready)
    def capf(cap, sc, pin_):
        for g_ in range(144):
            if "s_barrier" in sc.get(g_, []):
                for k in range(int(opts.get("xb0", 0)), int(opts.get("xb1", 0))): cap[g_ + k] = 0
            if any(t.startswith("buffer_") for t in pin_.get(g_, [])):
                if int(opts.get("xd", 0)) & 1: cap[g_ + 1] = min(cap[g_ + 1], 1)
                if int(opts.get("xd", 0)) & 2: cap[g_ - 1] = min(cap[g_ - 1], 1)
                if int(opts.get("xd", 0)) & 4: cap[g_ + 1] = 0
    return schedule(mf, pinned, scal, st, ds_in, "body%d" % par, capf=capf, next_first=qk_mfmas(par)[0], novv=int(opts.get("xvv", 0)), excl=int(opts.get("excl", 0)))

def stamp(i): return ["s_memrealtime s[%d:%d]" % (60 + 2 * i, 61 + 2 * i)] if STAMP and STAMP != 4 and (STAMP != 5 or i in (0,)) else []
def pstamp(i): return ["s_memrealtime s[%d:%d]" % (60 + 2 * i, 61 + 2 * i)] if STAMP == 5 else []
def cstamp(i): return ["s_memtime s[%d:%d]" % (60 + 2 * i, 61 + 2 * i)] if STAMP == 4 else []
if STAMP == 6:
    def stamp(i): return ["s_memtime s[%d:%d]" % (60 + 2 * i, 61 + 2 * i)]

P = []
A = P.append
A("s_cmp_ge_u32 s2, 256")
A("s_cbranch_scc1 L_end")
A("s_load_dwordx4 s[4:7], s[0:1], 0")
A("s_load_dwordx4 s[8:11], s[0:1], 16")
if STAMP: A("s_load_dwordx2 s[12:13], s[0:1], %d" % (32 if "skew" in opts else 40))
P += stamp(0)
vJ = 240
if int(opts.get("cpf", 1)):
    A("s_getpc_b64 s[18:19]")
    A("v_lshlrev_b32 v%d, 7, v0" % vJ)
    A("v_min_u32 v%d, CODE_HOT_BYTES, v%d" % (vJ, vJ))
    A("global_load_dword v%d, v%d, s[18:19]" % (vJ + 1, vJ))
vLN = 242; vQG = vT[0]; vQW = vT[1]; t2 = 243; t3 = 244; t4 = 245; t5 = 246
A("v_lshrrev_b32 v%d, 6, v0" % t2)
A("v_and_b32 v%d, 63, v0" % vLN)
A("s_mul_i32 s14, s2, 147456")
A("v_readfirstlane_b32 %s, v%d" % (sWave, t2))
A("s_mul_i32 s15, s2, 196608")
A("s_bfe_u32 %s, s2, 0x30003" % sCls)
A("v_lshrrev_b32 v%d, 3, v%d" % (t5, vLN))
A("v_mul_u32_u24 v%d, 384, v%d" % (t2, t5))
A("v_lshrrev_b32 v%d, 4, v%d" % (t3, vLN))
A("v_lshlrev_b32 v%d, 1, v%d" % (t4, t3))
A("v_xor_b32 v%d, v%d, v%d" % (t4, t4, vLN))
A("v_and_b32 v%d, 7, v%d" % (t4, t4))
A("v_lshl_add_u32 v%d, v%d, 4, v%d" % (vDMA, t4, t2))
A("s_mul_i32 %s, %s, 3072" % (sTmp, sWave))
A("v_add_u32 v%d, %s, v%d" % (vDMA, sTmp, vDMA))
A("v_and_b32 v%d, 7, v%d" % (t4, vLN))
A("v_lshl_add_u32 v%d, v%d, 4, v%d" % (vQG, t4, t2))
A("s_mul_i32 %s, %s, 36864" % (sRow, sWave))
A("v_add_u32 v%d, %s, v%d" % (vQG, sRow, vQG))
A("s_lshl_b32 %s, %s, 10" % (sKbeg, sWave))
A("s_add_u32 %s, %s, %d" % (sVbeg, sKbeg, VRING))
for rb in range(1, 6): A("s_mov_b32 %s, %d" % (sRB(rb), rb * 6144))
A("s_waitcnt lgkmcnt(0)")
P += pstamp(1)
def srd(base, src, off, size):
    A("s_add_u32 s%d, s%d, %s" % (base, src, off)); A("s_addc_u32 s%d, s%d, 0" % (base + 1, src + 1))
    A("s_mov_b32 s%d, %d" % (base + 2, size)); A("s_mov_b32 s%d, 0x20000" % (base + 3))
vm = []
def stg_point():
    n = len(vm) - 1
    if STG and n < len(STG) and STG[n] < 8:
        A("s_cmp_lt_u32 %s, %d" % (sCls, STG[n]))
        A("s_cbranch_scc1 L_stg%d" % n)
        A("s_waitcnt vmcnt(0)")
        A("L_stg%d:" % n)
def pro_tile(name, tile):
    srd_, beg = (sK, sKbeg) if name == "K" else (sV, sVbeg)
    A("s_mov_b32 %s, %d" % (sTmp, tile * SLOT))
    for cb in range(3):
        A("s_add_u32 m0, %s, %d" % (beg, tile * SLOT + cb * (4096 - 128)))
        A("s_nop 0")
        A("buffer_load_dwordx4 %s, %s, %s offen offset:%d %s lds" % (V(vDMA), srd_, sTmp, cb * 128, NT))
        vm.append("%s%d" % (name, tile)); stg_point()
def raw(rb, i): return 96 + rb * 24 + i * 4
def q_issue(rb):
    for i in range(6):
        A("buffer_load_dwordx4 %s, v%d, %s, %s offen offset:%d %s" % (V(raw(rb, i), 4), vQG, sQ, sRB(rb), (i & 1) * 3072 + (i >> 1) * 128, NT))
        vm.append("Q%d.%d" % (rb, i)); stg_point()
def vwait(name):
    last = max(i for i, x in enumerate(vm) if x == name)
    A("s_waitcnt vmcnt(%d)" % (len(vm) - 1 - last))
srd(24, 6, "s15", 196608)
pro_tile("K", 0)
K1E = int(opts.get("k1e", 1))
if K1E == 1: pro_tile("K", 1)
srd(20, 4, "s14", 147456)
for rb in range(QD): q_issue(rb)
P += pstamp(2)
srd(28, 8, "s15", 196608); srd(32, 10, "s14", 147456)
if int(opts.get("tlb", 0)):
    A("buffer_load_dword a112, v%d, %s, 0 offen nt" % (vQG, sO)); vm.append("tlb")
kvq = [("K", 1), ("V", 0), ("K", 2), ("V", 1), ("K", 3), ("V", 2)][(1 if K1E else 0):]
if STAMP:
    A("s_mov_b32 s36, s12"); A("s_mov_b32 s37, s13"); A("s_mov_b32 s38, %s" % ("64" if "skew" in opts else "0x100000")); A("s_mov_b32 s39, 0x20000")
    if "skew" in opts:
        A("s_not_b32 s80, s60"); A("v_mov_b32 v250, s80"); A("v_mov_b32 v251, 0"); A("s_mov_b64 exec, 1")
        A("buffer_atomic_umax v250, v251, %s, 0 offen" % sW); vm.append("skew"); A("s_mov_b64 exec, -1")
A("s_add_u32 %s, %s, %d" % (sKend, sKbeg, 4 * SLOT))
A("s_add_u32 %s, %s, %d" % (sVend, sVbeg, 4 * SLOT))
A("s_mul_i32 %s, %s, %d" % (sQL, sWave, QWAVE))
A("s_add_u32 %s, %s, %d" % (sQL, sQL, QLDS))
A("v_and_b32 v%d, 3, v%d" % (t4, vLN))
A("v_xor_b32 v%d, v%d, v%d" % (t2, t5, t4))
A("v_lshlrev_b32 v%d, 4, v%d" % (t2, t2))
A("v_lshl_add_u32 v%d, v%d, 8, v%d" % (t2, t4, t2))
A("v_bfe_u32 v%d, v%d, 2, 1" % (t4, vLN))
A("v_mul_u32_u24 v%d, %d, v%d" % (t4, QKS, t4))
A("v_add3_u32 v%d, v%d, v%d, %s" % (vQW, t2, t4, sQL))
A("v_and_b32 v%d, 15, v%d" % (t2, vLN))
A("v_xor_b32 v%d, v%d, v%d" % (t4, t2, t3))
A("v_lshlrev_b32 v%d, 4, v%d" % (t4, t4))
A("v_lshl_add_u32 v%d, v%d, 8, v%d" % (t4, t3, t4))
A("v_add_u32 v%d, %s, v%d" % (vQA, sQL, t4))
A("v_and_b32 v%d, 6, v%d" % (t4, vLN))
A("v_xor_b32 v%d, v%d, v%d" % (t4, t4, t3))
A("v_lshlrev_b32 v%d, 4, v%d" % (t4, t4))
A("v_lshl_add_u32 v%d, v%d, 7, v%d" % (vKA[0], t2, t4))
A("v_xor_b32 v%d, 64, v%d" % (vKA[1], vKA[0]))
A("v_lshrrev_b32 v%d, 2, v%d" % (t4, vLN))
A("v_lshlrev_b32 v%d, 7, v%d" % (t4, t4))
A("v_and_b32 v%d, 3, v%d" % (t2, vLN))
A("v_lshl_add_u32 v%d, v%d, 3, v%d" % (t4, t2, t4))
A("v_bfe_u32 v%d, v%d, 3, 2" % (t2, vLN))
A("v_lshl_add_u32 v%d, v%d, 5, v%d" % (t4, t2, t4))
A("v_add_u32 v%d, %d, v%d" % (vVA[0], VRING + 2 * SLOT, t4))
for x in range(1, 4): A("v_xor_b32 v%d, %d, v%d" % (vVA[x], 32 * x, vVA[0]))
A("s_mov_b32 s40, 0x%x" % CSCALE); A("s_mov_b32 s41, 0x%x" % CSCALE)
A("s_mov_b32 %s, 0" % sIT)
A("s_mov_b32 %s, %d" % (sKoff, 4 * SLOT))
A("s_mov_b32 %s, %d" % (sVoff, 3 * SLOT))
A("s_mov_b32 %s, %s" % (sKm, sKbeg))
A("s_add_u32 %s, %s, %d" % (sVm, sVbeg, 3 * SLOT))
A("s_mov_b32 %s, 0x%x" % (sLo, f2u(2.0 ** float(opts.get("llo", -20)))))
A("s_mov_b32 %s, 0x%x" % (sHi, f2u(2.0 ** float(opts.get("lhi", 24)))))
for i in vL: A("v_mov_b32 v%d, 0" % i)
ZR = FQ[5][1]
for i in range(4): A("v_accvgpr_write_b32 a%d, 0" % (124 + i))
A("v_mov_b32 v%d, %d" % (t2, FLAG))
A("ds_write_b32 v%d, v%d" % (t2, vL[0]))
def zero16(f, i): A("v_mfma_f32_32x32x16_bf16 %s[%d:%d], %s, %s, 0" % (f, i, i + 15, ZR, ZR))
for i in range(128, 256, 16): zero16("a", i)
WARM = int(opts.get("warm", 0))
if WARM:
    A("s_mov_b64 exec, 0")
    if WARM == 2:
        for w in range(1, 4):
            A("s_cmp_eq_u32 %s, %d" % (sWave, w)); A("s_cbranch_scc1 L_wseg%d" % w)
    A("s_branch L_epi")
    A("L_warm_back:")
    A("s_mov_b64 exec, -1")
    for i in vL: A("v_mov_b32 v%d, 0" % i)
vwait("K1" if K1E == 1 else "K0")
A("s_waitcnt lgkmcnt(0)")
P += pstamp(3)
A("s_barrier")
K0F = [V(G[rb][1], 4) for rb in range(6)] + [V(X[rb][1], 4) for rb in LATE] + FB
for n in range(12): A(k_read(K0F[n], 0, n >> 1, n & 1))
def pro_sm(rb):
    ops = sm(rb, 0, 0) + sm(rb, 0, 1)
    for t in [t for t in ops if t.startswith("v_exp")] + ["s_nop 0"] + [t for t in ops if not t.startswith("v_exp")]: A(t)
pend = []
for rb in range(QD, 6): pend += [("Q", rb, i) for i in range(6)]
for name, tile in kvq: pend += [(name, tile, cb) for cb in range(3)]
kvq = []
DEF = int(opts.get("defer", 0))
deferred = pend[len(pend) - 3 * DEF:] if DEF else []
if DEF: pend = pend[:len(pend) - 3 * DEF]
KVLATE = int(opts.get("kvlate", 0))
def issue_one():
    if not pend: return
    k, x, i = pend.pop(0)
    if k == "Q":
        A("buffer_load_dwordx4 %s, v%d, %s, %s offen offset:%d %s" % (V(raw(x, i), 4), vQG, sQ, sRB(x), (i & 1) * 3072 + (i >> 1) * 128, NT))
        vm.append("Q%d.%d" % (x, i))
    else:
        srd_, beg = (sK, sKbeg) if k == "K" else (sV, sVbeg)
        A("s_add_u32 m0, %s, %d" % (beg, x * SLOT + i * (4096 - 128)))
        A("s_mov_b32 %s, %d" % (sTmp, x * SLOT))
        A("buffer_load_dwordx4 %s, %s, %s offen offset:%d %s lds" % (V(vDMA), srd_, sTmp, i * 128, NT))
        vm.append("%s%d" % (k, x))
def qdst(rb, ks): return Ac(rb * 24 + ks * 4, 4) if rb < 4 else V(raw(rb, ks), 4)
def st_read(st_):
    rb, cb = divmod(st_, 3)
    for ks in (2 * cb, 2 * cb + 1): A(q_read(qdst(rb, ks), rb & 1, ks))
def st_mfma(st_):
    rb, cb = divmod(st_, 3)
    for hf in range(2):
        for ks in (2 * cb, 2 * cb + 1):
            d = V((G[rb][0] if hf == 0 else X[rb][0]), 4)
            A("%s %s, %s, %s, %s" % (MF, d, K0F[2 * ks + hf], qdst(rb, ks), "0" if ks == 0 else d))
nleft = 36
for st_ in range(18):
    rb, cb = divmod(st_, 3)
    for rh in range(2):
        i = 2 * cb + rh
        vwait("Q%d.%d" % (rb, i))
        if rb == 5 and i == 5: P += stamp(1) + pstamp(5)
        if rb == 2 and i == 5: P += pstamp(4)
        r0 = raw(rb, i)
        for k in range(4):
            t = 240 + 2 * k + 8 * rh
            A("v_lshlrev_b32 v%d, 16, v%d" % (t, r0 + k)); A("v_and_b32 v%d, 0xffff0000, v%d" % (t + 1, r0 + k))
        for k in range(4):
            t = 240 + 2 * k + 8 * rh
            A("v_pk_mul_f32 %s, %s, %s" % (V(t, 2), V(t, 2), sC2))
        for k in range(4):
            t = 240 + 2 * k + 8 * rh
            A("v_cvt_pk_bf16_f32 v%d, v%d, v%d" % (r0 + k, t, t + 1))
        if rh == 0 and st_ >= 1: st_read(st_ - 1)
        A("ds_write_b128 v%d, %s offset:%d" % (vQW, V(r0, 4), (rb & 1) * QRB + cb * 2 * QKS + rh * 128))
        if st_ == 17 and rh == 1: st_read(17)
        if pend and (pend[0][0] == "Q" or not KVLATE or len(pend) >= nleft - KVLATE):
            for _ in range(-(-len(pend) // nleft)): issue_one()
        nleft -= 1
        if nleft == 0:
            pend += deferred[:3]; deferred = deferred[3:]
            while pend: issue_one()
    if st_ >= 1:
        A("s_waitcnt lgkmcnt(%d)" % (2 if st_ < 17 else 4)); st_mfma(st_ - 1)
    if cb == 1 and rb >= 1 and rb - 1 in EARLY: pro_sm(rb - 1)
    for i in {7: (96, 112, 128), 13: (144, 160, 176), 16: (192, 208)}.get(st_, ()): zero16("v", i)
A("s_waitcnt lgkmcnt(0)")
st_mfma(17)
for i in (240, 224): zero16("v", i)
pend += deferred
while pend: issue_one()
if not K1E:
    vwait("K1")
    A("s_barrier")
A(k_read(FB[0], 1, 0, 0)); A(k_read(FB[1], 1, 1, 0))
for rb in LATE:
    for k in range(2): A(q_read(FQ[rb][k], rb - 4, k))
assert not kvq and vm[-15:] == ["V0"] * 3 + ["K2"] * 3 + ["V1"] * 3 + ["K3"] * 3 + ["V2"] * 3, vm
A("s_waitcnt lgkmcnt(0)")
P += stamp(2) + pstamp(6)

B0, q0 = body(0, [])
B1, q1 = body(1, q0)
B0, q0b = body(0, q1)
assert q0 == q0b
def strip(B):
    o = []
    for t in B:
        if "nobar" in opts and (t == "s_barrier" or "vmcnt" in t): continue
        if "nodma" in opts and (t.startswith("buffer_load") or "vmcnt" in t): continue
        if "nolds" in opts and (t.startswith("ds_read") or "lgkmcnt" in t): continue
        if "nowait" in opts and "lgkmcnt" in t: continue
        if "novalu" in opts and t.startswith("v_") and not t.startswith("v_mfma"): continue
        o.append(t)
    return o
B0 = strip(B0); B1 = strip(B1)
ROT = int(opts.get("rot", 1))
def split_last(B):
    i = max(k for k, t in enumerate(B) if t.startswith("v_mfma"))
    return B[:i + 1], B[i + 1:]
TAILPRE = []
if ROT:
    B0, r0_ = split_last(B0); B1, r1_ = split_last(B1)
    assert all(t.startswith("s_waitcnt") for t in r1_), r1_
    B1 = r0_ + B1; B0 = r1_ + B0; TAILPRE = r0_
if STAMP == 3:
    pre = ["s_mov_b32 m0, s84", "s_nop 0", "v_writelane_b32 v15, s80, m0", "v_writelane_b32 v14, s82, m0", "s_add_u32 s84, s84, 1", "s_memrealtime s[80:81]", "s_memtime s[82:83]"]
    B0 = pre + B0; B1 = pre + B1
    P += ["s_mov_b32 s84, 0", "s_mov_b32 s80, 0", "s_mov_b32 s82, 0"]

T = []
A = T.append
T += TAILPRE + stamp(3) + cstamp(0)
if STAMP == 3:
    T += pre + ["s_waitcnt lgkmcnt(0)"] + pre[:4]
    A("v_mbcnt_lo_u32_b32 v0, -1, 0"); A("v_mbcnt_hi_u32_b32 v0, -1, v0"); A("v_lshlrev_b32 v0, 3, v0")
    A("s_lshl_b32 s3, s2, 2"); A("s_add_u32 s3, s3, %s" % sWave); A("s_lshl_b32 s3, s3, 9"); A("s_add_u32 s3, s3, 65536")
    A("buffer_store_dwordx2 v[14:15], v0, %s, s3 offen" % sW)
def vt_read(db): return [t.replace(FBh[0][i], Ac(4 * db + 2 * i, 2)) for i, t in enumerate(v_read(0, 1, db))]
for db in range(3):
    for t in vt_read(db): A(t)
mf = ["%s %s, %s, %s, %s" % (MF, O4(rb, db), Ac(4 * db, 4), V(G[rb][1], 4), O4(rb, db)) for grp in (EARLY, LATE) for db in range(12) for rb in grp]
pinned = {3 * (db - 3): vt_read(db) for db in range(3, 12)}
dsT = q0 + [set(expand(Ac(4 * db + 2 * i, 2))) for db in range(3) for i in range(2)]
late_ops = [t for rb in LATE for h in range(2) for t in sm(rb, 1, h)]
head = [t for t in late_ops if t.startswith("v_exp")][:10]
for t in head: A(t)
st = [Op(t, 0, 45) for t in late_ops if t not in head]
tmp = [G[rb][0] for rb in range(6)]
def lred(rbs, g0):
    o = []
    for stage, sw in enumerate(("v_permlane32_swap_b32", "v_permlane16_swap_b32")):
        o += [Op("v_mov_b32 %s, %s" % (V(tmp[rb]), V(vL[rb])), g0) for rb in rbs]
        o += [Op("%s %s, %s" % (sw, V(vL[rb]), V(tmp[rb])), g0) for rb in rbs]
        o += [Op("v_add_f32 %s, %s, %s" % (V(vL[rb]), V(vL[rb]), V(tmp[rb])), g0) for rb in rbs]
    return o
ESH = int(opts.get("esh", 0))
eLN = G[0][0] + 1; eW = [vKA[0], vKA[1], vQA, vDMA]; eR = vT[0]; eS = vT[1]; e1 = G[1][0] + 1; e2 = G[2][0] + 1; e3 = G[3][0] + 1
addr = ["v_mbcnt_lo_u32_b32 v%d, -1, 0" % eLN, "v_mbcnt_hi_u32_b32 v%d, -1, v%d" % (eLN, eLN),
        "v_and_b32 v%d, 15, v%d" % (e1, eLN), "v_mul_u32_u24 v%d, 384, v%d" % (e1, e1),
        "v_bfe_u32 v%d, v%d, 4, 1" % (e2, eLN), "v_lshl_add_u32 v%d, v%d, 3, v%d" % (e1, e2, e1),
        "v_lshrrev_b32 v%d, 5, v%d" % (e2, eLN), "v_xor_b32 v%d, v%d, v%d" % (e2, e2, eLN), "v_and_b32 v%d, 7, v%d" % (e2, e2),
        "v_add_u32 v%d, %s, v%d" % (e1, sQL, e1)] + \
       (["v_and_b32 v%d, 8, v%d" % (e3, eLN), "v_add_u32 v%d, v%d, v%d" % (e1, e1, e3)] if ESH else []) + \
       sum([["v_xor_b32 v%d, %d, v%d" % (e3, 2 * x, e2), "v_lshl_add_u32 v%d, v%d, 4, v%d" % (eW[x], e3, e1)] for x in range(4)], []) + \
       ["v_lshrrev_b32 v%d, 3, v%d" % (e1, eLN), "v_xor_b32 v%d, v%d, v%d" % (e2, e1, eLN), "v_and_b32 v%d, 7, v%d" % (e2, e2),
        "v_mul_u32_u24 v%d, 384, v%d" % (e1, e1), "v_lshl_add_u32 v%d, v%d, 4, v%d" % (eR, e2, e1), "v_add_u32 v%d, %s, v%d" % (eR, sQL, eR),
        "v_and_b32 v%d, 7, v%d" % (e2, eLN), "v_lshl_add_u32 v%d, v%d, 4, v%d" % (eS, e2, e1), "v_add_u32 v%d, %s, v%d" % (eS, sRow, eS)]
mn = X[0][0]; mx = X[1][0]
st += lred(EARLY, 0) + lred(LATE, 0)
chk = ["v_min3_f32 v%d, v%d, v%d, v%d" % (mn, vL[0], vL[1], vL[2]), "v_min3_f32 v%d, v%d, v%d, v%d" % (mn, vL[3], vL[4], mn), "v_min_f32 v%d, v%d, v%d" % (mn, vL[5], mn),
       "v_add_f32 v%d, v%d, v%d" % (mx, vL[0], vL[1])] + ["v_add_f32 v%d, v%d, v%d" % (mx, mx, vL[i]) for i in range(2, 6)]
chk += ["v_cmp_nle_f32 vcc, %s, v%d" % (sLo, mn), "v_cmp_nge_f32 %s, %s, v%d" % (sBad, sHi, mx)]
chk += ["v_rcp_f32 %s, %s" % (V(vL[rb]), V(vL[rb])) for rb in range(6)]
st += [Op(t) for t in addr] + [Op(t) for t in chk]
PVT, _ = schedule(mf, pinned, [], st, dsT, "tailpv")
T += PVT
T += stamp(4) + cstamp(1)
A("s_or_b64 %s, %s, vcc" % (sBad, sBad))
A("s_cbranch_scc0 L_good")
A("v_mov_b32 v%d, %d" % (mn, FLAG)); A("v_mov_b32 v%d, 1" % mx)
A("ds_write_b32 v%d, v%d" % (mn, mx))
A("L_good:")
def ep_st(n, rh):
    rb, cb = n // 3, n % 3
    if "nost" in opts: return
    A("buffer_store_dwordx4 %s, v%d, %s, %s offen offset:%d %s" % (V(48 + 8 * (n % 6) + 4 * rh, 4), eS, sO, sRB(rb), rh * 3072 + cb * 128, SPOL))
def ep_rd(n):
    rb, cb = n // 3, n % 3; area = rb & 1
    for rh in range(2):
        if ESH == 2 and rh == 1:
            for k in range(2): A("ds_read_b64 %s, v%d offset:%d" % (V(48 + 8 * (n % 6) + 4 + 2 * k, 2), eR, area * QRB + 3080 + 8 * k + cb * 128))
        else: A("ds_read_b128 %s, v%d offset:%d" % (V(48 + 8 * (n % 6) + 4 * rh, 4), eR, area * QRB + rh * 3072 + cb * 128))
RD = int(opts.get("rd", 1))
for n in range(18 + RD + 1):
    if n == 0: T += cstamp(2)
    if n == 5: T += cstamp(3)
    if n == 10: T += cstamp(4)
    rb, cb = n // 3, n % 3
    m = n - RD - 1
    if n < 18:
        lp = vL[rb] & ~1; sel = vL[rb] & 1; area = rb & 1
        pk = 16 + 8 * (n & 1)
        fl, i0 = Oreg(rb, 4 * cb)
        w = 32
        if fl == "a":
            for i in range(16): A("v_accvgpr_read_b32 %s, %s" % (V(w + i), Ac(i0 + i)))
            src = w
        else: src = i0
        for i in range(0, 16, 2):
            A("v_pk_mul_f32 %s, %s, %s op_sel:[0,%d] op_sel_hi:[1,%d]" % (V(w + i, 2), V(src + i, 2), V(lp, 2), sel, sel))
    if m >= 0:
        A("s_waitcnt lgkmcnt(%d)" % (4 if n - 1 < 18 else 0))
        ep_st(m, 0)
    if n < 18:
        for i in range(8):
            A("v_cvt_pk_bf16_f32 %s, %s, %s" % (V(pk + i), V(w + 2 * i), V(w + 2 * i + 1)))
    if m >= 0: ep_st(m, 1)
    if 0 <= n - RD < 18: ep_rd(n - RD)
    if n < 18:
        for x in range(4):
            A("ds_write_b64 v%d, %s offset:%d" % (eW[x], V(pk + 2 * x, 2), area * QRB + cb * 128))
if STAMP:
    T += stamp(5) + cstamp(5)
    A("s_waitcnt vmcnt(0)")
    T += stamp(6) + cstamp(6)
    A("s_waitcnt lgkmcnt(0)")
    if "probe" in opts:
        pi, pj = [int(x) for x in opts["probe"].split(",")]
        if "skew" in opts:
            A("v_mov_b32 v10, 0"); A("buffer_load_dword v11, v10, %s, 0 offen sc0 sc1" % sW); A("s_waitcnt vmcnt(0)")
            A("v_readfirstlane_b32 s%d, v11" % (60 + 2 * pi)); A("s_not_b32 s%d, s%d" % (60 + 2 * pi, 60 + 2 * pi))
        A("s_sub_u32 s80, s%d, s%d" % (60 + 2 * pj, 60 + 2 * pi))
        if STAMP == 6:
            A("s_sub_u32 s80, s80, %d" % int(opts.get("pbase", 0))); A("s_min_u32 s80, s80, 40000")
            A("s_memrealtime s[72:73]"); A("s_waitcnt lgkmcnt(0)")
        else:
            A("s_min_u32 s80, s80, 10000")
            A("s_lshl_b32 s80, s80, 2")
        if "pcls" in opts:
            A("s_bfe_u32 s81, s2, 0x%x" % int(opts["pbits"], 16)); A("s_cmp_eq_u32 s81, %s" % opts["pcls"]); A("s_cselect_b32 s80, s80, 0")
        A("L_spin:")
        A("s_sleep 2")
        A("s_memrealtime s[82:83]")
        A("s_waitcnt lgkmcnt(0)")
        A("s_sub_u32 s81, s82, s72")
        A("s_cmp_lt_u32 s81, s80")
        A("s_cbranch_scc1 L_spin")
    A("s_lshl_b32 s3, s2, 2"); A("s_add_u32 s3, s3, %s" % sWave); A("s_lshl_b32 s3, s3, 6")
    A("v_mov_b32 v10, s3")
    for i in range(16): A("v_mov_b32 v%d, s%d" % (12 + i, 60 + i))
    for i in range(4 if "skew" not in opts else 0): A("buffer_store_dwordx4 v[%d:%d], v10, %s, 0 offen offset:%d" % (12 + 4 * i, 15 + 4 * i, sW, 16 * i))
A("s_barrier")
A("v_mov_b32 v0, %d" % FLAG)
A("ds_read_b32 v0, v0")
A("s_waitcnt lgkmcnt(0)")
A("v_readfirstlane_b32 %s, v0" % sTmp)
A("s_cmp_eq_u32 %s, 0" % sTmp)
A("s_cbranch_scc0 L_redo")
A("L_end:")
A("s_endpgm")
A("L_redo:")
A("s_waitcnt vmcnt(0)")
A("s_barrier")
A("v_mbcnt_lo_u32_b32 v0, -1, 0"); A("v_mbcnt_hi_u32_b32 v0, -1, v0")
A("s_lshl_b32 %s, %s, 6" % (sTmp, sWave))
A("v_add_u32 v0, %s, v0" % sTmp)

def I(l): return [Ins(t) for t in l]
seq = I(P) + I(B0) + I(["s_cbranch_scc1 L_tail"]) + I(B1) + I(["s_branch L_loop"]) + I(B0) + I(["s_cbranch_scc1 L_tail"]) + I(T)
errs = check_hazards(seq, "main") + check_waits(seq, "main")
for e in errs[:30]: sys.stderr.write(e + "\n")
if errs and not any(k.startswith("no") for k in opts):
    print("!!! %d hazard problems" % len(errs)); sys.exit(1)
S, lds2, e2_ = gen_safe.build_safe({"qd": "3", "nt": NT})
assert lds2 <= LDS_BYTES and e2_ == 0

hdr = open("standalone__gqa_softmax__near_ridge.s.ref").read().split("; Override")[0]
out = [hdr.rstrip(), "; @launch grid=(256,1,1) block=(256,1,1) lds=%d" % LDS_BYTES,
       '.amdgcn_target "amdgcn-amd-amdhsa--gfx950"', ".text", ".globl %s" % KN, ".p2align 8", ".type %s,@function" % KN, "%s:" % KN, "L_start:"]
def emit(l):
    for t in l: out.append(t if t.endswith(":") or t.startswith(".") else "    " + t)
emit(P); emit([".p2align 6", "L_loop:"]); emit(B0); emit(["s_cbranch_scc1 L_tail"]); emit(B1); emit(["s_branch L_loop", "L_lastw:", "s_waitcnt vmcnt(6)", "s_branch L_lastback", "L_tail:"]); emit(T); emit(S if 'nosafe' not in opts else ['s_endpgm'])
out = [t.replace("CODE_HOT_BYTES", "L_end-L_start") for t in out]
out += ['.section .rodata,"a"', ".p2align 6", ".amdhsa_kernel %s" % KN, "  .amdhsa_next_free_vgpr 512", "  .amdhsa_next_free_sgpr 96",
        "  .amdhsa_accum_offset 256", "  .amdhsa_group_segment_fixed_size 0", "  .amdhsa_kernarg_size 48", "  .amdhsa_user_sgpr_count 2",
        "  .amdhsa_user_sgpr_kernarg_segment_ptr 1", "  .amdhsa_system_sgpr_workgroup_id_x 1", ".end_amdhsa_kernel", ""]
open(sys.argv[1], "w").write("\n".join(out))
```

```python
import sys, math, struct
from asmlib import *
from sched import *
import gen_safe

opts = dict(a.split("=") for a in sys.argv[2:])
STAMP = int(opts.get("stamp", 0))
NT = opts.get("nt", "nt").replace("+", " ")
SPOL = opts.get("spol", "sc1").replace("+", " ")
QD = int(opts.get("qd", 3))
DEF = int(opts.get("defer", 3))
STG2 = [tuple(int(y) for y in x.split(":")) for x in opts.get("stg2", "4:8:2:21").split(",") if x]
KN = "standalone__gqa_softmax__near_ridge_kernel"
def f2u(x): return struct.unpack("<I", struct.pack("<f", x))[0]
CSCALE = f2u(math.log2(math.e) / math.sqrt(192.0))

KRING = 0; VRING = 49152; QLDS = 98304; SLOT = 12288
QKS = 1088; QRB = 6 * QKS; QWAVE = 2 * QRB + 1024
FLAG = QLDS + 4 * QWAVE
LDS_BYTES = FLAG + 64
def V(i, n=1): return "v%d" % i if n == 1 else "v[%d:%d]" % (i, i + n - 1)
def Ac(i, n=1): return "a%d" % i if n == 1 else "a[%d:%d]" % (i, i + n - 1)
vKA = [0, 1]; vVA = [2, 3, 4, 5]; vQA = 6; vDMA = 7
vL = [8 + i for i in range(6)]; vQG = 14; vQW = 15
FB = [Ac(96 + 4 * i, 4) for i in range(4)]
FQ = {4: [Ac(112, 4), Ac(116, 4)], 5: [Ac(120, 4), Ac(124, 4)]}
EARLY = [0, 1, 2, 3]; LATE = [4, 5]
G = {}; X = {}
r = 16
for rb in LATE:
    G[rb] = [r, r + 4]; X[rb] = [r + 8, r + 12]; r += 16
for rb in EARLY:
    G[rb] = [r, r + 4]; X[rb] = [r + 8, r + 8]; r += 12
assert r == 96
def Oreg(rb, db):
    b = rb * 12 + db
    return ("v", 96 + 4 * b) if b < 40 else ("a", 128 + 4 * (b - 40))
def O4(rb, db):
    f, i = Oreg(rb, db); return "%s[%d:%d]" % (f, i, i + 3)
def Qf(rb, ks): return Ac(rb * 24 + ks * 4, 4) if rb < 4 else FQ[rb][ks & 1]
sQ = "s[20:23]"; sK = "s[24:27]"; sV = "s[28:31]"; sO = "s[32:35]"; sW = "s[36:39]"
sC2 = "s[40:41]"; sIT = "s42"; sKoff = "s43"; sVoff = "s44"; sKm = "s45"; sVm = "s46"; sWave = "s47"
sTmp = "s48"; sRow = "s49"; sKend = "s50"; sVend = "s51"; sKbeg = "s52"; sVbeg = "s53"; sQL = "s16"; sCls = "s17"
sMask = "s54"; sLo = "s76"; sHi = "s77"; sBad = "s[78:79]"; sB2 = "s[80:81]"
def sRB(rb): return "0" if rb == 0 else "s%d" % (54 + rb)
MF = "v_mfma_f32_16x16x32_bf16"

def k_read(dst, tile_par, ks, hf):
    return "ds_read_b128 %s, %s offset:%d" % (dst, V(vKA[ks & 1]), tile_par * SLOT + (ks >> 1) * 4096 + hf * 2048)
def v_read(a0, tile_par, db):
    return ["ds_read_b64_tr_b16 %s, %s offset:%d" % (Ac(a0 + 2 * i, 2), V(vVA[db & 3]), tile_par * SLOT + (db >> 2) * 4096 + i * 2048) for i in range(2)]
def q_read(dst, area, ks):
    return "ds_read_b128 %s, %s offset:%d" % (dst, V(vQA), area * QRB + ks * QKS)
def qk_mfmas(par, last_up=False):
    out = []
    for g in range(6):
        p, hf = g >> 1, g & 1
        for rb in (range(6) if hf == 0 or (last_up and g == 5) else range(5, -1, -1)):
            for k in range(2):
                ks = 2 * p + k
                d = V((G[rb][par] if hf == 0 else X[rb][par]), 4)
                out.append("%s %s, %s, %s, %s" % (MF, d, FB[(2 * g + k) % 4], Qf(rb, ks), "0" if ks == 0 else d))
    return out
def sregs(rb, par): return [G[rb][par] + i for i in range(4)] + [X[rb][par] + i for i in range(4)]
def sm(rb, par, half):
    ops = []; s = sregs(rb, par)
    for i in (4 * half, 4 * half + 2):
        ops.append("v_exp_f32 %s, %s" % (V(s[i]), V(s[i])))
        ops.append("v_exp_f32 %s, %s" % (V(s[i + 1]), V(s[i + 1])))
        ops.append("v_add_f32 %s, %s, %s" % (V(vL[rb]), V(vL[rb]), V(s[i])))
        ops.append("v_add_f32 %s, %s, %s" % (V(vL[rb]), V(vL[rb]), V(s[i + 1])))
        ops.append("v_cvt_pk_bf16_f32 %s, %s, %s" % (V(G[rb][par] + i // 2), V(s[i]), V(s[i + 1])))
    return ops
def last_write_slot(mf, reg): return max(g for g, t in enumerate(mf) if reg in Ins(t).wr)
def paced(ops, g0, g1, floor=0, dead=10 ** 9):
    os_ = [Op(t) for t in ops]; tot = sum(o.cost for o in os_); acc = 0
    for o in os_:
        o.ming = max(floor, int(g0 + (g1 - g0) * acc / tot)); o.dead = dead; acc += o.cost
    return os_
def pin_qk(pinned, qk, tile_par, nq):
    def pin(g, t): pinned.setdefault(g, []).append(t)
    for g in range(1, 6):
        for k in range(2): pin(12 * (g - 1) + 2 * k, k_read(FB[(2 * g + k) % 4], tile_par, 2 * (g >> 1) + k, g & 1))
    lastq = {}
    for g, t in enumerate(qk):
        for rb in LATE:
            for k in range(2):
                if FQ[rb][k] in t: lastq[(g // 24, rb, k)] = g
    for p in range(nq):
        g = 0
        for (lg, rb, k) in sorted((lastq[(p, rb, k)], rb, k) for rb in LATE for k in range(2)):
            g = max(g, lg + 1)
            while g in pinned: g += 1
            pin(g, q_read(FQ[rb][k], rb - 4, (2 * p + 2 + k) % 6)); g += 2

def body(par, ds_in):
    np_ = par ^ 1
    qk = qk_mfmas(np_)
    mf = qk + ["%s %s, %s, %s, %s" % (MF, O4(rb, db), FB[db % 4], V(G[rb][par], 4), O4(rb, db)) for db in range(12) for rb in range(6)]
    pinned = {}
    def pin(g, t): pinned.setdefault(g, []).append(t)
    for db in range(12):
        for t in v_read(96 + 4 * (db % 4), par, db): pin({0: 60, 1: 63, 2: 72, 3: 75}.get(db, 72 + 6 * (db - 3)), t)
    pin(127, k_read(FB[0], par, 0, 0)); pin(133, k_read(FB[1], par, 1, 0))
    pin_qk(pinned, qk, np_, 3)
    scal = [(54, ["s_waitcnt vmcnt(9)", "s_barrier"], False)]
    dg = [71, 81, 93, 105, 117, 130]
    for i in range(6):
        srd_, so, sm_ = (sK, sKoff, sKm) if i < 3 else (sV, sVoff, sVm)
        assert dg[i] not in pinned
        scal.append((dg[i] - 1, ["s_add_u32 m0, %s, %d" % (sm_, (i % 3) * (4096 - 128))], True))
        pin(dg[i], "buffer_load_dwordx4 %s, %s, %s offen offset:%d %s lds" % (V(vDMA), srd_, so, (i % 3) * 128, NT))
    for g, so, m, end, beg in ((dg[2] + 1, sKoff, sKm, sKend, sKbeg), (dg[5] + 1, sVoff, sVm, sVend, sVbeg)):
        scal.append((g, ["s_add_u32 %s, %s, %d" % (so, so, SLOT), "s_add_u32 %s, %s, %d" % (m, m, SLOT),
                         "s_cmp_eq_u32 %s, %s" % (m, end), "s_cselect_b32 %s, %s, %s" % (m, beg, m)], False))
    if par == 1: scal.append((139, ["s_add_u32 %s, %s, 1" % (sIT, sIT), "s_cmp_lt_u32 %s, 7" % sIT], False))
    st = paced(sum([sm(rb, par, h) for rb in LATE for h in range(2)], []), 0, 50, dead=70)
    if par == 0:
        st += [Op("v_xor_b32 %s, 0x1e000, %s" % (V(a), V(a)), 44, 58) for a in vVA]
        st += [Op("v_xor_b32 %s, 0x6000, %s" % (V(a), V(a)), 52, 125) for a in vKA]
    E0, E1 = 55, 140
    for n, (rb, h) in enumerate([(0, 0), (1, 0), (2, 0), (3, 0), (3, 1), (2, 1), (1, 1), (0, 1)]):
        ready = last_write_slot(qk, "v%d" % sregs(rb, np_)[4 * h]) + 5
        st += paced(sm(rb, np_, h), E0 + (E1 - E0) * n / 8, E0 + (E1 - E0) * (n + 1) / 8, floor=ready)
    def capf(cap, sc, pin_):
        for g in range(144):
            if "s_barrier" in sc.get(g, []): cap[g] = 0
    return schedule(mf, pinned, scal, st, ds_in, "body%d" % par, next_first=qk_mfmas(par)[0], excl=True, capf=capf)

def stamp(i):
    if STAMP == 1: return ["s_memrealtime s[%d:%d]" % (60 + 2 * i, 61 + 2 * i)]
    if STAMP == 6: return ["s_memtime s[%d:%d]" % (60 + 2 * i, 61 + 2 * i)]
    return []

P = []
A = P.append
A("s_cmp_ge_u32 s2, 256")
A("s_cbranch_scc1 L_end")
A("s_load_dwordx4 s[4:7], s[0:1], 0")
A("s_load_dwordx4 s[8:11], s[0:1], 16")
if STAMP: A("s_load_dwordx2 s[12:13], s[0:1], 40")
P += stamp(0)
A("s_getpc_b64 s[18:19]")
A("v_lshlrev_b32 v240, 7, v0")
A("v_min_u32 v240, L_end-L_start, v240")
A("global_load_dword v241, v240, s[18:19]")
vLN = 242; t2 = 243; t3 = 244; t4 = 245; t5 = 246; t6 = 247
A("v_lshrrev_b32 v%d, 6, v0" % t2)
A("v_and_b32 v%d, 63, v0" % vLN)
A("s_mul_i32 s14, s2, 147456")
A("v_readfirstlane_b32 %s, v%d" % (sWave, t2))
A("s_mul_i32 s15, s2, 196608")
A("s_bfe_u32 %s, s2, 0x30003" % sCls)
A("v_lshrrev_b32 v%d, 3, v%d" % (t5, vLN))
A("v_mul_u32_u24 v%d, 384, v%d" % (t6, t5))
A("v_lshrrev_b32 v%d, 4, v%d" % (t3, vLN))
A("v_lshlrev_b32 v%d, 1, v%d" % (t4, t3))
A("v_xor_b32 v%d, v%d, v%d" % (t4, t4, vLN))
A("v_and_b32 v%d, 7, v%d" % (t4, t4))
A("v_lshl_add_u32 v%d, v%d, 4, v%d" % (vDMA, t4, t6))
A("s_mul_i32 %s, %s, 3072" % (sTmp, sWave))
A("v_add_u32 v%d, %s, v%d" % (vDMA, sTmp, vDMA))
A("v_and_b32 v%d, 7, v%d" % (t4, vLN))
A("v_lshl_add_u32 v%d, v%d, 4, v%d" % (vQG, t4, t6))
A("s_mul_i32 %s, %s, 36864" % (sRow, sWave))
A("v_add_u32 v%d, %s, v%d" % (vQG, sRow, vQG))
A("s_lshl_b32 %s, %s, 10" % (sKbeg, sWave))
A("s_add_u32 %s, %s, %d" % (sVbeg, sKbeg, VRING))
for rb in range(1, 6): A("s_mov_b32 %s, %d" % (sRB(rb), rb * 6144))
if STG2:
    A("s_mov_b32 s3, 0")
    for i, (lo, hi, k, cnt) in enumerate(STG2):
        A("s_sub_u32 %s, %s, %d" % (sTmp, sCls, lo)); A("s_cmp_lt_u32 %s, %d" % (sTmp, hi - lo)); A("s_cselect_b32 s3, %d, s3" % (1 << i))
A("s_waitcnt lgkmcnt(0)")
def srd(base, src, off, size):
    A("s_add_u32 s%d, s%d, %s" % (base, src, off)); A("s_addc_u32 s%d, s%d, 0" % (base + 1, src + 1))
    A("s_mov_b32 s%d, %d" % (base + 2, size)); A("s_mov_b32 s%d, 0x20000" % (base + 3))
vm = []
def raw(rb, i): return 96 + rb * 24 + i * 4
def issue(k, x, i):
    if k == "Q":
        A("buffer_load_dwordx4 %s, v%d, %s, %s offen offset:%d %s" % (V(raw(x, i), 4), vQG, sQ, sRB(x), (i & 1) * 3072 + (i >> 1) * 128, NT))
        vm.append("Q%d.%d" % (x, i))
    else:
        srd_, beg = (sK, sKbeg) if k == "K" else (sV, sVbeg)
        A("s_add_u32 m0, %s, %d" % (beg, x * SLOT + i * (4096 - 128)))
        A("s_mov_b32 %s, %d" % (sTmp, x * SLOT))
        A("buffer_load_dwordx4 %s, %s, %s offen offset:%d %s lds" % (V(vDMA), srd_, sTmp, i * 128, NT))
        vm.append("%s%d" % (k, x))
    n = len(vm) - 1
    for ci, (lo, hi, kk, cnt) in enumerate(STG2):
        if kk <= n < cnt:
            A("s_bitcmp1_b32 s3, %d" % ci); A("s_cbranch_scc0 L_sg%d_%d" % (n, ci)); A("s_waitcnt vmcnt(%d)" % kk); A("L_sg%d_%d:" % (n, ci))
def vwait(name):
    last = max(i for i, x in enumerate(vm) if x == name)
    A("s_waitcnt vmcnt(%d)" % (len(vm) - 1 - last))
srd(24, 6, "s15", 196608)
for cb in range(3): issue("K", 0, cb)
srd(20, 4, "s14", 147456)
for rb in range(QD):
    for i in range(6): issue("Q", rb, i)
srd(28, 8, "s15", 196608); srd(32, 10, "s14", 147456)
if STAMP:
    A("s_mov_b32 s36, s12"); A("s_mov_b32 s37, s13"); A("s_mov_b32 s38, 0x100000"); A("s_mov_b32 s39, 0x20000")
A("s_add_u32 %s, %s, %d" % (sKend, sKbeg, 4 * SLOT))
A("s_add_u32 %s, %s, %d" % (sVend, sVbeg, 4 * SLOT))
A("s_mul_i32 %s, %s, %d" % (sQL, sWave, QWAVE))
A("s_add_u32 %s, %s, %d" % (sQL, sQL, QLDS))
A("v_xor_b32 v%d, v%d, v%d" % (t2, t5, t4))
A("v_lshl_add_u32 v%d, v%d, 4, v%d" % (t2, t2, t6))
A("v_add_u32 v249, %s, v%d" % (sQL, t2))
A("v_and_b32 v%d, 3, v%d" % (t4, vLN))
A("v_xor_b32 v%d, v%d, v%d" % (t2, t5, t4))
A("v_lshlrev_b32 v%d, 4, v%d" % (t2, t2))
A("v_lshl_add_u32 v%d, v%d, 8, v%d" % (t2, t4, t2))
A("v_bfe_u32 v%d, v%d, 2, 1" % (t4, vLN))
A("v_mul_u32_u24 v%d, %d, v%d" % (t4, QKS, t4))
A("v_add3_u32 v%d, v%d, v%d, %s" % (vQW, t2, t4, sQL))
A("v_and_b32 v%d, 15, v%d" % (t2, vLN))
A("v_xor_b32 v%d, v%d, v%d" % (t4, t2, t3))
A("v_lshlrev_b32 v%d, 4, v%d" % (t4, t4))
A("v_lshl_add_u32 v%d, v%d, 8, v%d" % (t4, t3, t4))
A("v_add_u32 v%d, %s, v%d" % (vQA, sQL, t4))
A("v_mul_u32_u24 v%d, 384, v%d" % (t6, t2))
A("v_lshrrev_b32 v%d, 5, v%d" % (t4, vLN))
A("v_xor_b32 v%d, v%d, v%d" % (t4, t4, vLN))
A("v_and_b32 v%d, 7, v%d" % (t4, t4))
A("v_lshl_add_u32 v%d, v%d, 4, v%d" % (t6, t4, t6))
A("v_xor_b32 v%d, v%d, v%d" % (t4, t3, t5))
A("v_and_b32 v%d, 1, v%d" % (t4, t4))
A("v_lshl_add_u32 v%d, v%d, 3, v%d" % (t6, t4, t6))
A("v_add_u32 v248, %s, v%d" % (sQL, t6))
A("ds_write_b64 v%d, v[248:249] offset:%d" % (vQA, 2 * QRB))
A("v_and_b32 v%d, 6, v%d" % (t4, vLN))
A("v_xor_b32 v%d, v%d, v%d" % (t4, t4, t3))
A("v_lshlrev_b32 v%d, 4, v%d" % (t4, t4))
A("v_lshl_add_u32 v%d, v%d, 7, v%d" % (vKA[0], t2, t4))
A("v_xor_b32 v%d, 64, v%d" % (vKA[1], vKA[0]))
A("v_lshrrev_b32 v%d, 2, v%d" % (t4, vLN))
A("v_lshlrev_b32 v%d, 7, v%d" % (t4, t4))
A("v_and_b32 v%d, 3, v%d" % (t2, vLN))
A("v_lshl_add_u32 v%d, v%d, 3, v%d" % (t4, t2, t4))
A("v_bfe_u32 v%d, v%d, 3, 2" % (t2, vLN))
A("v_lshl_add_u32 v%d, v%d, 5, v%d" % (t4, t2, t4))
A("v_add_u32 v%d, %d, v%d" % (vVA[0], VRING + 2 * SLOT, t4))
for x in range(1, 4): A("v_xor_b32 v%d, %d, v%d" % (vVA[x], 32 * x, vVA[0]))
A("s_mov_b32 s40, 0x%x" % CSCALE); A("s_mov_b32 s41, 0x%x" % CSCALE)
A("s_mov_b32 %s, 0xffff0000" % sMask)
A("s_mov_b32 %s, 0" % sIT)
A("s_mov_b32 %s, %d" % (sKoff, 4 * SLOT))
A("s_mov_b32 %s, %d" % (sVoff, 3 * SLOT))
A("s_mov_b32 %s, %s" % (sKm, sKbeg))
A("s_add_u32 %s, %s, %d" % (sVm, sVbeg, 3 * SLOT))
A("s_mov_b32 %s, 0x%x" % (sLo, f2u(2.0 ** float(opts.get("llo", -20)))))
A("s_mov_b32 %s, 0x%x" % (sHi, f2u(2.0 ** float(opts.get("lhi", 24)))))
A("s_mov_b64 %s, 0" % sBad)
for i in vL: A("v_mov_b32 v%d, 0" % i)
ZR = FQ[5][1]
for i in range(4): A("v_accvgpr_write_b32 a%d, 0" % (124 + i))
A("v_mov_b32 v%d, %d" % (t2, FLAG))
A("ds_write_b32 v%d, v%d" % (t2, vL[0]))
def zero16(f, i): A("v_mfma_f32_32x32x16_bf16 %s[%d:%d], %s, %s, 0" % (f, i, i + 15, ZR, ZR))
for i in range(128, 256, 16): zero16("a", i)
vwait("K0")
A("s_waitcnt lgkmcnt(0)")
A("s_barrier")
K0F = [V(G[rb][1], 4) for rb in range(6)] + [V(X[rb][1], 4) for rb in LATE] + FB
for n in range(12): A(k_read(K0F[n], 0, n >> 1, n & 1))
def pro_sm(rb):
    ops = sm(rb, 0, 0) + sm(rb, 0, 1)
    for t in [t for t in ops if t.startswith("v_exp")] + ["s_nop 0"] + [t for t in ops if not t.startswith("v_exp")]: A(t)
pend = [("Q", rb, i) for rb in range(QD, 6) for i in range(6)]
pend += [(k, x, cb) for k, x in (("K", 1), ("V", 0), ("K", 2), ("V", 1), ("K", 3), ("V", 2)) for cb in range(3)]
deferred = pend[len(pend) - 3 * DEF:]; pend = pend[:len(pend) - 3 * DEF]
def qdst(rb, ks): return Ac(rb * 24 + ks * 4, 4) if rb < 4 else V(raw(rb, ks), 4)
def st_read(s_):
    rb, cb = divmod(s_, 3)
    for ks in (2 * cb, 2 * cb + 1): A(q_read(qdst(rb, ks), rb & 1, ks))
def st_mfma(s_):
    rb, cb = divmod(s_, 3)
    for hf in range(2):
        for ks in (2 * cb, 2 * cb + 1):
            d = V((G[rb][0] if hf == 0 else X[rb][0]), 4)
            A("%s %s, %s, %s, %s" % (MF, d, K0F[2 * ks + hf], qdst(rb, ks), "0" if ks == 0 else d))
nleft = 36
for s_ in range(18):
    rb, cb = divmod(s_, 3)
    for rh in range(2):
        i = 2 * cb + rh
        vwait("Q%d.%d" % (rb, i))
        if s_ == 17 and rh == 1: P += stamp(1)
        r0 = raw(rb, i); tb = 240 + 8 * rh
        for k in range(4):
            A("v_lshlrev_b32 v%d, 16, v%d" % (tb + 2 * k, r0 + k)); A("v_and_b32 v%d, %s, v%d" % (tb + 2 * k + 1, sMask, r0 + k))
        for k in range(4): A("v_pk_mul_f32 %s, %s, %s" % (V(tb + 2 * k, 2), V(tb + 2 * k, 2), sC2))
        for k in range(4): A("v_cvt_pk_bf16_f32 v%d, v%d, v%d" % (r0 + k, tb + 2 * k, tb + 2 * k + 1))
        if rh == 0 and s_ >= 1: st_read(s_ - 1)
        A("ds_write_b128 v%d, %s offset:%d" % (vQW, V(r0, 4), (rb & 1) * QRB + cb * 2 * QKS + rh * 128))
        if s_ == 17 and rh == 1: st_read(17)
        for _ in range(-(-len(pend) // nleft)): issue(*pend.pop(0))
        nleft -= 1
        if nleft == 0:
            for x in deferred[:3]: issue(*x)
    if s_ >= 1:
        A("s_waitcnt lgkmcnt(%d)" % (2 if s_ < 17 else 4)); st_mfma(s_ - 1)
    if cb == 1 and rb >= 1 and rb - 1 in EARLY: pro_sm(rb - 1)
    for i in {7: (96, 112, 128), 13: (144, 160, 176), 16: (192, 208)}.get(s_, ()): zero16("v", i)
A("s_waitcnt lgkmcnt(0)")
st_mfma(17)
for i in (240, 224): zero16("v", i)
for x in deferred[3:]: issue(*x)
vwait("K1")
A("s_barrier")
A(k_read(FB[0], 1, 0, 0)); A(k_read(FB[1], 1, 1, 0))
for rb in LATE:
    for k in range(2): A(q_read(FQ[rb][k], rb - 4, k))
assert vm[-18:] == sum([[x] * 3 for x in ("K1", "V0", "K2", "V1", "K3", "V2")], []), vm
A("s_waitcnt lgkmcnt(0)")
P += stamp(2)

B0, q0 = body(0, [])
B1, q1 = body(1, q0)
B0, q0b = body(0, q1)
assert q0 == q0b

T = []
A = T.append
T += stamp(3)
eW = [0, vQA, vDMA, vQW]; eR = 1; eS = vQG
vslot = [rb * 24 + 8 * p + 4 * k for p in range(3) for rb in ((3, 2, 1, 0) if p < 2 else (0, 1, 2, 3)) for k in range(2)]
def VF(t, db): return vslot[12 * t + db]
def phase_mf(rb): return ["%s %s, %s, %s, %s" % (MF, O4(rb, db), Ac(VF(t, db), 4), V(G[rb][t], 4), O4(rb, db)) for t in range(2) for db in range(12)]
def lfin(rb, g0):
    tmp = X[rb][1]; l = vL[rb]; o = []
    for sw in ("v_permlane32_swap_b32", "v_permlane16_swap_b32"):
        o += ["v_mov_b32 v%d, v%d" % (tmp, l), "%s v%d, v%d" % (sw, l, tmp), "v_add_f32 v%d, v%d, v%d" % (l, l, tmp)]
    o += ["v_cmp_nle_f32 vcc, %s, v%d" % (sLo, l), "v_cmp_nge_f32 %s, %s, v%d" % (sB2, sHi, l), "v_rcp_f32 v%d, v%d" % (l, l)]
    return [Op(t, g0) for t in o]
def rbk(n, rh): return 96 + 8 * (n % 4) + 4 * rh
def ep_st(n, rh):
    rb, cb = divmod(n, 3)
    return "buffer_store_dwordx4 %s, v%d, %s, %s offen offset:%d %s" % (Ac(rbk(n, rh), 4), eS, sO, sRB(rb), rh * 3072 + cb * 128, SPOL)
def ep_rd(n):
    rb, cb = divmod(n, 3); base = (rb & 1) * QRB + cb * 128
    return ["ds_read_b128 %s, v%d offset:%d" % (Ac(rbk(n, 0), 4), eR, base)] + \
           ["ds_read_b64 %s, v%d offset:%d" % (Ac(rbk(n, 1) + 2 * k, 2), eR, base + 3072 + 8 * (1 - k)) for k in range(2)]
def burst(rb):
    A("s_or_b64 %s, %s, vcc" % (sBad, sBad)); A("s_or_b64 %s, %s, %s" % (sBad, sBad, sB2))
    lp = vL[rb] & ~1; sel = vL[rb] & 1
    for cb in range(3):
        n = 3 * rb + cb
        fl, i0 = Oreg(rb, 4 * cb)
        w = i0
        if fl == "a":
            w = 96 + 16 * (n % 3)
            for i in range(16): A("v_accvgpr_read_b32 %s, %s" % (V(w + i), Ac(i0 + i)))
        for i in range(0, 16, 2):
            A("v_pk_mul_f32 %s, %s, %s op_sel:[0,%d] op_sel_hi:[1,%d]" % (V(w + i, 2), V(w + i, 2), V(lp, 2), sel, sel))
        if cb == 2: A("s_waitcnt lgkmcnt(4)"); A(ep_st(n - 2, 0))
        for i in range(8): A("v_cvt_pk_bf16_f32 %s, %s, %s" % (V(w + i), V(w + 2 * i), V(w + 2 * i + 1)))
        if cb == 2: A(ep_st(n - 2, 1))
        if cb >= 1:
            for t in ep_rd(n - 1): A(t)
        for x in range(4):
            A("ds_write_b64 v%d, %s offset:%d" % (eW[x], V(w + 2 * x, 2), (rb & 1) * QRB + cb * 128))
qk = qk_mfmas(1, last_up=True)
mf = qk + phase_mf(0)
pinned = {}
pin_qk(pinned, qk, 1, 2)
g = 21
for n in range(24):
    g = max(g, 1 + max(k for k, t in enumerate(qk) if ("a%d" % vslot[n]) in Ins(t).rd), (0, 0, 66)[n // 8])
    while g in pinned: g += 1
    pinned[g] = v_read(vslot[n], n // 12, n % 12); g += (2 if n < 16 else 2 + (n & 1))
pinned[88] = ["ds_read_b64 v[0:1], v%d offset:%d" % (vQA, 2 * QRB)]
scal = [(16, ["s_waitcnt vmcnt(0)", "s_barrier"], False)]
st = [Op("v_xor_b32 %s, 0x1e000, %s" % (V(a), V(a)), 0, 18) for a in vVA]
st += paced(sum([sm(rb, 0, h) for rb in LATE for h in range(2)], []), 0, 46, dead=70)
for rb, h, dead in ((0, 0, 81), (0, 1, 81), (1, 0, 95)):
    st += [Op(t, last_write_slot(qk, "v%d" % sregs(rb, 1)[4 * h]) + 5, dead) for t in sm(rb, 1, h)]
st += lfin(0, 0)
blk, _ = schedule(mf, pinned, scal, st, q1, "final0", excl=True)
T += blk
A("s_waitcnt lgkmcnt(0)")
for x in range(1, 4): A("v_xor_b32 v%d, %d, v0" % (eW[x], 32 * x))
burst(0)
for rb in range(1, 6):
    n = 3 * rb - 1
    rd = ep_rd(n)
    pinned = {1: [ep_st(n - 1, 0)], 4: [ep_st(n - 1, 1)], 7: rd[:2], 8: rd[2:], 17: [ep_st(n, 0)], 20: [ep_st(n, 1)]}
    scal = [(0, ["s_waitcnt lgkmcnt(4)"], True), (16, ["s_waitcnt lgkmcnt(0)"], True)]
    st = [Op(t, 0, 10) for t in sm(rb, 1, 1)] + lfin(rb, 0)
    if rb < 5: st += [Op(t) for t in sm(rb + 1, 1, 0)]
    blk, _ = schedule(phase_mf(rb), pinned, scal, st, [], "final%d" % rb, excl=True)
    T += blk
    if rb == 5: T += stamp(4)
    burst(rb)
A("s_waitcnt lgkmcnt(4)")
A(ep_st(16, 0)); A(ep_st(16, 1))
for t in ep_rd(17): A(t)
A("s_cmp_eq_u64 %s, 0" % sBad)
A("s_cbranch_scc1 L_good")
A("v_mov_b32 v2, %d" % FLAG); A("v_mov_b32 v3, 1")
A("ds_write_b32 v2, v3")
A("L_good:")
A("s_waitcnt lgkmcnt(0)")
A(ep_st(17, 0)); A(ep_st(17, 1))
if STAMP:
    T += stamp(5)
    A("s_waitcnt vmcnt(0)")
    T += stamp(6)
    A("s_waitcnt lgkmcnt(0)")
    A("s_lshl_b32 s3, s2, 2"); A("s_add_u32 s3, s3, %s" % sWave); A("s_lshl_b32 s3, s3, 6")
    A("v_mov_b32 v10, s3")
    for i in range(16): A("v_mov_b32 v%d, s%d" % (16 + i, 60 + i))
    for i in range(4): A("buffer_store_dwordx4 v[%d:%d], v10, %s, 0 offen offset:%d" % (16 + 4 * i, 19 + 4 * i, sW, 16 * i))
A("s_barrier")
A("v_mov_b32 v0, %d" % FLAG)
A("ds_read_b32 v0, v0")
A("s_waitcnt lgkmcnt(0)")
A("v_readfirstlane_b32 %s, v0" % sTmp)
A("s_cmp_eq_u32 %s, 0" % sTmp)
A("s_cbranch_scc0 L_redo")
A("L_end:")
A("s_endpgm")
A("L_redo:")
A("s_waitcnt vmcnt(0)")
A("s_barrier")
A("v_mbcnt_lo_u32_b32 v0, -1, 0"); A("v_mbcnt_hi_u32_b32 v0, -1, v0")
A("s_lshl_b32 %s, %s, 6" % (sTmp, sWave))
A("v_add_u32 v0, %s, v0" % sTmp)

def I(l): return [Ins(t) for t in l]
seq = I(P + B0 + B1 + ["s_cbranch_scc1 L_loop"] + B0 + B1 + ["s_cbranch_scc1 L_loop"] + T)
errs = check_hazards(seq, "main") + check_waits(seq, "main")
for e in errs[:30]: sys.stderr.write(e + "\n")
if errs:
    print("!!! %d hazard problems" % len(errs)); sys.exit(1)
S, lds2, e2_ = gen_safe.build_safe({"qd": "3", "nt": NT})
assert lds2 <= LDS_BYTES and e2_ == 0

hdr = open("standalone__gqa_softmax__near_ridge.s.ref").read().split("; Override")[0]
out = [hdr.rstrip(), "; @launch grid=(256,1,1) block=(256,1,1) lds=%d" % LDS_BYTES,
       '.amdgcn_target "amdgcn-amd-amdhsa--gfx950"', ".text", ".globl %s" % KN, ".p2align 8", ".type %s,@function" % KN, "%s:" % KN, "L_start:"]
def emit(l):
    for t in l: out.append(t if t.endswith(":") or t.startswith(".") else "    " + t)
emit(P); emit([".p2align 6", "L_loop:"]); emit(B0); emit(B1); emit(["s_cbranch_scc1 L_loop"]); emit(T); emit(S)
out += ['.section .rodata,"a"', ".p2align 6", ".amdhsa_kernel %s" % KN, "  .amdhsa_next_free_vgpr 512", "  .amdhsa_next_free_sgpr 96",
        "  .amdhsa_accum_offset 256", "  .amdhsa_group_segment_fixed_size 0", "  .amdhsa_kernarg_size 48", "  .amdhsa_user_sgpr_count 2",
        "  .amdhsa_user_sgpr_kernarg_segment_ptr 1", "  .amdhsa_system_sgpr_workgroup_id_x 1", ".end_amdhsa_kernel", ""]
open(sys.argv[1], "w").write("\n".join(out))
```

```python
import sys, math, struct
from asmlib import *
from sched import *
import gen_safe

opts = dict(a.split("=") for a in sys.argv[2:])
STAMP = int(opts.get("stamp", 0))
NT = opts.get("nt", "nt").replace("+", " ")
SPOL = opts.get("spol", "sc1").replace("+", " ")
QD = int(opts.get("qd", 3))
DEF = int(opts.get("defer", 3))
STG2 = [tuple(int(y) for y in x.split(":")) for x in opts.get("stg2", "4:8:2:21").split(",") if x]
KN = "standalone__gqa_softmax__near_ridge_kernel"
def f2u(x): return struct.unpack("<I", struct.pack("<f", x))[0]
CSCALE = f2u(math.log2(math.e) / math.sqrt(192.0))

KRING = 0; VRING = 49152; QLDS = 98304; SLOT = 12288
QKS = 1088; QRB = 6 * QKS; QWAVE = 2 * QRB + 1024
FLAG = QLDS + 4 * QWAVE
LDS_BYTES = FLAG + 64
def V(i, n=1): return "v%d" % i if n == 1 else "v[%d:%d]" % (i, i + n - 1)
def Ac(i, n=1): return "a%d" % i if n == 1 else "a[%d:%d]" % (i, i + n - 1)
vKA = [0, 1]; vVA = [2, 3, 4, 5]; vQA = 6; vDMA = 7
vL = [8 + i for i in range(6)]; vQG = 14; vQW = 15
FB = [Ac(96 + 4 * i, 4) for i in range(4)]
FQ = {4: [Ac(112, 4), Ac(116, 4)], 5: [Ac(120, 4), Ac(124, 4)]}
EARLY = [0, 1, 2, 3]; LATE = [4, 5]
G = {}; X = {}
r = 16
for rb in LATE:
    G[rb] = [r, r + 4]; X[rb] = [r + 8, r + 12]; r += 16
for rb in EARLY:
    G[rb] = [r, r + 4]; X[rb] = [r + 8, r + 8]; r += 12
assert r == 96
def Oreg(rb, db):
    b = rb * 12 + db
    return ("v", 96 + 4 * b) if b < 40 else ("a", 128 + 4 * (b - 40))
def O4(rb, db):
    f, i = Oreg(rb, db); return "%s[%d:%d]" % (f, i, i + 3)
def Qf(rb, ks): return Ac(rb * 24 + ks * 4, 4) if rb < 4 else FQ[rb][ks & 1]
sQ = "s[20:23]"; sK = "s[24:27]"; sV = "s[28:31]"; sO = "s[32:35]"; sW = "s[36:39]"
sC2 = "s[40:41]"; sIT = "s42"; sKoff = "s43"; sVoff = "s44"; sKm = "s45"; sVm = "s46"; sWave = "s47"
sTmp = "s48"; sRow = "s49"; sKend = "s50"; sVend = "s51"; sKbeg = "s52"; sVbeg = "s53"; sQL = "s16"; sCls = "s17"
sMask = "s54"; sLo = "s76"; sHi = "s77"; sBad = "s[78:79]"; sB2 = "s[80:81]"
def sRB(rb): return "0" if rb == 0 else "s%d" % (54 + rb)
MF = "v_mfma_f32_16x16x32_bf16"

def k_read(dst, tile_par, ks, hf):
    return "ds_read_b128 %s, %s offset:%d" % (dst, V(vKA[ks & 1]), tile_par * SLOT + (ks >> 1) * 4096 + hf * 2048)
def v_read(a0, tile_par, db):
    return ["ds_read_b64_tr_b16 %s, %s offset:%d" % (Ac(a0 + 2 * i, 2), V(vVA[db & 3]), tile_par * SLOT + (db >> 2) * 4096 + i * 2048) for i in range(2)]
def q_read(dst, area, ks):
    return "ds_read_b128 %s, %s offset:%d" % (dst, V(vQA), area * QRB + ks * QKS)
def qk_mfmas(par, last_up=False):
    out = []
    for g in range(6):
        p, hf = g >> 1, g & 1
        for rb in (range(6) if hf == 0 or (last_up and g == 5) else range(5, -1, -1)):
            for k in range(2):
                ks = 2 * p + k
                d = V((G[rb][par] if hf == 0 else X[rb][par]), 4)
                out.append("%s %s, %s, %s, %s" % (MF, d, FB[(2 * g + k) % 4], Qf(rb, ks), "0" if ks == 0 else d))
    return out
def sregs(rb, par): return [G[rb][par] + i for i in range(4)] + [X[rb][par] + i for i in range(4)]
def sm(rb, par, half):
    ops = []; s = sregs(rb, par)
    for i in (4 * half, 4 * half + 2):
        ops.append("v_exp_f32 %s, %s" % (V(s[i]), V(s[i])))
        ops.append("v_exp_f32 %s, %s" % (V(s[i + 1]), V(s[i + 1])))
        ops.append("v_add_f32 %s, %s, %s" % (V(vL[rb]), V(vL[rb]), V(s[i])))
        ops.append("v_add_f32 %s, %s, %s" % (V(vL[rb]), V(vL[rb]), V(s[i + 1])))
        ops.append("v_cvt_pk_bf16_f32 %s, %s, %s" % (V(G[rb][par] + i // 2), V(s[i]), V(s[i + 1])))
    return ops
def last_write_slot(mf, reg): return max(g for g, t in enumerate(mf) if reg in Ins(t).wr)
def paced(ops, g0, g1, floor=0, dead=10 ** 9):
    os_ = [Op(t) for t in ops]; tot = sum(o.cost for o in os_); acc = 0
    for o in os_:
        o.ming = max(floor, int(g0 + (g1 - g0) * acc / tot)); o.dead = dead; acc += o.cost
    return os_
def pin_qk(pinned, qk, tile_par, nq):
    def pin(g, t): pinned.setdefault(g, []).append(t)
    for g in range(1, 6):
        for k in range(2): pin(12 * (g - 1) + 2 * k, k_read(FB[(2 * g + k) % 4], tile_par, 2 * (g >> 1) + k, g & 1))
    lastq = {}
    for g, t in enumerate(qk):
        for rb in LATE:
            for k in range(2):
                if FQ[rb][k] in t: lastq[(g // 24, rb, k)] = g
    for p in range(nq):
        g = 0
        for (lg, rb, k) in sorted((lastq[(p, rb, k)], rb, k) for rb in LATE for k in range(2)):
            g = max(g, lg + 1)
            while g in pinned: g += 1
            pin(g, q_read(FQ[rb][k], rb - 4, (2 * p + 2 + k) % 6)); g += 2

def body(par, ds_in):
    np_ = par ^ 1
    qk = qk_mfmas(np_)
    mf = qk + ["%s %s, %s, %s, %s" % (MF, O4(rb, db), FB[db % 4], V(G[rb][par], 4), O4(rb, db)) for db in range(12) for rb in range(6)]
    pinned = {}
    def pin(g, t): pinned.setdefault(g, []).append(t)
    for db in range(12):
        for t in v_read(96 + 4 * (db % 4), par, db): pin({0: 60, 1: 63, 2: 72, 3: 75}.get(db, 72 + 6 * (db - 3)), t)
    pin(127, k_read(FB[0], par, 0, 0)); pin(133, k_read(FB[1], par, 1, 0))
    pin_qk(pinned, qk, np_, 3)
    scal = [(54, ["s_waitcnt vmcnt(9)", "s_barrier"], False)]
    dg = [71, 81, 93, 105, 117, 130]
    for i in range(6):
        srd_, so, sm_ = (sK, sKoff, sKm) if i < 3 else (sV, sVoff, sVm)
        assert dg[i] not in pinned
        scal.append((dg[i] - 1, ["s_add_u32 m0, %s, %d" % (sm_, (i % 3) * (4096 - 128))], True))
        pin(dg[i], "buffer_load_dwordx4 %s, %s, %s offen offset:%d %s lds" % (V(vDMA), srd_, so, (i % 3) * 128, NT))
    for g, so, m, end, beg in ((dg[2] + 1, sKoff, sKm, sKend, sKbeg), (dg[5] + 1, sVoff, sVm, sVend, sVbeg)):
        scal.append((g, ["s_add_u32 %s, %s, %d" % (so, so, SLOT), "s_add_u32 %s, %s, %d" % (m, m, SLOT),
                         "s_cmp_eq_u32 %s, %s" % (m, end), "s_cselect_b32 %s, %s, %s" % (m, beg, m)], False))
    if par == 1: scal.append((139, ["s_add_u32 %s, %s, 1" % (sIT, sIT), "s_cmp_lt_u32 %s, 7" % sIT], False))
    st = paced(sum([sm(rb, par, h) for rb in LATE for h in range(2)], []), 0, 50, dead=70)
    if par == 0:
        st += [Op("v_xor_b32 %s, 0x1e000, %s" % (V(a), V(a)), 44, 58) for a in vVA]
        st += [Op("v_xor_b32 %s, 0x6000, %s" % (V(a), V(a)), 52, 125) for a in vKA]
    E0, E1 = 55, 140
    for n, (rb, h) in enumerate([(0, 0), (1, 0), (2, 0), (3, 0), (3, 1), (2, 1), (1, 1), (0, 1)]):
        ready = last_write_slot(qk, "v%d" % sregs(rb, np_)[4 * h]) + 5
        st += paced(sm(rb, np_, h), E0 + (E1 - E0) * n / 8, E0 + (E1 - E0) * (n + 1) / 8, floor=ready)
    def capf(cap, sc, pin_):
        for g in range(144):
            if "s_barrier" in sc.get(g, []): cap[g] = 0
    return schedule(mf, pinned, scal, st, ds_in, "body%d" % par, next_first=qk_mfmas(par)[0], excl=True, capf=capf)

def stamp(i):
    if STAMP == 1: return ["s_memrealtime s[%d:%d]" % (60 + 2 * i, 61 + 2 * i)]
    if STAMP == 6: return ["s_memtime s[%d:%d]" % (60 + 2 * i, 61 + 2 * i)]
    return []

P = []
A = P.append
A("s_cmp_ge_u32 s2, 256")
A("s_cbranch_scc1 L_end")
A("s_load_dwordx4 s[4:7], s[0:1], 0")
A("s_load_dwordx4 s[8:11], s[0:1], 16")
if STAMP: A("s_load_dwordx2 s[12:13], s[0:1], 40")
P += stamp(0)
A("s_getpc_b64 s[18:19]")
A("v_lshlrev_b32 v240, 7, v0")
A("v_min_u32 v240, L_end-L_start, v240")
A("global_load_dword v241, v240, s[18:19]")
vLN = 242; t2 = 243; t3 = 244; t4 = 245; t5 = 246; t6 = 247
A("v_lshrrev_b32 v%d, 6, v0" % t2)
A("v_and_b32 v%d, 63, v0" % vLN)
A("s_mul_i32 s14, s2, 147456")
A("v_readfirstlane_b32 %s, v%d" % (sWave, t2))
A("s_mul_i32 s15, s2, 196608")
A("s_bfe_u32 %s, s2, 0x30003" % sCls)
A("v_lshrrev_b32 v%d, 3, v%d" % (t5, vLN))
A("v_mul_u32_u24 v%d, 384, v%d" % (t6, t5))
A("v_lshrrev_b32 v%d, 4, v%d" % (t3, vLN))
A("v_lshlrev_b32 v%d, 1, v%d" % (t4, t3))
A("v_xor_b32 v%d, v%d, v%d" % (t4, t4, vLN))
A("v_and_b32 v%d, 7, v%d" % (t4, t4))
A("v_lshl_add_u32 v%d, v%d, 4, v%d" % (vDMA, t4, t6))
A("s_mul_i32 %s, %s, 3072" % (sTmp, sWave))
A("v_add_u32 v%d, %s, v%d" % (vDMA, sTmp, vDMA))
A("v_and_b32 v%d, 7, v%d" % (t4, vLN))
A("v_lshl_add_u32 v%d, v%d, 4, v%d" % (vQG, t4, t6))
A("s_mul_i32 %s, %s, 36864" % (sRow, sWave))
A("v_add_u32 v%d, %s, v%d" % (vQG, sRow, vQG))
A("s_lshl_b32 %s, %s, 10" % (sKbeg, sWave))
A("s_add_u32 %s, %s, %d" % (sVbeg, sKbeg, VRING))
for rb in range(1, 6): A("s_mov_b32 %s, %d" % (sRB(rb), rb * 6144))
if STG2:
    A("s_mov_b32 s3, 0")
    for i, (lo, hi, k, cnt) in enumerate(STG2):
        A("s_sub_u32 %s, %s, %d" % (sTmp, sCls, lo)); A("s_cmp_lt_u32 %s, %d" % (sTmp, hi - lo)); A("s_cselect_b32 s3, %d, s3" % (1 << i))
A("s_waitcnt lgkmcnt(0)")
def srd(base, src, off, size):
    A("s_add_u32 s%d, s%d, %s" % (base, src, off)); A("s_addc_u32 s%d, s%d, 0" % (base + 1, src + 1))
    A("s_mov_b32 s%d, %d" % (base + 2, size)); A("s_mov_b32 s%d, 0x20000" % (base + 3))
vm = []
def raw(rb, i): return 96 + rb * 24 + i * 4
def issue(k, x, i):
    if k == "Q":
        A("buffer_load_dwordx4 %s, v%d, %s, %s offen offset:%d %s" % (V(raw(x, i), 4), vQG, sQ, sRB(x), (i & 1) * 3072 + (i >> 1) * 128, NT))
        vm.append("Q%d.%d" % (x, i))
    else:
        srd_, beg = (sK, sKbeg) if k == "K" else (sV, sVbeg)
        A("s_add_u32 m0, %s, %d" % (beg, x * SLOT + i * (4096 - 128)))
        A("s_mov_b32 %s, %d" % (sTmp, x * SLOT))
        A("buffer_load_dwordx4 %s, %s, %s offen offset:%d %s lds" % (V(vDMA), srd_, sTmp, i * 128, NT))
        vm.append("%s%d" % (k, x))
    n = len(vm) - 1
    for ci, (lo, hi, kk, cnt) in enumerate(STG2):
        if kk <= n < cnt:
            A("s_bitcmp1_b32 s3, %d" % ci); A("s_cbranch_scc0 L_sg%d_%d" % (n, ci)); A("s_waitcnt vmcnt(%d)" % kk); A("L_sg%d_%d:" % (n, ci))
def vwait(name):
    last = max(i for i, x in enumerate(vm) if x == name)
    A("s_waitcnt vmcnt(%d)" % (len(vm) - 1 - last))
srd(24, 6, "s15", 196608)
for cb in range(3): issue("K", 0, cb)
srd(20, 4, "s14", 147456)
for rb in range(QD):
    for i in range(6): issue("Q", rb, i)
srd(28, 8, "s15", 196608); srd(32, 10, "s14", 147456)
if STAMP:
    A("s_mov_b32 s36, s12"); A("s_mov_b32 s37, s13"); A("s_mov_b32 s38, 0x100000"); A("s_mov_b32 s39, 0x20000")
A("s_add_u32 %s, %s, %d" % (sKend, sKbeg, 4 * SLOT))
A("s_add_u32 %s, %s, %d" % (sVend, sVbeg, 4 * SLOT))
A("s_mul_i32 %s, %s, %d" % (sQL, sWave, QWAVE))
A("s_add_u32 %s, %s, %d" % (sQL, sQL, QLDS))
A("v_xor_b32 v%d, v%d, v%d" % (t2, t5, t4))
A("v_lshl_add_u32 v%d, v%d, 4, v%d" % (t2, t2, t6))
A("v_add_u32 v249, %s, v%d" % (sQL, t2))
A("v_and_b32 v%d, 3, v%d" % (t4, vLN))
A("v_xor_b32 v%d, v%d, v%d" % (t2, t5, t4))
A("v_lshlrev_b32 v%d, 4, v%d" % (t2, t2))
A("v_lshl_add_u32 v%d, v%d, 8, v%d" % (t2, t4, t2))
A("v_bfe_u32 v%d, v%d, 2, 1" % (t4, vLN))
A("v_mul_u32_u24 v%d, %d, v%d" % (t4, QKS, t4))
A("v_add3_u32 v%d, v%d, v%d, %s" % (vQW, t2, t4, sQL))
A("v_and_b32 v%d, 15, v%d" % (t2, vLN))
A("v_xor_b32 v%d, v%d, v%d" % (t4, t2, t3))
A("v_lshlrev_b32 v%d, 4, v%d" % (t4, t4))
A("v_lshl_add_u32 v%d, v%d, 8, v%d" % (t4, t3, t4))
A("v_add_u32 v%d, %s, v%d" % (vQA, sQL, t4))
A("v_mul_u32_u24 v%d, 384, v%d" % (t6, t2))
A("v_lshrrev_b32 v%d, 5, v%d" % (t4, vLN))
A("v_xor_b32 v%d, v%d, v%d" % (t4, t4, vLN))
A("v_and_b32 v%d, 7, v%d" % (t4, t4))
A("v_lshl_add_u32 v%d, v%d, 4, v%d" % (t6, t4, t6))
A("v_xor_b32 v%d, v%d, v%d" % (t4, t3, t5))
A("v_and_b32 v%d, 1, v%d" % (t4, t4))
A("v_lshl_add_u32 v%d, v%d, 3, v%d" % (t6, t4, t6))
A("v_add_u32 v248, %s, v%d" % (sQL, t6))
A("ds_write_b64 v%d, v[248:249] offset:%d" % (vQA, 2 * QRB))
A("v_and_b32 v%d, 6, v%d" % (t4, vLN))
A("v_xor_b32 v%d, v%d, v%d" % (t4, t4, t3))
A("v_lshlrev_b32 v%d, 4, v%d" % (t4, t4))
A("v_lshl_add_u32 v%d, v%d, 7, v%d" % (vKA[0], t2, t4))
A("v_xor_b32 v%d, 64, v%d" % (vKA[1], vKA[0]))
A("v_lshrrev_b32 v%d, 2, v%d" % (t4, vLN))
A("v_lshlrev_b32 v%d, 7, v%d" % (t4, t4))
A("v_and_b32 v%d, 3, v%d" % (t2, vLN))
A("v_lshl_add_u32 v%d, v%d, 3, v%d" % (t4, t2, t4))
A("v_bfe_u32 v%d, v%d, 3, 2" % (t2, vLN))
A("v_lshl_add_u32 v%d, v%d, 5, v%d" % (t4, t2, t4))
A("v_add_u32 v%d, %d, v%d" % (vVA[0], VRING + 2 * SLOT, t4))
for x in range(1, 4): A("v_xor_b32 v%d, %d, v%d" % (vVA[x], 32 * x, vVA[0]))
A("s_mov_b32 s40, 0x%x" % CSCALE); A("s_mov_b32 s41, 0x%x" % CSCALE)
A("s_mov_b32 %s, 0xffff0000" % sMask)
A("s_mov_b32 %s, 0" % sIT)
A("s_mov_b32 %s, %d" % (sKoff, 4 * SLOT))
A("s_mov_b32 %s, %d" % (sVoff, 3 * SLOT))
A("s_mov_b32 %s, %s" % (sKm, sKbeg))
A("s_add_u32 %s, %s, %d" % (sVm, sVbeg, 3 * SLOT))
A("s_mov_b32 %s, 0x%x" % (sLo, f2u(2.0 ** float(opts.get("llo", -20)))))
A("s_mov_b32 %s, 0x%x" % (sHi, f2u(2.0 ** float(opts.get("lhi", 24)))))
A("s_mov_b64 %s, 0" % sBad)
for i in vL: A("v_mov_b32 v%d, 0" % i)
ZR = FQ[5][1]
for i in range(4): A("v_accvgpr_write_b32 a%d, 0" % (124 + i))
A("v_mov_b32 v%d, %d" % (t2, FLAG))
A("ds_write_b32 v%d, v%d" % (t2, vL[0]))
def zero16(f, i): A("v_mfma_f32_32x32x16_bf16 %s[%d:%d], %s, %s, 0" % (f, i, i + 15, ZR, ZR))
for i in range(128, 256, 16): zero16("a", i)
vwait("K0")
A("s_waitcnt lgkmcnt(0)")
A("s_barrier")
K0F = [V(G[rb][1], 4) for rb in range(6)] + [V(X[rb][1], 4) for rb in LATE] + FB
for n in range(12): A(k_read(K0F[n], 0, n >> 1, n & 1))
def pro_sm(rb):
    ops = sm(rb, 0, 0) + sm(rb, 0, 1)
    for t in [t for t in ops if t.startswith("v_exp")] + ["s_nop 0"] + [t for t in ops if not t.startswith("v_exp")]: A(t)
pend = [("Q", rb, i) for rb in range(QD, 6) for i in range(6)]
pend += [(k, x, cb) for k, x in (("K", 1), ("V", 0), ("K", 2), ("V", 1), ("K", 3), ("V", 2)) for cb in range(3)]
deferred = pend[len(pend) - 3 * DEF:]; pend = pend[:len(pend) - 3 * DEF]
def qdst(rb, ks): return Ac(rb * 24 + ks * 4, 4) if rb < 4 else V(raw(rb, ks), 4)
def st_read(s_):
    rb, cb = divmod(s_, 3)
    for ks in (2 * cb, 2 * cb + 1): A(q_read(qdst(rb, ks), rb & 1, ks))
def st_mfma(s_):
    rb, cb = divmod(s_, 3)
    for hf in range(2):
        for ks in (2 * cb, 2 * cb + 1):
            d = V((G[rb][0] if hf == 0 else X[rb][0]), 4)
            A("%s %s, %s, %s, %s" % (MF, d, K0F[2 * ks + hf], qdst(rb, ks), "0" if ks == 0 else d))
nleft = 36
for s_ in range(18):
    rb, cb = divmod(s_, 3)
    for rh in range(2):
        i = 2 * cb + rh
        vwait("Q%d.%d" % (rb, i))
        if s_ == 17 and rh == 1: P += stamp(1)
        r0 = raw(rb, i); tb = 240 + 8 * rh
        for k in range(4):
            A("v_lshlrev_b32 v%d, 16, v%d" % (tb + 2 * k, r0 + k)); A("v_and_b32 v%d, %s, v%d" % (tb + 2 * k + 1, sMask, r0 + k))
        for k in range(4): A("v_pk_mul_f32 %s, %s, %s" % (V(tb + 2 * k, 2), V(tb + 2 * k, 2), sC2))
        for k in range(4): A("v_cvt_pk_bf16_f32 v%d, v%d, v%d" % (r0 + k, tb + 2 * k, tb + 2 * k + 1))
        if rh == 0 and s_ >= 1: st_read(s_ - 1)
        A("ds_write_b128 v%d, %s offset:%d" % (vQW, V(r0, 4), (rb & 1) * QRB + cb * 2 * QKS + rh * 128))
        if s_ == 17 and rh == 1: st_read(17)
        for _ in range(-(-len(pend) // nleft)): issue(*pend.pop(0))
        nleft -= 1
        if nleft == 0:
            for x in deferred[:3]: issue(*x)
    if s_ >= 1:
        A("s_waitcnt lgkmcnt(%d)" % (2 if s_ < 17 else 4)); st_mfma(s_ - 1)
    if cb == 1 and rb >= 1 and rb - 1 in EARLY: pro_sm(rb - 1)
    for i in {7: (96, 112, 128), 13: (144, 160, 176), 16: (192, 208)}.get(s_, ()): zero16("v", i)
A("s_waitcnt lgkmcnt(0)")
st_mfma(17)
for i in (240, 224): zero16("v", i)
for x in deferred[3:]: issue(*x)
vwait("K1")
A("s_barrier")
A(k_read(FB[0], 1, 0, 0)); A(k_read(FB[1], 1, 1, 0))
for rb in LATE:
    for k in range(2): A(q_read(FQ[rb][k], rb - 4, k))
assert vm[-18:] == sum([[x] * 3 for x in ("K1", "V0", "K2", "V1", "K3", "V2")], []), vm
A("s_waitcnt lgkmcnt(0)")
P += stamp(2)

B0, q0 = body(0, [])
B1, q1 = body(1, q0)
B0, q0b = body(0, q1)
assert q0 == q0b

T = []
A = T.append
T += stamp(3)
eW = [0, vQA, vDMA, vQW]; eR = 1; eS = vQG
vslot = [rb * 24 + 8 * p + 4 * k for p in range(3) for rb in ((3, 2, 1, 0) if p < 2 else (0, 1, 2, 3)) for k in range(2)]
def VF(t, db): return vslot[12 * t + db]
def phase_mf(rb): return ["%s %s, %s, %s, %s" % (MF, O4(rb, db), Ac(VF(t, db), 4), V(G[rb][t], 4), O4(rb, db)) for t in range(2) for db in range(12)]
def lfin(rb, g0):
    tmp = X[rb][1]; l = vL[rb]; o = []
    for sw in ("v_permlane32_swap_b32", "v_permlane16_swap_b32"):
        o += ["v_mov_b32 v%d, v%d" % (tmp, l), "%s v%d, v%d" % (sw, l, tmp), "v_add_f32 v%d, v%d, v%d" % (l, l, tmp)]
    o += ["v_cmp_nle_f32 vcc, %s, v%d" % (sLo, l), "v_cmp_nge_f32 %s, %s, v%d" % (sB2, sHi, l), "v_rcp_f32 v%d, v%d" % (l, l)]
    return [Op(t, g0) for t in o]
def rbk(n, rh): return 96 + 8 * (n % 4) + 4 * rh
def ep_st(n, rh):
    rb, cb = divmod(n, 3)
    return "buffer_store_dwordx4 %s, v%d, %s, %s offen offset:%d %s" % (Ac(rbk(n, rh), 4), eS, sO, sRB(rb), rh * 3072 + cb * 128, SPOL)
def ep_rd(n):
    rb, cb = divmod(n, 3); base = (rb & 1) * QRB + cb * 128
    return ["ds_read_b128 %s, v%d offset:%d" % (Ac(rbk(n, 0), 4), eR, base)] + \
           ["ds_read_b64 %s, v%d offset:%d" % (Ac(rbk(n, 1) + 2 * k, 2), eR, base + 3072 + 8 * (1 - k)) for k in range(2)]
def burst(rb):
    A("s_or_b64 %s, %s, vcc" % (sBad, sBad)); A("s_or_b64 %s, %s, %s" % (sBad, sBad, sB2))
    lp = vL[rb] & ~1; sel = vL[rb] & 1
    for cb in range(3):
        n = 3 * rb + cb
        fl, i0 = Oreg(rb, 4 * cb)
        w = i0
        if fl == "a":
            w = 96 + 16 * (n % 3)
            for i in range(16): A("v_accvgpr_read_b32 %s, %s" % (V(w + i), Ac(i0 + i)))
        for i in range(0, 16, 2):
            A("v_pk_mul_f32 %s, %s, %s op_sel:[0,%d] op_sel_hi:[1,%d]" % (V(w + i, 2), V(w + i, 2), V(lp, 2), sel, sel))
        if cb == 2: A("s_waitcnt lgkmcnt(4)"); A(ep_st(n - 2, 0))
        for i in range(8): A("v_cvt_pk_bf16_f32 %s, %s, %s" % (V(w + i), V(w + 2 * i), V(w + 2 * i + 1)))
        if cb == 2: A(ep_st(n - 2, 1))
        if cb >= 1:
            for t in ep_rd(n - 1): A(t)
        for x in range(4):
            A("ds_write_b64 v%d, %s offset:%d" % (eW[x], V(w + 2 * x, 2), (rb & 1) * QRB + cb * 128))
qk = qk_mfmas(1, last_up=True)
mf = qk + phase_mf(0)
pinned = {}
pin_qk(pinned, qk, 1, 2)
g = 21
for n in range(24):
    g = max(g, 1 + max(k for k, t in enumerate(qk) if ("a%d" % vslot[n]) in Ins(t).rd), (0, 0, 66)[n // 8])
    while g in pinned: g += 1
    pinned[g] = v_read(vslot[n], n // 12, n % 12); g += (2 if n < 16 else 2 + (n & 1))
pinned[88] = ["ds_read_b64 v[0:1], v%d offset:%d" % (vQA, 2 * QRB)]
scal = [(16, ["s_waitcnt vmcnt(0)", "s_barrier"], False)]
st = [Op("v_xor_b32 %s, 0x1e000, %s" % (V(a), V(a)), 0, 18) for a in vVA]
st += paced(sum([sm(rb, 0, h) for rb in LATE for h in range(2)], []), 0, 46, dead=70)
for rb, h, dead in ((0, 0, 81), (0, 1, 81), (1, 0, 95)):
    st += [Op(t, last_write_slot(qk, "v%d" % sregs(rb, 1)[4 * h]) + 5, dead) for t in sm(rb, 1, h)]
st += lfin(0, 0)
blk, _ = schedule(mf, pinned, scal, st, q1, "final0", excl=True)
T += blk
A("s_waitcnt lgkmcnt(0)")
for x in range(1, 4): A("v_xor_b32 v%d, %d, v0" % (eW[x], 32 * x))
burst(0)
for rb in range(1, 6):
    n = 3 * rb - 1
    rd = ep_rd(n)
    pinned = {1: [ep_st(n - 1, 0)], 4: [ep_st(n - 1, 1)], 7: rd[:2], 8: rd[2:], 17: [ep_st(n, 0)], 20: [ep_st(n, 1)]}
    scal = [(0, ["s_waitcnt lgkmcnt(4)"], True), (16, ["s_waitcnt lgkmcnt(0)"], True)]
    st = [Op(t, 0, 10) for t in sm(rb, 1, 1)] + lfin(rb, 0)
    if rb < 5: st += [Op(t) for t in sm(rb + 1, 1, 0)]
    blk, _ = schedule(phase_mf(rb), pinned, scal, st, [], "final%d" % rb, excl=True)
    T += blk
    if rb == 5: T += stamp(4)
    burst(rb)
A("s_waitcnt lgkmcnt(4)")
A(ep_st(16, 0)); A(ep_st(16, 1))
for t in ep_rd(17): A(t)
A("s_cmp_eq_u64 %s, 0" % sBad)
A("s_cbranch_scc1 L_good")
A("v_mov_b32 v2, %d" % FLAG); A("v_mov_b32 v3, 1")
A("ds_write_b32 v2, v3")
A("L_good:")
A("s_waitcnt lgkmcnt(0)")
A(ep_st(17, 0)); A(ep_st(17, 1))
if STAMP:
    T += stamp(5)
    A("s_waitcnt vmcnt(0)")
    T += stamp(6)
    A("s_waitcnt lgkmcnt(0)")
    if "probe" in opts:
        pi, pj = [int(x) for x in opts["probe"].split(",")]
        A("s_sub_u32 s84, s%d, s%d" % (60 + 2 * pj, 60 + 2 * pi))
        if "pneg" in opts: A("s_sub_u32 s84, %s, s84" % opts["pneg"])
        A("s_min_u32 s84, s84, 10000")
        A("s_lshl_b32 s84, s84, 2")
        if "pcls" in opts:
            A("s_bfe_u32 s85, s2, 0x%x" % int(opts["pbits"], 16)); A("s_cmp_eq_u32 s85, %s" % opts["pcls"]); A("s_cselect_b32 s84, s84, 0")
        A("L_spin:"); A("s_sleep 2"); A("s_memrealtime s[82:83]"); A("s_waitcnt lgkmcnt(0)")
        A("s_sub_u32 s85, s82, s72"); A("s_cmp_lt_u32 s85, s84"); A("s_cbranch_scc1 L_spin")
    A("s_lshl_b32 s3, s2, 2"); A("s_add_u32 s3, s3, %s" % sWave); A("s_lshl_b32 s3, s3, 6")
    A("v_mov_b32 v10, s3")
    for i in range(16): A("v_mov_b32 v%d, s%d" % (16 + i, 60 + i))
    for i in range(4): A("buffer_store_dwordx4 v[%d:%d], v10, %s, 0 offen offset:%d" % (16 + 4 * i, 19 + 4 * i, sW, 16 * i))
A("s_barrier")
A("v_mov_b32 v0, %d" % FLAG)
A("ds_read_b32 v0, v0")
A("s_waitcnt lgkmcnt(0)")
A("v_readfirstlane_b32 %s, v0" % sTmp)
A("s_cmp_eq_u32 %s, 0" % sTmp)
A("s_cbranch_scc0 L_redo")
A("L_end:")
A("s_endpgm")
A("L_redo:")
A("s_waitcnt vmcnt(0)")
A("s_barrier")
A("v_mbcnt_lo_u32_b32 v0, -1, 0"); A("v_mbcnt_hi_u32_b32 v0, -1, v0")
A("s_lshl_b32 %s, %s, 6" % (sTmp, sWave))
A("v_add_u32 v0, %s, v0" % sTmp)

def I(l): return [Ins(t) for t in l]
seq = I(P + B0 + B1 + ["s_cbranch_scc1 L_loop"] + B0 + B1 + ["s_cbranch_scc1 L_loop"] + T)
errs = check_hazards(seq, "main") + check_waits(seq, "main")
for e in errs[:30]: sys.stderr.write(e + "\n")
if errs:
    print("!!! %d hazard problems" % len(errs)); sys.exit(1)
S, lds2, e2_ = gen_safe.build_safe({"qd": "3", "nt": NT})
assert lds2 <= LDS_BYTES and e2_ == 0

hdr = open("standalone__gqa_softmax__near_ridge.s.ref").read().split("; Override")[0]
out = [hdr.rstrip(), "; @launch grid=(256,1,1) block=(256,1,1) lds=%d" % LDS_BYTES,
       '.amdgcn_target "amdgcn-amd-amdhsa--gfx950"', ".text", ".globl %s" % KN, ".p2align 8", ".type %s,@function" % KN, "%s:" % KN, "L_start:"]
def emit(l):
    for t in l: out.append(t if t.endswith(":") or t.startswith(".") else "    " + t)
emit(P); emit([".p2align 6", "L_loop:"]); emit(B0); emit(B1); emit(["s_cbranch_scc1 L_loop"]); emit(T); emit(S)
out += ['.section .rodata,"a"', ".p2align 6", ".amdhsa_kernel %s" % KN, "  .amdhsa_next_free_vgpr 512", "  .amdhsa_next_free_sgpr 96",
        "  .amdhsa_accum_offset 256", "  .amdhsa_group_segment_fixed_size 0", "  .amdhsa_kernarg_size 48", "  .amdhsa_user_sgpr_count 2",
        "  .amdhsa_user_sgpr_kernarg_segment_ptr 1", "  .amdhsa_system_sgpr_workgroup_id_x 1", ".end_amdhsa_kernel", ""]
open(sys.argv[1], "w").write("\n".join(out))
```

```python
import sys, math, struct
from asmlib import *
from sched import *
import gen_safe

opts = dict(a.split("=") for a in sys.argv[2:])
STAMP = int(opts.get("stamp", 0))
NT = opts.get("nt", "nt").replace("+", " ")
SPOL = opts.get("spol", "sc1").replace("+", " ")
QD = int(opts.get("qd", 3))
DEF = int(opts.get("defer", 3))
STG2 = [tuple(int(y) for y in x.split(":")) for x in opts.get("stg2", "4:8:2:21").split(",") if x]
KN = "standalone__gqa_softmax__near_ridge_kernel"
def f2u(x): return struct.unpack("<I", struct.pack("<f", x))[0]
CSCALE = f2u(math.log2(math.e) / math.sqrt(192.0))

KRING = 0; VRING = 49152; QLDS = 98304; SLOT = 12288
QKS = 1088; QRB = 6 * QKS; QWAVE = 2 * QRB + 1024
FLAG = QLDS + 4 * QWAVE
LDS_BYTES = FLAG + 64
def V(i, n=1): return "v%d" % i if n == 1 else "v[%d:%d]" % (i, i + n - 1)
def Ac(i, n=1): return "a%d" % i if n == 1 else "a[%d:%d]" % (i, i + n - 1)
vKA = [0, 1]; vVA = [2, 3, 4, 5]; vQA = 6; vDMA = 7
vL = [8 + i for i in range(6)]; vQG = 14; vQW = 15
FB = [Ac(96 + 4 * i, 4) for i in range(4)]
FQ = {4: [Ac(112, 4), Ac(116, 4)], 5: [Ac(120, 4), Ac(124, 4)]}
EARLY = [0, 1, 2, 3]; LATE = [4, 5]
G = {}; X = {}
r = 16
for rb in LATE:
    G[rb] = [r, r + 4]; X[rb] = [r + 8, r + 12]; r += 16
for rb in EARLY:
    G[rb] = [r, r + 4]; X[rb] = [r + 8, r + 8]; r += 12
assert r == 96
def Oreg(rb, db):
    b = rb * 12 + db
    return ("v", 96 + 4 * b) if b < 40 else ("a", 128 + 4 * (b - 40))
def O4(rb, db):
    f, i = Oreg(rb, db); return "%s[%d:%d]" % (f, i, i + 3)
def Qf(rb, ks): return Ac(rb * 24 + ks * 4, 4) if rb < 4 else FQ[rb][ks & 1]
sQ = "s[20:23]"; sK = "s[24:27]"; sV = "s[28:31]"; sO = "s[32:35]"; sW = "s[36:39]"
sC2 = "s[40:41]"; sIT = "s42"; sKoff = "s43"; sVoff = "s44"; sKm = "s45"; sVm = "s46"; sWave = "s47"
sTmp = "s48"; sRow = "s49"; sKend = "s50"; sVend = "s51"; sKbeg = "s52"; sVbeg = "s53"; sQL = "s16"; sCls = "s17"
sMask = "s54"; sLo = "s76"; sHi = "s77"; sBad = "s[78:79]"; sB2 = "s[80:81]"
def sRB(rb): return "0" if rb == 0 else "s%d" % (54 + rb)
MF = "v_mfma_f32_16x16x32_bf16"

def k_read(dst, tile_par, ks, hf):
    return "ds_read_b128 %s, %s offset:%d" % (dst, V(vKA[ks & 1]), tile_par * SLOT + (ks >> 1) * 4096 + hf * 2048)
def v_read(a0, tile_par, db):
    return ["ds_read_b64_tr_b16 %s, %s offset:%d" % (Ac(a0 + 2 * i, 2), V(vVA[db & 3]), tile_par * SLOT + (db >> 2) * 4096 + i * 2048) for i in range(2)]
def q_read(dst, area, ks):
    return "ds_read_b128 %s, %s offset:%d" % (dst, V(vQA), area * QRB + ks * QKS)
def qk_mfmas(par, last_up=False):
    out = []
    for g in range(6):
        p, hf = g >> 1, g & 1
        for rb in (range(6) if hf == 0 or (last_up and g == 5) else range(5, -1, -1)):
            for k in range(2):
                ks = 2 * p + k
                d = V((G[rb][par] if hf == 0 else X[rb][par]), 4)
                out.append("%s %s, %s, %s, %s" % (MF, d, FB[(2 * g + k) % 4], Qf(rb, ks), "0" if ks == 0 else d))
    return out
def sregs(rb, par): return [G[rb][par] + i for i in range(4)] + [X[rb][par] + i for i in range(4)]
def sm(rb, par, half):
    ops = []; s = sregs(rb, par)
    for i in (4 * half, 4 * half + 2):
        ops.append("v_exp_f32 %s, %s" % (V(s[i]), V(s[i])))
        ops.append("v_exp_f32 %s, %s" % (V(s[i + 1]), V(s[i + 1])))
        ops.append("v_add_f32 %s, %s, %s" % (V(vL[rb]), V(vL[rb]), V(s[i])))
        ops.append("v_add_f32 %s, %s, %s" % (V(vL[rb]), V(vL[rb]), V(s[i + 1])))
        ops.append("v_cvt_pk_bf16_f32 %s, %s, %s" % (V(G[rb][par] + i // 2), V(s[i]), V(s[i + 1])))
    return ops
def last_write_slot(mf, reg): return max(g for g, t in enumerate(mf) if reg in Ins(t).wr)
def paced(ops, g0, g1, floor=0, dead=10 ** 9):
    os_ = [Op(t) for t in ops]; tot = sum(o.cost for o in os_); acc = 0
    for o in os_:
        o.ming = max(floor, int(g0 + (g1 - g0) * acc / tot)); o.dead = dead; acc += o.cost
    return os_
def pin_qk(pinned, qk, tile_par, nq):
    def pin(g, t): pinned.setdefault(g, []).append(t)
    for g in range(1, 6):
        for k in range(2): pin(12 * (g - 1) + 2 * k, k_read(FB[(2 * g + k) % 4], tile_par, 2 * (g >> 1) + k, g & 1))
    lastq = {}
    for g, t in enumerate(qk):
        for rb in LATE:
            for k in range(2):
                if FQ[rb][k] in t: lastq[(g // 24, rb, k)] = g
    for p in range(nq):
        g = 0
        for (lg, rb, k) in sorted((lastq[(p, rb, k)], rb, k) for rb in LATE for k in range(2)):
            g = max(g, lg + 1)
            while g in pinned: g += 1
            pin(g, q_read(FQ[rb][k], rb - 4, (2 * p + 2 + k) % 6)); g += 2

def body(par, ds_in):
    np_ = par ^ 1
    qk = qk_mfmas(np_)
    mf = qk + ["%s %s, %s, %s, %s" % (MF, O4(rb, db), FB[db % 4], V(G[rb][par], 4), O4(rb, db)) for db in range(12) for rb in range(6)]
    pinned = {}
    def pin(g, t): pinned.setdefault(g, []).append(t)
    for db in range(12):
        for t in v_read(96 + 4 * (db % 4), par, db): pin({0: 60, 1: 63, 2: 72, 3: 75}.get(db, 72 + 6 * (db - 3)), t)
    pin(127, k_read(FB[0], par, 0, 0)); pin(133, k_read(FB[1], par, 1, 0))
    pin_qk(pinned, qk, np_, 3)
    scal = [(54, ["s_waitcnt vmcnt(9)", "s_barrier"], False)]
    dg = [71, 81, 93, 105, 117, 130]
    for i in range(6):
        srd_, so, sm_ = (sK, sKoff, sKm) if i < 3 else (sV, sVoff, sVm)
        assert dg[i] not in pinned
        scal.append((dg[i] - 1, ["s_add_u32 m0, %s, %d" % (sm_, (i % 3) * (4096 - 128))], True))
        pin(dg[i], "buffer_load_dwordx4 %s, %s, %s offen offset:%d %s lds" % (V(vDMA), srd_, so, (i % 3) * 128, NT))
    for g, so, m, end, beg in ((dg[2] + 1, sKoff, sKm, sKend, sKbeg), (dg[5] + 1, sVoff, sVm, sVend, sVbeg)):
        scal.append((g, ["s_add_u32 %s, %s, %d" % (so, so, SLOT), "s_add_u32 %s, %s, %d" % (m, m, SLOT),
                         "s_cmp_eq_u32 %s, %s" % (m, end), "s_cselect_b32 %s, %s, %s" % (m, beg, m)], False))
    if par == 1: scal.append((139, ["s_add_u32 %s, %s, 1" % (sIT, sIT), "s_cmp_lt_u32 %s, 7" % sIT], False))
    st = paced(sum([sm(rb, par, h) for rb in LATE for h in range(2)], []), 0, 50, dead=70)
    if par == 0:
        st += [Op("v_xor_b32 %s, 0x1e000, %s" % (V(a), V(a)), 44, 58) for a in vVA]
        st += [Op("v_xor_b32 %s, 0x6000, %s" % (V(a), V(a)), 52, 125) for a in vKA]
    E0, E1 = 55, 140
    for n, (rb, h) in enumerate([(0, 0), (1, 0), (2, 0), (3, 0), (3, 1), (2, 1), (1, 1), (0, 1)]):
        ready = last_write_slot(qk, "v%d" % sregs(rb, np_)[4 * h]) + 5
        st += paced(sm(rb, np_, h), E0 + (E1 - E0) * n / 8, E0 + (E1 - E0) * (n + 1) / 8, floor=ready)
    def capf(cap, sc, pin_):
        for g in range(144):
            if "s_barrier" in sc.get(g, []): cap[g] = 0
    return schedule(mf, pinned, scal, st, ds_in, "body%d" % par, next_first=qk_mfmas(par)[0], excl=True, capf=capf)

def stamp(i):
    if STAMP == 1: return ["s_memrealtime s[%d:%d]" % (60 + 2 * i, 61 + 2 * i)]
    if STAMP == 6: return ["s_memtime s[%d:%d]" % (60 + 2 * i, 61 + 2 * i)]
    return []

P = []
A = P.append
A("s_cmp_ge_u32 s2, 256")
A("s_cbranch_scc1 L_end")
A("s_load_dwordx4 s[4:7], s[0:1], 0")
A("s_load_dwordx4 s[8:11], s[0:1], 16")
if STAMP: A("s_load_dwordx2 s[12:13], s[0:1], 40")
P += stamp(0)
A("s_getpc_b64 s[18:19]")
A("v_lshlrev_b32 v240, 7, v0")
A("v_min_u32 v240, L_end-L_start, v240")
A("global_load_dword v241, v240, s[18:19]")
vLN = 242; t2 = 243; t3 = 244; t4 = 245; t5 = 246; t6 = 247
A("v_lshrrev_b32 v%d, 6, v0" % t2)
A("v_and_b32 v%d, 63, v0" % vLN)
A("s_mul_i32 s14, s2, 147456")
A("v_readfirstlane_b32 %s, v%d" % (sWave, t2))
A("s_mul_i32 s15, s2, 196608")
A("s_bfe_u32 %s, s2, 0x30003" % sCls)
A("v_lshrrev_b32 v%d, 3, v%d" % (t5, vLN))
A("v_mul_u32_u24 v%d, 384, v%d" % (t6, t5))
A("v_lshrrev_b32 v%d, 4, v%d" % (t3, vLN))
A("v_lshlrev_b32 v%d, 1, v%d" % (t4, t3))
A("v_xor_b32 v%d, v%d, v%d" % (t4, t4, vLN))
A("v_and_b32 v%d, 7, v%d" % (t4, t4))
A("v_lshl_add_u32 v%d, v%d, 4, v%d" % (vDMA, t4, t6))
A("s_mul_i32 %s, %s, 3072" % (sTmp, sWave))
A("v_add_u32 v%d, %s, v%d" % (vDMA, sTmp, vDMA))
A("v_and_b32 v%d, 7, v%d" % (t4, vLN))
A("v_lshl_add_u32 v%d, v%d, 4, v%d" % (vQG, t4, t6))
A("s_mul_i32 %s, %s, 36864" % (sRow, sWave))
A("v_add_u32 v%d, %s, v%d" % (vQG, sRow, vQG))
A("s_lshl_b32 %s, %s, 10" % (sKbeg, sWave))
A("s_add_u32 %s, %s, %d" % (sVbeg, sKbeg, VRING))
for rb in range(1, 6): A("s_mov_b32 %s, %d" % (sRB(rb), rb * 6144))
if STG2:
    A("s_mov_b32 s3, 0")
    for i, (lo, hi, k, cnt) in enumerate(STG2):
        A("s_sub_u32 %s, %s, %d" % (sTmp, sCls, lo)); A("s_cmp_lt_u32 %s, %d" % (sTmp, hi - lo)); A("s_cselect_b32 s3, %d, s3" % (1 << i))
A("s_waitcnt lgkmcnt(0)")
def srd(base, src, off, size):
    A("s_add_u32 s%d, s%d, %s" % (base, src, off)); A("s_addc_u32 s%d, s%d, 0" % (base + 1, src + 1))
    A("s_mov_b32 s%d, %d" % (base + 2, size)); A("s_mov_b32 s%d, 0x20000" % (base + 3))
vm = []
def raw(rb, i): return 96 + rb * 24 + i * 4
def issue(k, x, i):
    if k == "Q":
        A("buffer_load_dwordx4 %s, v%d, %s, %s offen offset:%d %s" % (V(raw(x, i), 4), vQG, sQ, sRB(x), (i & 1) * 3072 + (i >> 1) * 128, NT))
        vm.append("Q%d.%d" % (x, i))
    else:
        srd_, beg = (sK, sKbeg) if k == "K" else (sV, sVbeg)
        A("s_add_u32 m0, %s, %d" % (beg, x * SLOT + i * (4096 - 128)))
        A("s_mov_b32 %s, %d" % (sTmp, x * SLOT))
        A("buffer_load_dwordx4 %s, %s, %s offen offset:%d %s lds" % (V(vDMA), srd_, sTmp, i * 128, NT))
        vm.append("%s%d" % (k, x))
    n = len(vm) - 1
    for ci, (lo, hi, kk, cnt) in enumerate(STG2):
        if kk <= n < cnt:
            A("s_bitcmp1_b32 s3, %d" % ci); A("s_cbranch_scc0 L_sg%d_%d" % (n, ci)); A("s_waitcnt vmcnt(%d)" % kk); A("L_sg%d_%d:" % (n, ci))
def vwait(name):
    last = max(i for i, x in enumerate(vm) if x == name)
    A("s_waitcnt vmcnt(%d)" % (len(vm) - 1 - last))
TLB = int(opts.get("tlb", 0))
srd(24, 6, "s15", 196608)
issue("K", 0, 0)
if TLB & 1:
    srd(32, 10, "s14", 147456); srd(28, 8, "s15", 196608)
    A("v_lshlrev_b32 v240, 9, v%d" % vLN)
    A("buffer_load_dword v250, v240, %s, %s offen nt" % (sO, sRow)); vm.append("t")
    A("buffer_load_dword v251, v%d, %s, 0 offen nt" % (vDMA, sV)); vm.append("t")
for cb in range(1, 3): issue("K", 0, cb)
srd(20, 4, "s14", 147456)
for rb in range(QD):
    for i in range(6): issue("Q", rb, i)
if not TLB & 1: srd(28, 8, "s15", 196608); srd(32, 10, "s14", 147456)
if STAMP:
    A("s_mov_b32 s36, s12"); A("s_mov_b32 s37, s13"); A("s_mov_b32 s38, 0x100000"); A("s_mov_b32 s39, 0x20000")
A("s_add_u32 %s, %s, %d" % (sKend, sKbeg, 4 * SLOT))
A("s_add_u32 %s, %s, %d" % (sVend, sVbeg, 4 * SLOT))
A("s_mul_i32 %s, %s, %d" % (sQL, sWave, QWAVE))
A("s_add_u32 %s, %s, %d" % (sQL, sQL, QLDS))
A("v_xor_b32 v%d, v%d, v%d" % (t2, t5, t4))
A("v_lshl_add_u32 v%d, v%d, 4, v%d" % (t2, t2, t6))
A("v_add_u32 v249, %s, v%d" % (sQL, t2))
A("v_and_b32 v%d, 3, v%d" % (t4, vLN))
A("v_xor_b32 v%d, v%d, v%d" % (t2, t5, t4))
A("v_lshlrev_b32 v%d, 4, v%d" % (t2, t2))
A("v_lshl_add_u32 v%d, v%d, 8, v%d" % (t2, t4, t2))
A("v_bfe_u32 v%d, v%d, 2, 1" % (t4, vLN))
A("v_mul_u32_u24 v%d, %d, v%d" % (t4, QKS, t4))
A("v_add3_u32 v%d, v%d, v%d, %s" % (vQW, t2, t4, sQL))
A("v_and_b32 v%d, 15, v%d" % (t2, vLN))
A("v_xor_b32 v%d, v%d, v%d" % (t4, t2, t3))
A("v_lshlrev_b32 v%d, 4, v%d" % (t4, t4))
A("v_lshl_add_u32 v%d, v%d, 8, v%d" % (t4, t3, t4))
A("v_add_u32 v%d, %s, v%d" % (vQA, sQL, t4))
A("v_mul_u32_u24 v%d, 384, v%d" % (t6, t2))
A("v_lshrrev_b32 v%d, 5, v%d" % (t4, vLN))
A("v_xor_b32 v%d, v%d, v%d" % (t4, t4, vLN))
A("v_and_b32 v%d, 7, v%d" % (t4, t4))
A("v_lshl_add_u32 v%d, v%d, 4, v%d" % (t6, t4, t6))
A("v_xor_b32 v%d, v%d, v%d" % (t4, t3, t5))
A("v_and_b32 v%d, 1, v%d" % (t4, t4))
A("v_lshl_add_u32 v%d, v%d, 3, v%d" % (t6, t4, t6))
A("v_add_u32 v248, %s, v%d" % (sQL, t6))
A("ds_write_b64 v%d, v[248:249] offset:%d" % (vQA, 2 * QRB))
A("v_and_b32 v%d, 6, v%d" % (t4, vLN))
A("v_xor_b32 v%d, v%d, v%d" % (t4, t4, t3))
A("v_lshlrev_b32 v%d, 4, v%d" % (t4, t4))
A("v_lshl_add_u32 v%d, v%d, 7, v%d" % (vKA[0], t2, t4))
A("v_xor_b32 v%d, 64, v%d" % (vKA[1], vKA[0]))
A("v_lshrrev_b32 v%d, 2, v%d" % (t4, vLN))
A("v_lshlrev_b32 v%d, 7, v%d" % (t4, t4))
A("v_and_b32 v%d, 3, v%d" % (t2, vLN))
A("v_lshl_add_u32 v%d, v%d, 3, v%d" % (t4, t2, t4))
A("v_bfe_u32 v%d, v%d, 3, 2" % (t2, vLN))
A("v_lshl_add_u32 v%d, v%d, 5, v%d" % (t4, t2, t4))
A("v_add_u32 v%d, %d, v%d" % (vVA[0], VRING + 2 * SLOT, t4))
for x in range(1, 4): A("v_xor_b32 v%d, %d, v%d" % (vVA[x], 32 * x, vVA[0]))
A("s_mov_b32 s40, 0x%x" % CSCALE); A("s_mov_b32 s41, 0x%x" % CSCALE)
A("s_mov_b32 %s, 0xffff0000" % sMask)
A("s_mov_b32 %s, 0" % sIT)
A("s_mov_b32 %s, %d" % (sKoff, 4 * SLOT))
A("s_mov_b32 %s, %d" % (sVoff, 3 * SLOT))
A("s_mov_b32 %s, %s" % (sKm, sKbeg))
A("s_add_u32 %s, %s, %d" % (sVm, sVbeg, 3 * SLOT))
A("s_mov_b32 %s, 0x%x" % (sLo, f2u(2.0 ** float(opts.get("llo", -20)))))
A("s_mov_b32 %s, 0x%x" % (sHi, f2u(2.0 ** float(opts.get("lhi", 24)))))
A("s_mov_b64 %s, 0" % sBad)
for i in vL: A("v_mov_b32 v%d, 0" % i)
ZR = FQ[5][1]
for i in range(4): A("v_accvgpr_write_b32 a%d, 0" % (124 + i))
A("v_mov_b32 v%d, %d" % (t2, FLAG))
A("ds_write_b32 v%d, v%d" % (t2, vL[0]))
def zero16(f, i): A("v_mfma_f32_32x32x16_bf16 %s[%d:%d], %s, %s, 0" % (f, i, i + 15, ZR, ZR))
for i in range(128, 256, 16): zero16("a", i)
vwait("K0")
A("s_waitcnt lgkmcnt(0)")
A("s_barrier")
K0F = [V(G[rb][1], 4) for rb in range(6)] + [V(X[rb][1], 4) for rb in LATE] + FB
for n in range(12): A(k_read(K0F[n], 0, n >> 1, n & 1))
def pro_sm(rb):
    ops = sm(rb, 0, 0) + sm(rb, 0, 1)
    for t in [t for t in ops if t.startswith("v_exp")] + ["s_nop 0"] + [t for t in ops if not t.startswith("v_exp")]: A(t)
pend = [("Q", rb, i) for rb in range(QD, 6) for i in range(6)]
pend += [(k, x, cb) for k, x in (("K", 1), ("V", 0), ("K", 2), ("V", 1), ("K", 3), ("V", 2)) for cb in range(3)]
deferred = pend[len(pend) - 3 * DEF:]; pend = pend[:len(pend) - 3 * DEF]
def qdst(rb, ks): return Ac(rb * 24 + ks * 4, 4) if rb < 4 else V(raw(rb, ks), 4)
def st_read(s_):
    rb, cb = divmod(s_, 3)
    for ks in (2 * cb, 2 * cb + 1): A(q_read(qdst(rb, ks), rb & 1, ks))
def st_mfma(s_):
    rb, cb = divmod(s_, 3)
    for hf in range(2):
        for ks in (2 * cb, 2 * cb + 1):
            d = V((G[rb][0] if hf == 0 else X[rb][0]), 4)
            A("%s %s, %s, %s, %s" % (MF, d, K0F[2 * ks + hf], qdst(rb, ks), "0" if ks == 0 else d))
nleft = 36
for s_ in range(18):
    rb, cb = divmod(s_, 3)
    for rh in range(2):
        i = 2 * cb + rh
        vwait("Q%d.%d" % (rb, i))
        if s_ == 17 and rh == 1: P += stamp(1)
        r0 = raw(rb, i); tb = 240 + 8 * rh
        for k in range(4):
            A("v_lshlrev_b32 v%d, 16, v%d" % (tb + 2 * k, r0 + k)); A("v_and_b32 v%d, %s, v%d" % (tb + 2 * k + 1, sMask, r0 + k))
        for k in range(4): A("v_pk_mul_f32 %s, %s, %s" % (V(tb + 2 * k, 2), V(tb + 2 * k, 2), sC2))
        for k in range(4): A("v_cvt_pk_bf16_f32 v%d, v%d, v%d" % (r0 + k, tb + 2 * k, tb + 2 * k + 1))
        if rh == 0 and s_ >= 1: st_read(s_ - 1)
        A("ds_write_b128 v%d, %s offset:%d" % (vQW, V(r0, 4), (rb & 1) * QRB + cb * 2 * QKS + rh * 128))
        if s_ == 17 and rh == 1: st_read(17)
        for _ in range(-(-len(pend) // nleft)): issue(*pend.pop(0))
        nleft -= 1
        if nleft == 0:
            for x in deferred[:3]: issue(*x)
    if s_ >= 1:
        A("s_waitcnt lgkmcnt(%d)" % (2 if s_ < 17 else 4)); st_mfma(s_ - 1)
    if cb == 1 and rb >= 1 and rb - 1 in EARLY: pro_sm(rb - 1)
    for i in {7: (96, 112, 128), 13: (144, 160, 176), 16: (192, 208)}.get(s_, ()): zero16("v", i)
A("s_waitcnt lgkmcnt(0)")
st_mfma(17)
for i in (240, 224): zero16("v", i)
for x in deferred[3:]: issue(*x)
vwait("K1")
A("s_barrier")
A(k_read(FB[0], 1, 0, 0)); A(k_read(FB[1], 1, 1, 0))
for rb in LATE:
    for k in range(2): A(q_read(FQ[rb][k], rb - 4, k))
if TLB & 2: A("buffer_load_dword v%d, v%d, %s, 0 offen nt" % (vQW, vQG, sO))
assert vm[-18:] == sum([[x] * 3 for x in ("K1", "V0", "K2", "V1", "K3", "V2")], []), vm
A("s_waitcnt lgkmcnt(0)")
P += stamp(2)

B0, q0 = body(0, [])
B1, q1 = body(1, q0)
B0, q0b = body(0, q1)
assert q0 == q0b

T = []
A = T.append
T += stamp(3)
eW = [0, vQA, vDMA, vQW]; eR = 1; eS = vQG
vslot = [rb * 24 + 8 * p + 4 * k for p in range(3) for rb in ((3, 2, 1, 0) if p < 2 else (0, 1, 2, 3)) for k in range(2)]
def VF(t, db): return vslot[12 * t + db]
def phase_mf(rb): return ["%s %s, %s, %s, %s" % (MF, O4(rb, db), Ac(VF(t, db), 4), V(G[rb][t], 4), O4(rb, db)) for t in range(2) for db in range(12)]
def lfin(rb, g0):
    tmp = X[rb][1]; l = vL[rb]; o = []
    for sw in ("v_permlane32_swap_b32", "v_permlane16_swap_b32"):
        o += ["v_mov_b32 v%d, v%d" % (tmp, l), "%s v%d, v%d" % (sw, l, tmp), "v_add_f32 v%d, v%d, v%d" % (l, l, tmp)]
    o += ["v_cmp_nle_f32 vcc, %s, v%d" % (sLo, l), "v_cmp_nge_f32 %s, %s, v%d" % (sB2, sHi, l), "v_rcp_f32 v%d, v%d" % (l, l)]
    return [Op(t, g0) for t in o]
def rbk(n, rh): return 96 + 8 * (n % 4) + 4 * rh
def ep_st(n, rh):
    rb, cb = divmod(n, 3)
    return "buffer_store_dwordx4 %s, v%d, %s, %s offen offset:%d %s" % (Ac(rbk(n, rh), 4), eS, sO, sRB(rb), rh * 3072 + cb * 128, SPOL)
def ep_rd(n):
    rb, cb = divmod(n, 3); base = (rb & 1) * QRB + cb * 128
    return ["ds_read_b128 %s, v%d offset:%d" % (Ac(rbk(n, 0), 4), eR, base)] + \
           ["ds_read_b64 %s, v%d offset:%d" % (Ac(rbk(n, 1) + 2 * k, 2), eR, base + 3072 + 8 * (1 - k)) for k in range(2)]
def burst(rb):
    A("s_or_b64 %s, %s, vcc" % (sBad, sBad)); A("s_or_b64 %s, %s, %s" % (sBad, sBad, sB2))
    lp = vL[rb] & ~1; sel = vL[rb] & 1
    for cb in range(3):
        n = 3 * rb + cb
        fl, i0 = Oreg(rb, 4 * cb)
        w = i0
        if fl == "a":
            w = 96 + 16 * (n % 3)
            for i in range(16): A("v_accvgpr_read_b32 %s, %s" % (V(w + i), Ac(i0 + i)))
        for i in range(0, 16, 2):
            A("v_pk_mul_f32 %s, %s, %s op_sel:[0,%d] op_sel_hi:[1,%d]" % (V(w + i, 2), V(w + i, 2), V(lp, 2), sel, sel))
        if cb == 2: A("s_waitcnt lgkmcnt(4)"); A(ep_st(n - 2, 0))
        for i in range(8): A("v_cvt_pk_bf16_f32 %s, %s, %s" % (V(w + i), V(w + 2 * i), V(w + 2 * i + 1)))
        if cb == 2: A(ep_st(n - 2, 1))
        if cb >= 1:
            for t in ep_rd(n - 1): A(t)
        for x in range(4):
            A("ds_write_b64 v%d, %s offset:%d" % (eW[x], V(w + 2 * x, 2), (rb & 1) * QRB + cb * 128))
qk = qk_mfmas(1, last_up=True)
mf = qk + phase_mf(0)
pinned = {}
pin_qk(pinned, qk, 1, 2)
g = 21
for n in range(24):
    g = max(g, 1 + max(k for k, t in enumerate(qk) if ("a%d" % vslot[n]) in Ins(t).rd), (0, 0, 66)[n // 8])
    while g in pinned: g += 1
    pinned[g] = v_read(vslot[n], n // 12, n % 12); g += (2 if n < 16 else 2 + (n & 1))
pinned[88] = ["ds_read_b64 v[0:1], v%d offset:%d" % (vQA, 2 * QRB)]
scal = [(16, ["s_waitcnt vmcnt(0)", "s_barrier"], False)]
st = [Op("v_xor_b32 %s, 0x1e000, %s" % (V(a), V(a)), 0, 18) for a in vVA]
st += paced(sum([sm(rb, 0, h) for rb in LATE for h in range(2)], []), 0, 46, dead=70)
for rb, h, dead in ((0, 0, 81), (0, 1, 81), (1, 0, 95)):
    st += [Op(t, last_write_slot(qk, "v%d" % sregs(rb, 1)[4 * h]) + 5, dead) for t in sm(rb, 1, h)]
st += lfin(0, 0)
blk, _ = schedule(mf, pinned, scal, st, q1, "final0", excl=True)
T += blk
A("s_waitcnt lgkmcnt(0)")
for x in range(1, 4): A("v_xor_b32 v%d, %d, v0" % (eW[x], 32 * x))
burst(0)
for rb in range(1, 6):
    n = 3 * rb - 1
    rd = ep_rd(n)
    pinned = {1: [ep_st(n - 1, 0)], 4: [ep_st(n - 1, 1)], 7: rd[:2], 8: rd[2:], 17: [ep_st(n, 0)], 20: [ep_st(n, 1)]}
    scal = [(0, ["s_waitcnt lgkmcnt(4)"], True), (16, ["s_waitcnt lgkmcnt(0)"], True)]
    st = [Op(t, 0, 10) for t in sm(rb, 1, 1)] + lfin(rb, 0)
    if rb < 5: st += [Op(t) for t in sm(rb + 1, 1, 0)]
    blk, _ = schedule(phase_mf(rb), pinned, scal, st, [], "final%d" % rb, excl=True)
    T += blk
    if rb == 5: T += stamp(4)
    burst(rb)
A("s_waitcnt lgkmcnt(4)")
A(ep_st(16, 0)); A(ep_st(16, 1))
for t in ep_rd(17): A(t)
A("s_cmp_eq_u64 %s, 0" % sBad)
A("s_cbranch_scc1 L_good")
A("v_mov_b32 v2, %d" % FLAG); A("v_mov_b32 v3, 1")
A("ds_write_b32 v2, v3")
A("L_good:")
A("s_waitcnt lgkmcnt(0)")
A(ep_st(17, 0)); A(ep_st(17, 1))
if STAMP:
    T += stamp(5)
    A("s_waitcnt vmcnt(0)")
    T += stamp(6)
    A("s_waitcnt lgkmcnt(0)")
    if "probe" in opts:
        pi, pj = [int(x) for x in opts["probe"].split(",")]
        A("s_sub_u32 s84, s%d, s%d" % (60 + 2 * pj, 60 + 2 * pi))
        if "pneg" in opts: A("s_sub_u32 s84, %s, s84" % opts["pneg"])
        A("s_min_u32 s84, s84, 10000")
        A("s_lshl_b32 s84, s84, 2")
        if "pcls" in opts:
            A("s_bfe_u32 s85, s2, 0x%x" % int(opts["pbits"], 16)); A("s_cmp_eq_u32 s85, %s" % opts["pcls"]); A("s_cselect_b32 s84, s84, 0")
        A("L_spin:"); A("s_sleep 2"); A("s_memrealtime s[82:83]"); A("s_waitcnt lgkmcnt(0)")
        A("s_sub_u32 s85, s82, s72"); A("s_cmp_lt_u32 s85, s84"); A("s_cbranch_scc1 L_spin")
    A("s_lshl_b32 s3, s2, 2"); A("s_add_u32 s3, s3, %s" % sWave); A("s_lshl_b32 s3, s3, 6")
    A("v_mov_b32 v10, s3")
    for i in range(16): A("v_mov_b32 v%d, s%d" % (16 + i, 60 + i))
    for i in range(4): A("buffer_store_dwordx4 v[%d:%d], v10, %s, 0 offen offset:%d" % (16 + 4 * i, 19 + 4 * i, sW, 16 * i))
A("s_barrier")
A("v_mov_b32 v0, %d" % FLAG)
A("ds_read_b32 v0, v0")
A("s_waitcnt lgkmcnt(0)")
A("v_readfirstlane_b32 %s, v0" % sTmp)
A("s_cmp_eq_u32 %s, 0" % sTmp)
A("s_cbranch_scc0 L_redo")
A("L_end:")
A("s_endpgm")
A("L_redo:")
A("s_waitcnt vmcnt(0)")
A("s_barrier")
A("v_mbcnt_lo_u32_b32 v0, -1, 0"); A("v_mbcnt_hi_u32_b32 v0, -1, v0")
A("s_lshl_b32 %s, %s, 6" % (sTmp, sWave))
A("v_add_u32 v0, %s, v0" % sTmp)

def I(l): return [Ins(t) for t in l]
seq = I(P + B0 + B1 + ["s_cbranch_scc1 L_loop"] + B0 + B1 + ["s_cbranch_scc1 L_loop"] + T)
errs = check_hazards(seq, "main") + check_waits(seq, "main")
for e in errs[:30]: sys.stderr.write(e + "\n")
if errs:
    print("!!! %d hazard problems" % len(errs)); sys.exit(1)
S, lds2, e2_ = gen_safe.build_safe({"qd": "3", "nt": NT})
assert lds2 <= LDS_BYTES and e2_ == 0

hdr = open("standalone__gqa_softmax__near_ridge.s.ref").read().split("; Override")[0]
out = [hdr.rstrip(), "; @launch grid=(256,1,1) block=(256,1,1) lds=%d" % LDS_BYTES,
       '.amdgcn_target "amdgcn-amd-amdhsa--gfx950"', ".text", ".globl %s" % KN, ".p2align 8", ".type %s,@function" % KN, "%s:" % KN, "L_start:"]
def emit(l):
    for t in l: out.append(t if t.endswith(":") or t.startswith(".") else "    " + t)
emit(P); emit([".p2align 6", "L_loop:"]); emit(B0); emit(B1); emit(["s_cbranch_scc1 L_loop"]); emit(T); emit(S)
out += ['.section .rodata,"a"', ".p2align 6", ".amdhsa_kernel %s" % KN, "  .amdhsa_next_free_vgpr 512", "  .amdhsa_next_free_sgpr 96",
        "  .amdhsa_accum_offset 256", "  .amdhsa_group_segment_fixed_size 0", "  .amdhsa_kernarg_size 48", "  .amdhsa_user_sgpr_count 2",
        "  .amdhsa_user_sgpr_kernarg_segment_ptr 1", "  .amdhsa_system_sgpr_workgroup_id_x 1", ".end_amdhsa_kernel", ""]
open(sys.argv[1], "w").write("\n".join(out))
```

```python
import sys, math, struct
from asmlib import *
from sched import *
import gen_safe

opts = dict(a.split("=") for a in sys.argv[2:])
STAMP = int(opts.get("stamp", 0))
NT = opts.get("nt", "nt").replace("+", " ")
SPOL = opts.get("spol", "sc1").replace("+", " ")
QD = int(opts.get("qd", 3))
DEF = int(opts.get("defer", 3))
STG2 = [tuple(int(y) for y in x.split(":")) for x in opts.get("stg2", "").split(",") if x]
KN = "standalone__gqa_softmax__near_ridge_kernel"
def f2u(x): return struct.unpack("<I", struct.pack("<f", x))[0]
CSCALE = f2u(math.log2(math.e) / math.sqrt(192.0))

KRING = 0; VRING = 49152; QLDS = 98304; SLOT = 12288
QKS = 1088; QRB = 6 * QKS; QWAVE = 2 * QRB + 1024
FLAG = QLDS + 4 * QWAVE
LDS_BYTES = FLAG + 64
def V(i, n=1): return "v%d" % i if n == 1 else "v[%d:%d]" % (i, i + n - 1)
def Ac(i, n=1): return "a%d" % i if n == 1 else "a[%d:%d]" % (i, i + n - 1)
vKA = [0, 1]; vVA = [2, 3, 4, 5]; vQA = 6; vDMA = 7
vL = [8 + i for i in range(6)]; vQG = 14; vQW = 15
FB = [Ac(96 + 4 * i, 4) for i in range(4)]
FQ = {4: [Ac(112, 4), Ac(116, 4)], 5: [Ac(120, 4), Ac(124, 4)]}
EARLY = [0, 1, 2, 3]; LATE = [4, 5]
G = {}; X = {}
r = 16
for rb in LATE:
    G[rb] = [r, r + 4]; X[rb] = [r + 8, r + 12]; r += 16
for rb in EARLY:
    G[rb] = [r, r + 4]; X[rb] = [r + 8, r + 8]; r += 12
assert r == 96
def Oreg(rb, db):
    b = rb * 12 + db
    return ("v", 96 + 4 * b) if b < 40 else ("a", 128 + 4 * (b - 40))
def O4(rb, db):
    f, i = Oreg(rb, db); return "%s[%d:%d]" % (f, i, i + 3)
def Qf(rb, ks): return Ac(rb * 24 + ks * 4, 4) if rb < 4 else FQ[rb][ks & 1]
sQ = "s[20:23]"; sK = "s[24:27]"; sV = "s[28:31]"; sO = "s[32:35]"; sW = "s[36:39]"
sC2 = "s[40:41]"; sIT = "s42"; sKoff = "s43"; sVoff = "s44"; sKm = "s45"; sVm = "s46"; sWave = "s47"
sTmp = "s48"; sRow = "s49"; sKend = "s50"; sVend = "s51"; sKbeg = "s52"; sVbeg = "s53"; sQL = "s16"; sCls = "s17"
sMask = "s54"; sLo = "s76"; sHi = "s77"; sBad = "s[78:79]"; sB2 = "s[80:81]"
def sRB(rb): return "0" if rb == 0 else "s%d" % (54 + rb)
MF = "v_mfma_f32_16x16x32_bf16"

def k_read(dst, tile_par, ks, hf):
    return "ds_read_b128 %s, %s offset:%d" % (dst, V(vKA[ks & 1]), tile_par * SLOT + (ks >> 1) * 4096 + hf * 2048)
def v_read(a0, tile_par, db):
    return ["ds_read_b64_tr_b16 %s, %s offset:%d" % (Ac(a0 + 2 * i, 2), V(vVA[db & 3]), tile_par * SLOT + (db >> 2) * 4096 + i * 2048) for i in range(2)]
def q_read(dst, area, ks):
    return "ds_read_b128 %s, %s offset:%d" % (dst, V(vQA), area * QRB + ks * QKS)
def qk_mfmas(par, last_up=False):
    out = []
    for g in range(6):
        p, hf = g >> 1, g & 1
        for rb in (range(6) if hf == 0 or (last_up and g == 5) else range(5, -1, -1)):
            for k in range(2):
                ks = 2 * p + k
                d = V((G[rb][par] if hf == 0 else X[rb][par]), 4)
                out.append("%s %s, %s, %s, %s" % (MF, d, FB[(2 * g + k) % 4], Qf(rb, ks), "0" if ks == 0 else d))
    return out
def sregs(rb, par): return [G[rb][par] + i for i in range(4)] + [X[rb][par] + i for i in range(4)]
def sm(rb, par, half):
    ops = []; s = sregs(rb, par)
    for i in (4 * half, 4 * half + 2):
        ops.append("v_exp_f32 %s, %s" % (V(s[i]), V(s[i])))
        ops.append("v_exp_f32 %s, %s" % (V(s[i + 1]), V(s[i + 1])))
        ops.append("v_add_f32 %s, %s, %s" % (V(vL[rb]), V(vL[rb]), V(s[i])))
        ops.append("v_add_f32 %s, %s, %s" % (V(vL[rb]), V(vL[rb]), V(s[i + 1])))
        ops.append("v_cvt_pk_bf16_f32 %s, %s, %s" % (V(G[rb][par] + i // 2), V(s[i]), V(s[i + 1])))
    return ops
def last_write_slot(mf, reg): return max(g for g, t in enumerate(mf) if reg in Ins(t).wr)
def paced(ops, g0, g1, floor=0, dead=10 ** 9):
    os_ = [Op(t) for t in ops]; tot = sum(o.cost for o in os_); acc = 0
    for o in os_:
        o.ming = max(floor, int(g0 + (g1 - g0) * acc / tot)); o.dead = dead; acc += o.cost
    return os_
def pin_qk(pinned, qk, tile_par, nq):
    def pin(g, t): pinned.setdefault(g, []).append(t)
    for g in range(1, 6):
        for k in range(2): pin(12 * (g - 1) + 2 * k, k_read(FB[(2 * g + k) % 4], tile_par, 2 * (g >> 1) + k, g & 1))
    lastq = {}
    for g, t in enumerate(qk):
        for rb in LATE:
            for k in range(2):
                if FQ[rb][k] in t: lastq[(g // 24, rb, k)] = g
    for p in range(nq):
        g = 0
        for (lg, rb, k) in sorted((lastq[(p, rb, k)], rb, k) for rb in LATE for k in range(2)):
            g = max(g, lg + 1)
            while g in pinned: g += 1
            pin(g, q_read(FQ[rb][k], rb - 4, (2 * p + 2 + k) % 6)); g += 2

def body(par, ds_in):
    np_ = par ^ 1
    qk = qk_mfmas(np_)
    mf = qk + ["%s %s, %s, %s, %s" % (MF, O4(rb, db), FB[db % 4], V(G[rb][par], 4), O4(rb, db)) for db in range(12) for rb in range(6)]
    pinned = {}
    def pin(g, t): pinned.setdefault(g, []).append(t)
    for db in range(12):
        for t in v_read(96 + 4 * (db % 4), par, db): pin({0: 60, 1: 63, 2: 72, 3: 75}.get(db, 72 + 6 * (db - 3)), t)
    pin(127, k_read(FB[0], par, 0, 0)); pin(133, k_read(FB[1], par, 1, 0))
    pin_qk(pinned, qk, np_, 3)
    scal = [(54, ["s_waitcnt vmcnt(9)", "s_barrier"], False)]
    dg = [71, 81, 93, 105, 117, 130]
    for i in range(6):
        srd_, so, sm_ = (sK, sKoff, sKm) if i < 3 else (sV, sVoff, sVm)
        assert dg[i] not in pinned
        scal.append((dg[i] - 1, ["s_add_u32 m0, %s, %d" % (sm_, (i % 3) * (4096 - 128))], True))
        pin(dg[i], "buffer_load_dwordx4 %s, %s, %s offen offset:%d %s lds" % (V(vDMA), srd_, so, (i % 3) * 128, NT))
    for g, so, m, end, beg in ((dg[2] + 1, sKoff, sKm, sKend, sKbeg), (dg[5] + 1, sVoff, sVm, sVend, sVbeg)):
        scal.append((g, ["s_add_u32 %s, %s, %d" % (so, so, SLOT), "s_add_u32 %s, %s, %d" % (m, m, SLOT),
                         "s_cmp_eq_u32 %s, %s" % (m, end), "s_cselect_b32 %s, %s, %s" % (m, beg, m)], False))
    if par == 0: scal.append((139, ["s_add_u32 %s, %s, 1" % (sIT, sIT), "s_cmp_lt_u32 %s, 7" % sIT], False))
    st = paced(sum([sm(rb, par, h) for rb in LATE for h in range(2)], []), 0, 50, dead=70)
    if par == 0:
        st += [Op("v_xor_b32 %s, 0x1e000, %s" % (V(a), V(a)), 44, 58) for a in vVA]
        st += [Op("v_xor_b32 %s, 0x6000, %s" % (V(a), V(a)), 52, 125) for a in vKA]
    E0, E1 = 55, 140
    for n, (rb, h) in enumerate([(0, 0), (1, 0), (2, 0), (3, 0), (3, 1), (2, 1), (1, 1), (0, 1)]):
        ready = last_write_slot(qk, "v%d" % sregs(rb, np_)[4 * h]) + 5
        st += paced(sm(rb, np_, h), E0 + (E1 - E0) * n / 8, E0 + (E1 - E0) * (n + 1) / 8, floor=ready)
    def capf(cap, sc, pin_):
        for g in range(144):
            if "s_barrier" in sc.get(g, []): cap[g] = 0
    return schedule(mf, pinned, scal, st, ds_in, "body%d" % par, next_first=qk_mfmas(par)[0], excl=True, capf=capf)

def stamp(i):
    if STAMP == 1: return ["s_memrealtime s[%d:%d]" % (60 + 2 * i, 61 + 2 * i)]
    if STAMP == 6: return ["s_memtime s[%d:%d]" % (60 + 2 * i, 61 + 2 * i)]
    return []

P = []
A = P.append
A("s_cmp_ge_u32 s2, 256")
A("s_cbranch_scc1 L_end")
A("s_load_dwordx4 s[4:7], s[0:1], 0")
A("s_load_dwordx4 s[8:11], s[0:1], 16")
if STAMP: A("s_load_dwordx2 s[12:13], s[0:1], 40")
P += stamp(0)
A("s_getpc_b64 s[18:19]")
A("v_lshlrev_b32 v240, 7, v0")
A("v_min_u32 v240, L_end-L_start, v240")
A("global_load_dword v241, v240, s[18:19]")
vLN = 242; t2 = 243; t3 = 244; t4 = 245; t5 = 246; t6 = 247
A("v_lshrrev_b32 v%d, 6, v0" % t2)
A("v_and_b32 v%d, 63, v0" % vLN)
A("s_mul_i32 s14, s2, 147456")
A("v_readfirstlane_b32 %s, v%d" % (sWave, t2))
A("s_mul_i32 s15, s2, 196608")
A("s_bfe_u32 %s, s2, 0x30003" % sCls)
A("v_lshrrev_b32 v%d, 3, v%d" % (t5, vLN))
A("v_mul_u32_u24 v%d, 384, v%d" % (t6, t5))
A("v_lshrrev_b32 v%d, 4, v%d" % (t3, vLN))
A("v_lshlrev_b32 v%d, 1, v%d" % (t4, t3))
A("v_xor_b32 v%d, v%d, v%d" % (t4, t4, vLN))
A("v_and_b32 v%d, 7, v%d" % (t4, t4))
A("v_lshl_add_u32 v%d, v%d, 4, v%d" % (vDMA, t4, t6))
A("s_mul_i32 %s, %s, 3072" % (sTmp, sWave))
A("v_add_u32 v%d, %s, v%d" % (vDMA, sTmp, vDMA))
A("v_and_b32 v%d, 7, v%d" % (t4, vLN))
A("v_lshl_add_u32 v%d, v%d, 4, v%d" % (vQG, t4, t6))
A("s_mul_i32 %s, %s, 36864" % (sRow, sWave))
A("v_add_u32 v%d, %s, v%d" % (vQG, sRow, vQG))
A("s_lshl_b32 %s, %s, 10" % (sKbeg, sWave))
A("s_add_u32 %s, %s, %d" % (sVbeg, sKbeg, VRING))
for rb in range(1, 6): A("s_mov_b32 %s, %d" % (sRB(rb), rb * 6144))
if STG2:
    A("s_mov_b32 s3, 0")
    for i, (lo, hi, k, cnt) in enumerate(STG2):
        A("s_sub_u32 %s, %s, %d" % (sTmp, sCls, lo)); A("s_cmp_lt_u32 %s, %d" % (sTmp, hi - lo)); A("s_cselect_b32 s3, %d, s3" % (1 << i))
A("s_waitcnt lgkmcnt(0)")
def srd(base, src, off, size):
    A("s_add_u32 s%d, s%d, %s" % (base, src, off)); A("s_addc_u32 s%d, s%d, 0" % (base + 1, src + 1))
    A("s_mov_b32 s%d, %d" % (base + 2, size)); A("s_mov_b32 s%d, 0x20000" % (base + 3))
vm = []
def raw(rb, i): return 96 + rb * 24 + i * 4
def issue(k, x, i):
    if k == "Q":
        A("buffer_load_dwordx4 %s, v%d, %s, %s offen offset:%d %s" % (V(raw(x, i), 4), vQG, sQ, sRB(x), (i & 1) * 3072 + (i >> 1) * 128, NT))
        vm.append("Q%d.%d" % (x, i))
    else:
        srd_, beg = (sK, sKbeg) if k == "K" else (sV, sVbeg)
        A("s_add_u32 m0, %s, %d" % (beg, x * SLOT + i * (4096 - 128)))
        A("s_mov_b32 %s, %d" % (sTmp, x * SLOT))
        A("buffer_load_dwordx4 %s, %s, %s offen offset:%d %s lds" % (V(vDMA), srd_, sTmp, i * 128, NT))
        vm.append("%s%d" % (k, x))
    n = len(vm) - 1
    for ci, (lo, hi, kk, cnt) in enumerate(STG2):
        if kk <= n < cnt:
            A("s_bitcmp1_b32 s3, %d" % ci); A("s_cbranch_scc0 L_sg%d_%d" % (n, ci)); A("s_waitcnt vmcnt(%d)" % kk); A("L_sg%d_%d:" % (n, ci))
def vwait(name):
    last = max(i for i, x in enumerate(vm) if x == name)
    A("s_waitcnt vmcnt(%d)" % (len(vm) - 1 - last))
TLB = int(opts.get("tlb", 0))
srd(24, 6, "s15", 196608)
issue("K", 0, 0)
if TLB & 1:
    srd(32, 10, "s14", 147456); srd(28, 8, "s15", 196608)
    A("v_lshlrev_b32 v240, 9, v%d" % vLN)
    A("buffer_load_dword v250, v240, %s, %s offen nt" % (sO, sRow)); vm.append("t")
    A("buffer_load_dword v251, v%d, %s, 0 offen nt" % (vDMA, sV)); vm.append("t")
for cb in range(1, 3): issue("K", 0, cb)
srd(20, 4, "s14", 147456)
for rb in range(QD):
    for i in range(6): issue("Q", rb, i)
if not TLB & 1: srd(28, 8, "s15", 196608); srd(32, 10, "s14", 147456)
if STAMP:
    A("s_mov_b32 s36, s12"); A("s_mov_b32 s37, s13"); A("s_mov_b32 s38, 0x100000"); A("s_mov_b32 s39, 0x20000")
A("s_add_u32 %s, %s, %d" % (sKend, sKbeg, 4 * SLOT))
A("s_add_u32 %s, %s, %d" % (sVend, sVbeg, 4 * SLOT))
A("s_mul_i32 %s, %s, %d" % (sQL, sWave, QWAVE))
A("s_add_u32 %s, %s, %d" % (sQL, sQL, QLDS))
A("v_xor_b32 v%d, v%d, v%d" % (t2, t5, t4))
A("v_lshlrev_b32 v%d, 4, v%d" % (t2, t2))
A("v_lshl_add_u32 v%d, v%d, 7, v%d" % (t2, t5, t2))
A("s_mul_i32 %s, %s, 6144" % (sTmp, sWave))
A("v_add_u32 v249, %s, v%d" % (sTmp, t2))
A("v_and_b32 v%d, 3, v%d" % (t4, vLN))
A("v_xor_b32 v%d, v%d, v%d" % (t2, t5, t4))
A("v_lshlrev_b32 v%d, 4, v%d" % (t2, t2))
A("v_lshl_add_u32 v%d, v%d, 8, v%d" % (t2, t4, t2))
A("v_bfe_u32 v%d, v%d, 2, 1" % (t4, vLN))
A("v_mul_u32_u24 v%d, %d, v%d" % (t4, QKS, t4))
A("v_add3_u32 v%d, v%d, v%d, %s" % (vQW, t2, t4, sQL))
A("v_and_b32 v%d, 15, v%d" % (t2, vLN))
A("v_xor_b32 v%d, v%d, v%d" % (t4, t2, t3))
A("v_lshlrev_b32 v%d, 4, v%d" % (t4, t4))
A("v_lshl_add_u32 v%d, v%d, 8, v%d" % (t4, t3, t4))
A("v_add_u32 v%d, %s, v%d" % (vQA, sQL, t4))
A("v_lshlrev_b32 v%d, 7, v%d" % (t6, t2))
A("v_lshrrev_b32 v%d, 5, v%d" % (t4, vLN))
A("v_xor_b32 v%d, v%d, v%d" % (t4, t4, vLN))
A("v_and_b32 v%d, 7, v%d" % (t4, t4))
A("v_lshl_add_u32 v%d, v%d, 4, v%d" % (t6, t4, t6))
A("v_xor_b32 v%d, v%d, v%d" % (t4, t3, t5))
A("v_and_b32 v%d, 1, v%d" % (t4, t4))
A("v_lshl_add_u32 v%d, v%d, 3, v%d" % (t6, t4, t6))
A("v_add_u32 v248, %s, v%d" % (sTmp, t6))
A("ds_write_b64 v%d, v[248:249] offset:%d" % (vQA, 2 * QRB))
A("v_and_b32 v%d, 6, v%d" % (t4, vLN))
A("v_xor_b32 v%d, v%d, v%d" % (t4, t4, t3))
A("v_lshlrev_b32 v%d, 4, v%d" % (t4, t4))
A("v_lshl_add_u32 v%d, v%d, 7, v%d" % (vKA[0], t2, t4))
A("v_xor_b32 v%d, 64, v%d" % (vKA[1], vKA[0]))
A("v_lshrrev_b32 v%d, 2, v%d" % (t4, vLN))
A("v_lshlrev_b32 v%d, 7, v%d" % (t4, t4))
A("v_and_b32 v%d, 3, v%d" % (t2, vLN))
A("v_lshl_add_u32 v%d, v%d, 3, v%d" % (t4, t2, t4))
A("v_bfe_u32 v%d, v%d, 3, 2" % (t2, vLN))
A("v_lshl_add_u32 v%d, v%d, 5, v%d" % (t4, t2, t4))
A("v_add_u32 v%d, %d, v%d" % (vVA[0], VRING + 2 * SLOT, t4))
for x in range(1, 4): A("v_xor_b32 v%d, %d, v%d" % (vVA[x], 32 * x, vVA[0]))
A("s_mov_b32 s40, 0x%x" % CSCALE); A("s_mov_b32 s41, 0x%x" % CSCALE)
A("s_mov_b32 %s, 0xffff0000" % sMask)
A("s_mov_b32 %s, 0" % sIT)
A("s_mov_b32 %s, %d" % (sKoff, 4 * SLOT))
A("s_mov_b32 %s, %d" % (sVoff, 3 * SLOT))
A("s_mov_b32 %s, %s" % (sKm, sKbeg))
A("s_add_u32 %s, %s, %d" % (sVm, sVbeg, 3 * SLOT))
A("s_mov_b32 %s, 0x%x" % (sLo, f2u(2.0 ** float(opts.get("llo", -20)))))
A("s_mov_b32 %s, 0x%x" % (sHi, f2u(2.0 ** float(opts.get("lhi", 24)))))
A("s_mov_b64 %s, 0" % sBad)
for i in vL: A("v_mov_b32 v%d, 0" % i)
ZR = FQ[5][1]
for i in range(4): A("v_accvgpr_write_b32 a%d, 0" % (124 + i))
A("v_mov_b32 v%d, %d" % (t2, FLAG))
A("ds_write_b32 v%d, v%d" % (t2, vL[0]))
def zero16(f, i): A("v_mfma_f32_32x32x16_bf16 %s[%d:%d], %s, %s, 0" % (f, i, i + 15, ZR, ZR))
for i in range(128, 256, 16): zero16("a", i)
vwait("K0")
A("s_waitcnt lgkmcnt(0)")
A("s_barrier")
K0F = [V(G[rb][1], 4) for rb in range(6)] + [V(X[rb][1], 4) for rb in LATE] + FB
for n in range(12): A(k_read(K0F[n], 0, n >> 1, n & 1))
def pro_sm(rb):
    ops = sm(rb, 0, 0) + sm(rb, 0, 1)
    for t in [t for t in ops if t.startswith("v_exp")] + ["s_nop 0"] + [t for t in ops if not t.startswith("v_exp")]: A(t)
pend = [("Q", rb, i) for rb in range(QD, 6) for i in range(6)]
pend += [(k, x, cb) for k, x in (("K", 1), ("V", 0), ("K", 2), ("V", 1), ("K", 3), ("V", 2)) for cb in range(3)]
deferred = pend[len(pend) - 3 * DEF:]; pend = pend[:len(pend) - 3 * DEF]
def qdst(rb, ks): return Ac(rb * 24 + ks * 4, 4) if rb < 4 else V(raw(rb, ks), 4)
def st_read(s_):
    rb, cb = divmod(s_, 3)
    for ks in (2 * cb, 2 * cb + 1): A(q_read(qdst(rb, ks), rb & 1, ks))
def st_mfma(s_):
    rb, cb = divmod(s_, 3)
    for hf in range(2):
        for ks in (2 * cb, 2 * cb + 1):
            d = V((G[rb][0] if hf == 0 else X[rb][0]), 4)
            A("%s %s, %s, %s, %s" % (MF, d, K0F[2 * ks + hf], qdst(rb, ks), "0" if ks == 0 else d))
nleft = 36
for s_ in range(18):
    rb, cb = divmod(s_, 3)
    for rh in range(2):
        i = 2 * cb + rh
        vwait("Q%d.%d" % (rb, i))
        if s_ == 17 and rh == 1: P += stamp(1)
        r0 = raw(rb, i); tb = 240 + 8 * rh
        for k in range(4):
            A("v_lshlrev_b32 v%d, 16, v%d" % (tb + 2 * k, r0 + k)); A("v_and_b32 v%d, %s, v%d" % (tb + 2 * k + 1, sMask, r0 + k))
        for k in range(4): A("v_pk_mul_f32 %s, %s, %s" % (V(tb + 2 * k, 2), V(tb + 2 * k, 2), sC2))
        for k in range(4): A("v_cvt_pk_bf16_f32 v%d, v%d, v%d" % (r0 + k, tb + 2 * k, tb + 2 * k + 1))
        if rh == 0 and s_ >= 1: st_read(s_ - 1)
        A("ds_write_b128 v%d, %s offset:%d" % (vQW, V(r0, 4), (rb & 1) * QRB + cb * 2 * QKS + rh * 128))
        if s_ == 17 and rh == 1: st_read(17)
        for _ in range(-(-len(pend) // nleft)): issue(*pend.pop(0))
        nleft -= 1
        if nleft == 0:
            for x in deferred[:3]: issue(*x)
    if s_ >= 1:
        A("s_waitcnt lgkmcnt(%d)" % (2 if s_ < 17 else 4)); st_mfma(s_ - 1)
    if cb == 1 and rb >= 1 and rb - 1 in EARLY: pro_sm(rb - 1)
    for i in {7: (96, 112, 128), 13: (144, 160, 176), 16: (192, 208)}.get(s_, ()): zero16("v", i)
A("s_waitcnt lgkmcnt(0)")
st_mfma(17)
for i in (240, 224): zero16("v", i)
for x in deferred[3:]: issue(*x)
vwait("K1")
A("s_barrier")
A(k_read(FB[0], 1, 0, 0)); A(k_read(FB[1], 1, 1, 0))
for rb in LATE:
    for k in range(2): A(q_read(FQ[rb][k], rb - 4, k))
if TLB & 2: A("buffer_load_dword v%d, v%d, %s, 0 offen nt" % (vQW, vQG, sO))
assert vm[-18:] == sum([[x] * 3 for x in ("K1", "V0", "K2", "V1", "K3", "V2")], []), vm
A("s_waitcnt lgkmcnt(0)")
P += stamp(2)

B0, q0 = body(0, [])
B1, q1 = body(1, q0)
B0, q0b = body(0, q1)
assert q0 == q0b

T = []
A = T.append
T += stamp(3)
eW = [16, 17, 18, 19]; eR = vQW; eS = vQG
def R4(x): return "%s[%d:%d]" % (x[0], x[1], x[1] + 3)
def R2(x, h): return "%s[%d:%d]" % (x[0], x[1] + 2 * h, x[1] + 2 * h + 1)
def vrd(dst, tile, db):
    return ["ds_read_b64_tr_b16 %s, %s offset:%d" % (R2(dst, i), V(vVA[db & 3]), (tile - 12) * SLOT + (db >> 2) * 4096 + i * 2048) for i in range(2)]
X15 = {0: X[4][0], 1: X[5][0], 2: G[5][0], 3: X[0][0], 4: X[4][1], 5: X[5][1]}
def fs(rb, t): return [G[rb][t & 1] + i for i in range(4)] + [(X[rb][0] if t == 14 else X15[rb]) + i for i in range(4)]
def fsm(rb, t, half):
    ops = []; s_ = fs(rb, t)
    for i in (4 * half, 4 * half + 2):
        ops += ["v_exp_f32 %s, %s" % (V(s_[i]), V(s_[i])), "v_exp_f32 %s, %s" % (V(s_[i + 1]), V(s_[i + 1])),
                "v_add_f32 %s, %s, %s" % (V(vL[rb]), V(vL[rb]), V(s_[i])), "v_add_f32 %s, %s, %s" % (V(vL[rb]), V(vL[rb]), V(s_[i + 1])),
                "v_cvt_pk_bf16_f32 %s, %s, %s" % (V(s_[i // 2]), V(s_[i]), V(s_[i + 1]))]
    return ops
def qp(p): return [("a", rb * 24 + 8 * p + 4 * k) for rb in range(3) for k in range(2)]
def sb(*l): return [("a", 96 + 4 * i) for i in l]
vres = qp(0) + sb(4, 5) + qp(1) + sb(6, 7, 0, 1) + qp(2)
def phase_mf(rb): return ["%s %s, %s, %s, %s" % (MF, O4(rb, db), R4(vres[12 * t + db]), V(G[rb][t], 4), O4(rb, db)) for t in range(2) for db in range(12)]
def lfin(rb):
    tmp = X15[rb]; l = vL[rb]; o = []
    for sw in ("v_permlane32_swap_b32", "v_permlane16_swap_b32"):
        o += ["v_mov_b32 v%d, v%d" % (tmp, l), "%s v%d, v%d" % (sw, l, tmp), "v_add_f32 v%d, v%d, v%d" % (l, l, tmp)]
    o += ["v_cmp_nle_f32 vcc, %s, v%d" % (sLo, l), "v_cmp_nge_f32 %s, %s, v%d" % (sB2, sHi, l), "v_rcp_f32 v%d, v%d" % (l, l)]
    return [Op(t) for t in o]
def wreg(n):
    fl, i0 = Oreg(n // 3, 4 * (n % 3))
    return i0 if fl == "v" else 176 + 16 * (n % 4)
def stg(n): return (n % 3) * 2048
def ep_st(n, rh):
    rb, cb = divmod(n, 3)
    return "buffer_store_dwordx4 %s, v%d, %s, %s offen offset:%d %s" % (V(wreg(n) + 8 + 4 * rh, 4), eS, sO, sRB(rb), rh * 3072 + cb * 128, SPOL)
def ep_rd(n):
    return ["ds_read_b128 %s, v%d offset:%d" % (V(wreg(n) + 8, 4), eR, stg(n))] + \
           ["ds_read_b64 %s, v%d offset:%d" % (V(wreg(n) + 12 + 2 * k, 2), eR, stg(n) + 1024 + 8 * (1 - k)) for k in range(2)]
def burst(rb):
    A("s_or_b64 %s, %s, vcc" % (sBad, sBad)); A("s_or_b64 %s, %s, %s" % (sBad, sBad, sB2))
    lp = vL[rb] & ~1; sel = vL[rb] & 1
    for cb in range(3):
        n = 3 * rb + cb
        fl, i0 = Oreg(rb, 4 * cb); w = wreg(n)
        if fl == "a":
            for i in range(16): A("v_accvgpr_read_b32 %s, %s" % (V(w + i), Ac(i0 + i)))
        for i in range(0, 16, 2):
            A("v_pk_mul_f32 %s, %s, %s op_sel:[0,%d] op_sel_hi:[1,%d]" % (V(w + i, 2), V(w + i, 2), V(lp, 2), sel, sel))
        if cb == 2: A("s_waitcnt lgkmcnt(4)"); A(ep_st(n - 2, 0))
        for i in range(8): A("v_cvt_pk_bf16_f32 %s, %s, %s" % (V(w + i), V(w + 2 * i), V(w + 2 * i + 1)))
        if cb == 2: A(ep_st(n - 2, 1))
        if cb >= 1:
            for t in ep_rd(n - 1): A(t)
        for x in range(4):
            A("ds_write_b64 v%d, %s offset:%d" % (eW[x], V(w + 2 * x, 2), stg(n)))
def group_block(rbs, buf, qf, first):
    mf = []; frag = []
    for t in (14, 13, 15):
        if t == 13:
            for db in range(12):
                b = buf[len(frag) % 8]; frag.append((len(mf), vrd(b, 13, db), len(mf) + 2))
                mf += ["%s %s, %s, %s, %s" % (MF, O4(rb, db), R4(b), V(G[rb][1], 4), O4(rb, db)) for rb in rbs]
        else:
            for g in range(6):
                p, hf = (g >> 1, g & 1) if (t == 15 and first) else (g % 3, g // 3)
                bs = [buf[(len(frag) + k) % 8] for k in range(2)]
                for k in range(2): frag.append((len(mf), [k_read(R4(bs[k]), t - 14, 2 * p + k, hf)], len(mf) + 5))
                for rb in rbs:
                    for k in range(2):
                        d = V(fs(rb, t)[4 * hf], 4)
                        mf.append("%s %s, %s, %s, %s" % (MF, d, R4(bs[k]), qf(rb, 2 * p + k), "0" if p + k == 0 else d))
    return mf + phase_mf(rbs[0]), frag
def place(pinned, g, ins):
    while len(pinned.get(g, [])) + len(ins) > 2 or any(t.startswith("buffer") for t in pinned.get(g, [])): g += 1
    pinned.setdefault(g, []).extend(ins); return g
def block_stream(mf, rbs, lag):
    st = []
    r0_, r1_, r2_ = rbs
    for rb, t, h in ((r0_, 14, 0), (r1_, 14, 0), (r2_, 14, 0), (r0_, 14, 1), (r1_, 14, 1), (r2_, 14, 1), (r0_, 15, 0), (r0_, 15, 1), (-1, 0, 0), (r1_, 15, 0)):
        if rb < 0: st += lfin(r0_); continue
        ready = last_write_slot(mf[:108], "v%d" % fs(rb, t)[4 * h]) + lag
        dead = 131 if rb != r0_ else (105 if t == 14 else 117)
        st += [Op(x, ready, dead) for x in fsm(rb, t, h)]
    return st
def leftovers(n):
    rd = ep_rd(n)
    return {1: [ep_st(n - 1, 0)], 4: [ep_st(n - 1, 1)], 7: rd[:2], 8: rd[2:], 17: [ep_st(n, 0)], 20: [ep_st(n, 1)]}
def small_phase(rb, nxt):
    scal = [(0, ["s_waitcnt lgkmcnt(4)"], True), (16, ["s_waitcnt lgkmcnt(0)"], True)]
    st = [Op(t, 0, 10) for t in fsm(rb, 15, 1)] + lfin(rb)
    if nxt is not None: st += [Op(t) for t in fsm(nxt, 15, 0)]
    blk, _ = schedule(phase_mf(rb), leftovers(3 * rb - 1), scal, st, [], "phase%d" % rb, excl=True)
    return blk
bufA = [("a", 96 + 4 * i) for i in range(8)]
mf, frag = group_block([0, 1, 2], bufA, Qf, True)
pinned = {}
for i, (use, ins, _) in enumerate(frag):
    if i < 2: continue
    place(pinned, max(0 if i < 8 else frag[i - 8][2], use - 15 + (i & 1)), ins)
g = 80
for n in range(24):
    free = 1 + max(k for k, t in enumerate(mf[:108]) if ("a%d" % vres[n][1]) in Ins(t).rd)
    g = place(pinned, max(g, free), vrd(vres[n], 14 + n // 12, n % 12)) + (1 if n < 17 else 2)
place(pinned, 124, ["ds_read_b64 v[16:17], v%d offset:%d" % (vQA, 2 * QRB)])
scal = [(3, ["s_waitcnt vmcnt(3)", "s_barrier"], False), (74, ["s_waitcnt vmcnt(0)", "s_barrier"], False)]
st = [Op(t) for h in range(2) for t in sm(4, 1, h)] + block_stream(mf, [0, 1, 2], 5)
blk, _ = schedule(mf, pinned, scal, st, q0, "blockA", excl=True)
T += blk
if "fine" in opts: T += stamp(1)
A("s_waitcnt lgkmcnt(0)")
A("v_mov_b32 v%d, v17" % eR)
for x in (1, 2, 3): A("v_xor_b32 v%d, %d, v16" % (eW[x], 32 * x))
burst(0)
T += small_phase(1, 2); burst(1)
T += small_phase(2, None)
bufB = [("v", 96 + 4 * i) for i in range(8)]
def qfB(rb, ks): return Qf(rb, ks) if rb < 4 else V(128 + 24 * (rb - 4) + 4 * ks, 4)
mfB, fragB = group_block([3, 4, 5], bufB, qfB, False)
pre = [fragB[i][1][0] for i in range(4)] + [q_read(qfB(rb, k), rb - 4, k) for k in range(6) for rb in LATE]
for t in pre: A(t)
for x in range(4): A("v_mov_b32 v%d, v%d" % (G[0][0] + x, eW[x]))
eW = [G[0][0] + x for x in range(4)]
burst(2)
if "fine" in opts: T += stamp(2)
pinned = leftovers(8)
for i, (use, ins, _) in enumerate(fragB):
    if i < 4: continue
    g = place(pinned, max(0 if i < 8 else fragB[i - 8][2], use - 15 + (i & 1)), ins)
later = sum(1 for g in range(9, 16) for t in pinned.get(g, []) if t.startswith("ds_")) + len(pinned[8]) - 1
scal = [(0, ["s_waitcnt lgkmcnt(4)"], True), (16, ["s_waitcnt lgkmcnt(%d)" % later], True)]
blk, _ = schedule(mfB, pinned, scal, [Op(t, 0, 35) for h in range(2) for t in sm(5, 1, h)] + block_stream(mfB, [3, 4, 5], 7), [], "blockB", excl=True)
T += blk
if "fine" in opts: T += stamp(0)
burst(3)
T += small_phase(4, 5); burst(4)
T += small_phase(5, None)
T += stamp(4)
burst(5)
A("s_waitcnt lgkmcnt(4)")
A(ep_st(16, 0)); A(ep_st(16, 1))
for t in ep_rd(17): A(t)
A("s_cmp_eq_u64 %s, 0" % sBad)
A("s_cbranch_scc1 L_good")
A("v_mov_b32 v2, %d" % FLAG); A("v_mov_b32 v3, 1")
A("ds_write_b32 v2, v3")
A("L_good:")
A("s_waitcnt lgkmcnt(0)")
A(ep_st(17, 0)); A(ep_st(17, 1))
if STAMP:
    T += stamp(5)
    A("s_waitcnt vmcnt(0)")
    T += stamp(6)
    A("s_waitcnt lgkmcnt(0)")
    if "probe" in opts:
        pi, pj = [int(x) for x in opts["probe"].split(",")]
        A("s_sub_u32 s84, s%d, s%d" % (60 + 2 * pj, 60 + 2 * pi))
        if "pneg" in opts: A("s_sub_u32 s84, %s, s84" % opts["pneg"])
        if STAMP == 6:
            A("s_min_u32 s84, s84, 40000"); A("s_memrealtime s[72:73]"); A("s_waitcnt lgkmcnt(0)")
        else:
            A("s_min_u32 s84, s84, 10000")
            A("s_lshl_b32 s84, s84, 2")
        if "pcls" in opts:
            A("s_bfe_u32 s85, s2, 0x%x" % int(opts["pbits"], 16)); A("s_cmp_eq_u32 s85, %s" % opts["pcls"]); A("s_cselect_b32 s84, s84, 0")
        A("L_spin:"); A("s_sleep 2"); A("s_memrealtime s[82:83]"); A("s_waitcnt lgkmcnt(0)")
        A("s_sub_u32 s85, s82, s72"); A("s_cmp_lt_u32 s85, s84"); A("s_cbranch_scc1 L_spin")
    A("s_lshl_b32 s3, s2, 2"); A("s_add_u32 s3, s3, %s" % sWave); A("s_lshl_b32 s3, s3, 6")
    A("v_mov_b32 v10, s3")
    for i in range(16): A("v_mov_b32 v%d, s%d" % (16 + i, 60 + i))
    for i in range(4): A("buffer_store_dwordx4 v[%d:%d], v10, %s, 0 offen offset:%d" % (16 + 4 * i, 19 + 4 * i, sW, 16 * i))
A("s_barrier")
A("v_mov_b32 v0, %d" % FLAG)
A("ds_read_b32 v0, v0")
A("s_waitcnt lgkmcnt(0)")
A("v_readfirstlane_b32 %s, v0" % sTmp)
A("s_cmp_eq_u32 %s, 0" % sTmp)
A("s_cbranch_scc0 L_redo")
A("L_end:")
A("s_endpgm")
A("L_redo:")
A("s_waitcnt vmcnt(0)")
A("s_barrier")
A("v_mbcnt_lo_u32_b32 v0, -1, 0"); A("v_mbcnt_hi_u32_b32 v0, -1, v0")
A("s_lshl_b32 %s, %s, 6" % (sTmp, sWave))
A("v_add_u32 v0, %s, v0" % sTmp)

def I(l): return [Ins(t) for t in l]
seq = I(P + ["s_branch L_even"] + B0 + ["s_cbranch_scc1 L_loop"] + B1 + B0 + ["s_cbranch_scc1 L_loop"] + T)
errs = check_hazards(seq, "main") + check_waits(seq, "main")
for e in errs[:30]: sys.stderr.write(e + "\n")
if errs:
    print("!!! %d hazard problems" % len(errs)); sys.exit(1)
S, lds2, e2_ = gen_safe.build_safe({"qd": "3", "nt": NT})
assert lds2 <= LDS_BYTES and e2_ == 0

hdr = open("standalone__gqa_softmax__near_ridge.s.ref").read().split("; Override")[0]
out = [hdr.rstrip(), "; @launch grid=(256,1,1) block=(256,1,1) lds=%d" % LDS_BYTES,
       '.amdgcn_target "amdgcn-amd-amdhsa--gfx950"', ".text", ".globl %s" % KN, ".p2align 8", ".type %s,@function" % KN, "%s:" % KN, "L_start:"]
def emit(l):
    for t in l: out.append(t if t.endswith(":") or t.startswith(".") else "    " + t)
emit(P); emit(["s_branch L_even", ".p2align 6", "L_loop:"]); emit(B1); emit(["L_even:"]); emit(B0); emit(["s_cbranch_scc1 L_loop"]); emit(T); emit(S)
out += ['.section .rodata,"a"', ".p2align 6", ".amdhsa_kernel %s" % KN, "  .amdhsa_next_free_vgpr 512", "  .amdhsa_next_free_sgpr 96",
        "  .amdhsa_accum_offset 256", "  .amdhsa_group_segment_fixed_size 0", "  .amdhsa_kernarg_size 48", "  .amdhsa_user_sgpr_count 2",
        "  .amdhsa_user_sgpr_kernarg_segment_ptr 1", "  .amdhsa_system_sgpr_workgroup_id_x 1", ".end_amdhsa_kernel", ""]
open(sys.argv[1], "w").write("\n".join(out))
```

```python
import sys, math, struct
from asmlib import *
from sched import *
import gen_safe

opts = dict(a.split("=") for a in sys.argv[2:])
STAMP = int(opts.get("stamp", 0))
NT = opts.get("nt", "nt").replace("+", " ")
SPOL = opts.get("spol", "sc1").replace("+", " ")
QD = int(opts.get("qd", 3))
DEF = int(opts.get("defer", 3))
STG2 = [tuple(int(y) for y in x.split(":")) for x in opts.get("stg2", "").split(",") if x]
KN = "standalone__gqa_softmax__near_ridge_kernel"
def f2u(x): return struct.unpack("<I", struct.pack("<f", x))[0]
CSCALE = f2u(math.log2(math.e) / math.sqrt(192.0))

KRING = 0; VRING = 49152; QLDS = 98304; SLOT = 12288
QKS = 1088; QRB = 6 * QKS; QWAVE = 2 * QRB + 1024
FLAG = QLDS + 4 * QWAVE
LDS_BYTES = FLAG + 64
def V(i, n=1): return "v%d" % i if n == 1 else "v[%d:%d]" % (i, i + n - 1)
def Ac(i, n=1): return "a%d" % i if n == 1 else "a[%d:%d]" % (i, i + n - 1)
vKA = [0, 1]; vVA = [2, 3, 4, 5]; vQA = 6; vDMA = 7
vL = [8 + i for i in range(6)]; vQG = 14; vQW = 15
FB = [Ac(96 + 4 * i, 4) for i in range(4)]
FQ = {4: [Ac(112, 4), Ac(116, 4)], 5: [Ac(120, 4), Ac(124, 4)]}
EARLY = [0, 1, 2, 3]; LATE = [4, 5]
G = {}; X = {}
r = 16
for rb in LATE:
    G[rb] = [r, r + 4]; X[rb] = [r + 8, r + 12]; r += 16
for rb in EARLY:
    G[rb] = [r, r + 4]; X[rb] = [r + 8, r + 8]; r += 12
assert r == 96
def Oreg(rb, db):
    b = rb * 12 + db
    return ("v", 96 + 4 * b) if b < 40 else ("a", 128 + 4 * (b - 40))
def O4(rb, db):
    f, i = Oreg(rb, db); return "%s[%d:%d]" % (f, i, i + 3)
def Qf(rb, ks): return Ac(rb * 24 + ks * 4, 4) if rb < 4 else FQ[rb][ks & 1]
sQ = "s[20:23]"; sK = "s[24:27]"; sV = "s[28:31]"; sO = "s[32:35]"; sW = "s[36:39]"
sC2 = "s[40:41]"; sIT = "s42"; sKoff = "s43"; sVoff = "s44"; sKm = "s45"; sVm = "s46"; sWave = "s47"
sTmp = "s48"; sRow = "s49"; sKend = "s50"; sVend = "s51"; sKbeg = "s52"; sVbeg = "s53"; sQL = "s16"; sCls = "s17"
sMask = "s54"; sLo = "s76"; sHi = "s77"; sBad = "s[78:79]"; sB2 = "s[80:81]"
def sRB(rb): return "0" if rb == 0 else "s%d" % (54 + rb)
MF = "v_mfma_f32_16x16x32_bf16"

def k_read(dst, tile_par, ks, hf):
    return "ds_read_b128 %s, %s offset:%d" % (dst, V(vKA[ks & 1]), tile_par * SLOT + (ks >> 1) * 4096 + hf * 2048)
def v_read(a0, tile_par, db):
    return ["ds_read_b64_tr_b16 %s, %s offset:%d" % (Ac(a0 + 2 * i, 2), V(vVA[db & 3]), tile_par * SLOT + (db >> 2) * 4096 + i * 2048) for i in range(2)]
def q_read(dst, area, ks):
    return "ds_read_b128 %s, %s offset:%d" % (dst, V(vQA), area * QRB + ks * QKS)
def qk_mfmas(par, last_up=False):
    out = []
    for g in range(6):
        p, hf = g >> 1, g & 1
        for rb in (range(6) if hf == 0 or (last_up and g == 5) else range(5, -1, -1)):
            for k in range(2):
                ks = 2 * p + k
                d = V((G[rb][par] if hf == 0 else X[rb][par]), 4)
                out.append("%s %s, %s, %s, %s" % (MF, d, FB[(2 * g + k) % 4], Qf(rb, ks), "0" if ks == 0 else d))
    return out
def sregs(rb, par): return [G[rb][par] + i for i in range(4)] + [X[rb][par] + i for i in range(4)]
def sm(rb, par, half):
    ops = []; s = sregs(rb, par)
    for i in (4 * half, 4 * half + 2):
        ops.append("v_exp_f32 %s, %s" % (V(s[i]), V(s[i])))
        ops.append("v_exp_f32 %s, %s" % (V(s[i + 1]), V(s[i + 1])))
        ops.append("v_add_f32 %s, %s, %s" % (V(vL[rb]), V(vL[rb]), V(s[i])))
        ops.append("v_add_f32 %s, %s, %s" % (V(vL[rb]), V(vL[rb]), V(s[i + 1])))
        ops.append("v_cvt_pk_bf16_f32 %s, %s, %s" % (V(G[rb][par] + i // 2), V(s[i]), V(s[i + 1])))
    return ops
def last_write_slot(mf, reg): return max(g for g, t in enumerate(mf) if reg in Ins(t).wr)
def paced(ops, g0, g1, floor=0, dead=10 ** 9):
    os_ = [Op(t) for t in ops]; tot = sum(o.cost for o in os_); acc = 0
    for o in os_:
        o.ming = max(floor, int(g0 + (g1 - g0) * acc / tot)); o.dead = dead; acc += o.cost
    return os_
def pin_qk(pinned, qk, tile_par, nq):
    def pin(g, t): pinned.setdefault(g, []).append(t)
    for g in range(1, 6):
        for k in range(2): pin(12 * (g - 1) + 2 * k, k_read(FB[(2 * g + k) % 4], tile_par, 2 * (g >> 1) + k, g & 1))
    lastq = {}
    for g, t in enumerate(qk):
        for rb in LATE:
            for k in range(2):
                if FQ[rb][k] in t: lastq[(g // 24, rb, k)] = g
    for p in range(nq):
        g = 0
        for (lg, rb, k) in sorted((lastq[(p, rb, k)], rb, k) for rb in LATE for k in range(2)):
            g = max(g, lg + 1)
            while g in pinned: g += 1
            pin(g, q_read(FQ[rb][k], rb - 4, (2 * p + 2 + k) % 6)); g += 2

def body(par, ds_in):
    np_ = par ^ 1
    qk = qk_mfmas(np_)
    mf = qk + ["%s %s, %s, %s, %s" % (MF, O4(rb, db), FB[db % 4], V(G[rb][par], 4), O4(rb, db)) for db in range(12) for rb in range(6)]
    pinned = {}
    def pin(g, t): pinned.setdefault(g, []).append(t)
    for db in range(12):
        for t in v_read(96 + 4 * (db % 4), par, db): pin({0: 60, 1: 63, 2: 72, 3: 75}.get(db, 72 + 6 * (db - 3)), t)
    pin(127, k_read(FB[0], par, 0, 0)); pin(133, k_read(FB[1], par, 1, 0))
    pin_qk(pinned, qk, np_, 3)
    scal = [(57, ["s_waitcnt vmcnt(12) lgkmcnt(0)"], True), (58, ["s_barrier"], True)]
    if par == 1:
        scal.append((2, ["s_cmp_eq_u32 %s, 6" % sIT, "s_cselect_b32 s24, s28, s24", "s_cselect_b32 s25, s29, s25",
                         "s_cselect_b32 %s, %d, %s" % (sKoff, 15 * SLOT, sKoff)], False))
    dg = [71, 81, 93, 105, 117, 130]
    for i in range(6):
        srd_, so, sm_ = (sK, sKoff, sKm) if i < 3 else (sV, sVoff, sVm)
        assert dg[i] not in pinned
        scal.append((dg[i] - 1, ["s_add_u32 m0, %s, %d" % (sm_, (i % 3) * (4096 - 128))], True))
        pin(dg[i], "buffer_load_dwordx4 %s, %s, %s offen offset:%d %s lds" % (V(vDMA), srd_, so, (i % 3) * 128, NT))
    for g, so, m, end, beg in ((dg[2] + 1, sKoff, sKm, sKend, sKbeg), (dg[5] + 1, sVoff, sVm, sVend, sVbeg)):
        scal.append((g, ["s_add_u32 %s, %s, %d" % (so, so, SLOT), "s_add_u32 %s, %s, %d" % (m, m, SLOT),
                         "s_cmp_eq_u32 %s, %s" % (m, end), "s_cselect_b32 %s, %s, %s" % (m, beg, m)], False))
    if par == 0: scal.append((139, ["s_add_u32 %s, %s, 1" % (sIT, sIT), "s_cmp_lt_u32 %s, 7" % sIT], False))
    st = paced(sum([sm(rb, par, h) for rb in LATE for h in range(2)], []), 0, 50, dead=70)
    if par == 0:
        st += [Op("v_xor_b32 %s, 0x1e000, %s" % (V(a), V(a)), 44, 58) for a in vVA]
        st += [Op("v_xor_b32 %s, 0x6000, %s" % (V(a), V(a)), 52, 125) for a in vKA]
    E0, E1 = 55, 140
    for n, (rb, h) in enumerate([(0, 0), (1, 0), (2, 0), (3, 0), (3, 1), (2, 1), (1, 1), (0, 1)]):
        ready = last_write_slot(qk, "v%d" % sregs(rb, np_)[4 * h]) + 5
        st += paced(sm(rb, np_, h), E0 + (E1 - E0) * n / 8, E0 + (E1 - E0) * (n + 1) / 8, floor=ready)
    def capf(cap, sc, pin_):
        for g in range(144):
            if "s_barrier" in sc.get(g, []): cap[g] = 0
    return schedule(mf, pinned, scal, st, ds_in, "body%d" % par, next_first=qk_mfmas(par)[0], excl=True, capf=capf)

def stamp(i):
    if STAMP == 1: return ["s_memrealtime s[%d:%d]" % (60 + 2 * i, 61 + 2 * i)]
    if STAMP == 6: return ["s_memtime s[%d:%d]" % (60 + 2 * i, 61 + 2 * i)]
    return []

P = []
A = P.append
A("s_cmp_ge_u32 s2, 256")
A("s_cbranch_scc1 L_end")
A("s_load_dwordx4 s[4:7], s[0:1], 0")
A("s_load_dwordx4 s[8:11], s[0:1], 16")
if STAMP: A("s_load_dwordx2 s[12:13], s[0:1], 40")
P += stamp(0)
A("s_getpc_b64 s[18:19]")
A("v_lshlrev_b32 v240, 7, v0")
A("v_min_u32 v240, L_end-L_start, v240")
A("global_load_dword v241, v240, s[18:19]")
vLN = 242; t2 = 243; t3 = 244; t4 = 245; t5 = 246; t6 = 247
A("v_lshrrev_b32 v%d, 6, v0" % t2)
A("v_and_b32 v%d, 63, v0" % vLN)
A("s_mul_i32 s14, s2, 147456")
A("v_readfirstlane_b32 %s, v%d" % (sWave, t2))
A("s_mul_i32 s15, s2, 196608")
A("s_bfe_u32 %s, s2, 0x30003" % sCls)
A("v_lshrrev_b32 v%d, 3, v%d" % (t5, vLN))
A("v_mul_u32_u24 v%d, 384, v%d" % (t6, t5))
A("v_lshrrev_b32 v%d, 4, v%d" % (t3, vLN))
A("v_lshlrev_b32 v%d, 1, v%d" % (t4, t3))
A("v_xor_b32 v%d, v%d, v%d" % (t4, t4, vLN))
A("v_and_b32 v%d, 7, v%d" % (t4, t4))
A("v_lshl_add_u32 v%d, v%d, 4, v%d" % (vDMA, t4, t6))
A("s_mul_i32 %s, %s, 3072" % (sTmp, sWave))
A("v_add_u32 v%d, %s, v%d" % (vDMA, sTmp, vDMA))
A("v_and_b32 v%d, 7, v%d" % (t4, vLN))
A("v_lshl_add_u32 v%d, v%d, 4, v%d" % (vQG, t4, t6))
A("s_mul_i32 %s, %s, 36864" % (sRow, sWave))
A("v_add_u32 v%d, %s, v%d" % (vQG, sRow, vQG))
A("s_lshl_b32 %s, %s, 10" % (sKbeg, sWave))
A("s_add_u32 %s, %s, %d" % (sVbeg, sKbeg, VRING))
for rb in range(1, 6): A("s_mov_b32 %s, %d" % (sRB(rb), rb * 6144))
if STG2:
    A("s_mov_b32 s3, 0")
    for i, (lo, hi, k, cnt) in enumerate(STG2):
        A("s_sub_u32 %s, %s, %d" % (sTmp, sCls, lo)); A("s_cmp_lt_u32 %s, %d" % (sTmp, hi - lo)); A("s_cselect_b32 s3, %d, s3" % (1 << i))
A("s_waitcnt lgkmcnt(0)")
def srd(base, src, off, size):
    A("s_add_u32 s%d, s%d, %s" % (base, src, off)); A("s_addc_u32 s%d, s%d, 0" % (base + 1, src + 1))
    A("s_mov_b32 s%d, %d" % (base + 2, size)); A("s_mov_b32 s%d, 0x20000" % (base + 3))
vm = []
def raw(rb, i): return 96 + rb * 24 + i * 4
def issue(k, x, i):
    if k == "Q":
        A("buffer_load_dwordx4 %s, v%d, %s, %s offen offset:%d %s" % (V(raw(x, i), 4), vQG, sQ, sRB(x), (i & 1) * 3072 + (i >> 1) * 128, NT))
        vm.append("Q%d.%d" % (x, i))
    else:
        srd_, beg = (sK, sKbeg) if k == "K" else (sV, sVbeg)
        A("s_add_u32 m0, %s, %d" % (beg, (x & 3) * SLOT + i * (4096 - 128)))
        A("s_mov_b32 %s, %d" % (sTmp, x * SLOT))
        A("buffer_load_dwordx4 %s, %s, %s offen offset:%d %s lds" % (V(vDMA), srd_, sTmp, i * 128, NT))
        vm.append("%s%d" % (k, x))
    n = len(vm) - 1
    for ci, (lo, hi, kk, cnt) in enumerate(STG2):
        if kk <= n < cnt:
            A("s_bitcmp1_b32 s3, %d" % ci); A("s_cbranch_scc0 L_sg%d_%d" % (n, ci)); A("s_waitcnt vmcnt(%d)" % kk); A("L_sg%d_%d:" % (n, ci))
def vwait(name):
    last = max(i for i, x in enumerate(vm) if x == name)
    A("s_waitcnt vmcnt(%d)" % (len(vm) - 1 - last))
TLB = int(opts.get("tlb", 0))
srd(24, 6, "s15", 196608)
issue("K", 0, 0)
if TLB & 1:
    srd(32, 10, "s14", 147456); srd(28, 8, "s15", 196608)
    A("v_lshlrev_b32 v240, 9, v%d" % vLN)
    A("buffer_load_dword v250, v240, %s, %s offen nt" % (sO, sRow)); vm.append("t")
    A("buffer_load_dword v251, v%d, %s, 0 offen nt" % (vDMA, sV)); vm.append("t")
for cb in range(1, 3): issue("K", 0, cb)
srd(20, 4, "s14", 147456)
for rb in range(QD):
    for i in range(6): issue("Q", rb, i)
srd(28, 8, "s15", 15 * SLOT); srd(32, 10, "s14", 147456)
if STAMP:
    A("s_mov_b32 s36, s12"); A("s_mov_b32 s37, s13"); A("s_mov_b32 s38, 0x100000"); A("s_mov_b32 s39, 0x20000")
A("s_add_u32 %s, %s, %d" % (sKend, sKbeg, 4 * SLOT))
A("s_add_u32 %s, %s, %d" % (sVend, sVbeg, 4 * SLOT))
A("s_mul_i32 %s, %s, %d" % (sQL, sWave, QWAVE))
A("s_add_u32 %s, %s, %d" % (sQL, sQL, QLDS))
A("v_xor_b32 v%d, v%d, v%d" % (t2, t5, t4))
A("v_lshlrev_b32 v%d, 4, v%d" % (t2, t2))
A("v_lshl_add_u32 v%d, v%d, 7, v%d" % (t2, t5, t2))
A("s_mul_i32 %s, %s, 6144" % (sTmp, sWave))
A("s_cmp_lt_u32 %s, 2" % sWave)
A("s_cselect_b32 s3, %d, %d" % (1, 3))
A("s_mul_i32 s3, s3, %d" % SLOT)
A("s_add_u32 %s, %s, s3" % (sTmp, sTmp))
A("v_add_u32 v249, %s, v%d" % (sTmp, t2))
A("v_and_b32 v%d, 3, v%d" % (t4, vLN))
A("v_xor_b32 v%d, v%d, v%d" % (t2, t5, t4))
A("v_lshlrev_b32 v%d, 4, v%d" % (t2, t2))
A("v_lshl_add_u32 v%d, v%d, 8, v%d" % (t2, t4, t2))
A("v_bfe_u32 v%d, v%d, 2, 1" % (t4, vLN))
A("v_mul_u32_u24 v%d, %d, v%d" % (t4, QKS, t4))
A("v_add3_u32 v%d, v%d, v%d, %s" % (vQW, t2, t4, sQL))
A("v_and_b32 v%d, 15, v%d" % (t2, vLN))
A("v_xor_b32 v%d, v%d, v%d" % (t4, t2, t3))
A("v_lshlrev_b32 v%d, 4, v%d" % (t4, t4))
A("v_lshl_add_u32 v%d, v%d, 8, v%d" % (t4, t3, t4))
A("v_add_u32 v%d, %s, v%d" % (vQA, sQL, t4))
A("v_lshlrev_b32 v%d, 7, v%d" % (t6, t2))
A("v_lshrrev_b32 v%d, 5, v%d" % (t4, vLN))
A("v_xor_b32 v%d, v%d, v%d" % (t4, t4, vLN))
A("v_and_b32 v%d, 7, v%d" % (t4, t4))
A("v_lshl_add_u32 v%d, v%d, 4, v%d" % (t6, t4, t6))
A("v_xor_b32 v%d, v%d, v%d" % (t4, t3, t5))
A("v_and_b32 v%d, 1, v%d" % (t4, t4))
A("v_lshl_add_u32 v%d, v%d, 3, v%d" % (t6, t4, t6))
A("v_add_u32 v248, %s, v%d" % (sTmp, t6))
A("ds_write_b64 v%d, v[248:249] offset:%d" % (vQA, 2 * QRB))
A("v_and_b32 v%d, 6, v%d" % (t4, vLN))
A("v_xor_b32 v%d, v%d, v%d" % (t4, t4, t3))
A("v_lshlrev_b32 v%d, 4, v%d" % (t4, t4))
A("v_lshl_add_u32 v%d, v%d, 7, v%d" % (vKA[0], t2, t4))
A("v_xor_b32 v%d, 64, v%d" % (vKA[1], vKA[0]))
A("v_lshrrev_b32 v%d, 2, v%d" % (t4, vLN))
A("v_lshlrev_b32 v%d, 7, v%d" % (t4, t4))
A("v_and_b32 v%d, 3, v%d" % (t2, vLN))
A("v_lshl_add_u32 v%d, v%d, 3, v%d" % (t4, t2, t4))
A("v_bfe_u32 v%d, v%d, 3, 2" % (t2, vLN))
A("v_lshl_add_u32 v%d, v%d, 5, v%d" % (t4, t2, t4))
A("v_add_u32 v%d, %d, v%d" % (vVA[0], VRING + 2 * SLOT, t4))
for x in range(1, 4): A("v_xor_b32 v%d, %d, v%d" % (vVA[x], 32 * x, vVA[0]))
A("s_mov_b32 s40, 0x%x" % CSCALE); A("s_mov_b32 s41, 0x%x" % CSCALE)
A("s_mov_b32 %s, 0xffff0000" % sMask)
A("s_mov_b32 %s, 0" % sIT)
A("s_mov_b32 %s, %d" % (sKoff, 5 * SLOT))
A("s_mov_b32 %s, %d" % (sVoff, 3 * SLOT))
A("s_add_u32 %s, %s, %d" % (sKm, sKbeg, SLOT))
A("s_add_u32 %s, %s, %d" % (sVm, sVbeg, 3 * SLOT))
A("s_mov_b32 %s, 0x%x" % (sLo, f2u(2.0 ** float(opts.get("llo", -20)))))
A("s_mov_b32 %s, 0x%x" % (sHi, f2u(2.0 ** float(opts.get("lhi", 24)))))
A("s_mov_b64 %s, 0" % sBad)
for i in vL: A("v_mov_b32 v%d, 0" % i)
ZR = FQ[5][1]
for i in range(4): A("v_accvgpr_write_b32 a%d, 0" % (124 + i))
A("v_mov_b32 v%d, %d" % (t2, FLAG))
A("ds_write_b32 v%d, v%d" % (t2, vL[0]))
def zero16(f, i): A("v_mfma_f32_32x32x16_bf16 %s[%d:%d], %s, %s, 0" % (f, i, i + 15, ZR, ZR))
for i in range(128, 256, 16): zero16("a", i)
vwait("K0")
A("s_waitcnt lgkmcnt(0)")
A("s_barrier")
K0F = [V(G[rb][1], 4) for rb in range(6)] + [V(X[rb][1], 4) for rb in LATE] + FB
for n in range(12): A(k_read(K0F[n], 0, n >> 1, n & 1))
def pro_sm(rb):
    ops = sm(rb, 0, 0) + sm(rb, 0, 1)
    for t in [t for t in ops if t.startswith("v_exp")] + ["s_nop 0"] + [t for t in ops if not t.startswith("v_exp")]: A(t)
pend = [("Q", rb, i) for rb in range(QD, 6) for i in range(6)]
pend += [(k, x, cb) for k, x in (("K", 1), ("V", 0), ("K", 2), ("V", 1), ("K", 3), ("V", 2)) for cb in range(3)]
deferred = pend[len(pend) - 3 * DEF:]; pend = pend[:len(pend) - 3 * DEF]
def qdst(rb, ks): return Ac(rb * 24 + ks * 4, 4) if rb < 4 else V(raw(rb, ks), 4)
def st_read(s_):
    rb, cb = divmod(s_, 3)
    for ks in (2 * cb, 2 * cb + 1): A(q_read(qdst(rb, ks), rb & 1, ks))
def st_mfma(s_):
    rb, cb = divmod(s_, 3)
    for hf in range(2):
        for ks in (2 * cb, 2 * cb + 1):
            d = V((G[rb][0] if hf == 0 else X[rb][0]), 4)
            A("%s %s, %s, %s, %s" % (MF, d, K0F[2 * ks + hf], qdst(rb, ks), "0" if ks == 0 else d))
nleft = 36
for s_ in range(18):
    rb, cb = divmod(s_, 3)
    for rh in range(2):
        i = 2 * cb + rh
        vwait("Q%d.%d" % (rb, i))
        if s_ == 17 and rh == 1: P += stamp(1)
        r0 = raw(rb, i); tb = 240 + 8 * rh
        for k in range(4):
            A("v_lshlrev_b32 v%d, 16, v%d" % (tb + 2 * k, r0 + k)); A("v_and_b32 v%d, %s, v%d" % (tb + 2 * k + 1, sMask, r0 + k))
        for k in range(4): A("v_pk_mul_f32 %s, %s, %s" % (V(tb + 2 * k, 2), V(tb + 2 * k, 2), sC2))
        for k in range(4): A("v_cvt_pk_bf16_f32 v%d, v%d, v%d" % (r0 + k, tb + 2 * k, tb + 2 * k + 1))
        if rh == 0 and s_ >= 1: st_read(s_ - 1)
        A("ds_write_b128 v%d, %s offset:%d" % (vQW, V(r0, 4), (rb & 1) * QRB + cb * 2 * QKS + rh * 128))
        if s_ == 17 and rh == 1: st_read(17)
        for _ in range(-(-len(pend) // nleft)): issue(*pend.pop(0))
        nleft -= 1
        if nleft == 0:
            for x in deferred[:3]: issue(*x)
    if s_ >= 1:
        A("s_waitcnt lgkmcnt(%d)" % (2 if s_ < 17 else 4)); st_mfma(s_ - 1)
    if cb == 1 and rb >= 1 and rb - 1 in EARLY: pro_sm(rb - 1)
    for i in {7: (96, 112, 128), 13: (144, 160, 176), 16: (192, 208)}.get(s_, ()): zero16("v", i)
A("s_waitcnt lgkmcnt(0)")
st_mfma(17)
for i in (240, 224): zero16("v", i)
for x in deferred[3:]: issue(*x)
vwait("K1")
A("s_barrier")
A(k_read(FB[0], 1, 0, 0)); A(k_read(FB[1], 1, 1, 0))
for rb in LATE:
    for k in range(2): A(q_read(FQ[rb][k], rb - 4, k))
if TLB & 2: A("buffer_load_dword v%d, v%d, %s, 0 offen nt" % (vQW, vQG, sO))
for cb in range(3): issue("K", 4, cb)
assert vm[-21:] == sum([[x] * 3 for x in ("K1", "V0", "K2", "V1", "K3", "V2", "K4")], []), vm
A("s_waitcnt lgkmcnt(0)")
P += stamp(2)

B0, q0 = body(0, [])
B1, q1 = body(1, q0)
B0, q0b = body(0, q1)
assert q0 == q0b

T = []
A = T.append
T += stamp(3)
eW = [16, 17, 18, 19]; eR = vQW; eS = vQG
def R4(x): return "%s[%d:%d]" % (x[0], x[1], x[1] + 3)
def R2(x, h): return "%s[%d:%d]" % (x[0], x[1] + 2 * h, x[1] + 2 * h + 1)
def vrd(dst, tile, db):
    return ["ds_read_b64_tr_b16 %s, %s offset:%d" % (R2(dst, i), V(vVA[db & 3]), (0 if tile == 15 else (tile - 12) * SLOT) + (db >> 2) * 4096 + i * 2048) for i in range(2)]
X15 = {0: X[4][0], 1: X[5][0], 2: G[5][0], 3: X[0][0], 4: X[4][1], 5: X[5][1]}
def fs(rb, t): return [G[rb][t & 1] + i for i in range(4)] + [(X[rb][0] if t == 14 else X15[rb]) + i for i in range(4)]
def fsm(rb, t, half):
    ops = []; s_ = fs(rb, t)
    for i in (4 * half, 4 * half + 2):
        ops += ["v_exp_f32 %s, %s" % (V(s_[i]), V(s_[i])), "v_exp_f32 %s, %s" % (V(s_[i + 1]), V(s_[i + 1])),
                "v_add_f32 %s, %s, %s" % (V(vL[rb]), V(vL[rb]), V(s_[i])), "v_add_f32 %s, %s, %s" % (V(vL[rb]), V(vL[rb]), V(s_[i + 1])),
                "v_cvt_pk_bf16_f32 %s, %s, %s" % (V(s_[i // 2]), V(s_[i]), V(s_[i + 1]))]
    return ops
def qp(p): return [("a", rb * 24 + 8 * p + 4 * k) for rb in range(3) for k in range(2)]
def sb(*l): return [("a", 96 + 4 * i) for i in l]
vres = qp(0) + sb(4, 5) + qp(1) + sb(6, 7, 0, 1) + qp(2)
def phase_mf(rb): return ["%s %s, %s, %s, %s" % (MF, O4(rb, db), R4(vres[12 * t + db]), V(G[rb][t], 4), O4(rb, db)) for t in range(2) for db in range(12)]
def lfin(rb):
    tmp = X15[rb]; l = vL[rb]; o = []
    for sw in ("v_permlane32_swap_b32", "v_permlane16_swap_b32"):
        o += ["v_mov_b32 v%d, v%d" % (tmp, l), "%s v%d, v%d" % (sw, l, tmp), "v_add_f32 v%d, v%d, v%d" % (l, l, tmp)]
    o += ["v_cmp_nle_f32 vcc, %s, v%d" % (sLo, l), "v_cmp_nge_f32 %s, %s, v%d" % (sB2, sHi, l), "v_rcp_f32 v%d, v%d" % (l, l)]
    return [Op(t) for t in o]
def wreg(n):
    fl, i0 = Oreg(n // 3, 4 * (n % 3))
    return i0 if fl == "v" else 176 + 16 * (n % 4)
def stg(n): return (n % 3) * 2048
def ep_st(n, rh):
    rb, cb = divmod(n, 3)
    return "buffer_store_dwordx4 %s, v%d, %s, %s offen offset:%d %s" % (V(wreg(n) + 8 + 4 * rh, 4), eS, sO, sRB(rb), rh * 3072 + cb * 128, SPOL)
def ep_rd(n):
    return ["ds_read_b128 %s, v%d offset:%d" % (V(wreg(n) + 8, 4), eR, stg(n))] + \
           ["ds_read_b64 %s, v%d offset:%d" % (V(wreg(n) + 12 + 2 * k, 2), eR, stg(n) + 1024 + 8 * (1 - k)) for k in range(2)]
def burst(rb):
    A("s_or_b64 %s, %s, vcc" % (sBad, sBad)); A("s_or_b64 %s, %s, %s" % (sBad, sBad, sB2))
    lp = vL[rb] & ~1; sel = vL[rb] & 1
    for cb in range(3):
        n = 3 * rb + cb
        fl, i0 = Oreg(rb, 4 * cb); w = wreg(n)
        if fl == "a":
            for i in range(16): A("v_accvgpr_read_b32 %s, %s" % (V(w + i), Ac(i0 + i)))
        for i in range(0, 16, 2):
            A("v_pk_mul_f32 %s, %s, %s op_sel:[0,%d] op_sel_hi:[1,%d]" % (V(w + i, 2), V(w + i, 2), V(lp, 2), sel, sel))
        if cb == 2: A("s_waitcnt lgkmcnt(4)"); A(ep_st(n - 2, 0))
        for i in range(8): A("v_cvt_pk_bf16_f32 %s, %s, %s" % (V(w + i), V(w + 2 * i), V(w + 2 * i + 1)))
        if cb == 2: A(ep_st(n - 2, 1))
        if cb >= 1:
            for t in ep_rd(n - 1): A(t)
        for x in range(4):
            A("ds_write_b64 v%d, %s offset:%d" % (eW[x], V(w + 2 * x, 2), stg(n)))
def group_block(rbs, buf, qf, first):
    mf = []; frag = []
    for t in (14, 13, 15):
        if t == 13:
            for db in range(12):
                b = buf[len(frag) % 8]; frag.append((len(mf), vrd(b, 13, db), len(mf) + 2))
                mf += ["%s %s, %s, %s, %s" % (MF, O4(rb, db), R4(b), V(G[rb][1], 4), O4(rb, db)) for rb in rbs]
        else:
            for g in range(6):
                p, hf = (g >> 1, g & 1) if (t == 15 and first) else (g % 3, g // 3)
                bs = [buf[(len(frag) + k) % 8] for k in range(2)]
                for k in range(2): frag.append((len(mf), [k_read(R4(bs[k]), t - 14, 2 * p + k, hf)], len(mf) + 5))
                for rb in rbs:
                    for k in range(2):
                        d = V(fs(rb, t)[4 * hf], 4)
                        mf.append("%s %s, %s, %s, %s" % (MF, d, R4(bs[k]), qf(rb, 2 * p + k), "0" if p + k == 0 else d))
    return mf + phase_mf(rbs[0]), frag
def place(pinned, g, ins):
    while len(pinned.get(g, [])) + len(ins) > 2 or any(t.startswith("buffer") for t in pinned.get(g, [])): g += 1
    pinned.setdefault(g, []).extend(ins); return g
def block_stream(mf, rbs, lag):
    st = []
    r0_, r1_, r2_ = rbs
    for rb, t, h in ((r0_, 14, 0), (r1_, 14, 0), (r2_, 14, 0), (r0_, 14, 1), (r1_, 14, 1), (r2_, 14, 1), (r0_, 15, 0), (r0_, 15, 1), (-1, 0, 0), (r1_, 15, 0)):
        if rb < 0: st += lfin(r0_); continue
        ready = last_write_slot(mf[:108], "v%d" % fs(rb, t)[4 * h]) + lag
        dead = 131 if rb != r0_ else (105 if t == 14 else 117)
        st += [Op(x, ready, dead) for x in fsm(rb, t, h)]
    return st
def leftovers(n):
    rd = ep_rd(n)
    return {1: [ep_st(n - 1, 0)], 4: [ep_st(n - 1, 1)], 7: rd[:2], 8: rd[2:], 17: [ep_st(n, 0)], 20: [ep_st(n, 1)]}
def small_phase(rb, nxt):
    scal = [(0, ["s_waitcnt lgkmcnt(4)"], True), (16, ["s_waitcnt lgkmcnt(0)"], True)]
    st = [Op(t, 0, 10) for t in fsm(rb, 15, 1)] + lfin(rb)
    if nxt is not None: st += [Op(t) for t in fsm(nxt, 15, 0)]
    blk, _ = schedule(phase_mf(rb), leftovers(3 * rb - 1), scal, st, [], "phase%d" % rb, excl=True)
    return blk
bufA = [("a", 96 + 4 * i) for i in range(8)]
mf, frag = group_block([0, 1, 2], bufA, Qf, True)
pinned = {}
for i, (use, ins, _) in enumerate(frag):
    if i < 2: continue
    place(pinned, max(0 if i < 8 else frag[i - 8][2], use - 15 + (i & 1)), ins)
g = 80; gv = {}
for n in range(24):
    free = 1 + max(k for k, t in enumerate(mf[:108]) if ("a%d" % vres[n][1]) in Ins(t).rd)
    g = place(pinned, max(g, free), vrd(vres[n], 14 + n // 12, n % 12))
    gv[n] = g; g += (1 if n < 17 and n not in (9, 11) else 2)
place(pinned, 124, ["ds_read_b64 v[16:17], v%d offset:%d" % (vQA, 2 * QRB)])
scal = [(3, ["s_waitcnt vmcnt(12)", "s_barrier"], False), (74, ["s_waitcnt vmcnt(0)", "s_barrier"], False)]
st = [Op(t) for h in range(2) for t in sm(4, 1, h)] + block_stream(mf, [0, 1, 2], 5)
st[100:100] = [Op("v_subrev_u32 %s, %d, %s" % (V(vVA[x]), VRING, V(vVA[x])), gv[8 + x], gv[12 + x] - 1) for x in range(4)]
blk, _ = schedule(mf, pinned, scal, st, q0, "blockA", excl=True)
T += blk
if "fine" in opts: T += stamp(1)
A("s_waitcnt lgkmcnt(0)")
A("v_mov_b32 v%d, v17" % eR)
for x in (1, 2, 3): A("v_xor_b32 v%d, %d, v16" % (eW[x], 32 * x))
burst(0)
T += small_phase(1, 2); burst(1)
T += small_phase(2, None)
bufB = [("v", 96 + 4 * i) for i in range(8)]
def qfB(rb, ks): return Qf(rb, ks) if rb < 4 else V(128 + 24 * (rb - 4) + 4 * ks, 4)
mfB, fragB = group_block([3, 4, 5], bufB, qfB, False)
pre = [fragB[i][1][0] for i in range(4)] + [q_read(qfB(rb, k), rb - 4, k) for k in range(6) for rb in LATE]
for t in pre: A(t)
for x in range(4): A("v_mov_b32 v%d, v%d" % (G[0][0] + x, eW[x]))
eW = [G[0][0] + x for x in range(4)]
for a_ in vVA: A("v_add_u32 %s, %d, %s" % (V(a_), VRING, V(a_)))
burst(2)
if "fine" in opts: T += stamp(2)
pinned = leftovers(8)
for i, (use, ins, _) in enumerate(fragB):
    if i < 4: continue
    g = place(pinned, max(0 if i < 8 else fragB[i - 8][2], use - 15 + (i & 1)), ins)
later = sum(1 for g in range(9, 16) for t in pinned.get(g, []) if t.startswith("ds_")) + len(pinned[8]) - 1
scal = [(0, ["s_waitcnt lgkmcnt(4)"], True), (16, ["s_waitcnt lgkmcnt(%d)" % later], True)]
blk, _ = schedule(mfB, pinned, scal, [Op(t, 0, 35) for h in range(2) for t in sm(5, 1, h)] + block_stream(mfB, [3, 4, 5], 7), [], "blockB", excl=True)
T += blk
if "fine" in opts: T += stamp(0)
burst(3)
T += small_phase(4, 5); burst(4)
T += small_phase(5, None)
T += stamp(4)
burst(5)
A("s_waitcnt lgkmcnt(4)")
A(ep_st(16, 0)); A(ep_st(16, 1))
for t in ep_rd(17): A(t)
A("s_cmp_eq_u64 %s, 0" % sBad)
A("s_cbranch_scc1 L_good")
A("v_mov_b32 v2, %d" % FLAG); A("v_mov_b32 v3, 1")
A("ds_write_b32 v2, v3")
A("L_good:")
A("s_waitcnt lgkmcnt(0)")
A(ep_st(17, 0)); A(ep_st(17, 1))
if STAMP:
    T += stamp(5)
    A("s_waitcnt vmcnt(0)")
    T += stamp(6)
    A("s_waitcnt lgkmcnt(0)")
    if "probe" in opts:
        pi, pj = [int(x) for x in opts["probe"].split(",")]
        A("s_sub_u32 s84, s%d, s%d" % (60 + 2 * pj, 60 + 2 * pi))
        if "pneg" in opts: A("s_sub_u32 s84, %s, s84" % opts["pneg"])
        if STAMP == 6:
            A("s_min_u32 s84, s84, 40000"); A("s_memrealtime s[72:73]"); A("s_waitcnt lgkmcnt(0)")
        else:
            A("s_min_u32 s84, s84, 10000")
            A("s_lshl_b32 s84, s84, 2")
        if "pcls" in opts:
            A("s_bfe_u32 s85, s2, 0x%x" % int(opts["pbits"], 16)); A("s_cmp_eq_u32 s85, %s" % opts["pcls"]); A("s_cselect_b32 s84, s84, 0")
        A("L_spin:"); A("s_sleep 2"); A("s_memrealtime s[82:83]"); A("s_waitcnt lgkmcnt(0)")
        A("s_sub_u32 s85, s82, s72"); A("s_cmp_lt_u32 s85, s84"); A("s_cbranch_scc1 L_spin")
    A("s_lshl_b32 s3, s2, 2"); A("s_add_u32 s3, s3, %s" % sWave); A("s_lshl_b32 s3, s3, 6")
    A("v_mov_b32 v10, s3")
    for i in range(16): A("v_mov_b32 v%d, s%d" % (16 + i, 60 + i))
    for i in range(4): A("buffer_store_dwordx4 v[%d:%d], v10, %s, 0 offen offset:%d" % (16 + 4 * i, 19 + 4 * i, sW, 16 * i))
A("s_barrier")
A("v_mov_b32 v0, %d" % FLAG)
A("ds_read_b32 v0, v0")
A("s_waitcnt lgkmcnt(0)")
A("v_readfirstlane_b32 %s, v0" % sTmp)
A("s_cmp_eq_u32 %s, 0" % sTmp)
A("s_cbranch_scc0 L_redo")
A("L_end:")
A("s_endpgm")
A("L_redo:")
A("s_waitcnt vmcnt(0)")
A("s_barrier")
A("v_mbcnt_lo_u32_b32 v0, -1, 0"); A("v_mbcnt_hi_u32_b32 v0, -1, v0")
A("s_lshl_b32 %s, %s, 6" % (sTmp, sWave))
A("v_add_u32 v0, %s, v0" % sTmp)

def I(l): return [Ins(t) for t in l]
seq = I(P + ["s_branch L_even"] + B0 + ["s_cbranch_scc1 L_loop"] + B1 + B0 + ["s_cbranch_scc1 L_loop"] + T)
errs = check_hazards(seq, "main") + check_waits(seq, "main")
for e in errs[:30]: sys.stderr.write(e + "\n")
if errs:
    print("!!! %d hazard problems" % len(errs)); sys.exit(1)
S, lds2, e2_ = gen_safe.build_safe({"qd": "3", "nt": NT})
assert lds2 <= LDS_BYTES and e2_ == 0

hdr = open("standalone__gqa_softmax__near_ridge.s.ref").read().split("; Override")[0]
out = [hdr.rstrip(), "; @launch grid=(256,1,1) block=(256,1,1) lds=%d" % LDS_BYTES,
       '.amdgcn_target "amdgcn-amd-amdhsa--gfx950"', ".text", ".globl %s" % KN, ".p2align 8", ".type %s,@function" % KN, "%s:" % KN, "L_start:"]
def emit(l):
    for t in l: out.append(t if t.endswith(":") or t.startswith(".") else "    " + t)
emit(P); emit(["s_branch L_even", ".p2align 6", "L_loop:"]); emit(B1); emit(["L_even:"]); emit(B0); emit(["s_cbranch_scc1 L_loop"]); emit(T); emit(S)
out += ['.section .rodata,"a"', ".p2align 6", ".amdhsa_kernel %s" % KN, "  .amdhsa_next_free_vgpr 512", "  .amdhsa_next_free_sgpr 96",
        "  .amdhsa_accum_offset 256", "  .amdhsa_group_segment_fixed_size 0", "  .amdhsa_kernarg_size 48", "  .amdhsa_user_sgpr_count 2",
        "  .amdhsa_user_sgpr_kernarg_segment_ptr 1", "  .amdhsa_system_sgpr_workgroup_id_x 1", ".end_amdhsa_kernel", ""]
open(sys.argv[1], "w").write("\n".join(out))
```

```python
import sys, math, struct
from asmlib import *
from sched import *
import gen_safe

opts = dict(a.split("=") for a in sys.argv[2:])
STAMP = int(opts.get("stamp", 0))
NT = opts.get("nt", "nt").replace("+", " ")
SPOL = opts.get("spol", "sc1").replace("+", " ")
QD = int(opts.get("qd", 3))
DEF = int(opts.get("defer", 3))
STG2 = [tuple(int(y) for y in x.split(":")) for x in opts.get("stg2", "").split(",") if x]
KN = "standalone__gqa_softmax__near_ridge_kernel"
def f2u(x): return struct.unpack("<I", struct.pack("<f", x))[0]
CSCALE = f2u(math.log2(math.e) / math.sqrt(192.0))

KRING = 0; VRING = 49152; QLDS = 98304; SLOT = 12288
QKS = 1088; QRB = 6 * QKS; QWAVE = 2 * QRB + 1024
FLAG = QLDS + 4 * QWAVE
LDS_BYTES = FLAG + 64
def V(i, n=1): return "v%d" % i if n == 1 else "v[%d:%d]" % (i, i + n - 1)
def Ac(i, n=1): return "a%d" % i if n == 1 else "a[%d:%d]" % (i, i + n - 1)
vKA = [0, 1]; vVA = [2, 3, 4, 5]; vQA = 6; vDMA = 7
vL = [8 + i for i in range(6)]; vQG = 14; vQW = 15
FB = [Ac(96 + 4 * i, 4) for i in range(4)]
FQ = {4: [Ac(112, 4), Ac(116, 4)], 5: [Ac(120, 4), Ac(124, 4)]}
EARLY = [0, 1, 2, 3]; LATE = [4, 5]
G = {}; X = {}
r = 16
for rb in LATE:
    G[rb] = [r, r + 4]; X[rb] = [r + 8, r + 12]; r += 16
for rb in EARLY:
    G[rb] = [r, r + 4]; X[rb] = [r + 8, r + 8]; r += 12
assert r == 96
def Oreg(rb, db):
    b = rb * 12 + db
    return ("v", 96 + 4 * b) if b < 40 else ("a", 128 + 4 * (b - 40))
def O4(rb, db):
    f, i = Oreg(rb, db); return "%s[%d:%d]" % (f, i, i + 3)
def Qf(rb, ks): return Ac(rb * 24 + ks * 4, 4) if rb < 4 else FQ[rb][ks & 1]
sQ = "s[20:23]"; sK = "s[24:27]"; sV = "s[28:31]"; sO = "s[32:35]"; sW = "s[36:39]"
sC2 = "s[40:41]"; sIT = "s42"; sKoff = "s43"; sVoff = "s44"; sKm = "s45"; sVm = "s46"; sWave = "s47"
sTmp = "s48"; sRow = "s49"; sKend = "s50"; sVend = "s51"; sKbeg = "s52"; sVbeg = "s53"; sQL = "s16"; sCls = "s17"
sMask = "s54"; sLo = "s76"; sHi = "s77"; sBad = "s[78:79]"; sB2 = "s[80:81]"
def sRB(rb): return "0" if rb == 0 else "s%d" % (54 + rb)
MF = "v_mfma_f32_16x16x32_bf16"

def k_read(dst, tile_par, ks, hf):
    return "ds_read_b128 %s, %s offset:%d" % (dst, V(vKA[ks & 1]), tile_par * SLOT + (ks >> 1) * 4096 + hf * 2048)
def v_read(a0, tile_par, db):
    return ["ds_read_b64_tr_b16 %s, %s offset:%d" % (Ac(a0 + 2 * i, 2), V(vVA[db & 3]), tile_par * SLOT + (db >> 2) * 4096 + i * 2048) for i in range(2)]
def q_read(dst, area, ks):
    return "ds_read_b128 %s, %s offset:%d" % (dst, V(vQA), area * QRB + ks * QKS)
def qk_mfmas(par, last_up=False):
    out = []
    for g in range(6):
        p, hf = g >> 1, g & 1
        for rb in (range(6) if hf == 0 or (last_up and g == 5) else range(5, -1, -1)):
            for k in range(2):
                ks = 2 * p + k
                d = V((G[rb][par] if hf == 0 else X[rb][par]), 4)
                out.append("%s %s, %s, %s, %s" % (MF, d, FB[(2 * g + k) % 4], Qf(rb, ks), "0" if ks == 0 else d))
    return out
def sregs(rb, par): return [G[rb][par] + i for i in range(4)] + [X[rb][par] + i for i in range(4)]
def sm(rb, par, half):
    ops = []; s = sregs(rb, par)
    for i in (4 * half, 4 * half + 2):
        ops.append("v_exp_f32 %s, %s" % (V(s[i]), V(s[i])))
        ops.append("v_exp_f32 %s, %s" % (V(s[i + 1]), V(s[i + 1])))
        ops.append("v_add_f32 %s, %s, %s" % (V(vL[rb]), V(vL[rb]), V(s[i])))
        ops.append("v_add_f32 %s, %s, %s" % (V(vL[rb]), V(vL[rb]), V(s[i + 1])))
        ops.append("v_cvt_pk_bf16_f32 %s, %s, %s" % (V(G[rb][par] + i // 2), V(s[i]), V(s[i + 1])))
    return ops
def last_write_slot(mf, reg): return max(g for g, t in enumerate(mf) if reg in Ins(t).wr)
def paced(ops, g0, g1, floor=0, dead=10 ** 9):
    os_ = [Op(t) for t in ops]; tot = sum(o.cost for o in os_); acc = 0
    for o in os_:
        o.ming = max(floor, int(g0 + (g1 - g0) * acc / tot)); o.dead = dead; acc += o.cost
    return os_
def pin_qk(pinned, qk, tile_par, nq):
    def pin(g, t): pinned.setdefault(g, []).append(t)
    for g in range(1, 6):
        for k in range(2): pin(12 * (g - 1) + 2 * k, k_read(FB[(2 * g + k) % 4], tile_par, 2 * (g >> 1) + k, g & 1))
    lastq = {}
    for g, t in enumerate(qk):
        for rb in LATE:
            for k in range(2):
                if FQ[rb][k] in t: lastq[(g // 24, rb, k)] = g
    for p in range(nq):
        g = 0
        for (lg, rb, k) in sorted((lastq[(p, rb, k)], rb, k) for rb in LATE for k in range(2)):
            g = max(g, lg + 1)
            while g in pinned: g += 1
            pin(g, q_read(FQ[rb][k], rb - 4, (2 * p + 2 + k) % 6)); g += 2

def body(par, ds_in):
    np_ = par ^ 1
    qk = qk_mfmas(np_)
    mf = qk + ["%s %s, %s, %s, %s" % (MF, O4(rb, db), FB[db % 4], V(G[rb][par], 4), O4(rb, db)) for db in range(12) for rb in range(6)]
    pinned = {}
    def pin(g, t): pinned.setdefault(g, []).append(t)
    for db in range(12):
        for t in v_read(96 + 4 * (db % 4), par, db): pin({0: 60, 1: 63, 2: 72, 3: 75}.get(db, 72 + 6 * (db - 3)), t)
    pin(127, k_read(FB[0], par, 0, 0)); pin(133, k_read(FB[1], par, 1, 0))
    pin_qk(pinned, qk, np_, 3)
    scal = [(57, ["s_waitcnt vmcnt(12) lgkmcnt(0)"], True), (58, ["s_barrier"], True)]
    if par == 1:
        scal.append((2, ["s_cmp_eq_u32 %s, 6" % sIT, "s_cselect_b32 s24, s28, s24", "s_cselect_b32 s25, s29, s25",
                         "s_cselect_b32 %s, %d, %s" % (sKoff, 15 * SLOT, sKoff)], False))
    OW = int(opts.get("ow", 0))
    if par == 0 and OW:
        scal.append((2, ["s_cmp_eq_u32 %s, 6" % sIT, "s_cselect_b32 s28, s32, s28", "s_cselect_b32 s29, s33, s29", "s_cselect_b32 s30, s34, s30",
                         "s_cselect_b32 %s, 0, %s" % (sVoff, sVoff), "s_cselect_b32 s86, %d, 0" % (61440 if OW == 2 else 0)], False))
        scal.append((107, ["s_add_u32 %s, %s, s86" % (sVoff, sVoff)], False)); scal.append((119, ["s_add_u32 %s, %s, s86" % (sVoff, sVoff)], False))
    dg = [71, 81, 93, 105, 117, 130]
    for i in range(6):
        srd_, so, sm_ = (sK, sKoff, sKm) if i < 3 else (sV, sVoff, sVm)
        assert dg[i] not in pinned
        scal.append((dg[i] - 1, ["s_add_u32 m0, %s, %d" % (sm_, (i % 3) * (4096 - 128))], True))
        pin(dg[i], "buffer_load_dwordx4 %s, %s, %s offen offset:%d %s lds" % (V(vDMA), srd_, so, (i % 3) * 128, NT))
    for g, so, m, end, beg in ((dg[2] + 1, sKoff, sKm, sKend, sKbeg), (dg[5] + 1, sVoff, sVm, sVend, sVbeg)):
        scal.append((g, ["s_add_u32 %s, %s, %d" % (so, so, SLOT), "s_add_u32 %s, %s, %d" % (m, m, SLOT),
                         "s_cmp_eq_u32 %s, %s" % (m, end), "s_cselect_b32 %s, %s, %s" % (m, beg, m)], False))
    if par == 0: scal.append((139, ["s_add_u32 %s, %s, 1" % (sIT, sIT), "s_cmp_lt_u32 %s, 7" % sIT], False))
    st = paced(sum([sm(rb, par, h) for rb in LATE for h in range(2)], []), 0, 50, dead=70)
    if par == 0:
        st += [Op("v_xor_b32 %s, 0x1e000, %s" % (V(a), V(a)), 44, 58) for a in vVA]
        st += [Op("v_xor_b32 %s, 0x6000, %s" % (V(a), V(a)), 52, 125) for a in vKA]
    E0, E1 = 55, 140
    for n, (rb, h) in enumerate([(0, 0), (1, 0), (2, 0), (3, 0), (3, 1), (2, 1), (1, 1), (0, 1)]):
        ready = last_write_slot(qk, "v%d" % sregs(rb, np_)[4 * h]) + 5
        st += paced(sm(rb, np_, h), E0 + (E1 - E0) * n / 8, E0 + (E1 - E0) * (n + 1) / 8, floor=ready)
    def capf(cap, sc, pin_):
        for g in range(144):
            if "s_barrier" in sc.get(g, []): cap[g] = 0
    return schedule(mf, pinned, scal, st, ds_in, "body%d" % par, next_first=qk_mfmas(par)[0], excl=True, capf=capf)

def stamp(i):
    if STAMP == 1: return ["s_memrealtime s[%d:%d]" % (60 + 2 * i, 61 + 2 * i)]
    if STAMP == 6: return ["s_memtime s[%d:%d]" % (60 + 2 * i, 61 + 2 * i)]
    return []

P = []
A = P.append
A("s_cmp_ge_u32 s2, 256")
A("s_cbranch_scc1 L_end")
A("s_load_dwordx4 s[4:7], s[0:1], 0")
A("s_load_dwordx4 s[8:11], s[0:1], 16")
if STAMP: A("s_load_dwordx2 s[12:13], s[0:1], 40")
P += stamp(0)
A("s_getpc_b64 s[18:19]")
A("v_lshlrev_b32 v240, 7, v0")
A("v_min_u32 v240, L_end-L_start, v240")
A("global_load_dword v241, v240, s[18:19]")
vLN = 242; t2 = 243; t3 = 244; t4 = 245; t5 = 246; t6 = 247
A("v_lshrrev_b32 v%d, 6, v0" % t2)
A("v_and_b32 v%d, 63, v0" % vLN)
A("s_mul_i32 s14, s2, 147456")
A("v_readfirstlane_b32 %s, v%d" % (sWave, t2))
A("s_mul_i32 s15, s2, 196608")
A("s_bfe_u32 %s, s2, 0x30003" % sCls)
A("v_lshrrev_b32 v%d, 3, v%d" % (t5, vLN))
A("v_mul_u32_u24 v%d, 384, v%d" % (t6, t5))
A("v_lshrrev_b32 v%d, 4, v%d" % (t3, vLN))
A("v_lshlrev_b32 v%d, 1, v%d" % (t4, t3))
A("v_xor_b32 v%d, v%d, v%d" % (t4, t4, vLN))
A("v_and_b32 v%d, 7, v%d" % (t4, t4))
A("v_lshl_add_u32 v%d, v%d, 4, v%d" % (vDMA, t4, t6))
A("s_mul_i32 %s, %s, 3072" % (sTmp, sWave))
A("v_add_u32 v%d, %s, v%d" % (vDMA, sTmp, vDMA))
A("v_and_b32 v%d, 7, v%d" % (t4, vLN))
A("v_lshl_add_u32 v%d, v%d, 4, v%d" % (vQG, t4, t6))
A("s_mul_i32 %s, %s, 36864" % (sRow, sWave))
A("v_add_u32 v%d, %s, v%d" % (vQG, sRow, vQG))
A("s_lshl_b32 %s, %s, 10" % (sKbeg, sWave))
A("s_add_u32 %s, %s, %d" % (sVbeg, sKbeg, VRING))
for rb in range(1, 6): A("s_mov_b32 %s, %d" % (sRB(rb), rb * 6144))
if STG2:
    A("s_mov_b32 s3, 0")
    for i, (lo, hi, k, cnt) in enumerate(STG2):
        A("s_sub_u32 %s, %s, %d" % (sTmp, sCls, lo)); A("s_cmp_lt_u32 %s, %d" % (sTmp, hi - lo)); A("s_cselect_b32 s3, %d, s3" % (1 << i))
A("s_waitcnt lgkmcnt(0)")
def srd(base, src, off, size):
    A("s_add_u32 s%d, s%d, %s" % (base, src, off)); A("s_addc_u32 s%d, s%d, 0" % (base + 1, src + 1))
    A("s_mov_b32 s%d, %d" % (base + 2, size)); A("s_mov_b32 s%d, 0x20000" % (base + 3))
vm = []
def raw(rb, i): return 96 + rb * 24 + i * 4
def issue(k, x, i):
    if k == "Q":
        A("buffer_load_dwordx4 %s, v%d, %s, %s offen offset:%d %s" % (V(raw(x, i), 4), vQG, sQ, sRB(x), (i & 1) * 3072 + (i >> 1) * 128, NT))
        vm.append("Q%d.%d" % (x, i))
    else:
        srd_, beg = (sK, sKbeg) if k == "K" else (sV, sVbeg)
        A("s_add_u32 m0, %s, %d" % (beg, (x & 3) * SLOT + i * (4096 - 128)))
        A("s_mov_b32 %s, %d" % (sTmp, x * SLOT))
        A("buffer_load_dwordx4 %s, %s, %s offen offset:%d %s lds" % (V(vDMA), srd_, sTmp, i * 128, NT))
        vm.append("%s%d" % (k, x))
    n = len(vm) - 1
    for ci, (lo, hi, kk, cnt) in enumerate(STG2):
        if kk <= n < cnt:
            A("s_bitcmp1_b32 s3, %d" % ci); A("s_cbranch_scc0 L_sg%d_%d" % (n, ci)); A("s_waitcnt vmcnt(%d)" % kk); A("L_sg%d_%d:" % (n, ci))
def vwait(name):
    last = max(i for i, x in enumerate(vm) if x == name)
    A("s_waitcnt vmcnt(%d)" % (len(vm) - 1 - last))
TLB = int(opts.get("tlb", 0))
srd(24, 6, "s15", 196608)
issue("K", 0, 0)
if TLB & 1:
    srd(32, 10, "s14", 147456); srd(28, 8, "s15", 196608)
    A("v_lshlrev_b32 v240, 9, v%d" % vLN)
    A("buffer_load_dword v250, v240, %s, %s offen nt" % (sO, sRow)); vm.append("t")
    A("buffer_load_dword v251, v%d, %s, 0 offen nt" % (vDMA, sV)); vm.append("t")
for cb in range(1, 3): issue("K", 0, cb)
srd(20, 4, "s14", 147456)
for rb in range(QD):
    for i in range(6): issue("Q", rb, i)
srd(28, 8, "s15", 15 * SLOT); srd(32, 10, "s14", 147456)
if STAMP:
    A("s_mov_b32 s36, s12"); A("s_mov_b32 s37, s13"); A("s_mov_b32 s38, 0x100000"); A("s_mov_b32 s39, 0x20000")
A("s_add_u32 %s, %s, %d" % (sKend, sKbeg, 4 * SLOT))
A("s_add_u32 %s, %s, %d" % (sVend, sVbeg, 4 * SLOT))
A("s_mul_i32 %s, %s, %d" % (sQL, sWave, QWAVE))
A("s_add_u32 %s, %s, %d" % (sQL, sQL, QLDS))
A("v_xor_b32 v%d, v%d, v%d" % (t2, t5, t4))
A("v_lshlrev_b32 v%d, 4, v%d" % (t2, t2))
A("v_lshl_add_u32 v%d, v%d, 7, v%d" % (t2, t5, t2))
A("s_mul_i32 %s, %s, 6144" % (sTmp, sWave))
A("s_cmp_lt_u32 %s, 2" % sWave)
A("s_cselect_b32 s3, %d, %d" % (1, 3))
A("s_mul_i32 s3, s3, %d" % SLOT)
A("s_add_u32 %s, %s, s3" % (sTmp, sTmp))
A("v_add_u32 v249, %s, v%d" % (sTmp, t2))
A("v_and_b32 v%d, 3, v%d" % (t4, vLN))
A("v_xor_b32 v%d, v%d, v%d" % (t2, t5, t4))
A("v_lshlrev_b32 v%d, 4, v%d" % (t2, t2))
A("v_lshl_add_u32 v%d, v%d, 8, v%d" % (t2, t4, t2))
A("v_bfe_u32 v%d, v%d, 2, 1" % (t4, vLN))
A("v_mul_u32_u24 v%d, %d, v%d" % (t4, QKS, t4))
A("v_add3_u32 v%d, v%d, v%d, %s" % (vQW, t2, t4, sQL))
A("v_and_b32 v%d, 15, v%d" % (t2, vLN))
A("v_xor_b32 v%d, v%d, v%d" % (t4, t2, t3))
A("v_lshlrev_b32 v%d, 4, v%d" % (t4, t4))
A("v_lshl_add_u32 v%d, v%d, 8, v%d" % (t4, t3, t4))
A("v_add_u32 v%d, %s, v%d" % (vQA, sQL, t4))
A("v_lshlrev_b32 v%d, 7, v%d" % (t6, t2))
A("v_lshrrev_b32 v%d, 5, v%d" % (t4, vLN))
A("v_xor_b32 v%d, v%d, v%d" % (t4, t4, vLN))
A("v_and_b32 v%d, 7, v%d" % (t4, t4))
A("v_lshl_add_u32 v%d, v%d, 4, v%d" % (t6, t4, t6))
A("v_xor_b32 v%d, v%d, v%d" % (t4, t3, t5))
A("v_and_b32 v%d, 1, v%d" % (t4, t4))
A("v_lshl_add_u32 v%d, v%d, 3, v%d" % (t6, t4, t6))
A("v_add_u32 v248, %s, v%d" % (sTmp, t6))
A("ds_write_b64 v%d, v[248:249] offset:%d" % (vQA, 2 * QRB))
A("v_and_b32 v%d, 6, v%d" % (t4, vLN))
A("v_xor_b32 v%d, v%d, v%d" % (t4, t4, t3))
A("v_lshlrev_b32 v%d, 4, v%d" % (t4, t4))
A("v_lshl_add_u32 v%d, v%d, 7, v%d" % (vKA[0], t2, t4))
A("v_xor_b32 v%d, 64, v%d" % (vKA[1], vKA[0]))
A("v_lshrrev_b32 v%d, 2, v%d" % (t4, vLN))
A("v_lshlrev_b32 v%d, 7, v%d" % (t4, t4))
A("v_and_b32 v%d, 3, v%d" % (t2, vLN))
A("v_lshl_add_u32 v%d, v%d, 3, v%d" % (t4, t2, t4))
A("v_bfe_u32 v%d, v%d, 3, 2" % (t2, vLN))
A("v_lshl_add_u32 v%d, v%d, 5, v%d" % (t4, t2, t4))
A("v_add_u32 v%d, %d, v%d" % (vVA[0], VRING + 2 * SLOT, t4))
for x in range(1, 4): A("v_xor_b32 v%d, %d, v%d" % (vVA[x], 32 * x, vVA[0]))
A("s_mov_b32 s40, 0x%x" % CSCALE); A("s_mov_b32 s41, 0x%x" % CSCALE)
A("s_mov_b32 %s, 0xffff0000" % sMask)
A("s_mov_b32 %s, 0" % sIT)
A("s_mov_b32 %s, %d" % (sKoff, 5 * SLOT))
A("s_mov_b32 %s, %d" % (sVoff, 3 * SLOT))
A("s_add_u32 %s, %s, %d" % (sKm, sKbeg, SLOT))
A("s_add_u32 %s, %s, %d" % (sVm, sVbeg, 3 * SLOT))
A("s_mov_b32 %s, 0x%x" % (sLo, f2u(2.0 ** float(opts.get("llo", -20)))))
A("s_mov_b32 %s, 0x%x" % (sHi, f2u(2.0 ** float(opts.get("lhi", 24)))))
A("s_mov_b64 %s, 0" % sBad)
for i in vL: A("v_mov_b32 v%d, 0" % i)
ZR = FQ[5][1]
for i in range(4): A("v_accvgpr_write_b32 a%d, 0" % (124 + i))
A("v_mov_b32 v%d, %d" % (t2, FLAG))
A("ds_write_b32 v%d, v%d" % (t2, vL[0]))
def zero16(f, i): A("v_mfma_f32_32x32x16_bf16 %s[%d:%d], %s, %s, 0" % (f, i, i + 15, ZR, ZR))
for i in range(128, 256, 16): zero16("a", i)
vwait("K0")
A("s_waitcnt lgkmcnt(0)")
A("s_barrier")
K0F = [V(G[rb][1], 4) for rb in range(6)] + [V(X[rb][1], 4) for rb in LATE] + FB
for n in range(12): A(k_read(K0F[n], 0, n >> 1, n & 1))
def pro_sm(rb):
    ops = sm(rb, 0, 0) + sm(rb, 0, 1)
    for t in [t for t in ops if t.startswith("v_exp")] + ["s_nop 0"] + [t for t in ops if not t.startswith("v_exp")]: A(t)
pend = [("Q", rb, i) for rb in range(QD, 6) for i in range(6)]
pend += [(k, x, cb) for k, x in (("K", 1), ("V", 0), ("K", 2), ("V", 1), ("K", 3), ("V", 2)) for cb in range(3)]
deferred = pend[len(pend) - 3 * DEF:]; pend = pend[:len(pend) - 3 * DEF]
def qdst(rb, ks): return Ac(rb * 24 + ks * 4, 4) if rb < 4 else V(raw(rb, ks), 4)
def st_read(s_):
    rb, cb = divmod(s_, 3)
    for ks in (2 * cb, 2 * cb + 1): A(q_read(qdst(rb, ks), rb & 1, ks))
def st_mfma(s_):
    rb, cb = divmod(s_, 3)
    for hf in range(2):
        for ks in (2 * cb, 2 * cb + 1):
            d = V((G[rb][0] if hf == 0 else X[rb][0]), 4)
            A("%s %s, %s, %s, %s" % (MF, d, K0F[2 * ks + hf], qdst(rb, ks), "0" if ks == 0 else d))
nleft = 36
for s_ in range(18):
    rb, cb = divmod(s_, 3)
    for rh in range(2):
        i = 2 * cb + rh
        vwait("Q%d.%d" % (rb, i))
        if s_ == 17 and rh == 1: P += stamp(1)
        r0 = raw(rb, i); tb = 240 + 8 * rh
        for k in range(4):
            A("v_lshlrev_b32 v%d, 16, v%d" % (tb + 2 * k, r0 + k)); A("v_and_b32 v%d, %s, v%d" % (tb + 2 * k + 1, sMask, r0 + k))
        for k in range(4): A("v_pk_mul_f32 %s, %s, %s" % (V(tb + 2 * k, 2), V(tb + 2 * k, 2), sC2))
        for k in range(4): A("v_cvt_pk_bf16_f32 v%d, v%d, v%d" % (r0 + k, tb + 2 * k, tb + 2 * k + 1))
        if rh == 0 and s_ >= 1: st_read(s_ - 1)
        A("ds_write_b128 v%d, %s offset:%d" % (vQW, V(r0, 4), (rb & 1) * QRB + cb * 2 * QKS + rh * 128))
        if s_ == 17 and rh == 1: st_read(17)
        for _ in range(-(-len(pend) // nleft)): issue(*pend.pop(0))
        nleft -= 1
        if nleft == 0:
            for x in deferred[:3]: issue(*x)
    if s_ >= 1:
        A("s_waitcnt lgkmcnt(%d)" % (2 if s_ < 17 else 4)); st_mfma(s_ - 1)
    if cb == 1 and rb >= 1 and rb - 1 in EARLY: pro_sm(rb - 1)
    for i in {7: (96, 112, 128), 13: (144, 160, 176), 16: (192, 208)}.get(s_, ()): zero16("v", i)
A("s_waitcnt lgkmcnt(0)")
st_mfma(17)
for i in (240, 224): zero16("v", i)
for x in deferred[3:]: issue(*x)
vwait("K1")
A("s_barrier")
A(k_read(FB[0], 1, 0, 0)); A(k_read(FB[1], 1, 1, 0))
for rb in LATE:
    for k in range(2): A(q_read(FQ[rb][k], rb - 4, k))
if TLB & 2: A("buffer_load_dword v%d, v%d, %s, 0 offen nt" % (vQW, vQG, sO))
for cb in range(3): issue("K", 4, cb)
assert vm[-21:] == sum([[x] * 3 for x in ("K1", "V0", "K2", "V1", "K3", "V2", "K4")], []), vm
A("s_waitcnt lgkmcnt(0)")
P += stamp(2)

B0, q0 = body(0, [])
B1, q1 = body(1, q0)
B0, q0b = body(0, q1)
assert q0 == q0b

T = []
A = T.append
T += stamp(3)
eW = [16, 17, 18, 19]; eR = vQW; eS = vQG
def R4(x): return "%s[%d:%d]" % (x[0], x[1], x[1] + 3)
def R2(x, h): return "%s[%d:%d]" % (x[0], x[1] + 2 * h, x[1] + 2 * h + 1)
def vrd(dst, tile, db):
    return ["ds_read_b64_tr_b16 %s, %s offset:%d" % (R2(dst, i), V(vVA[db & 3]), (0 if tile == 15 else (tile - 12) * SLOT) + (db >> 2) * 4096 + i * 2048) for i in range(2)]
X15 = {0: X[4][0], 1: X[5][0], 2: G[5][0], 3: X[0][0], 4: X[4][1], 5: X[5][1]}
def fs(rb, t): return [G[rb][t & 1] + i for i in range(4)] + [(X[rb][0] if t == 14 else X15[rb]) + i for i in range(4)]
def fsm(rb, t, half):
    ops = []; s_ = fs(rb, t)
    for i in (4 * half, 4 * half + 2):
        ops += ["v_exp_f32 %s, %s" % (V(s_[i]), V(s_[i])), "v_exp_f32 %s, %s" % (V(s_[i + 1]), V(s_[i + 1])),
                "v_add_f32 %s, %s, %s" % (V(vL[rb]), V(vL[rb]), V(s_[i])), "v_add_f32 %s, %s, %s" % (V(vL[rb]), V(vL[rb]), V(s_[i + 1])),
                "v_cvt_pk_bf16_f32 %s, %s, %s" % (V(s_[i // 2]), V(s_[i]), V(s_[i + 1]))]
    return ops
def qp(p): return [("a", rb * 24 + 8 * p + 4 * k) for rb in range(3) for k in range(2)]
def sb(*l): return [("a", 96 + 4 * i) for i in l]
vres = qp(0) + sb(4, 5) + qp(1) + sb(6, 7, 0, 1) + qp(2)
def phase_mf(rb): return ["%s %s, %s, %s, %s" % (MF, O4(rb, db), R4(vres[12 * t + db]), V(G[rb][t], 4), O4(rb, db)) for t in range(2) for db in range(12)]
def lfin(rb):
    tmp = X15[rb]; l = vL[rb]; o = []
    for sw in ("v_permlane32_swap_b32", "v_permlane16_swap_b32"):
        o += ["v_mov_b32 v%d, v%d" % (tmp, l), "%s v%d, v%d" % (sw, l, tmp), "v_add_f32 v%d, v%d, v%d" % (l, l, tmp)]
    o += ["v_cmp_nle_f32 vcc, %s, v%d" % (sLo, l), "v_cmp_nge_f32 %s, %s, v%d" % (sB2, sHi, l), "v_rcp_f32 v%d, v%d" % (l, l)]
    return [Op(t) for t in o]
def wreg(n):
    fl, i0 = Oreg(n // 3, 4 * (n % 3))
    return i0 if fl == "v" else 176 + 16 * (n % 4)
def stg(n): return (n % 3) * 2048
def ep_st(n, rh):
    rb, cb = divmod(n, 3)
    return "buffer_store_dwordx4 %s, v%d, %s, %s offen offset:%d %s" % (V(wreg(n) + 8 + 4 * rh, 4), eS, sO, sRB(rb), rh * 3072 + cb * 128, SPOL)
def ep_rd(n):
    return ["ds_read_b128 %s, v%d offset:%d" % (V(wreg(n) + 8, 4), eR, stg(n))] + \
           ["ds_read_b64 %s, v%d offset:%d" % (V(wreg(n) + 12 + 2 * k, 2), eR, stg(n) + 1024 + 8 * (1 - k)) for k in range(2)]
def burst(rb):
    A("s_or_b64 %s, %s, vcc" % (sBad, sBad)); A("s_or_b64 %s, %s, %s" % (sBad, sBad, sB2))
    lp = vL[rb] & ~1; sel = vL[rb] & 1
    for cb in range(3):
        n = 3 * rb + cb
        fl, i0 = Oreg(rb, 4 * cb); w = wreg(n)
        if fl == "a":
            for i in range(16): A("v_accvgpr_read_b32 %s, %s" % (V(w + i), Ac(i0 + i)))
        for i in range(0, 16, 2):
            A("v_pk_mul_f32 %s, %s, %s op_sel:[0,%d] op_sel_hi:[1,%d]" % (V(w + i, 2), V(w + i, 2), V(lp, 2), sel, sel))
        if cb == 2: A("s_waitcnt lgkmcnt(4)"); A(ep_st(n - 2, 0))
        for i in range(8): A("v_cvt_pk_bf16_f32 %s, %s, %s" % (V(w + i), V(w + 2 * i), V(w + 2 * i + 1)))
        if cb == 2: A(ep_st(n - 2, 1))
        if cb >= 1:
            for t in ep_rd(n - 1): A(t)
        for x in range(4):
            A("ds_write_b64 v%d, %s offset:%d" % (eW[x], V(w + 2 * x, 2), stg(n)))
def group_block(rbs, buf, qf, first):
    mf = []; frag = []
    for t in (14, 13, 15):
        if t == 13:
            for db in range(12):
                b = buf[len(frag) % 8]; frag.append((len(mf), vrd(b, 13, db), len(mf) + 2))
                mf += ["%s %s, %s, %s, %s" % (MF, O4(rb, db), R4(b), V(G[rb][1], 4), O4(rb, db)) for rb in rbs]
        else:
            for g in range(6):
                p, hf = (g >> 1, g & 1) if (t == 15 and first) else (g % 3, g // 3)
                bs = [buf[(len(frag) + k) % 8] for k in range(2)]
                for k in range(2): frag.append((len(mf), [k_read(R4(bs[k]), t - 14, 2 * p + k, hf)], len(mf) + 5))
                for rb in rbs:
                    for k in range(2):
                        d = V(fs(rb, t)[4 * hf], 4)
                        mf.append("%s %s, %s, %s, %s" % (MF, d, R4(bs[k]), qf(rb, 2 * p + k), "0" if p + k == 0 else d))
    return mf + phase_mf(rbs[0]), frag
def place(pinned, g, ins):
    while len(pinned.get(g, [])) + len(ins) > 2 or any(t.startswith("buffer") for t in pinned.get(g, [])): g += 1
    pinned.setdefault(g, []).extend(ins); return g
def block_stream(mf, rbs, lag):
    st = []
    r0_, r1_, r2_ = rbs
    for rb, t, h in ((r0_, 14, 0), (r1_, 14, 0), (r2_, 14, 0), (r0_, 14, 1), (r1_, 14, 1), (r2_, 14, 1), (r0_, 15, 0), (r0_, 15, 1), (-1, 0, 0), (r1_, 15, 0)):
        if rb < 0: st += lfin(r0_); continue
        ready = last_write_slot(mf[:108], "v%d" % fs(rb, t)[4 * h]) + lag
        dead = 131 if rb != r0_ else (105 if t == 14 else 117)
        st += [Op(x, ready, dead) for x in fsm(rb, t, h)]
    return st
def leftovers(n):
    rd = ep_rd(n)
    return {1: [ep_st(n - 1, 0)], 4: [ep_st(n - 1, 1)], 7: rd[:2], 8: rd[2:], 17: [ep_st(n, 0)], 20: [ep_st(n, 1)]}
def small_phase(rb, nxt):
    scal = [(0, ["s_waitcnt lgkmcnt(4)"], True), (16, ["s_waitcnt lgkmcnt(0)"], True)]
    st = [Op(t, 0, 10) for t in fsm(rb, 15, 1)] + lfin(rb)
    if nxt is not None: st += [Op(t) for t in fsm(nxt, 15, 0)]
    blk, _ = schedule(phase_mf(rb), leftovers(3 * rb - 1), scal, st, [], "phase%d" % rb, excl=True)
    return blk
bufA = [("a", 96 + 4 * i) for i in range(8)]
mf, frag = group_block([0, 1, 2], bufA, Qf, True)
pinned = {}
for i, (use, ins, _) in enumerate(frag):
    if i < 2: continue
    place(pinned, max(0 if i < 8 else frag[i - 8][2], use - 15 + (i & 1)), ins)
g = 80; gv = {}
for n in range(24):
    free = 1 + max(k for k, t in enumerate(mf[:108]) if ("a%d" % vres[n][1]) in Ins(t).rd)
    g = place(pinned, max(g, free), vrd(vres[n], 14 + n // 12, n % 12))
    gv[n] = g; g += (1 if n < 17 and n not in (9, 11) else 2)
place(pinned, 124, ["ds_read_b64 v[16:17], v%d offset:%d" % (vQA, 2 * QRB)])
scal = [(3, ["s_waitcnt vmcnt(12)", "s_barrier"], False), (74, ["s_waitcnt vmcnt(3)", "s_barrier"], False)]
st = [Op(t) for h in range(2) for t in sm(4, 1, h)] + block_stream(mf, [0, 1, 2], 5)
st[100:100] = [Op("v_subrev_u32 %s, %d, %s" % (V(vVA[x]), VRING, V(vVA[x])), gv[8 + x], gv[12 + x] - 1) for x in range(4)]
blk, _ = schedule(mf, pinned, scal, st, q0, "blockA", excl=True)
T += blk
if "fine" in opts: T += stamp(1)
A("s_waitcnt lgkmcnt(0)")
A("v_mov_b32 v%d, v17" % eR)
for x in (1, 2, 3): A("v_xor_b32 v%d, %d, v16" % (eW[x], 32 * x))
burst(0)
T += small_phase(1, 2); burst(1)
T += small_phase(2, None)
bufB = [("v", 96 + 4 * i) for i in range(8)]
def qfB(rb, ks): return Qf(rb, ks) if rb < 4 else V(128 + 24 * (rb - 4) + 4 * ks, 4)
mfB, fragB = group_block([3, 4, 5], bufB, qfB, False)
pre = [fragB[i][1][0] for i in range(4)] + [q_read(qfB(rb, k), rb - 4, k) for k in range(6) for rb in LATE]
for t in pre: A(t)
for x in range(4): A("v_mov_b32 v%d, v%d" % (G[0][0] + x, eW[x]))
eW = [G[0][0] + x for x in range(4)]
for a_ in vVA: A("v_add_u32 %s, %d, %s" % (V(a_), VRING, V(a_)))
burst(2)
if "fine" in opts: T += stamp(2)
pinned = leftovers(8)
for i, (use, ins, _) in enumerate(fragB):
    if i < 4: continue
    g = place(pinned, max(0 if i < 8 else fragB[i - 8][2], use - 15 + (i & 1)), ins)
later = sum(1 for g in range(9, 16) for t in pinned.get(g, []) if t.startswith("ds_")) + len(pinned[8]) - 1
scal = [(0, ["s_waitcnt lgkmcnt(4)"], True), (16, ["s_waitcnt lgkmcnt(%d)" % later], True)]
blk, _ = schedule(mfB, pinned, scal, [Op(t, 0, 35) for h in range(2) for t in sm(5, 1, h)] + block_stream(mfB, [3, 4, 5], 7), [], "blockB", excl=True)
T += blk
if "fine" in opts: T += stamp(0)
burst(3)
T += small_phase(4, 5); burst(4)
T += small_phase(5, None)
T += stamp(4)
burst(5)
A("s_waitcnt lgkmcnt(4)")
A(ep_st(16, 0)); A(ep_st(16, 1))
for t in ep_rd(17): A(t)
A("s_cmp_eq_u64 %s, 0" % sBad)
A("s_cbranch_scc1 L_good")
A("v_mov_b32 v2, %d" % FLAG); A("v_mov_b32 v3, 1")
A("ds_write_b32 v2, v3")
A("L_good:")
A("s_waitcnt lgkmcnt(0)")
A(ep_st(17, 0)); A(ep_st(17, 1))
if STAMP:
    T += stamp(5)
    A("s_waitcnt vmcnt(0)")
    T += stamp(6)
    A("s_waitcnt lgkmcnt(0)")
    if "probe" in opts:
        pi, pj = [int(x) for x in opts["probe"].split(",")]
        A("s_sub_u32 s84, s%d, s%d" % (60 + 2 * pj, 60 + 2 * pi))
        if "pneg" in opts: A("s_sub_u32 s84, %s, s84" % opts["pneg"])
        if STAMP == 6:
            A("s_min_u32 s84, s84, 40000"); A("s_memrealtime s[72:73]"); A("s_waitcnt lgkmcnt(0)")
        else:
            A("s_min_u32 s84, s84, 10000")
            A("s_lshl_b32 s84, s84, 2")
        if "pcls" in opts:
            A("s_bfe_u32 s85, s2, 0x%x" % int(opts["pbits"], 16)); A("s_cmp_eq_u32 s85, %s" % opts["pcls"]); A("s_cselect_b32 s84, s84, 0")
        A("L_spin:"); A("s_sleep 2"); A("s_memrealtime s[82:83]"); A("s_waitcnt lgkmcnt(0)")
        A("s_sub_u32 s85, s82, s72"); A("s_cmp_lt_u32 s85, s84"); A("s_cbranch_scc1 L_spin")
    A("s_lshl_b32 s3, s2, 2"); A("s_add_u32 s3, s3, %s" % sWave); A("s_lshl_b32 s3, s3, 6")
    A("v_mov_b32 v10, s3")
    for i in range(16): A("v_mov_b32 v%d, s%d" % (16 + i, 60 + i))
    for i in range(4): A("buffer_store_dwordx4 v[%d:%d], v10, %s, 0 offen offset:%d" % (16 + 4 * i, 19 + 4 * i, sW, 16 * i))
A("s_barrier")
A("v_mov_b32 v0, %d" % FLAG)
A("ds_read_b32 v0, v0")
A("s_waitcnt lgkmcnt(0)")
A("v_readfirstlane_b32 %s, v0" % sTmp)
A("s_cmp_eq_u32 %s, 0" % sTmp)
A("s_cbranch_scc0 L_redo")
A("L_end:")
A("s_endpgm")
A("L_redo:")
A("s_waitcnt vmcnt(0)")
A("s_barrier")
A("v_mbcnt_lo_u32_b32 v0, -1, 0"); A("v_mbcnt_hi_u32_b32 v0, -1, v0")
A("s_lshl_b32 %s, %s, 6" % (sTmp, sWave))
A("v_add_u32 v0, %s, v0" % sTmp)

def I(l): return [Ins(t) for t in l]
seq = I(P + ["s_branch L_even"] + B0 + ["s_cbranch_scc1 L_loop"] + B1 + B0 + ["s_cbranch_scc1 L_loop"] + T)
errs = check_hazards(seq, "main") + check_waits(seq, "main")
for e in errs[:30]: sys.stderr.write(e + "\n")
if errs:
    print("!!! %d hazard problems" % len(errs)); sys.exit(1)
S, lds2, e2_ = gen_safe.build_safe({"qd": "3", "nt": NT})
assert lds2 <= LDS_BYTES and e2_ == 0

hdr = open("standalone__gqa_softmax__near_ridge.s.ref").read().split("; Override")[0]
out = [hdr.rstrip(), "; @launch grid=(256,1,1) block=(256,1,1) lds=%d" % LDS_BYTES,
       '.amdgcn_target "amdgcn-amd-amdhsa--gfx950"', ".text", ".globl %s" % KN, ".p2align 8", ".type %s,@function" % KN, "%s:" % KN, "L_start:"]
def emit(l):
    for t in l: out.append(t if t.endswith(":") or t.startswith(".") else "    " + t)
emit(P); emit(["s_branch L_even", ".p2align 6", "L_loop:"]); emit(B1); emit(["L_even:"]); emit(B0); emit(["s_cbranch_scc1 L_loop"]); emit(T); emit(S)
out += ['.section .rodata,"a"', ".p2align 6", ".amdhsa_kernel %s" % KN, "  .amdhsa_next_free_vgpr 512", "  .amdhsa_next_free_sgpr 96",
        "  .amdhsa_accum_offset 256", "  .amdhsa_group_segment_fixed_size 0", "  .amdhsa_kernarg_size 48", "  .amdhsa_user_sgpr_count 2",
        "  .amdhsa_user_sgpr_kernarg_segment_ptr 1", "  .amdhsa_system_sgpr_workgroup_id_x 1", ".end_amdhsa_kernel", ""]
open(sys.argv[1], "w").write("\n".join(out))
```

```python
import re

def expand(tok):
    tok = tok.strip()
    neg = tok.lstrip("-")
    m = re.fullmatch(r"abs\((.*)\)", neg)
    if m: neg = m.group(1)
    m = re.fullmatch(r"\|(.*)\|", neg)
    if m: neg = m.group(1)
    m = re.fullmatch(r"([vas])\[(\d+):(\d+)\]", neg)
    if m: return ["%s%d" % (m.group(1), i) for i in range(int(m.group(2)), int(m.group(3)) + 1)]
    m = re.fullmatch(r"([vas])(\d+)", neg)
    if m: return [neg]
    if neg in ("vcc", "exec", "m0", "scc"): return [neg]
    return []

TRANS = ("v_exp_f32", "v_rcp_f32", "v_log_f32", "v_rsq_f32", "v_sqrt_f32")

class Ins:
    def __init__(self, text):
        self.text = text.strip()
        t = self.text.split(";")[0].strip()
        self.rd = set(); self.wr = set()
        self.srcc = set(); self.ab = set()
        if t.endswith(":") or t.startswith(".") or not t:
            self.op = ""; self.kind = "label"; return
        parts = t.split(None, 1)
        op = parts[0]; self.op = op
        rest = parts[1] if len(parts) > 1 else ""
        ops = [x.strip() for x in rest.split(",")] if rest else []
        mods = ""
        if ops:
            l = ops[-1].split()
        rest2 = re.sub(r"\b(op_sel|op_sel_hi|neg_lo|neg_hi):\[[^\]]*\]", "", rest)
        ops = [x.strip() for x in rest2.split(",")] if rest2.strip() else []
        if ops:
            l = ops[-1].split(); ops[-1] = l[0] if l else ""; mods = " ".join(l[1:])
        self.mods = mods
        E = expand
        if op.startswith("v_mfma"):
            self.kind = "mfma"
            self.wr |= set(E(ops[0])); self.ab |= set(E(ops[1])) | set(E(ops[2])); self.srcc |= set(E(ops[3]))
            self.rd |= self.ab | self.srcc
            self.passes = 4 if "16x16x32" in op else 8
        elif op.startswith("ds_read"):
            self.kind = "ds"; self.wr |= set(E(ops[0])); self.rd |= set(E(ops[1]))
        elif op.startswith("ds_write"):
            self.kind = "ds"
            for o in ops: self.rd |= set(E(o))
        elif op.startswith("buffer_load"):
            self.kind = "vmem"
            if "lds" in mods.split():
                for o in ops: self.rd |= set(E(o))
                self.rd.add("m0")
            else:
                self.wr |= set(E(ops[0]))
                for o in ops[1:]: self.rd |= set(E(o))
        elif op.startswith("buffer_store") or op.startswith("buffer_atomic"):
            self.kind = "vmem"; self.store_data = set(E(ops[0]))
            for o in ops: self.rd |= set(E(o))
        elif op.startswith("global_load"):
            self.kind = "vmem"; self.wr |= set(E(ops[0]))
            for o in ops[1:]: self.rd |= set(E(o))
        elif op.startswith("v_cmp"):
            self.kind = "valu"; self.wr |= set(E(ops[0]))
            for o in ops[1:]: self.rd |= set(E(o))
        elif op.startswith("v_permlane") and "swap" in op:
            self.kind = "valu"
            for o in ops: self.rd |= set(E(o)); self.wr |= set(E(o))
        elif op == "v_nop": self.kind = "valu"
        elif op.startswith("v_"):
            self.kind = "trans" if op.replace("_e32", "").replace("_e64", "") in TRANS else "valu"
            self.wr |= set(E(ops[0]))
            for o in ops[1:]: self.rd |= set(E(o))
            if op.startswith("v_fmac") or op.startswith("v_dot2c"): self.rd |= set(E(ops[0]))
            if op.startswith("v_cndmask") and len(ops) == 3: self.rd.add("vcc")
        elif op == "s_waitcnt": self.kind = "wait"
        elif op == "s_barrier": self.kind = "barrier"
        elif op == "s_nop": self.kind = "nop"; self.n = int(ops[0], 0) + 1
        elif op.startswith("s_cbranch") or op in ("s_branch", "s_setpc_b64", "s_swappc_b64", "s_call_b64", "s_endpgm"):
            self.kind = "branch"
            if "vcc" in op: self.rd.add("vcc")
            if "scc" in op: self.rd.add("scc")
            if op == "s_setpc_b64": self.rd |= set(E(ops[0]))
            if op == "s_call_b64": self.wr |= set(E(ops[0]))
        elif op.startswith("s_load") or op.startswith("s_mem"):
            self.kind = "smem"; self.wr |= set(E(ops[0]))
            for o in ops[1:]: self.rd |= set(E(o))
        elif op.startswith("s_cmp") or op.startswith("s_bitcmp"):
            self.kind = "salu"; self.wr.add("scc")
            for o in ops: self.rd |= set(E(o))
        elif op in ("s_setprio", "s_sleep"): self.kind = "salu"
        elif op.startswith("s_"):
            self.kind = "salu"; self.wr |= set(E(ops[0]))
            for o in ops[1:]: self.rd |= set(E(o))
            if op.startswith(("s_cselect", "s_addc", "s_subb")): self.rd.add("scc")
            if not op.startswith(("s_mov", "s_mul", "s_cselect", "s_getpc", "s_getreg")): self.wr.add("scc")
        else:
            raise ValueError("unknown instr: " + text)
    def states(self):
        if self.kind == "label": return 0
        if self.kind == "nop": return self.n
        return 1
    def isvalu(self): return self.kind in ("valu", "trans")

def check_hazards(seq, name=""):
    errs = []
    n = len(seq)
    for i, c in enumerate(seq):
        if c.kind in ("label", "nop", "wait", "barrier"): continue
        dist = 0
        for k in range(i - 1, max(-1, i - 40), -1):
            p = seq[k]
            need = 0; why = ""
            def upd(v, w):
                nonlocal need, why
                if v > need: need, why = v, w
            if p.isvalu():
                vw = {r for r in p.wr if r[0] in "va" and r != "vcc"}
                sw = {r for r in p.wr if r[0] == "s" or r == "vcc"}
                if c.kind == "mfma" and vw & c.rd: upd(2, "valu->mfma")
                if p.kind == "trans" and c.kind == "valu" and vw & c.rd: upd(1, "trans->valu")
                if c.op.startswith("v_permlane") and vw & c.rd: upd(2, "valu->permlane")
                if c.op.startswith(("v_readfirstlane", "v_readlane")) and vw & c.rd: upd(1, "valu->readlane")
                if c.kind == "vmem" and sw & c.rd: upd(5, "valu sgpr->vmem")
                if c.isvalu() and sw & c.rd: upd(2, "valu sgpr->valu")
                if "dpp" in c.text and vw & c.rd: upd(2, "valu->dpp")
            if p.kind == "mfma":
                lat = {4: 8, 8: 12}[p.passes]
                if c.kind == "mfma":
                    if p.wr & c.ab: upd(lat, "mfma D->mfma AB")
                    if p.wr & c.srcc and not (p.wr == c.srcc and p.passes == c.passes): upd(lat - 2, "mfma D->mfma C overlap")
                elif c.isvalu() or c.kind in ("ds", "vmem"):
                    if p.wr & (c.rd | c.wr): upd(lat, "mfma D->valu/mem")
                    if c.isvalu() and p.srcc & c.wr: upd({4: 3, 8: 7}[p.passes], "mfma C WAR")
            if p.kind == "salu" and "m0" in p.wr and c.kind == "vmem" and "m0" in c.rd: upd(1, "m0->ldsdma")
            if p.kind == "vmem" and hasattr(p, "store_data") and len(p.store_data) >= 3 and p.store_data & c.wr:
                upd(2, "store data WAR")
            if need > dist:
                errs.append("%s: [%d] '%s' -> [%d] '%s' need %d have %d (%s)" % (name, k, p.text, i, c.text, need, dist, why))
            dist += p.states()
            if dist >= 20: break
    return errs

def check_waits(seq, name=""):
    errs = []
    ds = []; vm = []
    for i, c in enumerate(seq):
        if c.kind == "wait":
            m = re.search(r"lgkmcnt\((\d+)\)", c.text)
            if m:
                k = int(m.group(1)); ds = ds[len(ds) - k:] if k < len(ds) and k > 0 else ([] if k == 0 else ds)
            m = re.search(r"vmcnt\((\d+)\)", c.text)
            if m:
                k = int(m.group(1)); vm = vm[len(vm) - k:] if k < len(vm) and k > 0 else ([] if k == 0 else vm)
            continue
        for q, nm in ((ds, "ds"), (vm, "vm")):
            for w in q:
                if w & (c.rd | c.wr):
                    errs.append("%s: [%d] '%s' touches regs of outstanding %s load %s" % (name, i, c.text, nm, sorted(w & (c.rd | c.wr))))
        if c.kind in ("ds", "smem"): ds.append(set(c.wr))
        if c.kind == "vmem": vm.append(set(c.wr))
        if len(vm) > 63: errs.append("%s: [%d] vmcnt overflow" % (name, i))
    return errs

def check_scc(seq, name=""):
    errs = []; last = None
    for i, c in enumerate(seq):
        if "scc" in c.rd:
            ok = last is not None and (last.op.startswith(("s_cmp", "s_bitcmp")) if not c.op.startswith("s_addc") else last.op == "s_add_u32")
            if not ok: errs.append("%s: [%d] '%s' reads SCC last written by '%s'" % (name, i, c.text, last.text if last else None))
        if "scc" in c.wr: last = c
    return errs
```

```python
import sys, math, struct
from asmlib import *
from sched import *
import gen_safe

opts = dict(a.split("=") for a in sys.argv[2:])
STAMP = int(opts.get("stamp", 0))
NT = opts.get("nt", "nt").replace("+", " ")
SPOL = opts.get("spol", "sc1").replace("+", " ")
QD = int(opts.get("qd", 3))
DEF = int(opts.get("defer", 0))
STG2 = [tuple(int(y) for y in x.split(":")) for x in opts.get("stg2", "").split(",") if x]
KN = "standalone__gqa_softmax__near_ridge_kernel"
def f2u(x): return struct.unpack("<I", struct.pack("<f", x))[0]
CSCALE = f2u(math.log2(math.e) / math.sqrt(192.0))

KRING = 0; VRING = 36864; VX = 73728; QLDS = 98304; SLOT = 12288
QKS = 1088; QRB = 6 * QKS; QWAVE = 2 * QRB + 1024
FLAG = QLDS + 4 * QWAVE
LDS_BYTES = FLAG + 64
def V(i, n=1): return "v%d" % i if n == 1 else "v[%d:%d]" % (i, i + n - 1)
def Ac(i, n=1): return "a%d" % i if n == 1 else "a[%d:%d]" % (i, i + n - 1)
vKA = [0, 1]; vVA = [2, 3, 4, 5]; vQA = 6; vDMA = 7
vL = [8 + i for i in range(6)]; vQG = 14; vQW = 15
FB = [Ac(96 + 4 * i, 4) for i in range(4)]
FQ = {4: [Ac(112, 4), Ac(116, 4)], 5: [Ac(120, 4), Ac(124, 4)]}
EARLY = [0, 1, 2, 3]; LATE = [4, 5]
G = {}; X = {}
r = 16
for rb in LATE:
    G[rb] = [r, r + 4]; X[rb] = [r + 8, r + 12]; r += 16
for rb in EARLY:
    G[rb] = [r, r + 4]; X[rb] = [r + 8, r + 8]; r += 12
assert r == 96
def Oreg(rb, db):
    b = rb * 12 + db
    return ("v", 96 + 4 * b) if b < 40 else ("a", 128 + 4 * (b - 40))
def O4(rb, db):
    f, i = Oreg(rb, db); return "%s[%d:%d]" % (f, i, i + 3)
def Qf(rb, ks): return Ac(rb * 24 + ks * 4, 4) if rb < 4 else FQ[rb][ks & 1]
sQ = "s[20:23]"; sK = "s[24:27]"; sV = "s[28:31]"; sO = "s[32:35]"; sW = "s[36:39]"
sC2 = "s[40:41]"; sIT = "s42"; sKoff = "s43"; sVoff = "s44"; sKm = "s45"; sVm = "s46"; sWave = "s47"
sTmp = "s48"; sRow = "s49"; sKend = "s50"; sVend = "s51"; sKbeg = "s52"; sVbeg = "s53"; sQL = "s16"; sCls = "s17"
sVX = "s[84:87]"; sXoff = "s74"; sXm = "s75"; sKr = "s82"; sVr = "s83"; sKd = "s92"; sVd = "s93"
sMask = "s54"; sLo = "s76"; sHi = "s77"; sBad = "s[78:79]"; sB2 = "s[80:81]"
def sRB(rb): return "0" if rb == 0 else "s%d" % (54 + rb)
MF = "v_mfma_f32_16x16x32_bf16"

def k_read(dst, tile_par, ks, hf):
    return "ds_read_b128 %s, %s offset:%d" % (dst, V(vKA[ks & 1]), tile_par * SLOT + (ks >> 1) * 4096 + hf * 2048)
def v_read(a0, tile_par, db):
    return ["ds_read_b64_tr_b16 %s, %s offset:%d" % (Ac(a0 + 2 * i, 2), V(vVA[db & 3]), tile_par * SLOT + (db >> 2) * 4096 + i * 2048) for i in range(2)]
def q_read(dst, area, ks):
    return "ds_read_b128 %s, %s offset:%d" % (dst, V(vQA), area * QRB + ks * QKS)
def qk_mfmas(par, last_up=False):
    out = []
    for g in range(6):
        p, hf = g >> 1, g & 1
        for rb in (range(6) if hf == 0 or (last_up and g == 5) else range(5, -1, -1)):
            for k in range(2):
                ks = 2 * p + k
                d = V((G[rb][par] if hf == 0 else X[rb][par]), 4)
                out.append("%s %s, %s, %s, %s" % (MF, d, FB[(2 * g + k) % 4], Qf(rb, ks), "0" if ks == 0 else d))
    return out
def sregs(rb, par): return [G[rb][par] + i for i in range(4)] + [X[rb][par] + i for i in range(4)]
def sm(rb, par, half):
    ops = []; s = sregs(rb, par)
    for i in (4 * half, 4 * half + 2):
        ops.append("v_exp_f32 %s, %s" % (V(s[i]), V(s[i])))
        ops.append("v_exp_f32 %s, %s" % (V(s[i + 1]), V(s[i + 1])))
        ops.append("v_add_f32 %s, %s, %s" % (V(vL[rb]), V(vL[rb]), V(s[i])))
        ops.append("v_add_f32 %s, %s, %s" % (V(vL[rb]), V(vL[rb]), V(s[i + 1])))
        ops.append("v_cvt_pk_bf16_f32 %s, %s, %s" % (V(G[rb][par] + i // 2), V(s[i]), V(s[i + 1])))
    return ops
def last_write_slot(mf, reg): return max(g for g, t in enumerate(mf) if reg in Ins(t).wr)
def paced(ops, g0, g1, floor=0, dead=10 ** 9):
    os_ = [Op(t) for t in ops]; tot = sum(o.cost for o in os_); acc = 0
    for o in os_:
        o.ming = max(floor, int(g0 + (g1 - g0) * acc / tot)); o.dead = dead; acc += o.cost
    return os_
def pin_qk(pinned, qk, tile_par, nq):
    def pin(g, t): pinned.setdefault(g, []).append(t)
    for g in range(1, 6):
        for k in range(2): pin(12 * (g - 1) + 2 * k, k_read(FB[(2 * g + k) % 4], tile_par, 2 * (g >> 1) + k, g & 1))
    lastq = {}
    for g, t in enumerate(qk):
        for rb in LATE:
            for k in range(2):
                if FQ[rb][k] in t: lastq[(g // 24, rb, k)] = g
    for p in range(nq):
        g = 0
        for (lg, rb, k) in sorted((lastq[(p, rb, k)], rb, k) for rb in LATE for k in range(2)):
            g = max(g, lg + 1)
            while g in pinned: g += 1
            pin(g, q_read(FQ[rb][k], rb - 4, (2 * p + 2 + k) % 6)); g += 2

def body(par, ds_in, peel=False):
    np_ = par ^ 1
    qk = qk_mfmas(np_)
    mf = qk + ["%s %s, %s, %s, %s" % (MF, O4(rb, db), FB[db % 4], V(G[rb][par], 4), O4(rb, db)) for db in range(12) for rb in range(6)]
    pinned = {}
    def pin(g, t): pinned.setdefault(g, []).append(t)
    for db in range(12):
        for t in v_read(96 + 4 * (db % 4), 0, db): pin({0: 60, 1: 63, 2: 72, 3: 75}.get(db, 72 + 6 * (db - 3)), t)
    pin(127, k_read(FB[0], 0, 0, 0)); pin(133, k_read(FB[1], 0, 1, 0))
    pin_qk(pinned, qk, 0, 3)
    scal = [(57, ["s_waitcnt vmcnt(%d) lgkmcnt(0)" % (7 - par)], True), (58, ["s_barrier"], True)]
    if par == 1:
        scal.append((61, ["s_mov_b32 m0, %s" % sXm], True))
        pin(62, "buffer_load_dwordx4 %s, %s, %s offen %s lds" % (V(vDMA), sVX, sXoff, NT))
        scal.append((63, ["s_cmp_eq_u32 %s, 3" % sIT, "s_cselect_b32 %s, %d, 128" % (sTmp, SLOT - 256) if False else "s_cselect_b32 %s, s94, s95" % sTmp,
                          "s_add_u32 %s, %s, %s" % (sXoff, sXoff, sTmp), "s_add_u32 %s, %s, 4096" % (sXm, sXm)], False))
    adv = []
    for cnt, d in ((sVr, sVd), (sKr, sKd)):
        adv += ["s_add_u32 %s, %s, 1" % (cnt, cnt), "s_cmp_eq_u32 %s, 3" % cnt, "s_cselect_b32 %s, 0, %s" % (cnt, cnt),
                "s_cselect_b32 %s, s90, s91" % d]
    if peel: adv = ["s_mov_b32 %s, 0" % sVr, "s_mov_b32 %s, s90" % sVd, "s_mov_b32 %s, 2" % sKr, "s_mov_b32 %s, s91" % sKd]
    scal.append((1, adv, False))
    if peel:
        xg = [int(x) for x in opts.get("xg", "5,21,33,45,67,77").split(",")]
        xl = [(k, x, cb) for k, x in (("V", 1), ("K", 3)) for cb in range(3)]
        for g, (k, x, cb) in zip(xg, xl):
            srd_, beg = (sK, sKbeg) if k == "K" else (sV, sVbeg)
            assert g not in pinned and (g - 2) not in xg and (g - 1) not in xg, g
            if cb == 0: scal.append((g - 2, ["s_mov_b32 %s, %d" % (sTmp, x * SLOT)], True))
            scal.append((g - 1, ["s_add_u32 m0, %s, %d" % (beg, (x % 3) * SLOT + cb * (4096 - 128))], True))
            pin(g, "buffer_load_dwordx4 %s, %s, %s offen offset:%d %s lds" % (V(vDMA), srd_, sTmp, cb * 128, NT))
        dgp = [int(x) for x in opts.get("dgp", "87,99,111,119,130,141").split(",")]
        scal[0] = (57, ["s_waitcnt vmcnt(%d) lgkmcnt(0)" % (3 + sum(1 for g in xg if g < 57))], True)
        scal.append((121, ["s_waitcnt vmcnt(%d)" % sum(1 for g in xg + dgp if g < 121)], True)); scal.append((122, ["s_barrier"], True))
    if par == 0 and not peel and int(opts.get("keep", 0)):
        scal.append((2, ["s_cmp_eq_u32 %s, 6" % sIT, "s_cselect_b32 %s, 0, %s" % (sVoff, sVoff)], False))
    for i in range(int(opts.get("slow", 0))):
        g = [30, 101, 54, 138, 10, 83][i]
        if peel: scal.append((g, ["s_sleep 1"], True))
        else: scal.append((g, ["s_cmp_lt_u32 %s, %d" % (sIT, int(opts.get("slowit", 3))), "s_cbranch_scc0 L_sl%d_%d" % (par, i), "s_sleep 1", "L_sl%d_%d:" % (par, i)], True))
    OW = int(opts.get("ow", 0))
    if par == 0 and OW:
        scal.append((2, ["s_cmp_eq_u32 %s, 6" % sIT, "s_cselect_b32 s28, s32, s28", "s_cselect_b32 s29, s33, s29", "s_cselect_b32 s30, s34, s30",
                         "s_cselect_b32 %s, 0, %s" % (sVoff, sVoff), "s_cselect_b32 s86, %d, 0" % (61440 if OW == 2 else 0)], False))
        scal.append((107, ["s_add_u32 %s, %s, s86" % (sVoff, sVoff)], False)); scal.append((119, ["s_add_u32 %s, %s, s86" % (sVoff, sVoff)], False))
    dg = [int(x) for x in opts.get("dg", "71,81,93,105,117,130").split(",")] if not peel else dgp
    for i in range(6):
        srd_, so, sm_ = (sK, sKoff, sKm) if i < 3 else (sV, sVoff, sVm)
        assert dg[i] not in pinned
        scal.append((dg[i] - 1, ["s_add_u32 m0, %s, %d" % (sm_, (i % 3) * (4096 - 128))], True))
        pin(dg[i], "buffer_load_dwordx4 %s, %s, %s offen offset:%d %s lds" % (V(vDMA), srd_, so, (i % 3) * 128, NT))
    for g, so, m, end, beg in () if peel else ((dg[2] + 1 if dg[3] - dg[2] > 8 else dg[5] + 8, sKoff, sKm, sKend, sKbeg), (dg[5] + 1, sVoff, sVm, sVend, sVbeg)):
        scal.append((g, ["s_add_u32 %s, %s, %d" % (so, so, SLOT), "s_add_u32 %s, %s, %d" % (m, m, SLOT),
                         "s_cmp_eq_u32 %s, %s" % (m, end), "s_cselect_b32 %s, %s, %s" % (m, beg, m)], False))
    if par == 0 and not peel: scal.append((139, ["s_add_u32 %s, %s, 1" % (sIT, sIT), "s_cmp_lt_u32 %s, 7" % sIT], False))
    st = paced(sum([sm(rb, par, h) for rb in LATE for h in range(2)], []), 0, 50, dead=70)
    st += [Op("v_add_u32 %s, %s, %s" % (V(a), sVd, V(a)), 44, 56) for a in vVA]
    st += [Op("v_add_u32 %s, %s, %s" % (V(a), sKd, V(a)), 52, 125) for a in vKA]
    E0, E1 = 55, 140
    for n, (rb, h) in enumerate([(0, 0), (1, 0), (2, 0), (3, 0), (3, 1), (2, 1), (1, 1), (0, 1)]):
        ready = last_write_slot(qk, "v%d" % sregs(rb, np_)[4 * h]) + 5
        st += paced(sm(rb, np_, h), E0 + (E1 - E0) * n / 8, E0 + (E1 - E0) * (n + 1) / 8, floor=ready)
    def capf(cap, sc, pin_):
        for g in range(144):
            if "s_barrier" in sc.get(g, []): cap[g] = 0
    return schedule(mf, pinned, scal, st, ds_in, "body%d" % par, next_first=qk_mfmas(par)[0], excl=True, capf=capf)

def stamp(i):
    if STAMP in (1, 3): return ["s_memrealtime s[%d:%d]" % (60 + 2 * i, 61 + 2 * i)]
    if STAMP == 7:
        o = ["s_memrealtime s[%d:%d]" % (60 + 2 * i, 61 + 2 * i)] if i in (0, 2, 3, 6, 7) else []
        c = {2: 1, 7: 4, 3: 5}.get(i)
        return o + (["s_memtime s[%d:%d]" % (60 + 2 * c, 61 + 2 * c)] if c else [])
    if STAMP == 6: return ["s_memtime s[%d:%d]" % (60 + 2 * i, 61 + 2 * i)]
    return []

P = []
A = P.append
A("s_cmp_ge_u32 s2, 256")
A("s_cbranch_scc1 L_end")
A("s_load_dwordx4 s[4:7], s[0:1], 0")
A("s_load_dwordx4 s[8:11], s[0:1], 16")
if STAMP: A("s_load_dwordx2 s[12:13], s[0:1], 40")
P += stamp(0)
A("s_getpc_b64 s[18:19]")
A("v_lshlrev_b32 v240, 7, v0")
A("L_pc:")
A("v_min_u32 v240, CODELEN, v240")
A("v_add_u32 v240, CODEOFF, v240")
A("global_load_dword v241, v240, s[18:19]")
vLN = 242; t2 = 243; t3 = 244; t4 = 245; t5 = 246; t6 = 247
A("v_lshrrev_b32 v%d, 6, v0" % t2)
A("v_and_b32 v%d, 63, v0" % vLN)
A("s_mul_i32 s14, s2, 147456")
A("v_readfirstlane_b32 %s, v%d" % (sWave, t2))
A("s_mul_i32 s15, s2, 196608")
A("s_bfe_u32 %s, s2, 0x30003" % sCls)
A("v_lshrrev_b32 v%d, 3, v%d" % (t5, vLN))
A("v_mul_u32_u24 v%d, 384, v%d" % (t6, t5))
A("v_lshrrev_b32 v%d, 4, v%d" % (t3, vLN))
A("v_lshlrev_b32 v%d, 1, v%d" % (t4, t3))
A("v_xor_b32 v%d, v%d, v%d" % (t4, t4, vLN))
A("v_and_b32 v%d, 7, v%d" % (t4, t4))
A("v_lshl_add_u32 v%d, v%d, 4, v%d" % (vDMA, t4, t6))
A("s_mul_i32 %s, %s, 3072" % (sTmp, sWave))
A("v_add_u32 v%d, %s, v%d" % (vDMA, sTmp, vDMA))
A("v_and_b32 v%d, 7, v%d" % (t4, vLN))
A("v_lshl_add_u32 v%d, v%d, 4, v%d" % (vQG, t4, t6))
A("s_mul_i32 %s, %s, 36864" % (sRow, sWave))
A("v_add_u32 v%d, %s, v%d" % (vQG, sRow, vQG))
A("s_lshl_b32 %s, %s, 10" % (sKbeg, sWave))
A("s_add_u32 %s, %s, %d" % (sVbeg, sKbeg, VRING))
for rb in range(1, 6): A("s_mov_b32 %s, %d" % (sRB(rb), rb * 6144))
if STG2:
    A("s_mov_b32 s3, 0")
    for i, (lo, hi, k, cnt) in enumerate(STG2):
        A("s_sub_u32 %s, %s, %d" % (sTmp, sCls, lo)); A("s_cmp_lt_u32 %s, %d" % (sTmp, hi - lo)); A("s_cselect_b32 s3, %d, s3" % (1 << i))
A("s_waitcnt lgkmcnt(0)")
def srd(base, src, off, size):
    A("s_add_u32 s%d, s%d, %s" % (base, src, off)); A("s_addc_u32 s%d, s%d, 0" % (base + 1, src + 1))
    A("s_mov_b32 s%d, %d" % (base + 2, size)); A("s_mov_b32 s%d, 0x20000" % (base + 3))
vm = []
def raw(rb, i): return 96 + rb * 24 + i * 4
def issue(k, x, i):
    if k == "Q":
        A("buffer_load_dwordx4 %s, v%d, %s, %s offen offset:%d %s" % (V(raw(x, i), 4), vQG, sQ, sRB(x), (i & 1) * 3072 + (i >> 1) * 128, NT))
        vm.append("Q%d.%d" % (x, i))
    else:
        srd_, beg = (sK, sKbeg) if k == "K" else (sV, sVbeg)
        A("s_add_u32 m0, %s, %d" % (beg, (x % 3) * SLOT + i * (4096 - 128)))
        A("s_mov_b32 %s, %d" % (sTmp, x * SLOT))
        A("buffer_load_dwordx4 %s, %s, %s offen offset:%d %s lds" % (V(vDMA), srd_, sTmp, i * 128, NT))
        vm.append("%s%d" % (k, x))
    n = len(vm) - 1
    for ci, (lo, hi, kk, cnt) in enumerate(STG2):
        if kk <= n < cnt:
            A("s_bitcmp1_b32 s3, %d" % ci); A("s_cbranch_scc0 L_sg%d_%d" % (n, ci)); A("s_waitcnt vmcnt(%d)" % kk); A("L_sg%d_%d:" % (n, ci))
def vwait(name):
    last = max(i for i, x in enumerate(vm) if x == name)
    A("s_waitcnt vmcnt(%d)" % (len(vm) - 1 - last))
TLB = int(opts.get("tlb", 0))
srd(24, 6, "s15", 196608)
issue("K", 0, 0)
if TLB & 1:
    srd(32, 10, "s14", 147456); srd(28, 8, "s15", 196608)
    A("v_lshlrev_b32 v240, 9, v%d" % vLN)
    A("buffer_load_dword v250, v240, %s, %s offen nt" % (sO, sRow)); vm.append("t")
    A("buffer_load_dword v251, v%d, %s, 0 offen nt" % (vDMA, sV)); vm.append("t")
for cb in range(1, 3): issue("K", 0, cb)
K1E = int(opts.get("k1e", 0))
if K1E:
    for cb in range(3): issue("K", 1, cb)
srd(20, 4, "s14", 147456)
for rb in range(QD):
    for i in range(6): issue("Q", rb, i)
HOP = int(opts.get("hop", 1))
if HOP: A("s_branch L_main"); A(".p2align 12"); A("L_main:")
srd(28, 8, "s15", 14 * SLOT); srd(32, 10, "s14", 147456); srd(84, 8, "s15", 196608)
if STAMP:
    A("s_mov_b32 s36, s12"); A("s_mov_b32 s37, s13"); A("s_mov_b32 s38, 0x100000"); A("s_mov_b32 s39, 0x20000")
A("s_add_u32 %s, %s, %d" % (sKend, sKbeg, 3 * SLOT))
A("s_add_u32 %s, %s, %d" % (sVend, sVbeg, 3 * SLOT))
A("s_mul_i32 %s, %s, %d" % (sQL, sWave, QWAVE))
A("s_add_u32 %s, %s, %d" % (sQL, sQL, QLDS))
A("v_xor_b32 v%d, v%d, v%d" % (t2, t5, t4))
A("v_lshlrev_b32 v%d, 4, v%d" % (t2, t2))
A("v_lshl_add_u32 v%d, v%d, 7, v%d" % (t2, t5, t2))
A("s_mul_i32 %s, %s, 6144" % (sTmp, sWave))
A("s_cmp_lt_u32 %s, 2" % sWave)
A("s_cselect_b32 s3, %d, %d" % (1, 2))
A("s_mul_i32 s3, s3, %d" % SLOT)
A("s_add_u32 %s, %s, s3" % (sTmp, sTmp))
A("v_add_u32 v249, %s, v%d" % (sTmp, t2))
A("v_and_b32 v%d, 3, v%d" % (t4, vLN))
A("v_xor_b32 v%d, v%d, v%d" % (t2, t5, t4))
A("v_lshlrev_b32 v%d, 4, v%d" % (t2, t2))
A("v_lshl_add_u32 v%d, v%d, 8, v%d" % (t2, t4, t2))
A("v_bfe_u32 v%d, v%d, 2, 1" % (t4, vLN))
A("v_mul_u32_u24 v%d, %d, v%d" % (t4, QKS, t4))
A("v_add3_u32 v%d, v%d, v%d, %s" % (vQW, t2, t4, sQL))
A("v_and_b32 v%d, 15, v%d" % (t2, vLN))
A("v_xor_b32 v%d, v%d, v%d" % (t4, t2, t3))
A("v_lshlrev_b32 v%d, 4, v%d" % (t4, t4))
A("v_lshl_add_u32 v%d, v%d, 8, v%d" % (t4, t3, t4))
A("v_add_u32 v%d, %s, v%d" % (vQA, sQL, t4))
A("v_lshlrev_b32 v%d, 7, v%d" % (t6, t2))
A("v_lshrrev_b32 v%d, 5, v%d" % (t4, vLN))
A("v_xor_b32 v%d, v%d, v%d" % (t4, t4, vLN))
A("v_and_b32 v%d, 7, v%d" % (t4, t4))
A("v_lshl_add_u32 v%d, v%d, 4, v%d" % (t6, t4, t6))
A("v_xor_b32 v%d, v%d, v%d" % (t4, t3, t5))
A("v_and_b32 v%d, 1, v%d" % (t4, t4))
A("v_lshl_add_u32 v%d, v%d, 3, v%d" % (t6, t4, t6))
A("v_add_u32 v248, %s, v%d" % (sTmp, t6))
A("ds_write_b64 v%d, v[248:249] offset:%d" % (vQA, 2 * QRB))
A("v_and_b32 v%d, 6, v%d" % (t4, vLN))
A("v_xor_b32 v%d, v%d, v%d" % (t4, t4, t3))
A("v_lshlrev_b32 v%d, 4, v%d" % (t4, t4))
A("v_lshl_add_u32 v%d, v%d, 7, v%d" % (vKA[0], t2, t4))
A("v_xor_b32 v%d, 64, v%d" % (vKA[1], vKA[0]))
A("v_lshrrev_b32 v%d, 2, v%d" % (t4, vLN))
A("v_lshlrev_b32 v%d, 7, v%d" % (t4, t4))
A("v_and_b32 v%d, 3, v%d" % (t2, vLN))
A("v_lshl_add_u32 v%d, v%d, 3, v%d" % (t4, t2, t4))
A("v_bfe_u32 v%d, v%d, 3, 2" % (t2, vLN))
A("v_lshl_add_u32 v%d, v%d, 5, v%d" % (t4, t2, t4))
A("v_add_u32 v%d, %d, v%d" % (vVA[0], VRING + 2 * SLOT, t4))
for x in range(1, 4): A("v_xor_b32 v%d, %d, v%d" % (vVA[x], 32 * x, vVA[0]))
A("s_mov_b32 s40, 0x%x" % CSCALE); A("s_mov_b32 s41, 0x%x" % CSCALE)
A("s_mov_b32 %s, 0xffff0000" % sMask)
A("s_mov_b32 %s, 0" % sIT)
A("s_mov_b32 %s, %d" % (sKoff, 4 * SLOT))
A("s_mov_b32 %s, %d" % (sVoff, 2 * SLOT))
A("s_add_u32 %s, %s, %d" % (sKm, sKbeg, SLOT))
A("s_mov_b32 %s, %d" % (sXoff, 14 * SLOT)); A("s_add_u32 %s, %s, %d" % (sXm, sKbeg, VX))
A("s_mov_b32 s90, %d" % (-2 * SLOT)); A("s_mov_b32 s91, %d" % SLOT); A("s_mov_b32 s94, %d" % (SLOT - 256)); A("s_movk_i32 s95, 128")
A("s_add_u32 %s, %s, %d" % (sVm, sVbeg, 2 * SLOT))
A("s_mov_b32 %s, 0x%x" % (sLo, f2u(2.0 ** float(opts.get("llo", -20)))))
A("s_mov_b32 %s, 0x%x" % (sHi, f2u(2.0 ** float(opts.get("lhi", 24)))))
A("s_mov_b64 %s, 0" % sBad)
for i in vL: A("v_mov_b32 v%d, 0" % i)
ZR = FQ[5][1]
for i in range(4): A("v_accvgpr_write_b32 a%d, 0" % (124 + i))
A("v_mov_b32 v%d, %d" % (t2, FLAG))
A("ds_write_b32 v%d, v%d" % (t2, vL[0]))
def zero16(f, i): A("v_mfma_f32_32x32x16_bf16 %s[%d:%d], %s, %s, 0" % (f, i, i + 15, ZR, ZR))
for i in range(128, 256, 16): zero16("a", i)
A("HOPS0")
vwait("K1" if K1E else "K0")
A("s_waitcnt lgkmcnt(0)")
A("s_barrier")
K0F = [V(G[rb][1], 4) for rb in range(6)] + [V(X[rb][1], 4) for rb in LATE] + FB
for n in range(12): A(k_read(K0F[n], 0, n >> 1, n & 1))
def pro_sm(rb):
    ops = sm(rb, 0, 0) + sm(rb, 0, 1)
    for t in [t for t in ops if t.startswith("v_exp")] + ["s_nop 0"] + [t for t in ops if not t.startswith("v_exp")]: A(t)
pend = [("Q", rb, i) for rb in range(QD, 6) for i in range(6)]
pend += [(k, x, cb) for k, x in (("K", 1), ("V", 0), ("K", 2))[K1E:] for cb in range(3)]
deferred = pend[len(pend) - 3 * DEF:]; pend = pend[:len(pend) - 3 * DEF]
def qdst(rb, ks): return Ac(rb * 24 + ks * 4, 4) if rb < 4 else V(raw(rb, ks), 4)
def st_read(s_):
    rb, cb = divmod(s_, 3)
    for ks in (2 * cb, 2 * cb + 1): A(q_read(qdst(rb, ks), rb & 1, ks))
def st_mfma(s_):
    rb, cb = divmod(s_, 3)
    for hf in range(2):
        for ks in (2 * cb, 2 * cb + 1):
            d = V((G[rb][0] if hf == 0 else X[rb][0]), 4)
            A("%s %s, %s, %s, %s" % (MF, d, K0F[2 * ks + hf], qdst(rb, ks), "0" if ks == 0 else d))
nleft = 36
for s_ in range(18):
    rb, cb = divmod(s_, 3)
    for rh in range(2):
        i = 2 * cb + rh
        vwait("Q%d.%d" % (rb, i))
        if s_ == 17 and rh == 1: P += stamp(1)
        r0 = raw(rb, i); tb = 240 + 8 * rh
        for k in range(4):
            A("v_lshlrev_b32 v%d, 16, v%d" % (tb + 2 * k, r0 + k)); A("v_and_b32 v%d, %s, v%d" % (tb + 2 * k + 1, sMask, r0 + k))
        for k in range(4): A("v_pk_mul_f32 %s, %s, %s" % (V(tb + 2 * k, 2), V(tb + 2 * k, 2), sC2))
        for k in range(4): A("v_cvt_pk_bf16_f32 v%d, v%d, v%d" % (r0 + k, tb + 2 * k, tb + 2 * k + 1))
        if rh == 0 and s_ >= 1: st_read(s_ - 1)
        A("ds_write_b128 v%d, %s offset:%d" % (vQW, V(r0, 4), (rb & 1) * QRB + cb * 2 * QKS + rh * 128))
        if s_ == 17 and rh == 1: st_read(17)
        if pend and (pend[0][0] == "Q" or len(pend) >= nleft - int(opts.get("kvl", 3))):
            for _ in range(-(-len(pend) // nleft)): issue(*pend.pop(0))
        nleft -= 1
        if nleft == 0:
            for x in deferred[:3]: issue(*x)
    if s_ >= 1:
        A("s_waitcnt lgkmcnt(%d)" % (2 if s_ < 17 else 4)); st_mfma(s_ - 1)
        if "dum" in opts and s_ < 17:
            d0, d1 = [int(x) for x in opts["dum"].split(",")]
            rbp, cbp = divmod(s_ - 1, 3)
            for i in range(d0 + (d1 - d0) * s_ // 16):
                A("%s a[112:115], %s, %s, a[112:115]" % (MF, K0F[i % 12], qdst(rbp, 2 * cbp + (i & 1))))
    if cb == 1 and rb >= 1 and rb - 1 in EARLY: pro_sm(rb - 1)
    if s_ == int(opts.get("hs", 2)): A("HOPS1")
    for i in {7: (96, 112, 128), 13: (144, 160, 176), 16: (192, 208)}.get(s_, ()): zero16("v", i)
A("s_waitcnt lgkmcnt(0)")
st_mfma(17)
for i in (240, 224): zero16("v", i)
for x in deferred[3:]: issue(*x)
if not K1E:
    vwait("K1")
    A("s_barrier")
for a_ in vKA: A("v_add_u32 %s, %d, %s" % (V(a_), SLOT, V(a_)))
A(k_read(FB[0], 0, 0, 0)); A(k_read(FB[1], 0, 1, 0))
for rb in LATE:
    for k in range(2): A(q_read(FQ[rb][k], rb - 4, k))
if TLB & 2: A("buffer_load_dword v%d, v%d, %s, 0 offen nt" % (vQW, vQG, sO))
assert vm[-6:] == sum([[x] * 3 for x in ("V0", "K2")], []), vm
A("s_waitcnt lgkmcnt(0)")
P += stamp(2)

B0, q0 = body(0, [])
B1, q1 = body(1, q0)
B0, q0b = body(0, q1)
assert q0 == q0b
BP, qp_ = body(0, [], peel=True)
assert qp_ == q0
BP += ["s_add_u32 %s, %s, %d" % (sKoff, sKoff, SLOT), "s_add_u32 %s, %s, %d" % (sKm, sKm, SLOT),
       "s_add_u32 %s, %s, %d" % (sVoff, sVoff, SLOT), "s_mov_b32 %s, %s" % (sVm, sVbeg), "s_mov_b32 %s, 1" % sIT]
if STAMP == 7: BP += stamp(7)
if STAMP == 3:
    pre3 = ["s_mov_b32 m0, s13", "s_add_u32 s13, s13, 1", "v_writelane_b32 v15, s88, m0", "s_memrealtime s[88:89]"]
    BP = ["s_mov_b32 s13, 0", "s_mov_b32 s88, 0"] + pre3 + BP; B0 = pre3 + B0; B1 = pre3 + B1

T = []
A = T.append
T += stamp(3)
if STAMP == 3:
    T += pre3 + ["s_waitcnt lgkmcnt(0)"] + pre3[:3]
    A("v_mbcnt_lo_u32_b32 v16, -1, 0"); A("v_mbcnt_hi_u32_b32 v16, -1, v16"); A("v_lshlrev_b32 v16, 2, v16")
    A("s_lshl_b32 s3, s2, 2"); A("s_add_u32 s3, s3, %s" % sWave); A("s_lshl_b32 s3, s3, 8"); A("s_add_u32 s3, s3, 65536")
    A("buffer_store_dword v15, v16, %s, s3 offen" % sW)
eW = [16, 17, 18, 19]; eR = vQW; eS = vQG
for a_ in vKA: A("v_subrev_u32 %s, %d, %s" % (V(a_), 2 * SLOT, V(a_)))
def R4(x): return "%s[%d:%d]" % (x[0], x[1], x[1] + 3)
def R2(x, h): return "%s[%d:%d]" % (x[0], x[1] + 2 * h, x[1] + 2 * h + 1)
def vrd(dst, tile, db):
    return ["ds_read_b64_tr_b16 %s, %s offset:%d" % (R2(dst, i), V(vVA[db & 3]), {13: 1, 14: 3, 15: 4}[tile] * SLOT + (db >> 2) * 4096 + i * 2048) for i in range(2)]
X15 = {0: X[4][0], 1: X[5][0], 2: G[5][0], 3: X[0][0], 4: X[4][1], 5: X[5][1]}
G15 = {0: G[0][1], 1: G[1][1], 2: G[2][1], 3: G[1][0], 4: G[1][1], 5: G[2][0]}
def fs(rb, t): return [(G[rb][0] if t == 14 else G15[rb]) + i for i in range(4)] + [(X[rb][0] if t == 14 else X15[rb]) + i for i in range(4)]
def fsm(rb, t, half):
    ops = []; s_ = fs(rb, t)
    for i in (4 * half, 4 * half + 2):
        ops += ["v_exp_f32 %s, %s" % (V(s_[i]), V(s_[i])), "v_exp_f32 %s, %s" % (V(s_[i + 1]), V(s_[i + 1])),
                "v_add_f32 %s, %s, %s" % (V(vL[rb]), V(vL[rb]), V(s_[i])), "v_add_f32 %s, %s, %s" % (V(vL[rb]), V(vL[rb]), V(s_[i + 1])),
                "v_cvt_pk_bf16_f32 %s, %s, %s" % (V(s_[i // 2]), V(s_[i]), V(s_[i + 1]))]
    return ops
def qp(p): return [("a", rb * 24 + 8 * p + 4 * k) for rb in range(3) for k in range(2)]
def sb(*l): return [("a", 96 + 4 * i) for i in l]
vres = qp(0) + sb(4, 5) + qp(1) + sb(6, 7, 0, 1) + qp(2)
def v13(db): return ("v", 192 + 4 * db)
def phase_mf(rb):
    o = ["%s %s, %s, %s, %s" % (MF, O4(rb, db), R4(v13(db)), V(G[rb][1], 4), O4(rb, db)) for db in range(12)] if rb >= 3 else []
    return o + ["%s %s, %s, %s, %s" % (MF, O4(rb, db), R4(vres[12 * t + db]), V(fs(rb, 14 + t)[0], 4), O4(rb, db)) for t in range(2) for db in range(12)]
def lfin(rb):
    tmp = X15[rb]; l = vL[rb]; o = []
    for sw in ("v_permlane32_swap_b32", "v_permlane16_swap_b32"):
        o += ["v_mov_b32 v%d, v%d" % (tmp, l), "%s v%d, v%d" % (sw, l, tmp), "v_add_f32 v%d, v%d, v%d" % (l, l, tmp)]
    o += ["v_cmp_nle_f32 vcc, %s, v%d" % (sLo, l), "v_cmp_nge_f32 %s, %s, v%d" % (sB2, sHi, l), "v_rcp_f32 v%d, v%d" % (l, l)]
    return [Op(t) for t in o]
def wreg(n):
    fl, i0 = Oreg(n // 3, 4 * (n % 3))
    return i0 if fl == "v" else 96 + 16 * (n % 6)
def stg(n): return (n % 3) * 2048
def ep_st(n, rh):
    rb, cb = divmod(n, 3)
    return "buffer_store_dwordx4 %s, v%d, %s, %s offen offset:%d %s" % (V(wreg(n) + 8 + 4 * rh, 4), eS, sO, sRB(rb), rh * 3072 + cb * 128, SPOL)
def ep_rd(n):
    return ["ds_read_b128 %s, v%d offset:%d" % (V(wreg(n) + 8, 4), eR, stg(n))] + \
           ["ds_read_b64 %s, v%d offset:%d" % (V(wreg(n) + 12 + 2 * k, 2), eR, stg(n) + 1024 + 8 * (1 - k)) for k in range(2)]
ROWS = int(opts.get("rows", 1))
def burst(rb):
    A("s_or_b64 %s, %s, vcc" % (sBad, sBad)); A("s_or_b64 %s, %s, %s" % (sBad, sBad, sB2))
    lp = vL[rb] & ~1; sel = vL[rb] & 1
    for cb in range(3):
        n = 3 * rb + cb
        fl, i0 = Oreg(rb, 4 * cb); w = wreg(n)
        if fl == "a":
            for i in range(16): A("v_accvgpr_read_b32 %s, %s" % (V(w + i), Ac(i0 + i)))
        for i in range(0, 16, 2):
            A("v_pk_mul_f32 %s, %s, %s op_sel:[0,%d] op_sel_hi:[1,%d]" % (V(w + i, 2), V(w + i, 2), V(lp, 2), sel, sel))
        if cb == 2 and not ROWS: A("s_waitcnt lgkmcnt(4)"); A(ep_st(n - 2, 0))
        for i in range(8): A("v_cvt_pk_bf16_f32 %s, %s, %s" % (V(w + i), V(w + 2 * i), V(w + 2 * i + 1)))
        if cb == 2 and not ROWS: A(ep_st(n - 2, 1))
        if cb >= 1:
            for t in ep_rd(n - 1): A(t)
        for x in range(4):
            A("ds_write_b64 v%d, %s offset:%d" % (eW[x], V(w + 2 * x, 2), stg(n)))
def group_block(rbs, buf, qf, first):
    mf = []; frag = []
    for t in ((14, 13, 15) if first else (14, 15)):
        if t == 13:
            for db in range(12):
                b = buf[len(frag) % 8]; frag.append((len(mf), vrd(b, 13, db), len(mf) + 2))
                mf += ["%s %s, %s, %s, %s" % (MF, O4(rb, db), R4(b), V(G[rb][1], 4), O4(rb, db)) for rb in rbs]
        else:
            for g in range(6):
                p, hf = (g >> 1, g & 1) if (t == 15 and first) else (g % 3, g // 3)
                bs = [buf[(len(frag) + k) % 8] for k in range(2)]
                for k in range(2): frag.append((len(mf), [k_read(R4(bs[k]), 2 if t == 14 else 0, 2 * p + k, hf)], len(mf) + 5))
                for rb in rbs:
                    for k in range(2):
                        d = V(fs(rb, t)[4 * hf], 4)
                        mf.append("%s %s, %s, %s, %s" % (MF, d, R4(bs[k]), qf(rb, 2 * p + k), "0" if p + k == 0 else d))
    return mf + phase_mf(rbs[0]), frag
def place(pinned, g, ins):
    while len(pinned.get(g, [])) + len(ins) > 2 or any(t.startswith("buffer") for t in pinned.get(g, [])): g += 1
    pinned.setdefault(g, []).extend(ins); return g
def block_stream(mf, rbs, lag):
    st = []
    r0_, r1_, r2_ = rbs
    for rb, t, h in ((r0_, 14, 0), (r1_, 14, 0), (r2_, 14, 0), (r0_, 14, 1), (r1_, 14, 1), (r2_, 14, 1), (r0_, 15, 0), (r0_, 15, 1), (-1, 0, 0), (r1_, 15, 0)):
        if rb < 0: st += lfin(r0_); continue
        ready = last_write_slot(mf[:108], "v%d" % fs(rb, t)[4 * h]) + lag
        dead = 131 if rb != r0_ else (105 if t == 14 else 117)
        st += [Op(x, ready, dead) for x in fsm(rb, t, h)]
    return st
def leftovers(n):
    rd = ep_rd(n)
    if ROWS:
        d = {4: rd[:2], 5: rd[2:]}
        for i in range(6): d[11 + i + (i // 3) * int(opts.get("rgap", 2))] = [ep_st(n - 2 + i % 3, i // 3)]
        return d
    return {1: [ep_st(n - 1, 0)], 4: [ep_st(n - 1, 1)], 7: rd[:2], 8: rd[2:], 17: [ep_st(n, 0)], 20: [ep_st(n, 1)]}
def small_phase(rb, nxt):
    scal = [(0, ["s_waitcnt lgkmcnt(4)"], True), (16, ["s_waitcnt lgkmcnt(0)"], True)] if not ROWS else [(10, ["s_waitcnt lgkmcnt(0)"], True)]
    st = [Op(t, 0, 10) for t in fsm(rb, 15, 1)] + lfin(rb)
    if nxt is not None: st += [Op(t) for t in fsm(nxt, 15, 0)]
    blk, _ = schedule(phase_mf(rb), leftovers(3 * rb - 1), scal, st, [], "phase%d" % rb, excl=True)
    return blk
bufA = [("a", 96 + 4 * i) for i in range(8)]
mf, frag = group_block([0, 1, 2], bufA, Qf, True)
pinned = {}
for i, (use, ins, _) in enumerate(frag):
    if i < 2: continue
    place(pinned, max(0 if i < 8 else frag[i - 8][2], use - 15 + (i & 1)), ins)
g = 80; gv = {}
for n in range(24):
    free = 1 + max(k for k, t in enumerate(mf[:108]) if ("a%d" % vres[n][1]) in Ins(t).rd)
    g = place(pinned, max(g, free), vrd(vres[n], 14 + n // 12, n % 12))
    gv[n] = g; g += (1 if n < 17 else 2)
place(pinned, 124, ["ds_read_b64 v[16:17], v%d offset:%d" % (vQA, 2 * QRB)])
scal = [(13, ["s_waitcnt vmcnt(0)", "s_barrier"], False)]
st = [Op(t) for h in range(2) for t in sm(4, 1, h)] + block_stream(mf, [0, 1, 2], 5)
blk, _ = schedule(mf, pinned, scal, st, q0, "blockA", excl=True)
T += blk
if "fine" in opts: T += stamp(1)
A("s_waitcnt lgkmcnt(0)")
A("v_mov_b32 v%d, v17" % eR)
for x in (1, 2, 3): A("v_xor_b32 v%d, %d, v16" % (eW[x], 32 * x))
burst(0)
T += small_phase(1, 2); burst(1)
T += small_phase(2, None)
bufB = [("v", 96 + 4 * i) for i in range(8)]
def qfB(rb, ks): return Qf(rb, ks) if rb < 4 else V(128 + 24 * (rb - 4) + 4 * ks, 4)
mfB, fragB = group_block([3, 4, 5], bufB, qfB, False)
pre = [fragB[i][1][0] for i in range(4)] + [q_read(qfB(rb, k), rb - 4, k) for k in range(6) for rb in LATE]
for t in pre: A(t)
for x in range(4): A("v_mov_b32 v%d, v%d" % (G[0][0] + x, eW[x]))
eW = [G[0][0] + x for x in range(4)]
burst(2)
if "fine" in opts: T += stamp(2)
pinned = leftovers(8)
for i, (use, ins, _) in enumerate(fragB):
    if i < 4: continue
    g = place(pinned, max(0 if i < 8 else fragB[i - 8][2], use - 15 + (i & 1)), ins)
g = 22
for db in range(12): g = place(pinned, g, vrd(v13(db), 13, db)) + 3
if ROWS:
    later = sum(1 for g in range(6, 10) for t in pinned.get(g, []) if t.startswith("ds_")) + len(pinned[5]) - 1
    scal = [(10, ["s_waitcnt lgkmcnt(%d)" % later], True)]
else:
    later = sum(1 for g in range(9, 16) for t in pinned.get(g, []) if t.startswith("ds_")) + len(pinned[8]) - 1
    scal = [(0, ["s_waitcnt lgkmcnt(4)"], True), (16, ["s_waitcnt lgkmcnt(%d)" % later], True)]
st = [Op(t, 0, 50) for h in range(2) for t in sm(5, 1, h)]
for rb, t, h, dead in ((3, 14, 0, 81), (4, 14, 0, 107), (5, 14, 0, 107), (3, 14, 1, 81), (4, 14, 1, 107), (3, 15, 0, 93), (3, 15, 1, 93), (-1, 0, 0, 0), (5, 14, 1, 107)):
    if rb < 0: st += lfin(3); continue
    st += [Op(x, last_write_slot(mfB[:72], "v%d" % fs(rb, t)[4 * h]) + 7, dead) for x in fsm(rb, t, h)]
if ROWS: A("s_waitcnt lgkmcnt(7)")
blk, _ = schedule(mfB, pinned, scal, st, [], "blockB", excl=True)
T += blk
if "fine" in opts: T += stamp(0)
burst(3)
scal = [(0, ["s_waitcnt lgkmcnt(4)"], True), (16, ["s_waitcnt lgkmcnt(0)"], True)] if not ROWS else [(10, ["s_waitcnt lgkmcnt(0)"], True)]
st = [Op(t, 0, 22) for h in range(2) for t in fsm(4, 15, h)] + lfin(4) + [Op(t) for t in fsm(5, 15, 0)]
blk, _ = schedule(phase_mf(4), leftovers(11), scal, st, [], "phase4", excl=True)
T += blk
burst(4)
st = [Op(t, 0, 22) for t in fsm(5, 15, 1)] + lfin(5)
blk, _ = schedule(phase_mf(5), leftovers(14), scal, st, [], "phase5", excl=True)
T += blk
T += stamp(4)
burst(5)
if not ROWS:
    A("s_waitcnt lgkmcnt(4)")
    A(ep_st(16, 0)); A(ep_st(16, 1))
for t in ep_rd(17): A(t)
A("s_cmp_eq_u64 %s, 0" % sBad)
A("s_cbranch_scc1 L_good")
A("v_mov_b32 v2, %d" % FLAG); A("v_mov_b32 v3, 1")
A("ds_write_b32 v2, v3")
A("L_good:")
A("s_waitcnt lgkmcnt(0)")
if ROWS:
    for i in range(6): A(ep_st(15 + i % 3, i // 3))
else: A(ep_st(17, 0)); A(ep_st(17, 1))
if STAMP:
    T += stamp(5)
    A("s_waitcnt vmcnt(0)")
    T += stamp(6)
    A("s_waitcnt lgkmcnt(0)")
    if "probe" in opts:
        pi, pj = [int(x) for x in opts["probe"].split(",")]
        A("s_sub_u32 s84, s%d, s%d" % (60 + 2 * pj, 60 + 2 * pi))
        if "pneg" in opts: A("s_sub_u32 s84, %s, s84" % opts["pneg"])
        if STAMP == 6:
            A("s_min_u32 s84, s84, 40000"); A("s_memrealtime s[72:73]"); A("s_waitcnt lgkmcnt(0)")
        else:
            A("s_min_u32 s84, s84, 10000")
            A("s_lshl_b32 s84, s84, 2")
        if "pcls" in opts:
            A("s_bfe_u32 s85, s2, 0x%x" % int(opts["pbits"], 16)); A("s_cmp_eq_u32 s85, %s" % opts["pcls"]); A("s_cselect_b32 s84, s84, 0")
        A("L_spin:"); A("s_sleep 2"); A("s_memrealtime s[82:83]"); A("s_waitcnt lgkmcnt(0)")
        A("s_sub_u32 s85, s82, s72"); A("s_cmp_lt_u32 s85, s84"); A("s_cbranch_scc1 L_spin")
    A("s_lshl_b32 s3, s2, 2"); A("s_add_u32 s3, s3, %s" % sWave); A("s_lshl_b32 s3, s3, 6")
    A("v_mov_b32 v10, s3")
    for i in range(16): A("v_mov_b32 v%d, s%d" % (16 + i, 60 + i))
    for i in range(4): A("buffer_store_dwordx4 v[%d:%d], v10, %s, 0 offen offset:%d" % (16 + 4 * i, 19 + 4 * i, sW, 16 * i))
A("s_barrier")
A("v_mov_b32 v0, %d" % FLAG)
A("ds_read_b32 v0, v0")
A("s_waitcnt lgkmcnt(0)")
A("v_readfirstlane_b32 %s, v0" % sTmp)
A("s_cmp_eq_u32 %s, 0" % sTmp)
A("s_cbranch_scc0 L_redo")
A("L_end:")
A("s_endpgm")
A("L_hotend:")
A("L_redo:")
A("s_waitcnt vmcnt(0)")
A("s_barrier")
A("v_mbcnt_lo_u32_b32 v0, -1, 0"); A("v_mbcnt_hi_u32_b32 v0, -1, v0")
A("s_lshl_b32 %s, %s, 6" % (sTmp, sWave))
A("v_add_u32 v0, %s, v0" % sTmp)

if "cap" in opts:
    T2 = []
    for t in T:
        if t.startswith("buffer_store") and sO in t: T2.append("s_waitcnt vmcnt(%d)" % int(opts["cap"]))
        T2.append(t)
    T = T2
if "nost" in opts: T = [t for t in T if not (t.startswith("buffer_store") and sO in t)]
if "nowr" in opts: T = [t for t in T if not t.startswith("ds_write_b64")]
def I(l): return [Ins(t) for t in l if not t.startswith("HOPS")]
seq = I(P + BP + B1 + B0 + ["s_cbranch_scc1 L_loop"] + B1 + B0 + ["s_cbranch_scc1 L_loop"] + T)
errs = check_hazards(seq, "main") + check_waits(seq, "main") + check_scc(seq, "main")
for e in errs[:30]: sys.stderr.write(e + "\n")
if errs and "nost" not in opts:
    print("!!! %d hazard problems" % len(errs)); sys.exit(1)
S, lds2, e2_ = gen_safe.build_safe({"qd": "3", "nt": NT})
assert lds2 <= LDS_BYTES and e2_ == 0

hdr = open("standalone__gqa_softmax__near_ridge.s.ref").read().split("; Override")[0]
code = P + BP + [".p2align 3", "L_loop:"] + B1 + B0 + ["s_cbranch_scc1 L_loop"] + T
NH = 8
def render(code, nh):
    out = [hdr.rstrip(), "; @launch grid=(256,1,1) block=(256,1,1) lds=%d" % LDS_BYTES,
           '.amdgcn_target "amdgcn-amd-amdhsa--gfx950"', ".text", ".globl %s" % KN, ".p2align 8", ".type %s,@function" % KN, "%s:" % KN, "L_start:"]
    for t in code + S:
        if t.startswith("HOPS"):
            if not HOP: continue
            r_ = int(t[4:])
            out += ["    s_mov_b64 exec, 0"]
            for w in range(4):
                k = 4 * r_ + w
                out += ["    s_cmp_eq_u32 %s, %d" % (sWave, w), "    s_cbranch_scc1 %s" % ("L_hop%d" % k if k < nh else "L_hopback%d" % r_)]
            out += ["L_hopback%d:" % r_, "    s_mov_b64 exec, -1"]
            continue
        t = t.replace("CODELEN", "L_hotend-L_main" if HOP else "L_hotend-L_pc").replace("CODEOFF", "L_main-L_pc+4" if HOP else "0")
        out.append(t if t.endswith(":") or t.startswith(".") else "    " + t)
    out += ['.section .rodata,"a"', ".p2align 6", ".amdhsa_kernel %s" % KN, "  .amdhsa_next_free_vgpr 512", "  .amdhsa_next_free_sgpr 96",
            "  .amdhsa_accum_offset 256", "  .amdhsa_group_segment_fixed_size 0", "  .amdhsa_kernarg_size 48", "  .amdhsa_user_sgpr_count 2",
            "  .amdhsa_user_sgpr_kernarg_segment_ptr 1", "  .amdhsa_system_sgpr_workgroup_id_x 1", ".end_amdhsa_kernel", ""]
    return "\n".join(out)
import subprocess, re as _re
def addresses(code, nh):
    marked = []
    for i, t in enumerate(code): marked += ["M_%d:" % i, t]
    open("_g7.s", "w").write(render(marked, nh))
    subprocess.run(["clang", "-x", "assembler", "-target", "amdgcn-amd-amdhsa", "-mcpu=gfx950", "-c", "_g7.s", "-o", "_g7.o"], check=True)
    sy = subprocess.run(["llvm-objdump", "-t", "_g7.o"], capture_output=True, text=True).stdout
    ad = {m.group(2): int(m.group(1), 16) for m in _re.finditer(r"^([0-9a-f]+) .* (\S+)$", sy, _re.M)}
    return [ad["M_%d" % i] - ad["L_main"] for i in range(len(code))]
nh = 0
if HOP:
    STEP = int(opts.get("hstep", 4096))
    while nh < NH:
        ad = addresses(code, nh)
        lo = STEP * (nh + 1 + int(opts.get("hskip", 0)))
        if lo >= ad[code.index("L_end:")]: break
        cand = [i for i in range(1, len(code)) if lo <= ad[i] < lo + 56]
        good = [i for i in cand if code[i - 1].startswith("v_mfma") and not code[i].startswith("s_")]
        i = (good or cand)[0]
        code[i:i] = ["L_hop%d:" % nh, "s_cbranch_execz L_hopback%d" % (nh // 4), "s_nop 0"][:2 + (1 if "L_loop:" in code[:i] and "s_cbranch_scc1 L_loop" in code[i:] and False else 0)]
        nh += 1
    sys.stderr.write("hops: %d\n" % nh)
open(sys.argv[1], "w").write(render(code, nh))
```

```python
import sys, math, struct
from asmlib import *
from sched import *
import gen_safe

opts = dict(a.split("=") for a in sys.argv[2:])
STAMP = int(opts.get("stamp", 0))
NT = opts.get("nt", "nt").replace("+", " ")
SPOL = opts.get("spol", "sc1").replace("+", " ")
QD = int(opts.get("qd", 3))
DEF = int(opts.get("defer", 0))
STG2 = [tuple(int(y) for y in x.split(":")) for x in opts.get("stg2", "").split(",") if x]
KN = "standalone__gqa_softmax__near_ridge_kernel"
def f2u(x): return struct.unpack("<I", struct.pack("<f", x))[0]
CSCALE = f2u(math.log2(math.e) / math.sqrt(192.0))

KRING = 0; VRING = 49152; QLDS = 98304; SLOT = 12288
QKS = 1088; QRB = 6 * QKS; QWAVE = 2 * QRB + 1024
FLAG = QLDS + 4 * QWAVE
LDS_BYTES = FLAG + 64
def V(i, n=1): return "v%d" % i if n == 1 else "v[%d:%d]" % (i, i + n - 1)
def Ac(i, n=1): return "a%d" % i if n == 1 else "a[%d:%d]" % (i, i + n - 1)
vKA = [0, 1]; vVA = [2, 3, 4, 5]; vQA = 6; vDMA = 7
vL = [8 + i for i in range(6)]; vQG = 14; vQW = 15
FB = [Ac(96 + 4 * i, 4) for i in range(4)]
FQ = {4: [Ac(112, 4), Ac(116, 4)], 5: [Ac(120, 4), Ac(124, 4)]}
EARLY = [0, 1, 2, 3]; LATE = [4, 5]
G = {}; X = {}
r = 16
for rb in LATE:
    G[rb] = [r, r + 4]; X[rb] = [r + 8, r + 12]; r += 16
for rb in EARLY:
    G[rb] = [r, r + 4]; X[rb] = [r + 8, r + 8]; r += 12
assert r == 96
def Oreg(rb, db):
    b = rb * 12 + db
    return ("v", 96 + 4 * b) if b < 40 else ("a", 128 + 4 * (b - 40))
def O4(rb, db):
    f, i = Oreg(rb, db); return "%s[%d:%d]" % (f, i, i + 3)
def Qf(rb, ks): return Ac(rb * 24 + ks * 4, 4) if rb < 4 else FQ[rb][ks & 1]
sQ = "s[20:23]"; sK = "s[24:27]"; sV = "s[28:31]"; sO = "s[32:35]"; sW = "s[36:39]"
sC2 = "s[40:41]"; sIT = "s42"; sKoff = "s43"; sVoff = "s44"; sKm = "s45"; sVm = "s46"; sWave = "s47"
sTmp = "s48"; sRow = "s49"; sKend = "s50"; sVend = "s51"; sKbeg = "s52"; sVbeg = "s53"; sQL = "s16"; sCls = "s17"
sMask = "s54"; sLo = "s76"; sHi = "s77"; sBad = "s[78:79]"; sB2 = "s[80:81]"
def sRB(rb): return "0" if rb == 0 else "s%d" % (54 + rb)
MF = "v_mfma_f32_16x16x32_bf16"

def k_read(dst, tile_par, ks, hf):
    return "ds_read_b128 %s, %s offset:%d" % (dst, V(vKA[ks & 1]), tile_par * SLOT + (ks >> 1) * 4096 + hf * 2048)
def v_read(a0, tile_par, db):
    return ["ds_read_b64_tr_b16 %s, %s offset:%d" % (Ac(a0 + 2 * i, 2), V(vVA[db & 3]), tile_par * SLOT + (db >> 2) * 4096 + i * 2048) for i in range(2)]
def q_read(dst, area, ks):
    return "ds_read_b128 %s, %s offset:%d" % (dst, V(vQA), area * QRB + ks * QKS)
def qk_mfmas(par, last_up=False):
    out = []
    for g in range(6):
        p, hf = g >> 1, g & 1
        for rb in (range(6) if hf == 0 or (last_up and g == 5) else range(5, -1, -1)):
            for k in range(2):
                ks = 2 * p + k
                d = V((G[rb][par] if hf == 0 else X[rb][par]), 4)
                out.append("%s %s, %s, %s, %s" % (MF, d, FB[(2 * g + k) % 4], Qf(rb, ks), "0" if ks == 0 else d))
    return out
def sregs(rb, par): return [G[rb][par] + i for i in range(4)] + [X[rb][par] + i for i in range(4)]
def sm(rb, par, half):
    ops = []; s = sregs(rb, par)
    for i in (4 * half, 4 * half + 2):
        ops.append("v_exp_f32 %s, %s" % (V(s[i]), V(s[i])))
        ops.append("v_exp_f32 %s, %s" % (V(s[i + 1]), V(s[i + 1])))
        ops.append("v_add_f32 %s, %s, %s" % (V(vL[rb]), V(vL[rb]), V(s[i])))
        ops.append("v_add_f32 %s, %s, %s" % (V(vL[rb]), V(vL[rb]), V(s[i + 1])))
        ops.append("v_cvt_pk_bf16_f32 %s, %s, %s" % (V(G[rb][par] + i // 2), V(s[i]), V(s[i + 1])))
    return ops
def last_write_slot(mf, reg): return max(g for g, t in enumerate(mf) if reg in Ins(t).wr)
def paced(ops, g0, g1, floor=0, dead=10 ** 9):
    os_ = [Op(t) for t in ops]; tot = sum(o.cost for o in os_); acc = 0
    for o in os_:
        o.ming = max(floor, int(g0 + (g1 - g0) * acc / tot)); o.dead = dead; acc += o.cost
    return os_
def pin_qk(pinned, qk, tile_par, nq):
    def pin(g, t): pinned.setdefault(g, []).append(t)
    for g in range(1, 6):
        for k in range(2): pin(12 * (g - 1) + 2 * k, k_read(FB[(2 * g + k) % 4], tile_par, 2 * (g >> 1) + k, g & 1))
    lastq = {}
    for g, t in enumerate(qk):
        for rb in LATE:
            for k in range(2):
                if FQ[rb][k] in t: lastq[(g // 24, rb, k)] = g
    for p in range(nq):
        g = 0
        for (lg, rb, k) in sorted((lastq[(p, rb, k)], rb, k) for rb in LATE for k in range(2)):
            g = max(g, lg + 1)
            while g in pinned: g += 1
            pin(g, q_read(FQ[rb][k], rb - 4, (2 * p + 2 + k) % 6)); g += 2

def body(par, ds_in, peel=False):
    np_ = par ^ 1
    qk = qk_mfmas(np_)
    mf = qk + ["%s %s, %s, %s, %s" % (MF, O4(rb, db), FB[db % 4], V(G[rb][par], 4), O4(rb, db)) for db in range(12) for rb in range(6)]
    pinned = {}
    def pin(g, t): pinned.setdefault(g, []).append(t)
    for db in range(12):
        for t in v_read(96 + 4 * (db % 4), par, db): pin({0: 60, 1: 63, 2: 72, 3: 75}.get(db, 72 + 6 * (db - 3)), t)
    pin(127, k_read(FB[0], par, 0, 0)); pin(133, k_read(FB[1], par, 1, 0))
    pin_qk(pinned, qk, np_, 3)
    scal = [(57, ["s_waitcnt vmcnt(12) lgkmcnt(0)"], True), (58, ["s_barrier"], True)]
    if par == 1:
        scal.append((2, ["s_cmp_eq_u32 %s, 6" % sIT, "s_cselect_b32 s24, s28, s24", "s_cselect_b32 s25, s29, s25",
                         "s_cselect_b32 %s, %d, %s" % (sKoff, 15 * SLOT, sKoff)], False))
    if peel:
        xg = [int(x) for x in opts.get("xg", "5,9,21,28,33,45,52,67,77,87,99,111").split(",")]
        xl = [(k, x, cb) for k, x in (("V", 1), ("K", 3), ("V", 2), ("K", 4)) for cb in range(3)]
        for g, (k, x, cb) in zip(xg, xl):
            srd_, beg = (sK, sKbeg) if k == "K" else (sV, sVbeg)
            assert g not in pinned, g
            if cb == 0: scal.append((g - 2, ["s_mov_b32 %s, %d" % (sTmp, x * SLOT)], True))
            scal.append((g - 1, ["s_add_u32 m0, %s, %d" % (beg, (x & 3) * SLOT + cb * (4096 - 128))], True))
            pin(g, "buffer_load_dwordx4 %s, %s, %s offen offset:%d %s lds" % (V(vDMA), srd_, sTmp, cb * 128, NT))
        dgp = [int(x) for x in opts.get("dgp", "116,119,124,130,136,141").split(",")]
        scal[0] = (57, ["s_waitcnt vmcnt(%d) lgkmcnt(0)" % (3 + sum(1 for g in xg if g < 57))], True)
        scal.append((121, ["s_waitcnt vmcnt(%d)" % sum(1 for g in xg + dgp if g < 121)], True)); scal.append((122, ["s_barrier"], True))
    if par == 0 and not peel and int(opts.get("keep", 0)):
        scal.append((2, ["s_cmp_eq_u32 %s, 6" % sIT, "s_cselect_b32 %s, 0, %s" % (sVoff, sVoff)], False))
    OW = int(opts.get("ow", 0))
    if par == 0 and OW:
        scal.append((2, ["s_cmp_eq_u32 %s, 6" % sIT, "s_cselect_b32 s28, s32, s28", "s_cselect_b32 s29, s33, s29", "s_cselect_b32 s30, s34, s30",
                         "s_cselect_b32 %s, 0, %s" % (sVoff, sVoff), "s_cselect_b32 s86, %d, 0" % (61440 if OW == 2 else 0)], False))
        scal.append((107, ["s_add_u32 %s, %s, s86" % (sVoff, sVoff)], False)); scal.append((119, ["s_add_u32 %s, %s, s86" % (sVoff, sVoff)], False))
    dg = [int(x) for x in opts.get("dg", "71,81,93,105,117,130").split(",")] if not peel else dgp
    for i in range(6):
        srd_, so, sm_ = (sK, sKoff, sKm) if i < 3 else (sV, sVoff, sVm)
        assert dg[i] not in pinned
        scal.append((dg[i] - 1, ["s_add_u32 m0, %s, %d" % (sm_, (i % 3) * (4096 - 128))], True))
        pin(dg[i], "buffer_load_dwordx4 %s, %s, %s offen offset:%d %s lds" % (V(vDMA), srd_, so, (i % 3) * 128, NT))
    for g, so, m, end, beg in () if peel else ((dg[2] + 1 if dg[3] - dg[2] > 8 else dg[5] + 8, sKoff, sKm, sKend, sKbeg), (dg[5] + 1, sVoff, sVm, sVend, sVbeg)):
        scal.append((g, ["s_add_u32 %s, %s, %d" % (so, so, SLOT), "s_add_u32 %s, %s, %d" % (m, m, SLOT),
                         "s_cmp_eq_u32 %s, %s" % (m, end), "s_cselect_b32 %s, %s, %s" % (m, beg, m)], False))
    if par == 0 and not peel: scal.append((139, ["s_add_u32 %s, %s, 1" % (sIT, sIT), "s_cmp_lt_u32 %s, 7" % sIT], False))
    st = paced(sum([sm(rb, par, h) for rb in LATE for h in range(2)], []), 0, 50, dead=70)
    if par == 0:
        st += [Op("v_xor_b32 %s, 0x1e000, %s" % (V(a), V(a)), 44, 58) for a in vVA]
        st += [Op("v_xor_b32 %s, 0x6000, %s" % (V(a), V(a)), 52, 125) for a in vKA]
    E0, E1 = 55, 140
    for n, (rb, h) in enumerate([(0, 0), (1, 0), (2, 0), (3, 0), (3, 1), (2, 1), (1, 1), (0, 1)]):
        ready = last_write_slot(qk, "v%d" % sregs(rb, np_)[4 * h]) + 5
        st += paced(sm(rb, np_, h), E0 + (E1 - E0) * n / 8, E0 + (E1 - E0) * (n + 1) / 8, floor=ready)
    def capf(cap, sc, pin_):
        for g in range(144):
            if "s_barrier" in sc.get(g, []): cap[g] = 0
    return schedule(mf, pinned, scal, st, ds_in, "body%d" % par, next_first=qk_mfmas(par)[0], excl=True, capf=capf)

def stamp(i):
    if STAMP == 1: return ["s_memrealtime s[%d:%d]" % (60 + 2 * i, 61 + 2 * i)]
    if STAMP == 6: return ["s_memtime s[%d:%d]" % (60 + 2 * i, 61 + 2 * i)]
    return []

P = []
A = P.append
A("s_cmp_ge_u32 s2, 256")
A("s_cbranch_scc1 L_end")
A("s_load_dwordx4 s[4:7], s[0:1], 0")
A("s_load_dwordx4 s[8:11], s[0:1], 16")
if STAMP: A("s_load_dwordx2 s[12:13], s[0:1], 40")
P += stamp(0)
A("s_getpc_b64 s[18:19]")
A("v_lshlrev_b32 v240, 7, v0")
A("L_pc:")
A("v_min_u32 v240, CODELEN, v240")
A("v_add_u32 v240, CODEOFF, v240")
A("global_load_dword v241, v240, s[18:19]")
vLN = 242; t2 = 243; t3 = 244; t4 = 245; t5 = 246; t6 = 247
A("v_lshrrev_b32 v%d, 6, v0" % t2)
A("v_and_b32 v%d, 63, v0" % vLN)
A("s_mul_i32 s14, s2, 147456")
A("v_readfirstlane_b32 %s, v%d" % (sWave, t2))
A("s_mul_i32 s15, s2, 196608")
A("s_bfe_u32 %s, s2, 0x30003" % sCls)
A("v_lshrrev_b32 v%d, 3, v%d" % (t5, vLN))
A("v_mul_u32_u24 v%d, 384, v%d" % (t6, t5))
A("v_lshrrev_b32 v%d, 4, v%d" % (t3, vLN))
A("v_lshlrev_b32 v%d, 1, v%d" % (t4, t3))
A("v_xor_b32 v%d, v%d, v%d" % (t4, t4, vLN))
A("v_and_b32 v%d, 7, v%d" % (t4, t4))
A("v_lshl_add_u32 v%d, v%d, 4, v%d" % (vDMA, t4, t6))
A("s_mul_i32 %s, %s, 3072" % (sTmp, sWave))
A("v_add_u32 v%d, %s, v%d" % (vDMA, sTmp, vDMA))
A("v_and_b32 v%d, 7, v%d" % (t4, vLN))
A("v_lshl_add_u32 v%d, v%d, 4, v%d" % (vQG, t4, t6))
A("s_mul_i32 %s, %s, 36864" % (sRow, sWave))
A("v_add_u32 v%d, %s, v%d" % (vQG, sRow, vQG))
A("s_lshl_b32 %s, %s, 10" % (sKbeg, sWave))
A("s_add_u32 %s, %s, %d" % (sVbeg, sKbeg, VRING))
for rb in range(1, 6): A("s_mov_b32 %s, %d" % (sRB(rb), rb * 6144))
if STG2:
    A("s_mov_b32 s3, 0")
    for i, (lo, hi, k, cnt) in enumerate(STG2):
        A("s_sub_u32 %s, %s, %d" % (sTmp, sCls, lo)); A("s_cmp_lt_u32 %s, %d" % (sTmp, hi - lo)); A("s_cselect_b32 s3, %d, s3" % (1 << i))
A("s_waitcnt lgkmcnt(0)")
def srd(base, src, off, size):
    A("s_add_u32 s%d, s%d, %s" % (base, src, off)); A("s_addc_u32 s%d, s%d, 0" % (base + 1, src + 1))
    A("s_mov_b32 s%d, %d" % (base + 2, size)); A("s_mov_b32 s%d, 0x20000" % (base + 3))
vm = []
def raw(rb, i): return 96 + rb * 24 + i * 4
def issue(k, x, i):
    if k == "Q":
        A("buffer_load_dwordx4 %s, v%d, %s, %s offen offset:%d %s" % (V(raw(x, i), 4), vQG, sQ, sRB(x), (i & 1) * 3072 + (i >> 1) * 128, NT))
        vm.append("Q%d.%d" % (x, i))
    else:
        srd_, beg = (sK, sKbeg) if k == "K" else (sV, sVbeg)
        A("s_add_u32 m0, %s, %d" % (beg, (VRING + 3 * SLOT if (k, x) == ("K", 0) else (x & 3) * SLOT) + i * (4096 - 128)))
        A("s_mov_b32 %s, %d" % (sTmp, x * SLOT))
        A("buffer_load_dwordx4 %s, %s, %s offen offset:%d %s lds" % (V(vDMA), srd_, sTmp, i * 128, NT))
        vm.append("%s%d" % (k, x))
    n = len(vm) - 1
    for ci, (lo, hi, kk, cnt) in enumerate(STG2):
        if kk <= n < cnt:
            A("s_bitcmp1_b32 s3, %d" % ci); A("s_cbranch_scc0 L_sg%d_%d" % (n, ci)); A("s_waitcnt vmcnt(%d)" % kk); A("L_sg%d_%d:" % (n, ci))
def vwait(name):
    last = max(i for i, x in enumerate(vm) if x == name)
    A("s_waitcnt vmcnt(%d)" % (len(vm) - 1 - last))
TLB = int(opts.get("tlb", 0))
srd(24, 6, "s15", 196608)
issue("K", 0, 0)
if TLB & 1:
    srd(32, 10, "s14", 147456); srd(28, 8, "s15", 196608)
    A("v_lshlrev_b32 v240, 9, v%d" % vLN)
    A("buffer_load_dword v250, v240, %s, %s offen nt" % (sO, sRow)); vm.append("t")
    A("buffer_load_dword v251, v%d, %s, 0 offen nt" % (vDMA, sV)); vm.append("t")
for cb in range(1, 3): issue("K", 0, cb)
K1E = int(opts.get("k1e", 0))
if K1E:
    for cb in range(3): issue("K", 1, cb)
srd(20, 4, "s14", 147456)
for rb in range(QD):
    for i in range(6): issue("Q", rb, i)
HOP = int(opts.get("hop", 1))
if HOP: A("s_branch L_main"); A(".p2align 12"); A("L_main:")
srd(28, 8, "s15", 15 * SLOT); srd(32, 10, "s14", 147456)
if STAMP:
    A("s_mov_b32 s36, s12"); A("s_mov_b32 s37, s13"); A("s_mov_b32 s38, 0x100000"); A("s_mov_b32 s39, 0x20000")
A("s_add_u32 %s, %s, %d" % (sKend, sKbeg, 4 * SLOT))
A("s_add_u32 %s, %s, %d" % (sVend, sVbeg, 4 * SLOT))
A("s_mul_i32 %s, %s, %d" % (sQL, sWave, QWAVE))
A("s_add_u32 %s, %s, %d" % (sQL, sQL, QLDS))
A("v_xor_b32 v%d, v%d, v%d" % (t2, t5, t4))
A("v_lshlrev_b32 v%d, 4, v%d" % (t2, t2))
A("v_lshl_add_u32 v%d, v%d, 7, v%d" % (t2, t5, t2))
A("s_mul_i32 %s, %s, 6144" % (sTmp, sWave))
A("s_cmp_lt_u32 %s, 2" % sWave)
A("s_cselect_b32 s3, %d, %d" % (1, 3))
A("s_mul_i32 s3, s3, %d" % SLOT)
A("s_add_u32 %s, %s, s3" % (sTmp, sTmp))
A("v_add_u32 v249, %s, v%d" % (sTmp, t2))
A("v_and_b32 v%d, 3, v%d" % (t4, vLN))
A("v_xor_b32 v%d, v%d, v%d" % (t2, t5, t4))
A("v_lshlrev_b32 v%d, 4, v%d" % (t2, t2))
A("v_lshl_add_u32 v%d, v%d, 8, v%d" % (t2, t4, t2))
A("v_bfe_u32 v%d, v%d, 2, 1" % (t4, vLN))
A("v_mul_u32_u24 v%d, %d, v%d" % (t4, QKS, t4))
A("v_add3_u32 v%d, v%d, v%d, %s" % (vQW, t2, t4, sQL))
A("v_and_b32 v%d, 15, v%d" % (t2, vLN))
A("v_xor_b32 v%d, v%d, v%d" % (t4, t2, t3))
A("v_lshlrev_b32 v%d, 4, v%d" % (t4, t4))
A("v_lshl_add_u32 v%d, v%d, 8, v%d" % (t4, t3, t4))
A("v_add_u32 v%d, %s, v%d" % (vQA, sQL, t4))
A("v_lshlrev_b32 v%d, 7, v%d" % (t6, t2))
A("v_lshrrev_b32 v%d, 5, v%d" % (t4, vLN))
A("v_xor_b32 v%d, v%d, v%d" % (t4, t4, vLN))
A("v_and_b32 v%d, 7, v%d" % (t4, t4))
A("v_lshl_add_u32 v%d, v%d, 4, v%d" % (t6, t4, t6))
A("v_xor_b32 v%d, v%d, v%d" % (t4, t3, t5))
A("v_and_b32 v%d, 1, v%d" % (t4, t4))
A("v_lshl_add_u32 v%d, v%d, 3, v%d" % (t6, t4, t6))
A("v_add_u32 v248, %s, v%d" % (sTmp, t6))
A("ds_write_b64 v%d, v[248:249] offset:%d" % (vQA, 2 * QRB))
A("v_and_b32 v%d, 6, v%d" % (t4, vLN))
A("v_xor_b32 v%d, v%d, v%d" % (t4, t4, t3))
A("v_lshlrev_b32 v%d, 4, v%d" % (t4, t4))
A("v_lshl_add_u32 v%d, v%d, 7, v%d" % (vKA[0], t2, t4))
A("v_xor_b32 v%d, 64, v%d" % (vKA[1], vKA[0]))
for i in range(2): A("v_add_u32 v%d, %d, v%d" % (250 + i, VRING + 3 * SLOT, vKA[i]))
A("v_lshrrev_b32 v%d, 2, v%d" % (t4, vLN))
A("v_lshlrev_b32 v%d, 7, v%d" % (t4, t4))
A("v_and_b32 v%d, 3, v%d" % (t2, vLN))
A("v_lshl_add_u32 v%d, v%d, 3, v%d" % (t4, t2, t4))
A("v_bfe_u32 v%d, v%d, 3, 2" % (t2, vLN))
A("v_lshl_add_u32 v%d, v%d, 5, v%d" % (t4, t2, t4))
A("v_add_u32 v%d, %d, v%d" % (vVA[0], VRING + 2 * SLOT, t4))
for x in range(1, 4): A("v_xor_b32 v%d, %d, v%d" % (vVA[x], 32 * x, vVA[0]))
A("s_mov_b32 s40, 0x%x" % CSCALE); A("s_mov_b32 s41, 0x%x" % CSCALE)
A("s_mov_b32 %s, 0xffff0000" % sMask)
A("s_mov_b32 %s, 0" % sIT)
A("s_mov_b32 %s, %d" % (sKoff, 5 * SLOT))
A("s_mov_b32 %s, %d" % (sVoff, 3 * SLOT))
A("s_add_u32 %s, %s, %d" % (sKm, sKbeg, SLOT))
A("s_add_u32 %s, %s, %d" % (sVm, sVbeg, 3 * SLOT))
A("s_mov_b32 %s, 0x%x" % (sLo, f2u(2.0 ** float(opts.get("llo", -20)))))
A("s_mov_b32 %s, 0x%x" % (sHi, f2u(2.0 ** float(opts.get("lhi", 24)))))
A("s_mov_b64 %s, 0" % sBad)
for i in vL: A("v_mov_b32 v%d, 0" % i)
ZR = FQ[5][1]
for i in range(4): A("v_accvgpr_write_b32 a%d, 0" % (124 + i))
A("v_mov_b32 v%d, %d" % (t2, FLAG))
A("ds_write_b32 v%d, v%d" % (t2, vL[0]))
def zero16(f, i): A("v_mfma_f32_32x32x16_bf16 %s[%d:%d], %s, %s, 0" % (f, i, i + 15, ZR, ZR))
for i in range(128, 256, 16): zero16("a", i)
A("HOPS0")
vwait("K1" if K1E else "K0")
A("s_waitcnt lgkmcnt(0)")
A("s_barrier")
K0F = [V(G[rb][1], 4) for rb in range(6)] + [V(X[rb][1], 4) for rb in LATE] + FB
for n in range(12): A(k_read(K0F[n], 0, n >> 1, n & 1).replace(", v0 ", ", v250 ").replace(", v1 ", ", v251 "))
def pro_sm(rb):
    ops = sm(rb, 0, 0) + sm(rb, 0, 1)
    for t in [t for t in ops if t.startswith("v_exp")] + ["s_nop 0"] + [t for t in ops if not t.startswith("v_exp")]: A(t)
pend = [("Q", rb, i) for rb in range(QD, 6) for i in range(6)]
pend += [(k, x, cb) for k, x in (("K", 1), ("V", 0), ("K", 2))[K1E:] for cb in range(3)]
deferred = pend[len(pend) - 3 * DEF:]; pend = pend[:len(pend) - 3 * DEF]
def qdst(rb, ks): return Ac(rb * 24 + ks * 4, 4) if rb < 4 else V(raw(rb, ks), 4)
def st_read(s_):
    rb, cb = divmod(s_, 3)
    for ks in (2 * cb, 2 * cb + 1): A(q_read(qdst(rb, ks), rb & 1, ks))
def st_mfma(s_):
    rb, cb = divmod(s_, 3)
    for hf in range(2):
        for ks in (2 * cb, 2 * cb + 1):
            d = V((G[rb][0] if hf == 0 else X[rb][0]), 4)
            A("%s %s, %s, %s, %s" % (MF, d, K0F[2 * ks + hf], qdst(rb, ks), "0" if ks == 0 else d))
nleft = 36
for s_ in range(18):
    rb, cb = divmod(s_, 3)
    for rh in range(2):
        i = 2 * cb + rh
        vwait("Q%d.%d" % (rb, i))
        if s_ == 17 and rh == 1: P += stamp(1)
        r0 = raw(rb, i); tb = 240 + 8 * rh
        for k in range(4):
            A("v_lshlrev_b32 v%d, 16, v%d" % (tb + 2 * k, r0 + k)); A("v_and_b32 v%d, %s, v%d" % (tb + 2 * k + 1, sMask, r0 + k))
        for k in range(4): A("v_pk_mul_f32 %s, %s, %s" % (V(tb + 2 * k, 2), V(tb + 2 * k, 2), sC2))
        for k in range(4): A("v_cvt_pk_bf16_f32 v%d, v%d, v%d" % (r0 + k, tb + 2 * k, tb + 2 * k + 1))
        if rh == 0 and s_ >= 1: st_read(s_ - 1)
        A("ds_write_b128 v%d, %s offset:%d" % (vQW, V(r0, 4), (rb & 1) * QRB + cb * 2 * QKS + rh * 128))
        if s_ == 17 and rh == 1: st_read(17)
        if pend and (pend[0][0] == "Q" or len(pend) >= nleft - int(opts.get("kvl", 3))):
            for _ in range(-(-len(pend) // nleft)): issue(*pend.pop(0))
        nleft -= 1
        if nleft == 0:
            for x in deferred[:3]: issue(*x)
    if s_ >= 1:
        A("s_waitcnt lgkmcnt(%d)" % (2 if s_ < 17 else 4)); st_mfma(s_ - 1)
    if cb == 1 and rb >= 1 and rb - 1 in EARLY: pro_sm(rb - 1)
    if s_ == int(opts.get("hs", 2)): A("HOPS1")
    for i in {7: (96, 112, 128), 13: (144, 160, 176), 16: (192, 208)}.get(s_, ()): zero16("v", i)
A("s_waitcnt lgkmcnt(0)")
st_mfma(17)
for i in (240, 224): zero16("v", i)
for x in deferred[3:]: issue(*x)
if not K1E:
    vwait("K1")
    A("s_barrier")
A(k_read(FB[0], 1, 0, 0)); A(k_read(FB[1], 1, 1, 0))
for rb in LATE:
    for k in range(2): A(q_read(FQ[rb][k], rb - 4, k))
if TLB & 2: A("buffer_load_dword v%d, v%d, %s, 0 offen nt" % (vQW, vQG, sO))
assert vm[-6:] == sum([[x] * 3 for x in ("V0", "K2")], []), vm
A("s_waitcnt lgkmcnt(0)")
P += stamp(2)

B0, q0 = body(0, [])
B1, q1 = body(1, q0)
B0, q0b = body(0, q1)
assert q0 == q0b
BP, qp_ = body(0, [], peel=True)
assert qp_ == q0
BP += ["s_add_u32 %s, %s, %d" % (sKoff, sKoff, SLOT), "s_add_u32 %s, %s, %d" % (sKm, sKm, SLOT),
       "s_add_u32 %s, %s, %d" % (sVoff, sVoff, SLOT), "s_mov_b32 %s, %s" % (sVm, sVbeg), "s_mov_b32 %s, 1" % sIT]

T = []
A = T.append
T += stamp(3)
eW = [16, 17, 18, 19]; eR = vQW; eS = vQG
def R4(x): return "%s[%d:%d]" % (x[0], x[1], x[1] + 3)
def R2(x, h): return "%s[%d:%d]" % (x[0], x[1] + 2 * h, x[1] + 2 * h + 1)
def vrd(dst, tile, db):
    return ["ds_read_b64_tr_b16 %s, %s offset:%d" % (R2(dst, i), V(vVA[db & 3]), (0 if tile == 15 else (tile - 12) * SLOT) + (db >> 2) * 4096 + i * 2048) for i in range(2)]
X15 = {0: X[4][0], 1: X[5][0], 2: G[5][0], 3: X[0][0], 4: X[4][1], 5: X[5][1]}
G15 = {0: G[0][1], 1: G[1][1], 2: G[2][1], 3: G[1][0], 4: G[1][1], 5: G[2][0]}
def fs(rb, t): return [(G[rb][0] if t == 14 else G15[rb]) + i for i in range(4)] + [(X[rb][0] if t == 14 else X15[rb]) + i for i in range(4)]
def fsm(rb, t, half):
    ops = []; s_ = fs(rb, t)
    for i in (4 * half, 4 * half + 2):
        ops += ["v_exp_f32 %s, %s" % (V(s_[i]), V(s_[i])), "v_exp_f32 %s, %s" % (V(s_[i + 1]), V(s_[i + 1])),
                "v_add_f32 %s, %s, %s" % (V(vL[rb]), V(vL[rb]), V(s_[i])), "v_add_f32 %s, %s, %s" % (V(vL[rb]), V(vL[rb]), V(s_[i + 1])),
                "v_cvt_pk_bf16_f32 %s, %s, %s" % (V(s_[i // 2]), V(s_[i]), V(s_[i + 1]))]
    return ops
def qp(p): return [("a", rb * 24 + 8 * p + 4 * k) for rb in range(3) for k in range(2)]
def sb(*l): return [("a", 96 + 4 * i) for i in l]
vres = qp(0) + sb(4, 5) + qp(1) + sb(6, 7, 0, 1) + qp(2)
def v13(db): return ("v", 192 + 4 * db)
def phase_mf(rb):
    o = ["%s %s, %s, %s, %s" % (MF, O4(rb, db), R4(v13(db)), V(G[rb][1], 4), O4(rb, db)) for db in range(12)] if rb >= 3 else []
    return o + ["%s %s, %s, %s, %s" % (MF, O4(rb, db), R4(vres[12 * t + db]), V(fs(rb, 14 + t)[0], 4), O4(rb, db)) for t in range(2) for db in range(12)]
def lfin(rb):
    tmp = X15[rb]; l = vL[rb]; o = []
    for sw in ("v_permlane32_swap_b32", "v_permlane16_swap_b32"):
        o += ["v_mov_b32 v%d, v%d" % (tmp, l), "%s v%d, v%d" % (sw, l, tmp), "v_add_f32 v%d, v%d, v%d" % (l, l, tmp)]
    o += ["v_cmp_nle_f32 vcc, %s, v%d" % (sLo, l), "v_cmp_nge_f32 %s, %s, v%d" % (sB2, sHi, l), "v_rcp_f32 v%d, v%d" % (l, l)]
    return [Op(t) for t in o]
def wreg(n):
    fl, i0 = Oreg(n // 3, 4 * (n % 3))
    return i0 if fl == "v" else 96 + 16 * (n % 6)
def stg(n): return (n % 3) * 2048
def ep_st(n, rh):
    rb, cb = divmod(n, 3)
    return "buffer_store_dwordx4 %s, v%d, %s, %s offen offset:%d %s" % (V(wreg(n) + 8 + 4 * rh, 4), eS, sO, sRB(rb), rh * 3072 + cb * 128, SPOL)
def ep_rd(n):
    return ["ds_read_b128 %s, v%d offset:%d" % (V(wreg(n) + 8, 4), eR, stg(n))] + \
           ["ds_read_b64 %s, v%d offset:%d" % (V(wreg(n) + 12 + 2 * k, 2), eR, stg(n) + 1024 + 8 * (1 - k)) for k in range(2)]
ROWS = int(opts.get("rows", 1))
def burst(rb):
    A("s_or_b64 %s, %s, vcc" % (sBad, sBad)); A("s_or_b64 %s, %s, %s" % (sBad, sBad, sB2))
    lp = vL[rb] & ~1; sel = vL[rb] & 1
    for cb in range(3):
        n = 3 * rb + cb
        fl, i0 = Oreg(rb, 4 * cb); w = wreg(n)
        if fl == "a":
            for i in range(16): A("v_accvgpr_read_b32 %s, %s" % (V(w + i), Ac(i0 + i)))
        for i in range(0, 16, 2):
            A("v_pk_mul_f32 %s, %s, %s op_sel:[0,%d] op_sel_hi:[1,%d]" % (V(w + i, 2), V(w + i, 2), V(lp, 2), sel, sel))
        if cb == 2 and not ROWS: A("s_waitcnt lgkmcnt(4)"); A(ep_st(n - 2, 0))
        for i in range(8): A("v_cvt_pk_bf16_f32 %s, %s, %s" % (V(w + i), V(w + 2 * i), V(w + 2 * i + 1)))
        if cb == 2 and not ROWS: A(ep_st(n - 2, 1))
        if cb >= 1:
            for t in ep_rd(n - 1): A(t)
        for x in range(4):
            A("ds_write_b64 v%d, %s offset:%d" % (eW[x], V(w + 2 * x, 2), stg(n)))
def group_block(rbs, buf, qf, first):
    mf = []; frag = []
    for t in ((14, 13, 15) if first else (14, 15)):
        if t == 13:
            for db in range(12):
                b = buf[len(frag) % 8]; frag.append((len(mf), vrd(b, 13, db), len(mf) + 2))
                mf += ["%s %s, %s, %s, %s" % (MF, O4(rb, db), R4(b), V(G[rb][1], 4), O4(rb, db)) for rb in rbs]
        else:
            for g in range(6):
                p, hf = (g >> 1, g & 1) if (t == 15 and first) else (g % 3, g // 3)
                bs = [buf[(len(frag) + k) % 8] for k in range(2)]
                for k in range(2): frag.append((len(mf), [k_read(R4(bs[k]), t - 14, 2 * p + k, hf)], len(mf) + 5))
                for rb in rbs:
                    for k in range(2):
                        d = V(fs(rb, t)[4 * hf], 4)
                        mf.append("%s %s, %s, %s, %s" % (MF, d, R4(bs[k]), qf(rb, 2 * p + k), "0" if p + k == 0 else d))
    return mf + phase_mf(rbs[0]), frag
def place(pinned, g, ins):
    while len(pinned.get(g, [])) + len(ins) > 2 or any(t.startswith("buffer") for t in pinned.get(g, [])): g += 1
    pinned.setdefault(g, []).extend(ins); return g
def block_stream(mf, rbs, lag):
    st = []
    r0_, r1_, r2_ = rbs
    for rb, t, h in ((r0_, 14, 0), (r1_, 14, 0), (r2_, 14, 0), (r0_, 14, 1), (r1_, 14, 1), (r2_, 14, 1), (r0_, 15, 0), (r0_, 15, 1), (-1, 0, 0), (r1_, 15, 0)):
        if rb < 0: st += lfin(r0_); continue
        ready = last_write_slot(mf[:108], "v%d" % fs(rb, t)[4 * h]) + lag
        dead = 131 if rb != r0_ else (105 if t == 14 else 117)
        st += [Op(x, ready, dead) for x in fsm(rb, t, h)]
    return st
def leftovers(n):
    rd = ep_rd(n)
    if ROWS:
        d = {4: rd[:2], 5: rd[2:]}
        for i in range(6): d[11 + i + (i // 3) * int(opts.get("rgap", 2))] = [ep_st(n - 2 + i % 3, i // 3)]
        return d
    return {1: [ep_st(n - 1, 0)], 4: [ep_st(n - 1, 1)], 7: rd[:2], 8: rd[2:], 17: [ep_st(n, 0)], 20: [ep_st(n, 1)]}
def small_phase(rb, nxt):
    scal = [(0, ["s_waitcnt lgkmcnt(4)"], True), (16, ["s_waitcnt lgkmcnt(0)"], True)] if not ROWS else [(10, ["s_waitcnt lgkmcnt(0)"], True)]
    st = [Op(t, 0, 10) for t in fsm(rb, 15, 1)] + lfin(rb)
    if nxt is not None: st += [Op(t) for t in fsm(nxt, 15, 0)]
    blk, _ = schedule(phase_mf(rb), leftovers(3 * rb - 1), scal, st, [], "phase%d" % rb, excl=True)
    return blk
bufA = [("a", 96 + 4 * i) for i in range(8)]
mf, frag = group_block([0, 1, 2], bufA, Qf, True)
pinned = {}
for i, (use, ins, _) in enumerate(frag):
    if i < 2: continue
    place(pinned, max(0 if i < 8 else frag[i - 8][2], use - 15 + (i & 1)), ins)
g = 80; gv = {}
for n in range(24):
    free = 1 + max(k for k, t in enumerate(mf[:108]) if ("a%d" % vres[n][1]) in Ins(t).rd)
    g = place(pinned, max(g, free), vrd(vres[n], 14 + n // 12, n % 12))
    gv[n] = g; g += (1 if n < 17 and n not in (9, 11) else 2)
place(pinned, 124, ["ds_read_b64 v[16:17], v%d offset:%d" % (vQA, 2 * QRB)])
kg = [int(x) for x in opts.get("kg", "").split(",") if x]
scal = [(3, ["s_waitcnt vmcnt(12)", "s_barrier"], False), (74, ["s_waitcnt vmcnt(%d)" % (3 + sum(1 for g in kg if g < 74)), "s_barrier"], False)]
if kg: scal.append((8, ["s_add_u32 m0, %s, %d" % (sVbeg, 3 * SLOT)], True))
for i, g in enumerate(kg):
    assert g not in pinned, g
    if i % 3 == 0: scal.append((g - 1, ["s_add_u32 %s, %s, %d" % (sVoff, sVoff, SLOT)], True))
    pinned[g] = ["buffer_load_dwordx4 %s, %s, %s offen offset:%d %s lds" % (V(vDMA), sV, sVoff, (i % 3) * 128, NT)]
st = [Op(t) for h in range(2) for t in sm(4, 1, h)] + block_stream(mf, [0, 1, 2], 5)
st[100:100] = [Op("v_subrev_u32 %s, %d, %s" % (V(vVA[x]), VRING, V(vVA[x])), gv[8 + x], gv[12 + x] - 1) for x in range(4)]
blk, _ = schedule(mf, pinned, scal, st, q0, "blockA", excl=True)
T += blk
if "fine" in opts: T += stamp(1)
A("s_waitcnt lgkmcnt(0)")
A("v_mov_b32 v%d, v17" % eR)
for x in (1, 2, 3): A("v_xor_b32 v%d, %d, v16" % (eW[x], 32 * x))
burst(0)
T += small_phase(1, 2); burst(1)
T += small_phase(2, None)
bufB = [("v", 96 + 4 * i) for i in range(8)]
def qfB(rb, ks): return Qf(rb, ks) if rb < 4 else V(128 + 24 * (rb - 4) + 4 * ks, 4)
mfB, fragB = group_block([3, 4, 5], bufB, qfB, False)
pre = [fragB[i][1][0] for i in range(4)] + [q_read(qfB(rb, k), rb - 4, k) for k in range(6) for rb in LATE]
for t in pre: A(t)
for x in range(4): A("v_mov_b32 v%d, v%d" % (G[0][0] + x, eW[x]))
eW = [G[0][0] + x for x in range(4)]
for a_ in vVA: A("v_add_u32 %s, %d, %s" % (V(a_), VRING, V(a_)))
burst(2)
if "fine" in opts: T += stamp(2)
pinned = leftovers(8)
for i, (use, ins, _) in enumerate(fragB):
    if i < 4: continue
    g = place(pinned, max(0 if i < 8 else fragB[i - 8][2], use - 15 + (i & 1)), ins)
g = 22
for db in range(12): g = place(pinned, g, vrd(v13(db), 13, db)) + 3
if ROWS:
    later = sum(1 for g in range(6, 10) for t in pinned.get(g, []) if t.startswith("ds_")) + len(pinned[5]) - 1
    scal = [(10, ["s_waitcnt lgkmcnt(%d)" % later], True)]
else:
    later = sum(1 for g in range(9, 16) for t in pinned.get(g, []) if t.startswith("ds_")) + len(pinned[8]) - 1
    scal = [(0, ["s_waitcnt lgkmcnt(4)"], True), (16, ["s_waitcnt lgkmcnt(%d)" % later], True)]
st = [Op(t, 0, 50) for h in range(2) for t in sm(5, 1, h)]
for rb, t, h, dead in ((3, 14, 0, 81), (4, 14, 0, 107), (5, 14, 0, 107), (3, 14, 1, 81), (4, 14, 1, 107), (3, 15, 0, 93), (3, 15, 1, 93), (-1, 0, 0, 0), (5, 14, 1, 107)):
    if rb < 0: st += lfin(3); continue
    st += [Op(x, last_write_slot(mfB[:72], "v%d" % fs(rb, t)[4 * h]) + 7, dead) for x in fsm(rb, t, h)]
if ROWS: A("s_waitcnt lgkmcnt(7)")
blk, _ = schedule(mfB, pinned, scal, st, [], "blockB", excl=True)
T += blk
if "fine" in opts: T += stamp(0)
burst(3)
scal = [(0, ["s_waitcnt lgkmcnt(4)"], True), (16, ["s_waitcnt lgkmcnt(0)"], True)] if not ROWS else [(10, ["s_waitcnt lgkmcnt(0)"], True)]
st = [Op(t, 0, 22) for h in range(2) for t in fsm(4, 15, h)] + lfin(4) + [Op(t) for t in fsm(5, 15, 0)]
blk, _ = schedule(phase_mf(4), leftovers(11), scal, st, [], "phase4", excl=True)
T += blk
burst(4)
st = [Op(t, 0, 22) for t in fsm(5, 15, 1)] + lfin(5)
blk, _ = schedule(phase_mf(5), leftovers(14), scal, st, [], "phase5", excl=True)
T += blk
T += stamp(4)
burst(5)
if not ROWS:
    A("s_waitcnt lgkmcnt(4)")
    A(ep_st(16, 0)); A(ep_st(16, 1))
for t in ep_rd(17): A(t)
A("s_cmp_eq_u64 %s, 0" % sBad)
A("s_cbranch_scc1 L_good")
A("v_mov_b32 v2, %d" % FLAG); A("v_mov_b32 v3, 1")
A("ds_write_b32 v2, v3")
A("L_good:")
A("s_waitcnt lgkmcnt(0)")
if ROWS:
    for i in range(6): A(ep_st(15 + i % 3, i // 3))
else: A(ep_st(17, 0)); A(ep_st(17, 1))
if STAMP:
    T += stamp(5)
    A("s_waitcnt vmcnt(0)")
    T += stamp(6)
    A("s_waitcnt lgkmcnt(0)")
    if "probe" in opts:
        pi, pj = [int(x) for x in opts["probe"].split(",")]
        A("s_sub_u32 s84, s%d, s%d" % (60 + 2 * pj, 60 + 2 * pi))
        if "pneg" in opts: A("s_sub_u32 s84, %s, s84" % opts["pneg"])
        if STAMP == 6:
            A("s_min_u32 s84, s84, 40000"); A("s_memrealtime s[72:73]"); A("s_waitcnt lgkmcnt(0)")
        else:
            A("s_min_u32 s84, s84, 10000")
            A("s_lshl_b32 s84, s84, 2")
        if "pcls" in opts:
            A("s_bfe_u32 s85, s2, 0x%x" % int(opts["pbits"], 16)); A("s_cmp_eq_u32 s85, %s" % opts["pcls"]); A("s_cselect_b32 s84, s84, 0")
        A("L_spin:"); A("s_sleep 2"); A("s_memrealtime s[82:83]"); A("s_waitcnt lgkmcnt(0)")
        A("s_sub_u32 s85, s82, s72"); A("s_cmp_lt_u32 s85, s84"); A("s_cbranch_scc1 L_spin")
    A("s_lshl_b32 s3, s2, 2"); A("s_add_u32 s3, s3, %s" % sWave); A("s_lshl_b32 s3, s3, 6")
    A("v_mov_b32 v10, s3")
    for i in range(16): A("v_mov_b32 v%d, s%d" % (16 + i, 60 + i))
    for i in range(4): A("buffer_store_dwordx4 v[%d:%d], v10, %s, 0 offen offset:%d" % (16 + 4 * i, 19 + 4 * i, sW, 16 * i))
A("s_barrier")
A("v_mov_b32 v0, %d" % FLAG)
A("ds_read_b32 v0, v0")
A("s_waitcnt lgkmcnt(0)")
A("v_readfirstlane_b32 %s, v0" % sTmp)
A("s_cmp_eq_u32 %s, 0" % sTmp)
A("s_cbranch_scc0 L_redo")
A("L_end:")
A("s_endpgm")
A("L_redo:")
A("s_waitcnt vmcnt(0)")
A("s_barrier")
A("v_mbcnt_lo_u32_b32 v0, -1, 0"); A("v_mbcnt_hi_u32_b32 v0, -1, v0")
A("s_lshl_b32 %s, %s, 6" % (sTmp, sWave))
A("v_add_u32 v0, %s, v0" % sTmp)

if "cap" in opts:
    T2 = []
    for t in T:
        if t.startswith("buffer_store") and sO in t: T2.append("s_waitcnt vmcnt(%d)" % int(opts["cap"]))
        T2.append(t)
    T = T2
if "nost" in opts: T = [t for t in T if not (t.startswith("buffer_store") and sO in t)]
if "nowr" in opts: T = [t for t in T if not t.startswith("ds_write_b64")]
def I(l): return [Ins(t) for t in l if not t.startswith("HOPS")]
seq = I(P + BP + B1 + B0 + ["s_cbranch_scc1 L_loop"] + B1 + B0 + ["s_cbranch_scc1 L_loop"] + T)
errs = check_hazards(seq, "main") + check_waits(seq, "main")
for e in errs[:30]: sys.stderr.write(e + "\n")
if errs and "nost" not in opts:
    print("!!! %d hazard problems" % len(errs)); sys.exit(1)
S, lds2, e2_ = gen_safe.build_safe({"qd": "3", "nt": NT})
assert lds2 <= LDS_BYTES and e2_ == 0

hdr = open("standalone__gqa_softmax__near_ridge.s.ref").read().split("; Override")[0]
code = P + BP + [".p2align 3", "L_loop:"] + B1 + B0 + ["s_cbranch_scc1 L_loop"] + T
NH = 8
def render(code, nh):
    out = [hdr.rstrip(), "; @launch grid=(256,1,1) block=(256,1,1) lds=%d" % LDS_BYTES,
           '.amdgcn_target "amdgcn-amd-amdhsa--gfx950"', ".text", ".globl %s" % KN, ".p2align 8", ".type %s,@function" % KN, "%s:" % KN, "L_start:"]
    for t in code + S:
        if t.startswith("HOPS"):
            if not HOP: continue
            r_ = int(t[4:])
            out += ["    s_mov_b64 exec, 0"]
            for w in range(4):
                k = 4 * r_ + w
                out += ["    s_cmp_eq_u32 %s, %d" % (sWave, w), "    s_cbranch_scc1 %s" % ("L_hop%d" % k if k < nh else "L_hopback%d" % r_)]
            out += ["L_hopback%d:" % r_, "    s_mov_b64 exec, -1"]
            continue
        t = t.replace("CODELEN", "L_end-L_main" if HOP else "L_end-L_pc").replace("CODEOFF", "L_main-L_pc+4" if HOP else "0")
        out.append(t if t.endswith(":") or t.startswith(".") else "    " + t)
    out += ['.section .rodata,"a"', ".p2align 6", ".amdhsa_kernel %s" % KN, "  .amdhsa_next_free_vgpr 512", "  .amdhsa_next_free_sgpr 96",
            "  .amdhsa_accum_offset 256", "  .amdhsa_group_segment_fixed_size 0", "  .amdhsa_kernarg_size 48", "  .amdhsa_user_sgpr_count 2",
            "  .amdhsa_user_sgpr_kernarg_segment_ptr 1", "  .amdhsa_system_sgpr_workgroup_id_x 1", ".end_amdhsa_kernel", ""]
    return "\n".join(out)
import subprocess, re as _re
def addresses(code, nh):
    marked = []
    for i, t in enumerate(code): marked += ["M_%d:" % i, t]
    open("_g7.s", "w").write(render(marked, nh))
    subprocess.run(["clang", "-x", "assembler", "-target", "amdgcn-amd-amdhsa", "-mcpu=gfx950", "-c", "_g7.s", "-o", "_g7.o"], check=True)
    sy = subprocess.run(["llvm-objdump", "-t", "_g7.o"], capture_output=True, text=True).stdout
    ad = {m.group(2): int(m.group(1), 16) for m in _re.finditer(r"^([0-9a-f]+) .* (\S+)$", sy, _re.M)}
    return [ad["M_%d" % i] - ad["L_main"] for i in range(len(code))]
nh = 0
if HOP:
    STEP = int(opts.get("hstep", 4096))
    while nh < NH:
        ad = addresses(code, nh)
        lo = STEP * (nh + 1) + int(opts.get("hoff", 0))
        if lo >= ad[code.index("L_end:")]: break
        cand = [i for i in range(1, len(code)) if lo <= ad[i] < lo + 56]
        good = [i for i in cand if code[i - 1].startswith("v_mfma") and not code[i].startswith("s_")]
        i = (good or cand)[0]
        code[i:i] = ["L_hop%d:" % nh, "s_cbranch_execz L_hopback%d" % (nh // 4), "s_nop 0"][:2 + (1 if "L_loop:" in code[:i] and "s_cbranch_scc1 L_loop" in code[i:] and False else 0)]
        nh += 1
    sys.stderr.write("hops: %d\n" % nh)
open(sys.argv[1], "w").write(render(code, nh))
```

```python
import sys, math, struct
from asmlib import *
from sched import *
import gen_safe

opts = dict(a.split("=") for a in sys.argv[2:])
STAMP = int(opts.get("stamp", 0))
NT = opts.get("nt", "nt").replace("+", " ")
SPOL = opts.get("spol", "nt+sc1").replace("+", " ")
QD = int(opts.get("qd", 3))
DEF = int(opts.get("defer", 0))
STG2 = [tuple(int(y) for y in x.split(":")) for x in opts.get("stg2", "").split(",") if x]
KN = "standalone__gqa_softmax__near_ridge_kernel"
def f2u(x): return struct.unpack("<I", struct.pack("<f", x))[0]
CSCALE = f2u(math.log2(math.e) / math.sqrt(192.0))

KRING = 0; VRING = 36864; VX = 73728; QLDS = 98304; SLOT = 12288
QKS = 1088; QRB = 6 * QKS; QWAVE = 2 * QRB + 1024
FLAG = QLDS + 4 * QWAVE
LDS_BYTES = FLAG + 64
def V(i, n=1): return "v%d" % i if n == 1 else "v[%d:%d]" % (i, i + n - 1)
def Ac(i, n=1): return "a%d" % i if n == 1 else "a[%d:%d]" % (i, i + n - 1)
vKA = [0, 1]; vVA = [2, 3, 4, 5]; vQA = 6; vDMA = 7
vL = [8 + i for i in range(6)]; vQG = 14; vQW = 15
FB = [Ac(96 + 4 * i, 4) for i in range(4)]
FQ = {4: [Ac(112, 4), Ac(116, 4)], 5: [Ac(120, 4), Ac(124, 4)]}
EARLY = [0, 1, 2, 3]; LATE = [4, 5]
G = {}; X = {}
r = 16
for rb in LATE:
    G[rb] = [r, r + 4]; X[rb] = [r + 8, r + 12]; r += 16
for rb in EARLY:
    G[rb] = [r, r + 4]; X[rb] = [r + 8, r + 8]; r += 12
assert r == 96
def Oreg(rb, db):
    b = rb * 12 + db
    return ("v", 96 + 4 * b) if b < 40 else ("a", 128 + 4 * (b - 40))
def O4(rb, db):
    f, i = Oreg(rb, db); return "%s[%d:%d]" % (f, i, i + 3)
def Qf(rb, ks): return Ac(rb * 24 + ks * 4, 4) if rb < 4 else FQ[rb][ks & 1]
sQ = "s[20:23]"; sK = "s[24:27]"; sV = "s[28:31]"; sO = "s[32:35]"; sW = "s[36:39]"
sC2 = "s[40:41]"; sIT = "s42"; sKoff = "s43"; sVoff = "s44"; sKm = "s45"; sVm = "s46"; sWave = "s47"
sTmp = "s48"; sRow = "s49"; sKend = "s50"; sVend = "s51"; sKbeg = "s52"; sVbeg = "s53"; sQL = "s16"; sCls = "s17"
sVX = "s[84:87]"; sXoff = "s74"; sXm = "s75"; sKr = "s82"; sVr = "s83"; sKd = "s92"; sVd = "s93"
sMask = "s54"; sLo = "s76"; sHi = "s77"; sBad = "s[78:79]"; sB2 = "s[80:81]"
def sRB(rb): return "0" if rb == 0 else "s%d" % (54 + rb)
MF = "v_mfma_f32_16x16x32_bf16"

def k_read(dst, tile_par, ks, hf):
    return "ds_read_b128 %s, %s offset:%d" % (dst, V(vKA[ks & 1]), tile_par * SLOT + (ks >> 1) * 4096 + hf * 2048)
def v_read(a0, tile_par, db):
    return ["ds_read_b64_tr_b16 %s, %s offset:%d" % (Ac(a0 + 2 * i, 2), V(vVA[db & 3]), tile_par * SLOT + (db >> 2) * 4096 + i * 2048) for i in range(2)]
def q_read(dst, area, ks):
    return "ds_read_b128 %s, %s offset:%d" % (dst, V(vQA), area * QRB + ks * QKS)
def qk_mfmas(par, last_up=False):
    out = []
    for g in range(6):
        p, hf = g >> 1, g & 1
        for rb in (range(6) if hf == 0 or (last_up and g == 5) else range(5, -1, -1)):
            for k in range(2):
                ks = 2 * p + k
                d = V((G[rb][par] if hf == 0 else X[rb][par]), 4)
                out.append("%s %s, %s, %s, %s" % (MF, d, FB[(2 * g + k) % 4], Qf(rb, ks), "0" if ks == 0 else d))
    return out
def sregs(rb, par): return [G[rb][par] + i for i in range(4)] + [X[rb][par] + i for i in range(4)]
def sm(rb, par, half):
    ops = []; s = sregs(rb, par)
    for i in (4 * half, 4 * half + 2):
        ops.append("v_exp_f32 %s, %s" % (V(s[i]), V(s[i])))
        ops.append("v_exp_f32 %s, %s" % (V(s[i + 1]), V(s[i + 1])))
        ops.append("v_add_f32 %s, %s, %s" % (V(vL[rb]), V(vL[rb]), V(s[i])))
        ops.append("v_add_f32 %s, %s, %s" % (V(vL[rb]), V(vL[rb]), V(s[i + 1])))
        ops.append("v_cvt_pk_bf16_f32 %s, %s, %s" % (V(G[rb][par] + i // 2), V(s[i]), V(s[i + 1])))
    return ops
def last_write_slot(mf, reg): return max(g for g, t in enumerate(mf) if reg in Ins(t).wr)
def paced(ops, g0, g1, floor=0, dead=10 ** 9):
    os_ = [Op(t) for t in ops]; tot = sum(o.cost for o in os_); acc = 0
    for o in os_:
        o.ming = max(floor, int(g0 + (g1 - g0) * acc / tot)); o.dead = dead; acc += o.cost
    return os_
def pin_qk(pinned, qk, tile_par, nq):
    def pin(g, t): pinned.setdefault(g, []).append(t)
    for g in range(1, 6):
        for k in range(2): pin(12 * (g - 1) + 2 * k, k_read(FB[(2 * g + k) % 4], tile_par, 2 * (g >> 1) + k, g & 1))
    lastq = {}
    for g, t in enumerate(qk):
        for rb in LATE:
            for k in range(2):
                if FQ[rb][k] in t: lastq[(g // 24, rb, k)] = g
    for p in range(nq):
        g = 0
        for (lg, rb, k) in sorted((lastq[(p, rb, k)], rb, k) for rb in LATE for k in range(2)):
            g = max(g, lg + 1)
            while g in pinned: g += 1
            pin(g, q_read(FQ[rb][k], rb - 4, (2 * p + 2 + k) % 6)); g += 2

def body(par, ds_in, peel=False):
    np_ = par ^ 1
    qk = qk_mfmas(np_)
    mf = qk + ["%s %s, %s, %s, %s" % (MF, O4(rb, db), FB[db % 4], V(G[rb][par], 4), O4(rb, db)) for db in range(12) for rb in range(6)]
    pinned = {}
    def pin(g, t): pinned.setdefault(g, []).append(t)
    for db in range(12):
        for t in v_read(96 + 4 * (db % 4), 0, db): pin({0: 60, 1: 63, 2: 72, 3: 75}.get(db, 72 + 6 * (db - 3)), t)
    pin(127, k_read(FB[0], 0, 0, 0)); pin(133, k_read(FB[1], 0, 1, 0))
    pin_qk(pinned, qk, 0, 3)
    scal = [(57, ["s_waitcnt vmcnt(%d) lgkmcnt(0)" % (7 - par)], True), (58, ["s_barrier"], True)]
    if par == 1:
        scal.append((61, ["s_mov_b32 m0, %s" % sXm], True))
        pin(62, "buffer_load_dwordx4 %s, %s, %s offen %s lds" % (V(vDMA), sVX, sXoff, NT))
        scal.append((63, ["s_cmp_eq_u32 %s, 3" % sIT, "s_cselect_b32 %s, %d, 128" % (sTmp, SLOT - 256) if False else "s_cselect_b32 %s, s94, s95" % sTmp,
                          "s_add_u32 %s, %s, %s" % (sXoff, sXoff, sTmp), "s_add_u32 %s, %s, 4096" % (sXm, sXm)], False))
    adv = []
    for cnt, d in ((sVr, sVd), (sKr, sKd)):
        adv += ["s_add_u32 %s, %s, 1" % (cnt, cnt), "s_cmp_eq_u32 %s, 3" % cnt, "s_cselect_b32 %s, 0, %s" % (cnt, cnt),
                "s_cselect_b32 %s, s90, s91" % d]
    if peel: adv = ["s_mov_b32 %s, 0" % sVr, "s_mov_b32 %s, s90" % sVd, "s_mov_b32 %s, 2" % sKr, "s_mov_b32 %s, s91" % sKd]
    scal.append((1, adv, False))
    if peel:
        xg = [int(x) for x in opts.get("xg", "5,21,33,45,67,77").split(",")]
        xl = [(k, x, cb) for k, x in (("V", 1), ("K", 3)) for cb in range(3)]
        for g, (k, x, cb) in zip(xg, xl):
            srd_, beg = (sK, sKbeg) if k == "K" else (sV, sVbeg)
            assert g not in pinned and (g - 2) not in xg and (g - 1) not in xg, g
            if cb == 0: scal.append((g - 2, ["s_mov_b32 %s, %d" % (sTmp, x * SLOT)], True))
            scal.append((g - 1, ["s_add_u32 m0, %s, %d" % (beg, (x % 3) * SLOT + cb * (4096 - 128))], True))
            pin(g, "buffer_load_dwordx4 %s, %s, %s offen offset:%d %s lds" % (V(vDMA), srd_, sTmp, cb * 128, NT))
        dgp = [int(x) for x in opts.get("dgp", "87,99,111,119,130,141").split(",")]
        scal[0] = (57, ["s_waitcnt vmcnt(%d) lgkmcnt(0)" % (3 + sum(1 for g in xg if g < 57))], True)
        scal.append((121, ["s_waitcnt vmcnt(%d)" % sum(1 for g in xg + dgp if g < 121)], True)); scal.append((122, ["s_barrier"], True))
    if par == 0 and not peel and int(opts.get("keep", 0)):
        scal.append((2, ["s_cmp_eq_u32 %s, 6" % sIT, "s_cselect_b32 %s, 0, %s" % (sVoff, sVoff)], False))
    for i in range(int(opts.get("slow", 0))):
        g = [30, 101, 54, 138, 10, 83][i]
        if peel: scal.append((g, ["s_sleep 1"], True))
        else: scal.append((g, ["s_cmp_lt_u32 %s, %d" % (sIT, int(opts.get("slowit", 3))), "s_cbranch_scc0 L_sl%d_%d" % (par, i), "s_sleep 1", "L_sl%d_%d:" % (par, i)], True))
    OW = int(opts.get("ow", 0))
    if par == 0 and OW:
        scal.append((2, ["s_cmp_eq_u32 %s, 6" % sIT, "s_cselect_b32 s28, s32, s28", "s_cselect_b32 s29, s33, s29", "s_cselect_b32 s30, s34, s30",
                         "s_cselect_b32 %s, 0, %s" % (sVoff, sVoff), "s_cselect_b32 s86, %d, 0" % (61440 if OW == 2 else 0)], False))
        scal.append((107, ["s_add_u32 %s, %s, s86" % (sVoff, sVoff)], False)); scal.append((119, ["s_add_u32 %s, %s, s86" % (sVoff, sVoff)], False))
    dg = [int(x) for x in opts.get("dg", "71,81,93,105,117,130").split(",")] if not peel else dgp
    for i in range(6):
        srd_, so, sm_ = (sK, sKoff, sKm) if i < 3 else (sV, sVoff, sVm)
        assert dg[i] not in pinned
        scal.append((dg[i] - 1, ["s_add_u32 m0, %s, %d" % (sm_, (i % 3) * (4096 - 128))], True))
        pin(dg[i], "buffer_load_dwordx4 %s, %s, %s offen offset:%d %s lds" % (V(vDMA), srd_, so, (i % 3) * 128, NT))
    for g, so, m, end, beg in () if peel else ((dg[2] + 1 if dg[3] - dg[2] > 8 else dg[5] + 8, sKoff, sKm, sKend, sKbeg), (dg[5] + 1, sVoff, sVm, sVend, sVbeg)):
        scal.append((g, ["s_add_u32 %s, %s, %d" % (so, so, SLOT), "s_add_u32 %s, %s, %d" % (m, m, SLOT),
                         "s_cmp_eq_u32 %s, %s" % (m, end), "s_cselect_b32 %s, %s, %s" % (m, beg, m)], False))
    if par == 0 and not peel: scal.append((139, ["s_add_u32 %s, %s, 1" % (sIT, sIT), "s_cmp_lt_u32 %s, 7" % sIT], False))
    st = paced(sum([sm(rb, par, h) for rb in LATE for h in range(2)], []), 0, 50, dead=70)
    st += [Op("v_add_u32 %s, %s, %s" % (V(a), sVd, V(a)), 44, 56) for a in vVA]
    st += [Op("v_add_u32 %s, %s, %s" % (V(a), sKd, V(a)), 52, 125) for a in vKA]
    E0, E1 = 55, 140
    for n, (rb, h) in enumerate([(0, 0), (1, 0), (2, 0), (3, 0), (3, 1), (2, 1), (1, 1), (0, 1)]):
        ready = last_write_slot(qk, "v%d" % sregs(rb, np_)[4 * h]) + 5
        st += paced(sm(rb, np_, h), E0 + (E1 - E0) * n / 8, E0 + (E1 - E0) * (n + 1) / 8, floor=ready)
    def capf(cap, sc, pin_):
        for g in range(144):
            if "s_barrier" in sc.get(g, []): cap[g] = 0
    return schedule(mf, pinned, scal, st, ds_in, "body%d" % par, next_first=qk_mfmas(par)[0], excl=True, capf=capf)

def stamp(i):
    if STAMP in (1, 3): return ["s_memrealtime s[%d:%d]" % (60 + 2 * i, 61 + 2 * i)]
    if STAMP == 7:
        o = ["s_memrealtime s[%d:%d]" % (60 + 2 * i, 61 + 2 * i)] if i in (0, 2, 3, 6, 7) else []
        c = {2: 1, 7: 4, 3: 5}.get(i)
        return o + (["s_memtime s[%d:%d]" % (60 + 2 * c, 61 + 2 * c)] if c else [])
    if STAMP == 6: return ["s_memtime s[%d:%d]" % (60 + 2 * i, 61 + 2 * i)]
    return []

P = []
A = P.append
A("s_cmp_ge_u32 s2, 256")
A("s_cbranch_scc1 L_end")
A("s_load_dwordx4 s[4:7], s[0:1], 0")
A("s_load_dwordx4 s[8:11], s[0:1], 16")
if STAMP: A("s_load_dwordx2 s[12:13], s[0:1], 40")
P += stamp(0)
A("s_getpc_b64 s[18:19]")
A("v_lshlrev_b32 v240, 7, v0")
A("L_pc:")
A("v_min_u32 v240, CODELEN, v240")
A("v_add_u32 v240, CODEOFF, v240")
A("global_load_dword v241, v240, s[18:19]")
vLN = 242; t2 = 243; t3 = 244; t4 = 245; t5 = 246; t6 = 247
A("v_lshrrev_b32 v%d, 6, v0" % t2)
A("v_and_b32 v%d, 63, v0" % vLN)
A("s_mul_i32 s14, s2, 147456")
A("v_readfirstlane_b32 %s, v%d" % (sWave, t2))
A("s_mul_i32 s15, s2, 196608")
A("s_bfe_u32 %s, s2, 0x30003" % sCls)
A("v_lshrrev_b32 v%d, 3, v%d" % (t5, vLN))
A("v_mul_u32_u24 v%d, 384, v%d" % (t6, t5))
A("v_lshrrev_b32 v%d, 4, v%d" % (t3, vLN))
A("v_lshlrev_b32 v%d, 1, v%d" % (t4, t3))
A("v_xor_b32 v%d, v%d, v%d" % (t4, t4, vLN))
A("v_and_b32 v%d, 7, v%d" % (t4, t4))
A("v_lshl_add_u32 v%d, v%d, 4, v%d" % (vDMA, t4, t6))
A("s_mul_i32 %s, %s, 3072" % (sTmp, sWave))
A("v_add_u32 v%d, %s, v%d" % (vDMA, sTmp, vDMA))
A("v_and_b32 v%d, 7, v%d" % (t4, vLN))
A("v_lshl_add_u32 v%d, v%d, 4, v%d" % (vQG, t4, t6))
A("s_mul_i32 %s, %s, 36864" % (sRow, sWave))
A("v_add_u32 v%d, %s, v%d" % (vQG, sRow, vQG))
A("s_lshl_b32 %s, %s, 10" % (sKbeg, sWave))
A("s_add_u32 %s, %s, %d" % (sVbeg, sKbeg, VRING))
for rb in range(1, 6): A("s_mov_b32 %s, %d" % (sRB(rb), rb * 6144))
if STG2:
    A("s_mov_b32 s3, 0")
    for i, (lo, hi, k, cnt) in enumerate(STG2):
        A("s_sub_u32 %s, %s, %d" % (sTmp, sCls, lo)); A("s_cmp_lt_u32 %s, %d" % (sTmp, hi - lo)); A("s_cselect_b32 s3, %d, s3" % (1 << i))
A("s_waitcnt lgkmcnt(0)")
def srd(base, src, off, size):
    A("s_add_u32 s%d, s%d, %s" % (base, src, off)); A("s_addc_u32 s%d, s%d, 0" % (base + 1, src + 1))
    A("s_mov_b32 s%d, %d" % (base + 2, size)); A("s_mov_b32 s%d, 0x20000" % (base + 3))
vm = []
def raw(rb, i): return 96 + rb * 24 + i * 4
def issue(k, x, i):
    if k == "Q":
        A("buffer_load_dwordx4 %s, v%d, %s, %s offen offset:%d %s" % (V(raw(x, i), 4), vQG, sQ, sRB(x), (i & 1) * 3072 + (i >> 1) * 128, NT))
        vm.append("Q%d.%d" % (x, i))
    else:
        srd_, beg = (sK, sKbeg) if k == "K" else (sV, sVbeg)
        A("s_add_u32 m0, %s, %d" % (beg, (x % 3) * SLOT + i * (4096 - 128)))
        A("s_mov_b32 %s, %d" % (sTmp, x * SLOT))
        A("buffer_load_dwordx4 %s, %s, %s offen offset:%d %s lds" % (V(vDMA), srd_, sTmp, i * 128, NT))
        vm.append("%s%d" % (k, x))
    n = len(vm) - 1
    for ci, (lo, hi, kk, cnt) in enumerate(STG2):
        if kk <= n < cnt:
            A("s_bitcmp1_b32 s3, %d" % ci); A("s_cbranch_scc0 L_sg%d_%d" % (n, ci)); A("s_waitcnt vmcnt(%d)" % kk); A("L_sg%d_%d:" % (n, ci))
def vwait(name):
    last = max(i for i, x in enumerate(vm) if x == name)
    A("s_waitcnt vmcnt(%d)" % (len(vm) - 1 - last))
TLB = int(opts.get("tlb", 0))
srd(24, 6, "s15", 196608)
issue("K", 0, 0)
if TLB & 1:
    srd(32, 10, "s14", 147456); srd(28, 8, "s15", 196608)
    A("v_lshlrev_b32 v240, 9, v%d" % vLN)
    A("buffer_load_dword v250, v240, %s, %s offen nt" % (sO, sRow)); vm.append("t")
    A("buffer_load_dword v251, v%d, %s, 0 offen nt" % (vDMA, sV)); vm.append("t")
for cb in range(1, 3): issue("K", 0, cb)
K1E = int(opts.get("k1e", 0))
if K1E:
    for cb in range(3): issue("K", 1, cb)
srd(20, 4, "s14", 147456)
for rb in range(QD):
    for i in range(6): issue("Q", rb, i)
HOP = int(opts.get("hop", 1))
if HOP: A("s_branch L_main"); A(".p2align 12"); A("L_main:")
srd(28, 8, "s15", 14 * SLOT); srd(32, 10, "s14", 147456); srd(84, 8, "s15", 196608)
if STAMP:
    A("s_mov_b32 s36, s12"); A("s_mov_b32 s37, s13"); A("s_mov_b32 s38, 0x100000"); A("s_mov_b32 s39, 0x20000")
A("s_add_u32 %s, %s, %d" % (sKend, sKbeg, 3 * SLOT))
A("s_add_u32 %s, %s, %d" % (sVend, sVbeg, 3 * SLOT))
A("s_mul_i32 %s, %s, %d" % (sQL, sWave, QWAVE))
A("s_add_u32 %s, %s, %d" % (sQL, sQL, QLDS))
A("v_xor_b32 v%d, v%d, v%d" % (t2, t5, t4))
A("v_lshlrev_b32 v%d, 4, v%d" % (t2, t2))
A("v_lshl_add_u32 v%d, v%d, 7, v%d" % (t2, t5, t2))
A("s_mul_i32 %s, %s, 6144" % (sTmp, sWave))
A("s_cmp_lt_u32 %s, 2" % sWave)
A("s_cselect_b32 s3, %d, %d" % (1, 2))
A("s_mul_i32 s3, s3, %d" % SLOT)
A("s_add_u32 %s, %s, s3" % (sTmp, sTmp))
A("v_add_u32 v249, %s, v%d" % (sTmp, t2))
A("v_and_b32 v%d, 3, v%d" % (t4, vLN))
A("v_xor_b32 v%d, v%d, v%d" % (t2, t5, t4))
A("v_lshlrev_b32 v%d, 4, v%d" % (t2, t2))
A("v_lshl_add_u32 v%d, v%d, 8, v%d" % (t2, t4, t2))
A("v_bfe_u32 v%d, v%d, 2, 1" % (t4, vLN))
A("v_mul_u32_u24 v%d, %d, v%d" % (t4, QKS, t4))
A("v_add3_u32 v%d, v%d, v%d, %s" % (vQW, t2, t4, sQL))
A("v_and_b32 v%d, 15, v%d" % (t2, vLN))
A("v_xor_b32 v%d, v%d, v%d" % (t4, t2, t3))
A("v_lshlrev_b32 v%d, 4, v%d" % (t4, t4))
A("v_lshl_add_u32 v%d, v%d, 8, v%d" % (t4, t3, t4))
A("v_add_u32 v%d, %s, v%d" % (vQA, sQL, t4))
A("v_lshlrev_b32 v%d, 7, v%d" % (t6, t2))
A("v_lshrrev_b32 v%d, 5, v%d" % (t4, vLN))
A("v_xor_b32 v%d, v%d, v%d" % (t4, t4, vLN))
A("v_and_b32 v%d, 7, v%d" % (t4, t4))
A("v_lshl_add_u32 v%d, v%d, 4, v%d" % (t6, t4, t6))
A("v_xor_b32 v%d, v%d, v%d" % (t4, t3, t5))
A("v_and_b32 v%d, 1, v%d" % (t4, t4))
A("v_lshl_add_u32 v%d, v%d, 3, v%d" % (t6, t4, t6))
A("v_add_u32 v248, %s, v%d" % (sTmp, t6))
A("ds_write_b64 v%d, v[248:249] offset:%d" % (vQA, 2 * QRB))
A("v_and_b32 v%d, 6, v%d" % (t4, vLN))
A("v_xor_b32 v%d, v%d, v%d" % (t4, t4, t3))
A("v_lshlrev_b32 v%d, 4, v%d" % (t4, t4))
A("v_lshl_add_u32 v%d, v%d, 7, v%d" % (vKA[0], t2, t4))
A("v_xor_b32 v%d, 64, v%d" % (vKA[1], vKA[0]))
A("v_lshrrev_b32 v%d, 2, v%d" % (t4, vLN))
A("v_lshlrev_b32 v%d, 7, v%d" % (t4, t4))
A("v_and_b32 v%d, 3, v%d" % (t2, vLN))
A("v_lshl_add_u32 v%d, v%d, 3, v%d" % (t4, t2, t4))
A("v_bfe_u32 v%d, v%d, 3, 2" % (t2, vLN))
A("v_lshl_add_u32 v%d, v%d, 5, v%d" % (t4, t2, t4))
A("v_add_u32 v%d, %d, v%d" % (vVA[0], VRING + 2 * SLOT, t4))
for x in range(1, 4): A("v_xor_b32 v%d, %d, v%d" % (vVA[x], 32 * x, vVA[0]))
A("s_mov_b32 s40, 0x%x" % CSCALE); A("s_mov_b32 s41, 0x%x" % CSCALE)
A("s_mov_b32 %s, 0xffff0000" % sMask)
A("s_mov_b32 %s, 0" % sIT)
A("s_mov_b32 %s, %d" % (sKoff, 4 * SLOT))
A("s_mov_b32 %s, %d" % (sVoff, 2 * SLOT))
A("s_add_u32 %s, %s, %d" % (sKm, sKbeg, SLOT))
A("s_mov_b32 %s, %d" % (sXoff, 14 * SLOT)); A("s_add_u32 %s, %s, %d" % (sXm, sKbeg, VX))
A("s_mov_b32 s90, %d" % (-2 * SLOT)); A("s_mov_b32 s91, %d" % SLOT); A("s_mov_b32 s94, %d" % (SLOT - 256)); A("s_movk_i32 s95, 128")
A("s_add_u32 %s, %s, %d" % (sVm, sVbeg, 2 * SLOT))
A("s_mov_b32 %s, 0x%x" % (sLo, f2u(2.0 ** float(opts.get("llo", -20)))))
A("s_mov_b32 %s, 0x%x" % (sHi, f2u(2.0 ** float(opts.get("lhi", 24)))))
A("s_mov_b64 %s, 0" % sBad)
for i in vL: A("v_mov_b32 v%d, 0" % i)
ZR = FQ[5][1]
for i in range(4): A("v_accvgpr_write_b32 a%d, 0" % (124 + i))
A("v_mov_b32 v%d, %d" % (t2, FLAG))
A("ds_write_b32 v%d, v%d" % (t2, vL[0]))
def zero16(f, i): A("v_mfma_f32_32x32x16_bf16 %s[%d:%d], %s, %s, 0" % (f, i, i + 15, ZR, ZR))
for i in range(128, 256, 16): zero16("a", i)
A("HOPS0")
vwait("K1" if K1E else "K0")
A("s_waitcnt lgkmcnt(0)")
A("s_barrier")
K0F = [V(G[rb][1], 4) for rb in range(6)] + [V(X[rb][1], 4) for rb in LATE] + FB
for n in range(12): A(k_read(K0F[n], 0, n >> 1, n & 1))
def pro_sm(rb):
    ops = sm(rb, 0, 0) + sm(rb, 0, 1)
    for t in [t for t in ops if t.startswith("v_exp")] + ["s_nop 0"] + [t for t in ops if not t.startswith("v_exp")]: A(t)
pend = [("Q", rb, i) for rb in range(QD, 6) for i in range(6)]
pend += [(k, x, cb) for k, x in (("K", 1), ("V", 0), ("K", 2))[K1E:] for cb in range(3)]
deferred = pend[len(pend) - 3 * DEF:]; pend = pend[:len(pend) - 3 * DEF]
def qdst(rb, ks): return Ac(rb * 24 + ks * 4, 4) if rb < 4 else V(raw(rb, ks), 4)
def st_read(s_):
    rb, cb = divmod(s_, 3)
    for ks in (2 * cb, 2 * cb + 1): A(q_read(qdst(rb, ks), rb & 1, ks))
def st_mfma(s_):
    rb, cb = divmod(s_, 3)
    for hf in range(2):
        for ks in (2 * cb, 2 * cb + 1):
            d = V((G[rb][0] if hf == 0 else X[rb][0]), 4)
            A("%s %s, %s, %s, %s" % (MF, d, K0F[2 * ks + hf], qdst(rb, ks), "0" if ks == 0 else d))
nleft = 36
for s_ in range(18):
    rb, cb = divmod(s_, 3)
    for rh in range(2):
        i = 2 * cb + rh
        vwait("Q%d.%d" % (rb, i))
        if s_ == 17 and rh == 1: P += stamp(1)
        r0 = raw(rb, i); tb = 240 + 8 * rh
        for k in range(4):
            A("v_lshlrev_b32 v%d, 16, v%d" % (tb + 2 * k, r0 + k)); A("v_and_b32 v%d, %s, v%d" % (tb + 2 * k + 1, sMask, r0 + k))
        for k in range(4): A("v_pk_mul_f32 %s, %s, %s" % (V(tb + 2 * k, 2), V(tb + 2 * k, 2), sC2))
        for k in range(4): A("v_cvt_pk_bf16_f32 v%d, v%d, v%d" % (r0 + k, tb + 2 * k, tb + 2 * k + 1))
        if rh == 0 and s_ >= 1: st_read(s_ - 1)
        A("ds_write_b128 v%d, %s offset:%d" % (vQW, V(r0, 4), (rb & 1) * QRB + cb * 2 * QKS + rh * 128))
        if s_ == 17 and rh == 1: st_read(17)
        if pend and (pend[0][0] == "Q" or len(pend) >= nleft - int(opts.get("kvl", 3))):
            for _ in range(-(-len(pend) // nleft)): issue(*pend.pop(0))
        nleft -= 1
        if nleft == 0:
            for x in deferred[:3]: issue(*x)
    if s_ >= 1:
        A("s_waitcnt lgkmcnt(%d)" % (2 if s_ < 17 else 4)); st_mfma(s_ - 1)
        if "dum" in opts and s_ < 17:
            d0, d1 = [int(x) for x in opts["dum"].split(",")]
            rbp, cbp = divmod(s_ - 1, 3)
            for i in range(d0 + (d1 - d0) * s_ // 16):
                A("%s a[112:115], %s, %s, a[112:115]" % (MF, K0F[i % 12], qdst(rbp, 2 * cbp + (i & 1))))
    if cb == 1 and rb >= 1 and rb - 1 in EARLY: pro_sm(rb - 1)
    if s_ == int(opts.get("hs", 2)): A("HOPS1")
    for i in {7: (96, 112, 128), 13: (144, 160, 176), 16: (192, 208)}.get(s_, ()): zero16("v", i)
A("s_waitcnt lgkmcnt(0)")
st_mfma(17)
for i in (240, 224): zero16("v", i)
for x in deferred[3:]: issue(*x)
if not K1E:
    vwait("K1")
    A("s_barrier")
for a_ in vKA: A("v_add_u32 %s, %d, %s" % (V(a_), SLOT, V(a_)))
A(k_read(FB[0], 0, 0, 0)); A(k_read(FB[1], 0, 1, 0))
for rb in LATE:
    for k in range(2): A(q_read(FQ[rb][k], rb - 4, k))
if TLB & 2: A("buffer_load_dword v%d, v%d, %s, 0 offen nt" % (vQW, vQG, sO))
assert vm[-6:] == sum([[x] * 3 for x in ("V0", "K2")], []), vm
A("s_waitcnt lgkmcnt(0)")
P += stamp(2)

B0, q0 = body(0, [])
B1, q1 = body(1, q0)
B0, q0b = body(0, q1)
assert q0 == q0b
BP, qp_ = body(0, [], peel=True)
assert qp_ == q0
BP += ["s_add_u32 %s, %s, %d" % (sKoff, sKoff, SLOT), "s_add_u32 %s, %s, %d" % (sKm, sKm, SLOT),
       "s_add_u32 %s, %s, %d" % (sVoff, sVoff, SLOT), "s_mov_b32 %s, %s" % (sVm, sVbeg), "s_mov_b32 %s, 1" % sIT]
if STAMP == 7: BP += stamp(7)
if STAMP == 3:
    pre3 = ["s_mov_b32 m0, s13", "s_add_u32 s13, s13, 1", "v_writelane_b32 v15, s88, m0", "s_memrealtime s[88:89]"]
    BP = ["s_mov_b32 s13, 0", "s_mov_b32 s88, 0"] + pre3 + BP; B0 = pre3 + B0; B1 = pre3 + B1

T = []
A = T.append
T += stamp(3)
if STAMP == 3:
    T += pre3 + ["s_waitcnt lgkmcnt(0)"] + pre3[:3]
    A("v_mbcnt_lo_u32_b32 v16, -1, 0"); A("v_mbcnt_hi_u32_b32 v16, -1, v16"); A("v_lshlrev_b32 v16, 2, v16")
    A("s_lshl_b32 s3, s2, 2"); A("s_add_u32 s3, s3, %s" % sWave); A("s_lshl_b32 s3, s3, 8"); A("s_add_u32 s3, s3, 65536")
    A("buffer_store_dword v15, v16, %s, s3 offen" % sW)
eW = [16, 17, 18, 19]; eR = vQW; eS = vQG
for a_ in vKA: A("v_subrev_u32 %s, %d, %s" % (V(a_), 2 * SLOT, V(a_)))
def R4(x): return "%s[%d:%d]" % (x[0], x[1], x[1] + 3)
def R2(x, h): return "%s[%d:%d]" % (x[0], x[1] + 2 * h, x[1] + 2 * h + 1)
def vrd(dst, tile, db):
    return ["ds_read_b64_tr_b16 %s, %s offset:%d" % (R2(dst, i), V(vVA[db & 3]), {13: 1, 14: 3, 15: 4}[tile] * SLOT + (db >> 2) * 4096 + i * 2048) for i in range(2)]
X15 = {0: X[4][0], 1: X[5][0], 2: G[5][0], 3: X[0][0], 4: X[4][1], 5: X[5][1]}
G15 = {0: G[0][1], 1: G[1][1], 2: G[2][1], 3: G[1][0], 4: G[1][1], 5: G[2][0]}
def fs(rb, t): return [(G[rb][0] if t == 14 else G15[rb]) + i for i in range(4)] + [(X[rb][0] if t == 14 else X15[rb]) + i for i in range(4)]
def fsm(rb, t, half):
    ops = []; s_ = fs(rb, t)
    for i in (4 * half, 4 * half + 2):
        ops += ["v_exp_f32 %s, %s" % (V(s_[i]), V(s_[i])), "v_exp_f32 %s, %s" % (V(s_[i + 1]), V(s_[i + 1])),
                "v_add_f32 %s, %s, %s" % (V(vL[rb]), V(vL[rb]), V(s_[i])), "v_add_f32 %s, %s, %s" % (V(vL[rb]), V(vL[rb]), V(s_[i + 1])),
                "v_cvt_pk_bf16_f32 %s, %s, %s" % (V(s_[i // 2]), V(s_[i]), V(s_[i + 1]))]
    return ops
def qp(p): return [("a", rb * 24 + 8 * p + 4 * k) for rb in range(3) for k in range(2)]
def sb(*l): return [("a", 96 + 4 * i) for i in l]
vres = qp(0) + sb(4, 5) + qp(1) + sb(6, 7, 0, 1) + qp(2)
def v13(db): return ("v", 192 + 4 * db)
def phase_mf(rb):
    o = ["%s %s, %s, %s, %s" % (MF, O4(rb, db), R4(v13(db)), V(G[rb][1], 4), O4(rb, db)) for db in range(12)] if rb >= 3 else []
    return o + ["%s %s, %s, %s, %s" % (MF, O4(rb, db), R4(vres[12 * t + db]), V(fs(rb, 14 + t)[0], 4), O4(rb, db)) for t in range(2) for db in range(12)]
def lfin(rb):
    tmp = X15[rb]; l = vL[rb]; o = []
    for sw in ("v_permlane32_swap_b32", "v_permlane16_swap_b32"):
        o += ["v_mov_b32 v%d, v%d" % (tmp, l), "%s v%d, v%d" % (sw, l, tmp), "v_add_f32 v%d, v%d, v%d" % (l, l, tmp)]
    o += ["v_cmp_nle_f32 vcc, %s, v%d" % (sLo, l), "v_cmp_nge_f32 %s, %s, v%d" % (sB2, sHi, l), "v_rcp_f32 v%d, v%d" % (l, l)]
    return [Op(t) for t in o]
def wreg(n):
    fl, i0 = Oreg(n // 3, 4 * (n % 3))
    return i0 if fl == "v" else 96 + 16 * (n % 6)
def stg(n): return (n % 3) * 2048
def ep_st(n, rh):
    rb, cb = divmod(n, 3)
    return "buffer_store_dwordx4 %s, v%d, %s, %s offen offset:%d %s" % (V(wreg(n) + 8 + 4 * rh, 4), eS, sO, sRB(rb), rh * 3072 + cb * 128, SPOL)
def ep_rd(n):
    return ["ds_read_b128 %s, v%d offset:%d" % (V(wreg(n) + 8, 4), eR, stg(n))] + \
           ["ds_read_b64 %s, v%d offset:%d" % (V(wreg(n) + 12 + 2 * k, 2), eR, stg(n) + 1024 + 8 * (1 - k)) for k in range(2)]
ROWS = int(opts.get("rows", 0))
def burst(rb):
    A("s_or_b64 %s, %s, vcc" % (sBad, sBad)); A("s_or_b64 %s, %s, %s" % (sBad, sBad, sB2))
    lp = vL[rb] & ~1; sel = vL[rb] & 1
    for cb in range(3):
        n = 3 * rb + cb
        fl, i0 = Oreg(rb, 4 * cb); w = wreg(n)
        if fl == "a":
            for i in range(16):
                if rb < 5 or 4 * cb + i // 4 >= PRE5: A("v_accvgpr_read_b32 %s, %s" % (V(w + i), Ac(i0 + i)))
        for i in range(0, 16, 2):
            A("v_pk_mul_f32 %s, %s, %s op_sel:[0,%d] op_sel_hi:[1,%d]" % (V(w + i, 2), V(w + i, 2), V(lp, 2), sel, sel))
        if cb == 2 and not ROWS: A("s_waitcnt lgkmcnt(4)"); A(ep_st(n - 2, 0))
        for i in range(8): A("v_cvt_pk_bf16_f32 %s, %s, %s" % (V(w + i), V(w + 2 * i), V(w + 2 * i + 1)))
        if cb == 2 and not ROWS: A(ep_st(n - 2, 1))
        if cb >= 1:
            for t in ep_rd(n - 1): A(t)
        for x in range(4):
            A("ds_write_b64 v%d, %s offset:%d" % (eW[x], V(w + 2 * x, 2), stg(n)))
def group_block(rbs, buf, qf, first):
    mf = []; frag = []
    for t in ((14, 13, 15) if first else (14, 15)):
        if t == 13:
            for db in range(12):
                b = buf[len(frag) % 8]; frag.append((len(mf), vrd(b, 13, db), len(mf) + 2))
                mf += ["%s %s, %s, %s, %s" % (MF, O4(rb, db), R4(b), V(G[rb][1], 4), O4(rb, db)) for rb in rbs]
        else:
            for g in range(6):
                p, hf = (g >> 1, g & 1) if (t == 15 and first) else (g % 3, g // 3)
                bs = [buf[(len(frag) + k) % 8] for k in range(2)]
                for k in range(2): frag.append((len(mf), [k_read(R4(bs[k]), 2 if t == 14 else 0, 2 * p + k, hf)], len(mf) + 5))
                for rb in rbs:
                    for k in range(2):
                        d = V(fs(rb, t)[4 * hf], 4)
                        mf.append("%s %s, %s, %s, %s" % (MF, d, R4(bs[k]), qf(rb, 2 * p + k), "0" if p + k == 0 else d))
    return mf + phase_mf(rbs[0]), frag
def place(pinned, g, ins):
    while len(pinned.get(g, [])) + len(ins) > 2 or any(t.startswith("buffer") for t in pinned.get(g, [])): g += 1
    pinned.setdefault(g, []).extend(ins); return g
def block_stream(mf, rbs, lag):
    st = []
    r0_, r1_, r2_ = rbs
    for rb, t, h in ((r0_, 14, 0), (r1_, 14, 0), (r2_, 14, 0), (r0_, 14, 1), (r1_, 14, 1), (r2_, 14, 1), (r0_, 15, 0), (r0_, 15, 1), (-1, 0, 0), (r1_, 15, 0)):
        if rb < 0: st += lfin(r0_); continue
        ready = last_write_slot(mf[:108], "v%d" % fs(rb, t)[4 * h]) + lag
        dead = 131 if rb != r0_ else (105 if t == 14 else 117)
        st += [Op(x, ready, dead) for x in fsm(rb, t, h)]
    return st
def leftovers(n):
    rd = ep_rd(n)
    if ROWS:
        d = {4: rd[:2], 5: rd[2:]}
        for i in range(6): d[11 + i + (i // 3) * int(opts.get("rgap", 2))] = [ep_st(n - 2 + i % 3, i // 3)]
        return d
    return {1: [ep_st(n - 1, 0)], 4: [ep_st(n - 1, 1)], 7: rd[:2], 8: rd[2:], 17: [ep_st(n, 0)], 20: [ep_st(n, 1)]}
def small_phase(rb, nxt, extra=()):
    scal = [(0, ["s_waitcnt lgkmcnt(4)"], True), (16, ["s_waitcnt lgkmcnt(0)"], True)] if not ROWS else [(10, ["s_waitcnt lgkmcnt(0)"], True)]
    st = [Op(t, 0, 10) for t in fsm(rb, 15, 1)] + lfin(rb)
    if nxt is not None: st += [Op(t) for t in fsm(nxt, 15, 0)]
    pinned = leftovers(3 * rb - 1)
    for g, ins in extra: pinned[g] = ins
    if extra: scal[1] = (16, ["s_waitcnt lgkmcnt(%d)" % sum(len(ins) for g, ins in extra if g < 16)], True)
    blk, _ = schedule(phase_mf(rb), pinned, scal, st, [], "phase%d" % rb, excl=True)
    return blk
bufA = [("a", 96 + 4 * i) for i in range(8)]
mf, frag = group_block([0, 1, 2], bufA, Qf, True)
pinned = {}
for i, (use, ins, _) in enumerate(frag):
    if i < 2: continue
    place(pinned, max(0 if i < 8 else frag[i - 8][2], use - 15 + (i & 1)), ins)
g = 80; gv = {}
for n in range(24):
    free = 1 + max(k for k, t in enumerate(mf[:108]) if ("a%d" % vres[n][1]) in Ins(t).rd)
    g = place(pinned, max(g, free), vrd(vres[n], 14 + n // 12, n % 12))
    gv[n] = g; g += (1 if n < 17 else 2)
place(pinned, 124, ["ds_read_b64 v[16:17], v%d offset:%d" % (vQA, 2 * QRB)])
scal = [(13, ["s_waitcnt vmcnt(0)", "s_barrier"], False)]
st = [Op(t) for h in range(2) for t in sm(4, 1, h)] + block_stream(mf, [0, 1, 2], 5)
blk, _ = schedule(mf, pinned, scal, st, q0, "blockA", excl=True)
T += blk
if "fine" in opts: T += stamp(1)
A("s_waitcnt lgkmcnt(0)")
A("v_mov_b32 v%d, v17" % eR)
for x in (1, 2, 3): A("v_xor_b32 v%d, %d, v16" % (eW[x], 32 * x))
burst(0)
T += small_phase(1, 2); burst(1)
bufB = [("v", 96 + 4 * i) for i in range(8)]
def qfB(rb, ks): return Qf(rb, ks) if rb < 4 else V(128 + 24 * (rb - 4) + 4 * ks, 4)
mfB, fragB = group_block([3, 4, 5], bufB, qfB, False)
pre = [fragB[i][1][0] for i in range(4)] + [q_read(qfB(rb, k), rb - 4, k) for k in range(6) for rb in LATE]
T += small_phase(2, None, [(g, pre[2 * i:2 * i + 2]) for i, g in enumerate((11, 14, 18, 19, 21, 22, 23))])
for t in pre[14:]: A(t)
for x in range(4): A("v_mov_b32 v%d, v%d" % (G[0][0] + x, eW[x]))
eW = [G[0][0] + x for x in range(4)]
burst(2)
if "fine" in opts: T += stamp(2)
pinned = leftovers(8)
for i, (use, ins, _) in enumerate(fragB):
    if i < 4: continue
    g = place(pinned, max(0 if i < 8 else fragB[i - 8][2], use - 15 + (i & 1)), ins)
g = 22
for db in range(12): g = place(pinned, g, vrd(v13(db), 13, db)) + 3
if ROWS:
    later = sum(1 for g in range(6, 10) for t in pinned.get(g, []) if t.startswith("ds_")) + len(pinned[5]) - 1
    scal = [(10, ["s_waitcnt lgkmcnt(%d)" % later], True)]
else:
    later = sum(1 for g in range(9, 16) for t in pinned.get(g, []) if t.startswith("ds_")) + len(pinned[8]) - 1
    scal = [(0, ["s_waitcnt lgkmcnt(4)"], True), (16, ["s_waitcnt lgkmcnt(%d)" % later], True)]
st = [Op(t, 0, 50) for h in range(2) for t in sm(5, 1, h)]
for rb, t, h, dead in ((3, 14, 0, 81), (4, 14, 0, 107), (5, 14, 0, 107), (3, 14, 1, 81), (4, 14, 1, 107), (3, 15, 0, 93), (3, 15, 1, 93), (-1, 0, 0, 0), (5, 14, 1, 107)):
    if rb < 0: st += lfin(3); continue
    st += [Op(x, last_write_slot(mfB[:72], "v%d" % fs(rb, t)[4 * h]) + 7, dead) for x in fsm(rb, t, h)]
if ROWS: A("s_waitcnt lgkmcnt(7)")
blk, _ = schedule(mfB, pinned, scal, st, [], "blockB", excl=True)
T += blk
if "fine" in opts: T += stamp(0)
burst(3)
scal = [(0, ["s_waitcnt lgkmcnt(4)"], True), (16, ["s_waitcnt lgkmcnt(0)"], True)] if not ROWS else [(10, ["s_waitcnt lgkmcnt(0)"], True)]
st = [Op(t, 0, 22) for h in range(2) for t in fsm(4, 15, h)] + lfin(4) + [Op(t) for h in range(2) for t in fsm(5, 15, h)]
blk, _ = schedule(phase_mf(4), leftovers(11), scal, st, [], "phase4", excl=True)
T += blk
burst(4)
m5 = phase_mf(5); m5 = [m5[12 * t + db] for db in range(12) for t in range(3)]
st = lfin(5)
PRE5 = 9
for db in range(PRE5):
    st += [Op("v_accvgpr_read_b32 %s, %s" % (V(wreg(15 + db // 4) + 4 * (db % 4) + i), Ac(Oreg(5, db)[1] + i)), 3 * db + 2 + 5) for i in range(4)]
blk, _ = schedule(m5, leftovers(14), scal, st, [], "phase5", excl=True)
T += blk
T += stamp(4)
burst(5)
if not ROWS:
    A("s_waitcnt lgkmcnt(4)")
    A(ep_st(16, 0)); A(ep_st(16, 1))
for t in ep_rd(17): A(t)
A("s_cmp_eq_u64 %s, 0" % sBad)
A("s_cbranch_scc1 L_good")
A("v_mov_b32 v2, %d" % FLAG); A("v_mov_b32 v3, 1")
A("ds_write_b32 v2, v3")
A("L_good:")
A("s_waitcnt lgkmcnt(0)")
if ROWS:
    for i in range(6): A(ep_st(15 + i % 3, i // 3))
else: A(ep_st(17, 0)); A(ep_st(17, 1))
if STAMP:
    T += stamp(5)
    A("s_waitcnt vmcnt(0)")
    T += stamp(6)
    A("s_waitcnt lgkmcnt(0)")
    if "probe" in opts:
        pi, pj = [int(x) for x in opts["probe"].split(",")]
        A("s_sub_u32 s84, s%d, s%d" % (60 + 2 * pj, 60 + 2 * pi))
        if "pneg" in opts: A("s_sub_u32 s84, %s, s84" % opts["pneg"])
        if STAMP == 6:
            A("s_min_u32 s84, s84, 40000"); A("s_memrealtime s[72:73]"); A("s_waitcnt lgkmcnt(0)")
        else:
            A("s_min_u32 s84, s84, 10000")
            A("s_lshl_b32 s84, s84, 2")
        if "pcls" in opts:
            A("s_bfe_u32 s85, s2, 0x%x" % int(opts["pbits"], 16)); A("s_cmp_eq_u32 s85, %s" % opts["pcls"]); A("s_cselect_b32 s84, s84, 0")
        A("L_spin:"); A("s_sleep 2"); A("s_memrealtime s[82:83]"); A("s_waitcnt lgkmcnt(0)")
        A("s_sub_u32 s85, s82, s72"); A("s_cmp_lt_u32 s85, s84"); A("s_cbranch_scc1 L_spin")
    A("s_lshl_b32 s3, s2, 2"); A("s_add_u32 s3, s3, %s" % sWave); A("s_lshl_b32 s3, s3, 6")
    A("v_mov_b32 v10, s3")
    for i in range(16): A("v_mov_b32 v%d, s%d" % (16 + i, 60 + i))
    for i in range(4): A("buffer_store_dwordx4 v[%d:%d], v10, %s, 0 offen offset:%d" % (16 + 4 * i, 19 + 4 * i, sW, 16 * i))
A("s_barrier")
A("v_mov_b32 v0, %d" % FLAG)
A("ds_read_b32 v0, v0")
A("s_waitcnt lgkmcnt(0)")
A("v_readfirstlane_b32 %s, v0" % sTmp)
A("s_cmp_eq_u32 %s, 0" % sTmp)
A("s_cbranch_scc0 L_redo")
A("L_end:")
A("s_endpgm")
A("L_hotend:")
A("L_redo:")
A("s_waitcnt vmcnt(0)")
A("s_barrier")
A("v_mbcnt_lo_u32_b32 v0, -1, 0"); A("v_mbcnt_hi_u32_b32 v0, -1, v0")
A("s_lshl_b32 %s, %s, 6" % (sTmp, sWave))
A("v_add_u32 v0, %s, v0" % sTmp)

if "cap" in opts:
    T2 = []
    for t in T:
        if t.startswith("buffer_store") and sO in t: T2.append("s_waitcnt vmcnt(%d)" % int(opts["cap"]))
        T2.append(t)
    T = T2
if "nost" in opts: T = [t for t in T if not (t.startswith("buffer_store") and sO in t)]
if "nowr" in opts: T = [t for t in T if not t.startswith("ds_write_b64")]
def I(l): return [Ins(t) for t in l if not t.startswith("HOPS")]
seq = I(P + BP + B1 + B0 + ["s_cbranch_scc1 L_loop"] + B1 + B0 + ["s_cbranch_scc1 L_loop"] + T)
errs = check_hazards(seq, "main") + check_waits(seq, "main") + check_scc(seq, "main")
for e in errs[:30]: sys.stderr.write(e + "\n")
if errs and "nost" not in opts:
    print("!!! %d hazard problems" % len(errs)); sys.exit(1)
S, lds2, e2_ = gen_safe.build_safe({"qd": "3", "nt": NT})
assert lds2 <= LDS_BYTES and e2_ == 0

hdr = open("standalone__gqa_softmax__near_ridge.s.ref").read().split("; Override")[0]
code = P + ["; ---- iteration 0 (also completes the first K/V prefetch)"] + BP + ["; ---- iterations 1..12: QK(j+1) | PV(j)", ".p2align 3", "L_loop:"] + B1 + B0 + ["s_cbranch_scc1 L_loop",
       "; ---- tiles 13..15: row blocks 0-2 to the end, then 3-5; normalise, stage through LDS, store"] + T + ["; ---- online-max path (taken only when a row sum left the checked range)"]
NH = 8
DOC = """;
; Attention forward, one workgroup per (batch, head): 4 waves x 96 query rows, 16x16x32 bf16 MFMA, 32-key tiles.
;   S^T = K Q^T and O^T = V^T P^T, so a lane owns one query row; K/V tiles stream HBM -> LDS (LDS-DMA, XOR-swizzled),
;   softmax VALU work is interleaved with the MFMAs of the neighbouring tile.
; Fast path: Q is scaled by log2(e)/sqrt(192) once, p = 2^s is taken against the reference point 0 (softmax is shift
;   invariant).  Every row sum is checked against [2^-20, 2^24] (NaN and inf fail the check); if any row of the head
;   fails, the whole workgroup recomputes the head on the path labelled S_* which subtracts the running row maximum.
; The last tiles are processed row block by row block so that output stores overlap the remaining matrix work.
; Generated by the author's own script (instruction scheduling and hazard checking included).""".split("\n")
def render(code, nh):
    out = [hdr.rstrip(), "; @launch grid=(256,1,1) block=(256,1,1) lds=%d" % LDS_BYTES] + DOC + [
           '.amdgcn_target "amdgcn-amd-amdhsa--gfx950"', ".text", ".globl %s" % KN, ".p2align 8", ".type %s,@function" % KN, "%s:" % KN, "L_start:"]
    for t in code + S:
        if t.startswith("HOPS"):
            if not HOP: continue
            r_ = int(t[4:])
            out += ["; visit the first line of later code pages (no lane active, no memory instruction on that path)", "    s_mov_b64 exec, 0"]
            for w in range(4):
                k = 4 * r_ + w
                out += ["    s_cmp_eq_u32 %s, %d" % (sWave, w), "    s_cbranch_scc1 %s" % ("L_hop%d" % k if k < nh else "L_hopback%d" % r_)]
            out += ["L_hopback%d:" % r_, "    s_mov_b64 exec, -1"]
            continue
        t = t.replace("CODELEN", "L_hotend-L_main" if HOP else "L_hotend-L_pc").replace("CODEOFF", "L_main-L_pc+4" if HOP else "0")
        out.append(t if t.endswith(":") or t.startswith((".", ";")) else "    " + t)
    out += ['.section .rodata,"a"', ".p2align 6", ".amdhsa_kernel %s" % KN, "  .amdhsa_next_free_vgpr 512", "  .amdhsa_next_free_sgpr 96",
            "  .amdhsa_accum_offset 256", "  .amdhsa_group_segment_fixed_size 0", "  .amdhsa_kernarg_size 48", "  .amdhsa_user_sgpr_count 2",
            "  .amdhsa_user_sgpr_kernarg_segment_ptr 1", "  .amdhsa_system_sgpr_workgroup_id_x 1", ".end_amdhsa_kernel", ""]
    return "\n".join(out)
import subprocess, re as _re
def addresses(code, nh):
    marked = []
    for i, t in enumerate(code): marked += ["M_%d:" % i, t]
    open("_g7.s", "w").write(render(marked, nh))
    subprocess.run(["clang", "-x", "assembler", "-target", "amdgcn-amd-amdhsa", "-mcpu=gfx950", "-c", "_g7.s", "-o", "_g7.o"], check=True)
    sy = subprocess.run(["llvm-objdump", "-t", "_g7.o"], capture_output=True, text=True).stdout
    ad = {m.group(2): int(m.group(1), 16) for m in _re.finditer(r"^([0-9a-f]+) .* (\S+)$", sy, _re.M)}
    return [ad["M_%d" % i] - ad["L_main"] for i in range(len(code))]
nh = 0
if HOP:
    STEP = int(opts.get("hstep", 4096))
    while nh < NH:
        ad = addresses(code, nh)
        lo = STEP * (nh + 1 + int(opts.get("hskip", 0)))
        if lo >= ad[code.index("L_end:")]: break
        cand = [i for i in range(1, len(code)) if lo <= ad[i] < lo + 56]
        good = [i for i in cand if code[i - 1].startswith("v_mfma") and not code[i].startswith("s_")]
        i = (good or cand)[0]
        code[i:i] = ["L_hop%d:" % nh, "s_cbranch_execz L_hopback%d" % (nh // 4), "s_nop 0"][:2 + (1 if "L_loop:" in code[:i] and "s_cbranch_scc1 L_loop" in code[i:] and False else 0)]
        nh += 1
    sys.stderr.write("hops: %d\n" % nh)
open(sys.argv[1], "w").write(render(code, nh))
```

```python
import sys, math, struct
from asmlib import *
from sched import *
import gen_safe

opts = dict(a.split("=") for a in sys.argv[2:])
STAMP = int(opts.get("stamp", 0))
NT = opts.get("nt", "nt").replace("+", " ")
SPOL = opts.get("spol", "nt+sc1").replace("+", " ")
QD = int(opts.get("qd", 3))
DEF = int(opts.get("defer", 0))
STG2 = [tuple(int(y) for y in x.split(":")) for x in opts.get("stg2", "").split(",") if x]
XP = int(opts.get("xp", 2))
KN = "standalone__gqa_softmax__near_ridge_kernel"
def f2u(x): return struct.unpack("<I", struct.pack("<f", x))[0]
CSCALE = f2u(math.log2(math.e) / math.sqrt(192.0))

KRING = 0; VRING = 36864; VX = 73728; QLDS = 98304; SLOT = 12288
QKS = 1088; QRB = 6 * QKS; QWAVE = 2 * QRB + 1024
FLAG = QLDS + 4 * QWAVE
LDS_BYTES = FLAG + 64
def V(i, n=1): return "v%d" % i if n == 1 else "v[%d:%d]" % (i, i + n - 1)
def Ac(i, n=1): return "a%d" % i if n == 1 else "a[%d:%d]" % (i, i + n - 1)
vKA = [0, 1]; vVA = [2, 3, 4, 5]; vQA = 6; vDMA = 7
vL = [8 + i for i in range(6)]; vQG = 14; vQW = 15
FB = [Ac(96 + 4 * i, 4) for i in range(4)]
FQ = {4: [Ac(112, 4), Ac(116, 4)], 5: [Ac(120, 4), Ac(124, 4)]}
EARLY = [0, 1, 2, 3]; LATE = [4, 5]
G = {}; X = {}
r = 16
for rb in LATE:
    G[rb] = [r, r + 4]; X[rb] = [r + 8, r + 12]; r += 16
for rb in EARLY:
    G[rb] = [r, r + 4]; X[rb] = [r + 8, r + 8]; r += 12
assert r == 96
def Oreg(rb, db):
    b = rb * 12 + db
    return ("v", 96 + 4 * b) if b < 40 else ("a", 128 + 4 * (b - 40))
def O4(rb, db):
    f, i = Oreg(rb, db); return "%s[%d:%d]" % (f, i, i + 3)
def Qf(rb, ks): return Ac(rb * 24 + ks * 4, 4) if rb < 4 else FQ[rb][ks & 1]
sQ = "s[20:23]"; sK = "s[24:27]"; sV = "s[28:31]"; sO = "s[32:35]"; sW = "s[36:39]"
sC2 = "s[40:41]"; sIT = "s42"; sKoff = "s43"; sVoff = "s44"; sKm = "s45"; sVm = "s46"; sWave = "s47"
sTmp = "s48"; sRow = "s49"; sKend = "s50"; sVend = "s51"; sKbeg = "s52"; sVbeg = "s53"; sQL = "s16"; sCls = "s17"
sVX = "s[84:87]"; sXoff = "s74"; sXm = "s75"; sKr = "s82"; sVr = "s83"; sKd = "s92"; sVd = "s93"
sMask = "s54"; sLo = "s76"; sHi = "s77"; sBad = "s[78:79]"; sB2 = "s[80:81]"
def sRB(rb): return "0" if rb == 0 else "s%d" % (54 + rb)
MF = "v_mfma_f32_16x16x32_bf16"

def k_read(dst, tile_par, ks, hf):
    return "ds_read_b128 %s, %s offset:%d" % (dst, V(vKA[ks & 1]), tile_par * SLOT + (ks >> 1) * 4096 + hf * 2048)
def v_read(a0, tile_par, db):
    return ["ds_read_b64_tr_b16 %s, %s offset:%d" % (Ac(a0 + 2 * i, 2), V(vVA[db & 3]), tile_par * SLOT + (db >> 2) * 4096 + i * 2048) for i in range(2)]
def q_read(dst, area, ks):
    return "ds_read_b128 %s, %s offset:%d" % (dst, V(vQA), area * QRB + ks * QKS)
def qk_mfmas(par, last_up=False):
    out = []
    for g in range(6):
        p, hf = g >> 1, g & 1
        for rb in (range(6) if hf == 0 or (last_up and g == 5) else range(5, -1, -1)):
            for k in range(2):
                ks = 2 * p + k
                d = V((G[rb][par] if hf == 0 else X[rb][par]), 4)
                out.append("%s %s, %s, %s, %s" % (MF, d, FB[(2 * g + k) % 4], Qf(rb, ks), "0" if ks == 0 else d))
    return out
def sregs(rb, par): return [G[rb][par] + i for i in range(4)] + [X[rb][par] + i for i in range(4)]
def sm(rb, par, half):
    ops = []; s = sregs(rb, par)
    for i in (4 * half, 4 * half + 2):
        ops.append("v_exp_f32 %s, %s" % (V(s[i]), V(s[i])))
        ops.append("v_exp_f32 %s, %s" % (V(s[i + 1]), V(s[i + 1])))
        ops.append("v_add_f32 %s, %s, %s" % (V(vL[rb]), V(vL[rb]), V(s[i])))
        ops.append("v_add_f32 %s, %s, %s" % (V(vL[rb]), V(vL[rb]), V(s[i + 1])))
        ops.append("v_cvt_pk_bf16_f32 %s, %s, %s" % (V(G[rb][par] + i // 2), V(s[i]), V(s[i + 1])))
    return ops
def last_write_slot(mf, reg): return max(g for g, t in enumerate(mf) if reg in Ins(t).wr)
def paced(ops, g0, g1, floor=0, dead=10 ** 9):
    os_ = [Op(t) for t in ops]; tot = sum(o.cost for o in os_); acc = 0
    for o in os_:
        o.ming = max(floor, int(g0 + (g1 - g0) * acc / tot)); o.dead = dead; acc += o.cost
    return os_
def pin_qk(pinned, qk, tile_par, nq):
    def pin(g, t): pinned.setdefault(g, []).append(t)
    for g in range(1, 6):
        for k in range(2): pin(12 * (g - 1) + 2 * k, k_read(FB[(2 * g + k) % 4], tile_par, 2 * (g >> 1) + k, g & 1))
    lastq = {}
    for g, t in enumerate(qk):
        for rb in LATE:
            for k in range(2):
                if FQ[rb][k] in t: lastq[(g // 24, rb, k)] = g
    for p in range(nq):
        g = 0
        for (lg, rb, k) in sorted((lastq[(p, rb, k)], rb, k) for rb in LATE for k in range(2)):
            g = max(g, lg + 1)
            while g in pinned: g += 1
            pin(g, q_read(FQ[rb][k], rb - 4, (2 * p + 2 + k) % 6)); g += 2

def body(par, ds_in, peel=False):
    np_ = par ^ 1
    qk = qk_mfmas(np_)
    mf = qk + ["%s %s, %s, %s, %s" % (MF, O4(rb, db), FB[db % 4], V(G[rb][par], 4), O4(rb, db)) for db in range(12) for rb in range(6)]
    pinned = {}
    def pin(g, t): pinned.setdefault(g, []).append(t)
    for db in range(12):
        for t in v_read(96 + 4 * (db % 4), 0, db): pin({0: 60, 1: 63, 2: 72, 3: 75}.get(db, 72 + 6 * (db - 3)), t)
    pin(127, k_read(FB[0], 0, 0, 0)); pin(133, k_read(FB[1], 0, 1, 0))
    pin_qk(pinned, qk, 0, 3)
    scal = [(57, ["s_waitcnt vmcnt(%d) lgkmcnt(0)" % (7 - par)], True), (58, ["s_barrier"], True)]
    if par == 1:
        scal.append((61, ["s_mov_b32 m0, %s" % sXm], True))
        pin(62, "buffer_load_dwordx4 %s, %s, %s offen %s lds" % (V(vDMA), sVX, sXoff, NT))
        scal.append((63, ["s_cmp_eq_u32 %s, 3" % sIT, "s_cselect_b32 %s, %d, 128" % (sTmp, SLOT - 256) if False else "s_cselect_b32 %s, s94, s95" % sTmp,
                          "s_add_u32 %s, %s, %s" % (sXoff, sXoff, sTmp), "s_add_u32 %s, %s, 4096" % (sXm, sXm)], False))
    adv = []
    for cnt, d in ((sVr, sVd), (sKr, sKd)):
        adv += ["s_add_u32 %s, %s, 1" % (cnt, cnt), "s_cmp_eq_u32 %s, 3" % cnt, "s_cselect_b32 %s, 0, %s" % (cnt, cnt),
                "s_cselect_b32 %s, s90, s91" % d]
    if peel: adv = ["s_mov_b32 %s, 0" % sVr, "s_mov_b32 %s, s90" % sVd, "s_mov_b32 %s, 2" % sKr, "s_mov_b32 %s, s91" % sKd]
    scal.append((1, adv, False))
    if peel:
        xg = [int(x) for x in opts.get("xg", "5,21,33,45,67,77").split(",")]
        xl = [(k, x, cb) for k, x in (("V", 1), ("K", 3))[XP:] for cb in range(3)]
        xg = xg[3 * XP:]
        for g, (k, x, cb) in zip(xg, xl):
            srd_, beg = (sK, sKbeg) if k == "K" else (sV, sVbeg)
            assert g not in pinned and (g - 2) not in xg and (g - 1) not in xg, g
            if cb == 0: scal.append((g - 2, ["s_mov_b32 %s, %d" % (sTmp, x * SLOT)], True))
            scal.append((g - 1, ["s_add_u32 m0, %s, %d" % (beg, (x % 3) * SLOT + cb * (4096 - 128))], True))
            pin(g, "buffer_load_dwordx4 %s, %s, %s offen offset:%d %s lds" % (V(vDMA), srd_, sTmp, cb * 128, NT))
        dgp = [int(x) for x in opts.get("dgp", "71,81,93,105,117,130").split(",")]
        scal[0] = (57, ["s_waitcnt vmcnt(%d) lgkmcnt(0)" % (3 + 3 * XP + sum(1 for g in xg if g < 57))], True)
        scal.append((121, ["s_waitcnt vmcnt(%d)" % (3 * XP + sum(1 for g in xg + dgp if g < 121))], True)); scal.append((122, ["s_barrier"], True))
    if par == 0 and not peel and int(opts.get("keep", 0)):
        scal.append((2, ["s_cmp_eq_u32 %s, 6" % sIT, "s_cselect_b32 %s, 0, %s" % (sVoff, sVoff)], False))
    for i in range(int(opts.get("slow", 0))):
        g = [30, 101, 54, 138, 10, 83][i]
        if peel: scal.append((g, ["s_sleep 1"], True))
        else: scal.append((g, ["s_cmp_lt_u32 %s, %d" % (sIT, int(opts.get("slowit", 3))), "s_cbranch_scc0 L_sl%d_%d" % (par, i), "s_sleep 1", "L_sl%d_%d:" % (par, i)], True))
    OW = int(opts.get("ow", 0))
    if par == 0 and OW:
        scal.append((2, ["s_cmp_eq_u32 %s, 6" % sIT, "s_cselect_b32 s28, s32, s28", "s_cselect_b32 s29, s33, s29", "s_cselect_b32 s30, s34, s30",
                         "s_cselect_b32 %s, 0, %s" % (sVoff, sVoff), "s_cselect_b32 s86, %d, 0" % (61440 if OW == 2 else 0)], False))
        scal.append((107, ["s_add_u32 %s, %s, s86" % (sVoff, sVoff)], False)); scal.append((119, ["s_add_u32 %s, %s, s86" % (sVoff, sVoff)], False))
    dg = [int(x) for x in opts.get("dg", "71,81,93,105,117,130").split(",")] if not peel else dgp
    for i in range(6):
        srd_, so, sm_ = (sV, sVoff, sVm) if i < 3 else (sK, sKoff, sKm)
        assert dg[i] not in pinned
        scal.append((dg[i] - 1, ["s_add_u32 m0, %s, %d" % (sm_, (i % 3) * (4096 - 128))], True))
        pin(dg[i], "buffer_load_dwordx4 %s, %s, %s offen offset:%d %s lds" % (V(vDMA), srd_, so, (i % 3) * 128, NT))
    for g, so, m, end, beg in () if peel else ((dg[2] + 1 if dg[3] - dg[2] > 8 else dg[5] + 8, sVoff, sVm, sVend, sVbeg), (dg[5] + 1, sKoff, sKm, sKend, sKbeg)):
        scal.append((g, ["s_add_u32 %s, %s, %d" % (so, so, SLOT), "s_add_u32 %s, %s, %d" % (m, m, SLOT),
                         "s_cmp_eq_u32 %s, %s" % (m, end), "s_cselect_b32 %s, %s, %s" % (m, beg, m)], False))
    if par == 0 and not peel: scal.append((139, ["s_add_u32 %s, %s, 1" % (sIT, sIT), "s_cmp_lt_u32 %s, 7" % sIT], False))
    st = paced(sum([sm(rb, par, h) for rb in LATE for h in range(2)], []), 0, 50, dead=70)
    st += [Op("v_add_u32 %s, %s, %s" % (V(a), sVd, V(a)), 44, 56) for a in vVA]
    st += [Op("v_add_u32 %s, %s, %s" % (V(a), sKd, V(a)), 52, 125) for a in vKA]
    E0, E1 = 55, 140
    for n, (rb, h) in enumerate([(0, 0), (1, 0), (2, 0), (3, 0), (3, 1), (2, 1), (1, 1), (0, 1)]):
        ready = last_write_slot(qk, "v%d" % sregs(rb, np_)[4 * h]) + 5
        st += paced(sm(rb, np_, h), E0 + (E1 - E0) * n / 8, E0 + (E1 - E0) * (n + 1) / 8, floor=ready)
    def capf(cap, sc, pin_):
        for g in range(144):
            if "s_barrier" in sc.get(g, []): cap[g] = 0
    return schedule(mf, pinned, scal, st, ds_in, "body%d" % par, next_first=qk_mfmas(par)[0], excl=True, capf=capf)

def stamp(i):
    if STAMP in (1, 3): return ["s_memrealtime s[%d:%d]" % (60 + 2 * i, 61 + 2 * i)]
    if STAMP == 7:
        o = ["s_memrealtime s[%d:%d]" % (60 + 2 * i, 61 + 2 * i)] if i in (0, 2, 3, 6, 7) else []
        c = {2: 1, 7: 4, 3: 5}.get(i)
        return o + (["s_memtime s[%d:%d]" % (60 + 2 * c, 61 + 2 * c)] if c else [])
    if STAMP == 6: return ["s_memtime s[%d:%d]" % (60 + 2 * i, 61 + 2 * i)]
    return []

P = []
A = P.append
A("s_cmp_ge_u32 s2, 256")
A("s_cbranch_scc1 L_end")
A("s_load_dwordx4 s[4:7], s[0:1], 0")
A("s_load_dwordx4 s[8:11], s[0:1], 16")
if STAMP: A("s_load_dwordx2 s[12:13], s[0:1], 40")
P += stamp(0)
A("s_getpc_b64 s[18:19]")
A("v_lshlrev_b32 v240, 7, v0")
A("L_pc:")
A("v_min_u32 v240, CODELEN, v240")
A("v_add_u32 v240, CODEOFF, v240")
A("global_load_dword v241, v240, s[18:19]")
vLN = 242; t2 = 243; t3 = 244; t4 = 245; t5 = 246; t6 = 247
A("v_lshrrev_b32 v%d, 6, v0" % t2)
A("v_and_b32 v%d, 63, v0" % vLN)
A("s_mul_i32 s14, s2, 147456")
A("v_readfirstlane_b32 %s, v%d" % (sWave, t2))
A("s_mul_i32 s15, s2, 196608")
A("s_bfe_u32 %s, s2, 0x30003" % sCls)
A("v_lshrrev_b32 v%d, 3, v%d" % (t5, vLN))
A("v_mul_u32_u24 v%d, 384, v%d" % (t6, t5))
A("v_lshrrev_b32 v%d, 4, v%d" % (t3, vLN))
A("v_lshlrev_b32 v%d, 1, v%d" % (t4, t3))
A("v_xor_b32 v%d, v%d, v%d" % (t4, t4, vLN))
A("v_and_b32 v%d, 7, v%d" % (t4, t4))
A("v_lshl_add_u32 v%d, v%d, 4, v%d" % (vDMA, t4, t6))
A("s_mul_i32 %s, %s, 3072" % (sTmp, sWave))
A("v_add_u32 v%d, %s, v%d" % (vDMA, sTmp, vDMA))
A("v_and_b32 v%d, 7, v%d" % (t4, vLN))
A("v_lshl_add_u32 v%d, v%d, 4, v%d" % (vQG, t4, t6))
A("s_mul_i32 %s, %s, 36864" % (sRow, sWave))
A("v_add_u32 v%d, %s, v%d" % (vQG, sRow, vQG))
A("s_lshl_b32 %s, %s, 10" % (sKbeg, sWave))
A("s_add_u32 %s, %s, %d" % (sVbeg, sKbeg, VRING))
for rb in range(1, 6): A("s_mov_b32 %s, %d" % (sRB(rb), rb * 6144))
if STG2:
    A("s_mov_b32 s3, 0")
    for i, (lo, hi, k, cnt) in enumerate(STG2):
        A("s_sub_u32 %s, %s, %d" % (sTmp, sCls, lo)); A("s_cmp_lt_u32 %s, %d" % (sTmp, hi - lo)); A("s_cselect_b32 s3, %d, s3" % (1 << i))
A("s_waitcnt lgkmcnt(0)")
def srd(base, src, off, size):
    A("s_add_u32 s%d, s%d, %s" % (base, src, off)); A("s_addc_u32 s%d, s%d, 0" % (base + 1, src + 1))
    A("s_mov_b32 s%d, %d" % (base + 2, size)); A("s_mov_b32 s%d, 0x20000" % (base + 3))
vm = []
def raw(rb, i): return 96 + rb * 24 + i * 4
def issue(k, x, i):
    if k == "Q":
        A("buffer_load_dwordx4 %s, v%d, %s, %s offen offset:%d %s" % (V(raw(x, i), 4), vQG, sQ, sRB(x), (i & 1) * 3072 + (i >> 1) * 128, NT))
        vm.append("Q%d.%d" % (x, i))
    else:
        srd_, beg = (sK, sKbeg) if k == "K" else (sV, sVbeg)
        A("s_add_u32 m0, %s, %d" % (beg, (VX if (k, x) == ("K", 0) else (x % 3) * SLOT) + i * (4096 - 128)))
        A("s_mov_b32 %s, %d" % (sTmp, x * SLOT))
        A("buffer_load_dwordx4 %s, %s, %s offen offset:%d %s lds" % (V(vDMA), srd_, sTmp, i * 128, NT))
        vm.append("%s%d" % (k, x))
    n = len(vm) - 1
    for ci, (lo, hi, kk, cnt) in enumerate(STG2):
        if kk <= n < cnt:
            A("s_bitcmp1_b32 s3, %d" % ci); A("s_cbranch_scc0 L_sg%d_%d" % (n, ci)); A("s_waitcnt vmcnt(%d)" % kk); A("L_sg%d_%d:" % (n, ci))
def vwait(name):
    last = max(i for i, x in enumerate(vm) if x == name)
    A("s_waitcnt vmcnt(%d)" % (len(vm) - 1 - last))
TLB = int(opts.get("tlb", 0))
srd(24, 6, "s15", 196608)
issue("K", 0, 0)
if TLB & 1:
    srd(32, 10, "s14", 147456); srd(28, 8, "s15", 196608)
    A("v_lshlrev_b32 v240, 9, v%d" % vLN)
    A("buffer_load_dword v250, v240, %s, %s offen nt" % (sO, sRow)); vm.append("t")
    A("buffer_load_dword v251, v%d, %s, 0 offen nt" % (vDMA, sV)); vm.append("t")
for cb in range(1, 3): issue("K", 0, cb)
K1E = int(opts.get("k1e", 0))
if K1E:
    for cb in range(3): issue("K", 1, cb)
srd(20, 4, "s14", 147456)
for rb in range(QD):
    for i in range(6): issue("Q", rb, i)
HOP = int(opts.get("hop", 1))
if HOP: A("s_branch L_main"); A(".p2align 12"); A("L_main:")
srd(28, 8, "s15", 14 * SLOT); srd(32, 10, "s14", 147456); srd(84, 8, "s15", 196608)
if STAMP:
    A("s_mov_b32 s36, s12"); A("s_mov_b32 s37, s13"); A("s_mov_b32 s38, 0x100000"); A("s_mov_b32 s39, 0x20000")
A("s_add_u32 %s, %s, %d" % (sKend, sKbeg, 3 * SLOT))
A("s_add_u32 %s, %s, %d" % (sVend, sVbeg, 3 * SLOT))
A("s_mul_i32 %s, %s, %d" % (sQL, sWave, QWAVE))
A("s_add_u32 %s, %s, %d" % (sQL, sQL, QLDS))
A("v_xor_b32 v%d, v%d, v%d" % (t2, t5, t4))
A("v_lshlrev_b32 v%d, 4, v%d" % (t2, t2))
A("v_lshl_add_u32 v%d, v%d, 7, v%d" % (t2, t5, t2))
A("s_mul_i32 %s, %s, 6144" % (sTmp, sWave))
A("s_cmp_lt_u32 %s, 2" % sWave)
A("s_cselect_b32 s3, %d, %d" % (1, 2))
A("s_mul_i32 s3, s3, %d" % SLOT)
A("s_add_u32 %s, %s, s3" % (sTmp, sTmp))
A("v_add_u32 v249, %s, v%d" % (sTmp, t2))
A("v_and_b32 v%d, 3, v%d" % (t4, vLN))
A("v_xor_b32 v%d, v%d, v%d" % (t2, t5, t4))
A("v_lshlrev_b32 v%d, 4, v%d" % (t2, t2))
A("v_lshl_add_u32 v%d, v%d, 8, v%d" % (t2, t4, t2))
A("v_bfe_u32 v%d, v%d, 2, 1" % (t4, vLN))
A("v_mul_u32_u24 v%d, %d, v%d" % (t4, QKS, t4))
A("v_add3_u32 v%d, v%d, v%d, %s" % (vQW, t2, t4, sQL))
A("v_and_b32 v%d, 15, v%d" % (t2, vLN))
A("v_xor_b32 v%d, v%d, v%d" % (t4, t2, t3))
A("v_lshlrev_b32 v%d, 4, v%d" % (t4, t4))
A("v_lshl_add_u32 v%d, v%d, 8, v%d" % (t4, t3, t4))
A("v_add_u32 v%d, %s, v%d" % (vQA, sQL, t4))
A("v_lshlrev_b32 v%d, 7, v%d" % (t6, t2))
A("v_lshrrev_b32 v%d, 5, v%d" % (t4, vLN))
A("v_xor_b32 v%d, v%d, v%d" % (t4, t4, vLN))
A("v_and_b32 v%d, 7, v%d" % (t4, t4))
A("v_lshl_add_u32 v%d, v%d, 4, v%d" % (t6, t4, t6))
A("v_xor_b32 v%d, v%d, v%d" % (t4, t3, t5))
A("v_and_b32 v%d, 1, v%d" % (t4, t4))
A("v_lshl_add_u32 v%d, v%d, 3, v%d" % (t6, t4, t6))
A("v_add_u32 v248, %s, v%d" % (sTmp, t6))
A("ds_write_b64 v%d, v[248:249] offset:%d" % (vQA, 2 * QRB))
A("v_and_b32 v%d, 6, v%d" % (t4, vLN))
A("v_xor_b32 v%d, v%d, v%d" % (t4, t4, t3))
A("v_lshlrev_b32 v%d, 4, v%d" % (t4, t4))
A("v_lshl_add_u32 v%d, v%d, 7, v%d" % (vKA[0], t2, t4))
A("v_xor_b32 v%d, 64, v%d" % (vKA[1], vKA[0]))
for i in range(2): A("v_add_u32 v%d, %d, v%d" % (250 + i, VX, vKA[i]))
A("v_lshrrev_b32 v%d, 2, v%d" % (t4, vLN))
A("v_lshlrev_b32 v%d, 7, v%d" % (t4, t4))
A("v_and_b32 v%d, 3, v%d" % (t2, vLN))
A("v_lshl_add_u32 v%d, v%d, 3, v%d" % (t4, t2, t4))
A("v_bfe_u32 v%d, v%d, 3, 2" % (t2, vLN))
A("v_lshl_add_u32 v%d, v%d, 5, v%d" % (t4, t2, t4))
A("v_add_u32 v%d, %d, v%d" % (vVA[0], VRING + 2 * SLOT, t4))
for x in range(1, 4): A("v_xor_b32 v%d, %d, v%d" % (vVA[x], 32 * x, vVA[0]))
A("s_mov_b32 s40, 0x%x" % CSCALE); A("s_mov_b32 s41, 0x%x" % CSCALE)
A("s_mov_b32 %s, 0xffff0000" % sMask)
A("s_mov_b32 %s, 0" % sIT)
A("s_mov_b32 %s, %d" % (sKoff, 4 * SLOT))
A("s_mov_b32 %s, %d" % (sVoff, 2 * SLOT))
A("s_add_u32 %s, %s, %d" % (sKm, sKbeg, SLOT))
A("s_mov_b32 %s, %d" % (sXoff, 14 * SLOT)); A("s_add_u32 %s, %s, %d" % (sXm, sKbeg, VX))
A("s_mov_b32 s90, %d" % (-2 * SLOT)); A("s_mov_b32 s91, %d" % SLOT); A("s_mov_b32 s94, %d" % (SLOT - 256)); A("s_movk_i32 s95, 128")
A("s_add_u32 %s, %s, %d" % (sVm, sVbeg, 2 * SLOT))
A("s_mov_b32 %s, 0x%x" % (sLo, f2u(2.0 ** float(opts.get("llo", -20)))))
A("s_mov_b32 %s, 0x%x" % (sHi, f2u(2.0 ** float(opts.get("lhi", 24)))))
A("s_mov_b64 %s, 0" % sBad)
for i in vL: A("v_mov_b32 v%d, 0" % i)
ZR = FQ[5][1]
for i in range(4): A("v_accvgpr_write_b32 a%d, 0" % (124 + i))
A("v_mov_b32 v%d, %d" % (t2, FLAG))
A("ds_write_b32 v%d, v%d" % (t2, vL[0]))
def zero16(f, i): A("v_mfma_f32_32x32x16_bf16 %s[%d:%d], %s, %s, 0" % (f, i, i + 15, ZR, ZR))
for i in range(128, 256, 16): zero16("a", i)
A("HOPS0")
vwait("K1" if K1E else "K0")
A("s_waitcnt lgkmcnt(0)")
A("s_barrier")
K0F = [V(G[rb][1], 4) for rb in range(6)] + [V(X[rb][1], 4) for rb in LATE] + FB
for n in range(12): A(k_read(K0F[n], 0, n >> 1, n & 1).replace(", v0 ", ", v250 ").replace(", v1 ", ", v251 "))
def pro_sm(rb):
    ops = sm(rb, 0, 0) + sm(rb, 0, 1)
    for t in [t for t in ops if t.startswith("v_exp")] + ["s_nop 0"] + [t for t in ops if not t.startswith("v_exp")]: A(t)
pend = [("Q", rb, i) for rb in range(QD, 6) for i in range(6)]
pend += [(k, x, cb) for k, x in (("K", 1), ("V", 0), ("K", 2), ("V", 1), ("K", 3))[K1E:3 + XP] for cb in range(3)]
deferred = pend[len(pend) - 3 * DEF:]; pend = pend[:len(pend) - 3 * DEF]
def qdst(rb, ks): return Ac(rb * 24 + ks * 4, 4) if rb < 4 else V(raw(rb, ks), 4)
def st_read(s_):
    rb, cb = divmod(s_, 3)
    for ks in (2 * cb, 2 * cb + 1): A(q_read(qdst(rb, ks), rb & 1, ks))
def st_mfma(s_):
    rb, cb = divmod(s_, 3)
    for hf in range(2):
        for ks in (2 * cb, 2 * cb + 1):
            d = V((G[rb][0] if hf == 0 else X[rb][0]), 4)
            A("%s %s, %s, %s, %s" % (MF, d, K0F[2 * ks + hf], qdst(rb, ks), "0" if ks == 0 else d))
nleft = 36
for s_ in range(18):
    rb, cb = divmod(s_, 3)
    for rh in range(2):
        i = 2 * cb + rh
        vwait("Q%d.%d" % (rb, i))
        if s_ == 17 and rh == 1: P += stamp(1)
        r0 = raw(rb, i); tb = 240 + 8 * rh
        for k in range(4):
            A("v_lshlrev_b32 v%d, 16, v%d" % (tb + 2 * k, r0 + k)); A("v_and_b32 v%d, %s, v%d" % (tb + 2 * k + 1, sMask, r0 + k))
        for k in range(4): A("v_pk_mul_f32 %s, %s, %s" % (V(tb + 2 * k, 2), V(tb + 2 * k, 2), sC2))
        for k in range(4): A("v_cvt_pk_bf16_f32 v%d, v%d, v%d" % (r0 + k, tb + 2 * k, tb + 2 * k + 1))
        if rh == 0 and s_ >= 1: st_read(s_ - 1)
        A("ds_write_b128 v%d, %s offset:%d" % (vQW, V(r0, 4), (rb & 1) * QRB + cb * 2 * QKS + rh * 128))
        if s_ == 17 and rh == 1: st_read(17)
        if pend and (pend[0][0] == "Q" or len(pend) >= nleft - int(opts.get("kvl", 99))):
            for _ in range(-(-len(pend) // nleft)): issue(*pend.pop(0))
        nleft -= 1
        if nleft == 0:
            for x in deferred[:3]: issue(*x)
    if s_ >= 1:
        A("s_waitcnt lgkmcnt(%d)" % (2 if s_ < 17 else 4)); st_mfma(s_ - 1)
        if "dum" in opts and s_ < 17:
            d0, d1 = [int(x) for x in opts["dum"].split(",")]
            rbp, cbp = divmod(s_ - 1, 3)
            for i in range(d0 + (d1 - d0) * s_ // 16):
                A("%s a[112:115], %s, %s, a[112:115]" % (MF, K0F[i % 12], qdst(rbp, 2 * cbp + (i & 1))))
    if cb == 1 and rb >= 1 and rb - 1 in EARLY: pro_sm(rb - 1)
    if s_ == int(opts.get("hs", 2)): A("HOPS1")
    for i in {7: (96, 112, 128), 13: (144, 160, 176), 16: (192, 208)}.get(s_, ()): zero16("v", i)
A("s_waitcnt lgkmcnt(0)")
st_mfma(17)
for i in (240, 224): zero16("v", i)
for x in deferred[3:]: issue(*x)
if not K1E:
    vwait("K1")
    A("s_barrier")
for a_ in vKA: A("v_add_u32 %s, %d, %s" % (V(a_), SLOT, V(a_)))
A(k_read(FB[0], 0, 0, 0)); A(k_read(FB[1], 0, 1, 0))
for rb in LATE:
    for k in range(2): A(q_read(FQ[rb][k], rb - 4, k))
if TLB & 2: A("buffer_load_dword v%d, v%d, %s, 0 offen nt" % (vQW, vQG, sO))
assert vm[-6 - 3 * XP:] == sum([[x] * 3 for x in ("V0", "K2", "V1", "K3")[:2 + XP]], []), vm
A("s_waitcnt lgkmcnt(0)")
P += stamp(2)

B0, q0 = body(0, [])
B1, q1 = body(1, q0)
B0, q0b = body(0, q1)
assert q0 == q0b
BP, qp_ = body(0, [], peel=True)
assert qp_ == q0
BP += ["s_add_u32 %s, %s, %d" % (sKoff, sKoff, SLOT), "s_add_u32 %s, %s, %d" % (sKm, sKm, SLOT),
       "s_add_u32 %s, %s, %d" % (sVoff, sVoff, SLOT), "s_mov_b32 %s, %s" % (sVm, sVbeg), "s_mov_b32 %s, 1" % sIT]
if STAMP == 7: BP += stamp(7)
if STAMP == 3:
    pre3 = ["s_mov_b32 m0, s13", "s_add_u32 s13, s13, 1", "v_writelane_b32 v15, s88, m0", "s_memrealtime s[88:89]"]
    BP = ["s_mov_b32 s13, 0", "s_mov_b32 s88, 0"] + pre3 + BP; B0 = pre3 + B0; B1 = pre3 + B1

T = []
A = T.append
T += stamp(3)
if STAMP == 3:
    T += pre3 + ["s_waitcnt lgkmcnt(0)"] + pre3[:3]
    A("v_mbcnt_lo_u32_b32 v16, -1, 0"); A("v_mbcnt_hi_u32_b32 v16, -1, v16"); A("v_lshlrev_b32 v16, 2, v16")
    A("s_lshl_b32 s3, s2, 2"); A("s_add_u32 s3, s3, %s" % sWave); A("s_lshl_b32 s3, s3, 8"); A("s_add_u32 s3, s3, 65536")
    A("buffer_store_dword v15, v16, %s, s3 offen" % sW)
eW = [16, 17, 18, 19]; eR = vQW; eS = vQG
for a_ in vKA: A("v_subrev_u32 %s, %d, %s" % (V(a_), 2 * SLOT, V(a_)))
def R4(x): return "%s[%d:%d]" % (x[0], x[1], x[1] + 3)
def R2(x, h): return "%s[%d:%d]" % (x[0], x[1] + 2 * h, x[1] + 2 * h + 1)
def vrd(dst, tile, db):
    return ["ds_read_b64_tr_b16 %s, %s offset:%d" % (R2(dst, i), V(vVA[db & 3]), {13: 1, 14: 3, 15: 4}[tile] * SLOT + (db >> 2) * 4096 + i * 2048) for i in range(2)]
X15 = {0: X[4][0], 1: X[5][0], 2: G[5][0], 3: X[0][0], 4: X[4][1], 5: X[5][1]}
G15 = {0: G[0][1], 1: G[1][1], 2: G[2][1], 3: G[1][0], 4: G[1][1], 5: G[2][0]}
def fs(rb, t): return [(G[rb][0] if t == 14 else G15[rb]) + i for i in range(4)] + [(X[rb][0] if t == 14 else X15[rb]) + i for i in range(4)]
def fsm(rb, t, half):
    ops = []; s_ = fs(rb, t)
    for i in (4 * half, 4 * half + 2):
        ops += ["v_exp_f32 %s, %s" % (V(s_[i]), V(s_[i])), "v_exp_f32 %s, %s" % (V(s_[i + 1]), V(s_[i + 1])),
                "v_add_f32 %s, %s, %s" % (V(vL[rb]), V(vL[rb]), V(s_[i])), "v_add_f32 %s, %s, %s" % (V(vL[rb]), V(vL[rb]), V(s_[i + 1])),
                "v_cvt_pk_bf16_f32 %s, %s, %s" % (V(s_[i // 2]), V(s_[i]), V(s_[i + 1]))]
    return ops
def qp(p): return [("a", rb * 24 + 8 * p + 4 * k) for rb in range(3) for k in range(2)]
def sb(*l): return [("a", 96 + 4 * i) for i in l]
vres = qp(0) + sb(4, 5) + qp(1) + sb(6, 7, 0, 1) + qp(2)
def v13(db): return ("v", 192 + 4 * db)
def phase_mf(rb):
    o = ["%s %s, %s, %s, %s" % (MF, O4(rb, db), R4(v13(db)), V(G[rb][1], 4), O4(rb, db)) for db in range(12)] if rb >= 3 else []
    return o + ["%s %s, %s, %s, %s" % (MF, O4(rb, db), R4(vres[12 * t + db]), V(fs(rb, 14 + t)[0], 4), O4(rb, db)) for t in range(2) for db in range(12)]
def lfin(rb):
    tmp = X15[rb]; l = vL[rb]; o = []
    for sw in ("v_permlane32_swap_b32", "v_permlane16_swap_b32"):
        o += ["v_mov_b32 v%d, v%d" % (tmp, l), "%s v%d, v%d" % (sw, l, tmp), "v_add_f32 v%d, v%d, v%d" % (l, l, tmp)]
    o += ["v_cmp_nle_f32 vcc, %s, v%d" % (sLo, l), "v_cmp_nge_f32 %s, %s, v%d" % (sB2, sHi, l), "v_rcp_f32 v%d, v%d" % (l, l)]
    return [Op(t) for t in o]
def wreg(n):
    fl, i0 = Oreg(n // 3, 4 * (n % 3))
    return i0 if fl == "v" else 96 + 16 * (n % 6)
def stg(n): return (n % 3) * 2048
def ep_st(n, rh):
    rb, cb = divmod(n, 3)
    return "buffer_store_dwordx4 %s, v%d, %s, %s offen offset:%d %s" % (V(wreg(n) + 8 + 4 * rh, 4), eS, sO, sRB(rb), rh * 3072 + cb * 128, SPOL)
def ep_rd(n):
    return ["ds_read_b128 %s, v%d offset:%d" % (V(wreg(n) + 8, 4), eR, stg(n))] + \
           ["ds_read_b64 %s, v%d offset:%d" % (V(wreg(n) + 12 + 2 * k, 2), eR, stg(n) + 1024 + 8 * (1 - k)) for k in range(2)]
ROWS = int(opts.get("rows", 0))
def burst(rb):
    A("s_or_b64 %s, %s, vcc" % (sBad, sBad)); A("s_or_b64 %s, %s, %s" % (sBad, sBad, sB2))
    lp = vL[rb] & ~1; sel = vL[rb] & 1
    for cb in range(3):
        n = 3 * rb + cb
        fl, i0 = Oreg(rb, 4 * cb); w = wreg(n)
        if fl == "a":
            for i in range(16):
                if rb < 5 or 4 * cb + i // 4 >= PRE5: A("v_accvgpr_read_b32 %s, %s" % (V(w + i), Ac(i0 + i)))
        for i in range(0, 16, 2):
            A("v_pk_mul_f32 %s, %s, %s op_sel:[0,%d] op_sel_hi:[1,%d]" % (V(w + i, 2), V(w + i, 2), V(lp, 2), sel, sel))
        if cb == 2 and not ROWS: A("s_waitcnt lgkmcnt(4)"); A(ep_st(n - 2, 0))
        for i in range(8): A("v_cvt_pk_bf16_f32 %s, %s, %s" % (V(w + i), V(w + 2 * i), V(w + 2 * i + 1)))
        if cb == 2 and not ROWS: A(ep_st(n - 2, 1))
        if cb >= 1:
            for t in ep_rd(n - 1): A(t)
        for x in range(4):
            A("ds_write_b64 v%d, %s offset:%d" % (eW[x], V(w + 2 * x, 2), stg(n)))
def group_block(rbs, buf, qf, first):
    mf = []; frag = []
    for t in ((14, 13, 15) if first else (14, 15)):
        if t == 13:
            for db in range(12):
                b = buf[len(frag) % 8]; frag.append((len(mf), vrd(b, 13, db), len(mf) + 2))
                mf += ["%s %s, %s, %s, %s" % (MF, O4(rb, db), R4(b), V(G[rb][1], 4), O4(rb, db)) for rb in rbs]
        else:
            for g in range(6):
                p, hf = (g >> 1, g & 1) if (t == 15 and first) else (g % 3, g // 3)
                bs = [buf[(len(frag) + k) % 8] for k in range(2)]
                for k in range(2): frag.append((len(mf), [k_read(R4(bs[k]), 2 if t == 14 else 0, 2 * p + k, hf)], len(mf) + 5))
                for rb in rbs:
                    for k in range(2):
                        d = V(fs(rb, t)[4 * hf], 4)
                        mf.append("%s %s, %s, %s, %s" % (MF, d, R4(bs[k]), qf(rb, 2 * p + k), "0" if p + k == 0 else d))
    return mf + phase_mf(rbs[0]), frag
def place(pinned, g, ins):
    while len(pinned.get(g, [])) + len(ins) > 2 or any(t.startswith("buffer") for t in pinned.get(g, [])): g += 1
    pinned.setdefault(g, []).extend(ins); return g
def block_stream(mf, rbs, lag):
    st = []
    r0_, r1_, r2_ = rbs
    for rb, t, h in ((r0_, 14, 0), (r1_, 14, 0), (r2_, 14, 0), (r0_, 14, 1), (r1_, 14, 1), (r2_, 14, 1), (r0_, 15, 0), (r0_, 15, 1), (-1, 0, 0), (r1_, 15, 0)):
        if rb < 0: st += lfin(r0_); continue
        ready = last_write_slot(mf[:108], "v%d" % fs(rb, t)[4 * h]) + lag
        dead = 131 if rb != r0_ else (105 if t == 14 else 117)
        st += [Op(x, ready, dead) for x in fsm(rb, t, h)]
    return st
def leftovers(n):
    rd = ep_rd(n)
    if ROWS:
        d = {4: rd[:2], 5: rd[2:]}
        for i in range(6): d[11 + i + (i // 3) * int(opts.get("rgap", 2))] = [ep_st(n - 2 + i % 3, i // 3)]
        return d
    return {1: [ep_st(n - 1, 0)], 4: [ep_st(n - 1, 1)], 7: rd[:2], 8: rd[2:], 17: [ep_st(n, 0)], 20: [ep_st(n, 1)]}
def small_phase(rb, nxt, extra=()):
    scal = [(0, ["s_waitcnt lgkmcnt(4)"], True), (16, ["s_waitcnt lgkmcnt(0)"], True)] if not ROWS else [(10, ["s_waitcnt lgkmcnt(0)"], True)]
    st = [Op(t, 0, 10) for t in fsm(rb, 15, 1)] + lfin(rb)
    if nxt is not None: st += [Op(t) for t in fsm(nxt, 15, 0)]
    pinned = leftovers(3 * rb - 1)
    for g, ins in extra: pinned[g] = ins
    if extra: scal[1] = (16, ["s_waitcnt lgkmcnt(%d)" % sum(len(ins) for g, ins in extra if g < 16)], True)
    blk, _ = schedule(phase_mf(rb), pinned, scal, st, [], "phase%d" % rb, excl=True)
    return blk
bufA = [("a", 96 + 4 * i) for i in range(8)]
mf, frag = group_block([0, 1, 2], bufA, Qf, True)
pinned = {}
for i, (use, ins, _) in enumerate(frag):
    if i < 2: continue
    place(pinned, max(0 if i < 8 else frag[i - 8][2], use - 15 + (i & 1)), ins)
g = 80; gv = {}
for n in range(24):
    free = 1 + max(k for k, t in enumerate(mf[:108]) if ("a%d" % vres[n][1]) in Ins(t).rd)
    g = place(pinned, max(g, free), vrd(vres[n], 14 + n // 12, n % 12))
    gv[n] = g; g += (1 if n < 17 else 2)
place(pinned, 124, ["ds_read_b64 v[16:17], v%d offset:%d" % (vQA, 2 * QRB)])
scal = [(18, ["s_waitcnt vmcnt(9)", "s_barrier"], False), (51, ["s_waitcnt vmcnt(0)", "s_barrier"], False)]
st = [Op(t) for h in range(2) for t in sm(4, 1, h)] + block_stream(mf, [0, 1, 2], 5)
blk, _ = schedule(mf, pinned, scal, st, q0, "blockA", excl=True)
T += blk
if "fine" in opts: T += stamp(1)
A("s_waitcnt lgkmcnt(0)")
A("v_mov_b32 v%d, v17" % eR)
for x in (1, 2, 3): A("v_xor_b32 v%d, %d, v16" % (eW[x], 32 * x))
burst(0)
T += small_phase(1, 2); burst(1)
bufB = [("v", 96 + 4 * i) for i in range(8)]
def qfB(rb, ks): return Qf(rb, ks) if rb < 4 else V(128 + 24 * (rb - 4) + 4 * ks, 4)
mfB, fragB = group_block([3, 4, 5], bufB, qfB, False)
pre = [fragB[i][1][0] for i in range(4)] + [q_read(qfB(rb, k), rb - 4, k) for k in range(6) for rb in LATE]
T += small_phase(2, None, [(g, pre[2 * i:2 * i + 2]) for i, g in enumerate((11, 14, 18, 19, 21, 22, 23))])
for t in pre[14:]: A(t)
for x in range(4): A("v_mov_b32 v%d, v%d" % (G[0][0] + x, eW[x]))
eW = [G[0][0] + x for x in range(4)]
burst(2)
if "fine" in opts: T += stamp(2)
pinned = leftovers(8)
for i, (use, ins, _) in enumerate(fragB):
    if i < 4: continue
    g = place(pinned, max(0 if i < 8 else fragB[i - 8][2], use - 15 + (i & 1)), ins)
g = 22
for db in range(12): g = place(pinned, g, vrd(v13(db), 13, db)) + 3
if ROWS:
    later = sum(1 for g in range(6, 10) for t in pinned.get(g, []) if t.startswith("ds_")) + len(pinned[5]) - 1
    scal = [(10, ["s_waitcnt lgkmcnt(%d)" % later], True)]
else:
    later = sum(1 for g in range(9, 16) for t in pinned.get(g, []) if t.startswith("ds_")) + len(pinned[8]) - 1
    scal = [(0, ["s_waitcnt lgkmcnt(4)"], True), (16, ["s_waitcnt lgkmcnt(%d)" % later], True)]
st = [Op(t, 0, 50) for h in range(2) for t in sm(5, 1, h)]
for rb, t, h, dead in ((3, 14, 0, 81), (4, 14, 0, 107), (5, 14, 0, 107), (3, 14, 1, 81), (4, 14, 1, 107), (3, 15, 0, 93), (3, 15, 1, 93), (-1, 0, 0, 0), (5, 14, 1, 107)):
    if rb < 0: st += lfin(3); continue
    st += [Op(x, last_write_slot(mfB[:72], "v%d" % fs(rb, t)[4 * h]) + 7, dead) for x in fsm(rb, t, h)]
if ROWS: A("s_waitcnt lgkmcnt(7)")
blk, _ = schedule(mfB, pinned, scal, st, [], "blockB", excl=True)
T += blk
if "fine" in opts: T += stamp(0)
burst(3)
scal = [(0, ["s_waitcnt lgkmcnt(4)"], True), (16, ["s_waitcnt lgkmcnt(0)"], True)] if not ROWS else [(10, ["s_waitcnt lgkmcnt(0)"], True)]
st = [Op(t, 0, 22) for h in range(2) for t in fsm(4, 15, h)] + lfin(4) + [Op(t) for h in range(2) for t in fsm(5, 15, h)]
blk, _ = schedule(phase_mf(4), leftovers(11), scal, st, [], "phase4", excl=True)
T += blk
burst(4)
m5 = phase_mf(5); m5 = [m5[12 * t + db] for db in range(12) for t in range(3)]
st = lfin(5)
PRE5 = 9
for db in range(PRE5):
    st += [Op("v_accvgpr_read_b32 %s, %s" % (V(wreg(15 + db // 4) + 4 * (db % 4) + i), Ac(Oreg(5, db)[1] + i)), 3 * db + 2 + 5) for i in range(4)]
blk, _ = schedule(m5, leftovers(14), scal, st, [], "phase5", excl=True)
T += blk
T += stamp(4)
burst(5)
if not ROWS:
    A("s_waitcnt lgkmcnt(4)")
    A(ep_st(16, 0)); A(ep_st(16, 1))
for t in ep_rd(17): A(t)
A("s_cmp_eq_u64 %s, 0" % sBad)
A("s_cbranch_scc1 L_good")
A("v_mov_b32 v2, %d" % FLAG); A("v_mov_b32 v3, 1")
A("ds_write_b32 v2, v3")
A("L_good:")
A("s_waitcnt lgkmcnt(0)")
if ROWS:
    for i in range(6): A(ep_st(15 + i % 3, i // 3))
else: A(ep_st(17, 0)); A(ep_st(17, 1))
if STAMP:
    T += stamp(5)
    A("s_waitcnt vmcnt(0)")
    T += stamp(6)
    A("s_waitcnt lgkmcnt(0)")
    if "probe" in opts:
        pi, pj = [int(x) for x in opts["probe"].split(",")]
        A("s_sub_u32 s84, s%d, s%d" % (60 + 2 * pj, 60 + 2 * pi))
        if "pneg" in opts: A("s_sub_u32 s84, %s, s84" % opts["pneg"])
        if STAMP == 6:
            A("s_min_u32 s84, s84, 40000"); A("s_memrealtime s[72:73]"); A("s_waitcnt lgkmcnt(0)")
        else:
            A("s_min_u32 s84, s84, 10000")
            A("s_lshl_b32 s84, s84, 2")
        if "pcls" in opts:
            A("s_bfe_u32 s85, s2, 0x%x" % int(opts["pbits"], 16)); A("s_cmp_eq_u32 s85, %s" % opts["pcls"]); A("s_cselect_b32 s84, s84, 0")
        A("L_spin:"); A("s_sleep 2"); A("s_memrealtime s[82:83]"); A("s_waitcnt lgkmcnt(0)")
        A("s_sub_u32 s85, s82, s72"); A("s_cmp_lt_u32 s85, s84"); A("s_cbranch_scc1 L_spin")
    A("s_lshl_b32 s3, s2, 2"); A("s_add_u32 s3, s3, %s" % sWave); A("s_lshl_b32 s3, s3, 6")
    A("v_mov_b32 v10, s3")
    for i in range(16): A("v_mov_b32 v%d, s%d" % (16 + i, 60 + i))
    for i in range(4): A("buffer_store_dwordx4 v[%d:%d], v10, %s, 0 offen offset:%d" % (16 + 4 * i, 19 + 4 * i, sW, 16 * i))
A("s_barrier")
A("v_mov_b32 v0, %d" % FLAG)
A("ds_read_b32 v0, v0")
A("s_waitcnt lgkmcnt(0)")
A("v_readfirstlane_b32 %s, v0" % sTmp)
A("s_cmp_eq_u32 %s, 0" % sTmp)
A("s_cbranch_scc0 L_redo")
A("L_end:")
A("s_endpgm")
A("L_hotend:")
A("L_redo:")
A("s_waitcnt vmcnt(0)")
A("s_barrier")
A("v_mbcnt_lo_u32_b32 v0, -1, 0"); A("v_mbcnt_hi_u32_b32 v0, -1, v0")
A("s_lshl_b32 %s, %s, 6" % (sTmp, sWave))
A("v_add_u32 v0, %s, v0" % sTmp)

if "cap" in opts:
    T2 = []
    for t in T:
        if t.startswith("buffer_store") and sO in t: T2.append("s_waitcnt vmcnt(%d)" % int(opts["cap"]))
        T2.append(t)
    T = T2
if "nost" in opts: T = [t for t in T if not (t.startswith("buffer_store") and sO in t)]
if "nowr" in opts: T = [t for t in T if not t.startswith("ds_write_b64")]
def I(l): return [Ins(t) for t in l if not t.startswith("HOPS")]
seq = I(P + BP + B1 + B0 + ["s_cbranch_scc1 L_loop"] + B1 + B0 + ["s_cbranch_scc1 L_loop"] + T)
errs = check_hazards(seq, "main") + check_waits(seq, "main") + check_scc(seq, "main")
for e in errs[:30]: sys.stderr.write(e + "\n")
if errs and "nost" not in opts:
    print("!!! %d hazard problems" % len(errs)); sys.exit(1)
S, lds2, e2_ = gen_safe.build_safe({"qd": "3", "nt": NT})
assert lds2 <= LDS_BYTES and e2_ == 0

hdr = open("standalone__gqa_softmax__near_ridge.s.ref").read().split("; Override")[0]
code = P + ["; ---- iteration 0 (also completes the first K/V prefetch)"] + BP + ["; ---- iterations 1..12: QK(j+1) | PV(j)", ".p2align 3", "L_loop:"] + B1 + B0 + ["s_cbranch_scc1 L_loop",
       "; ---- tiles 13..15: row blocks 0-2 to the end, then 3-5; normalise, stage through LDS, store"] + T + ["; ---- online-max path (taken only when a row sum left the checked range)"]
NH = 8
DOC = """;
; Attention forward, one workgroup per (batch, head): 4 waves x 96 query rows, 16x16x32 bf16 MFMA, 32-key tiles.
;   S^T = K Q^T and O^T = V^T P^T, so a lane owns one query row; K/V tiles stream HBM -> LDS (LDS-DMA, XOR-swizzled),
;   softmax VALU work is interleaved with the MFMAs of the neighbouring tile.
; Fast path: Q is scaled by log2(e)/sqrt(192) once, p = 2^s is taken against the reference point 0 (softmax is shift
;   invariant).  Every row sum is checked against [2^-20, 2^24] (NaN and inf fail the check); if any row of the head
;   fails, the whole workgroup recomputes the head on the path labelled S_* which subtracts the running row maximum.
; The last tiles are processed row block by row block so that output stores overlap the remaining matrix work.
; Generated by the author's own script (instruction scheduling and hazard checking included).""".split("\n")
def render(code, nh):
    out = [hdr.rstrip(), "; @launch grid=(256,1,1) block=(256,1,1) lds=%d" % LDS_BYTES] + DOC + [
           '.amdgcn_target "amdgcn-amd-amdhsa--gfx950"', ".text", ".globl %s" % KN, ".p2align 8", ".type %s,@function" % KN, "%s:" % KN, "L_start:"]
    for t in code + S:
        if t.startswith("HOPS"):
            if not HOP: continue
            r_ = int(t[4:])
            out += ["; visit the first line of later code pages (no lane active, no memory instruction on that path)", "    s_mov_b64 exec, 0"]
            for w in range(4):
                k = 4 * r_ + w
                out += ["    s_cmp_eq_u32 %s, %d" % (sWave, w), "    s_cbranch_scc1 %s" % ("L_hop%d" % k if k < nh else "L_hopback%d" % r_)]
            out += ["L_hopback%d:" % r_, "    s_mov_b64 exec, -1"]
            continue
        t = t.replace("CODELEN", "L_hotend-L_main" if HOP else "L_hotend-L_pc").replace("CODEOFF", "L_main-L_pc+4" if HOP else "0")
        out.append(t if t.endswith(":") or t.startswith((".", ";")) else "    " + t)
    out += ['.section .rodata,"a"', ".p2align 6", ".amdhsa_kernel %s" % KN, "  .amdhsa_next_free_vgpr 512", "  .amdhsa_next_free_sgpr 96",
            "  .amdhsa_accum_offset 256", "  .amdhsa_group_segment_fixed_size 0", "  .amdhsa_kernarg_size 48", "  .amdhsa_user_sgpr_count 2",
            "  .amdhsa_user_sgpr_kernarg_segment_ptr 1", "  .amdhsa_system_sgpr_workgroup_id_x 1", ".end_amdhsa_kernel", ""]
    return "\n".join(out)
import subprocess, re as _re
def addresses(code, nh):
    marked = []
    for i, t in enumerate(code): marked += ["M_%d:" % i, t]
    open("_g7.s", "w").write(render(marked, nh))
    subprocess.run(["clang", "-x", "assembler", "-target", "amdgcn-amd-amdhsa", "-mcpu=gfx950", "-c", "_g7.s", "-o", "_g7.o"], check=True)
    sy = subprocess.run(["llvm-objdump", "-t", "_g7.o"], capture_output=True, text=True).stdout
    ad = {m.group(2): int(m.group(1), 16) for m in _re.finditer(r"^([0-9a-f]+) .* (\S+)$", sy, _re.M)}
    return [ad["M_%d" % i] - ad["L_main"] for i in range(len(code))]
nh = 0
if HOP:
    STEP = int(opts.get("hstep", 4096))
    while nh < NH:
        ad = addresses(code, nh)
        lo = STEP * (nh + 1 + int(opts.get("hskip", 3)))
        if lo >= ad[code.index("L_end:")]: break
        cand = [i for i in range(1, len(code)) if lo <= ad[i] < lo + 56]
        good = [i for i in cand if code[i - 1].startswith("v_mfma") and not code[i].startswith("s_")]
        i = (good or cand)[0]
        code[i:i] = ["L_hop%d:" % nh, "s_cbranch_execz L_hopback%d" % (nh // 4), "s_nop 0"][:2 + (1 if "L_loop:" in code[:i] and "s_cbranch_scc1 L_loop" in code[i:] and False else 0)]
        nh += 1
    sys.stderr.write("hops: %d\n" % nh)
open(sys.argv[1], "w").write(render(code, nh))
```

```python
import sys, math, struct
from asmlib import *
from sched import *
import gen_safe

opts = dict(a.split("=") for a in sys.argv[2:])
STAMP = int(opts.get("stamp", 0))
NT = opts.get("nt", "nt").replace("+", " ")
SPOL = opts.get("spol", "sc1").replace("+", " ")
QD = int(opts.get("qd", 3))
DEF = int(opts.get("defer", 2))
STG2 = [tuple(int(y) for y in x.split(":")) for x in opts.get("stg2", "").split(",") if x]
XP = int(opts.get("xp", 2))
KN = "standalone__gqa_softmax__near_ridge_kernel"
def f2u(x): return struct.unpack("<I", struct.pack("<f", x))[0]
CSCALE = f2u(math.log2(math.e) / math.sqrt(192.0))

VRING = 0; VX = 36864; KRING = 49152; KX = 86016; QLDS = 98304; SLOT = 12288
QKS = 1088; QRB = 6 * QKS; QWAVE = 2 * QRB + 1024
FLAG = QLDS + 4 * QWAVE
LDS_BYTES = FLAG + 64
def V(i, n=1): return "v%d" % i if n == 1 else "v[%d:%d]" % (i, i + n - 1)
def Ac(i, n=1): return "a%d" % i if n == 1 else "a[%d:%d]" % (i, i + n - 1)
vKA = [0, 1]; vVA = [2, 3, 4, 5]; vQA = 6; vDMA = 7
vL = [8 + i for i in range(6)]; vQG = 14; vQW = 15
FB = [Ac(96 + 4 * i, 4) for i in range(4)]
FQ = {4: [Ac(112, 4), Ac(116, 4)], 5: [Ac(120, 4), Ac(124, 4)]}
EARLY = [0, 1, 2, 3]; LATE = [4, 5]
G = {}; X = {}
r = 16
for rb in LATE:
    G[rb] = [r, r + 4]; X[rb] = [r + 8, r + 12]; r += 16
for rb in EARLY:
    G[rb] = [r, r + 4]; X[rb] = [r + 8, r + 8]; r += 12
assert r == 96
def Oreg(rb, db):
    b = rb * 12 + db
    return ("v", 96 + 4 * b) if b < 40 else ("a", 128 + 4 * (b - 40))
def O4(rb, db):
    f, i = Oreg(rb, db); return "%s[%d:%d]" % (f, i, i + 3)
def Qf(rb, ks): return Ac(rb * 24 + ks * 4, 4) if rb < 4 else FQ[rb][ks & 1]
sQ = "s[20:23]"; sK = "s[24:27]"; sV = "s[28:31]"; sO = "s[32:35]"; sW = "s[36:39]"
sC2 = "s[40:41]"; sIT = "s42"; sKoff = "s43"; sVoff = "s44"; sKm = "s45"; sVm = "s46"; sWave = "s47"
sTmp = "s48"; sRow = "s49"; sKend = "s50"; sVend = "s51"; sKbeg = "s52"; sVbeg = "s53"; sQL = "s16"; sCls = "s17"
sVX = "s[84:87]"; sXoff = "s74"; sXm = "s75"; sKr = "s82"; sVr = "s83"; sKd = "s92"; sVd = "s93"
sMask = "s54"; sLo = "s76"; sHi = "s77"; sBad = "s[78:79]"; sB2 = "s[80:81]"
def sRB(rb): return "0" if rb == 0 else "s%d" % (54 + rb)
MF = "v_mfma_f32_16x16x32_bf16"

def k_read(dst, tile_par, ks, hf):
    return "ds_read_b128 %s, %s offset:%d" % (dst, V(vKA[ks & 1]), tile_par * SLOT + (ks >> 1) * 4096 + hf * 2048)
def v_read(a0, tile_par, db):
    return ["ds_read_b64_tr_b16 %s, %s offset:%d" % (Ac(a0 + 2 * i, 2), V(vVA[db & 3]), tile_par * SLOT + (db >> 2) * 4096 + i * 2048) for i in range(2)]
def q_read(dst, area, ks):
    return "ds_read_b128 %s, %s offset:%d" % (dst, V(vQA), area * QRB + ks * QKS)
def qk_mfmas(par, last_up=False):
    out = []
    for g in range(6):
        p, hf = g >> 1, g & 1
        for rb in (range(6) if hf == 0 or (last_up and g == 5) else range(5, -1, -1)):
            for k in range(2):
                ks = 2 * p + k
                d = V((G[rb][par] if hf == 0 else X[rb][par]), 4)
                out.append("%s %s, %s, %s, %s" % (MF, d, FB[(2 * g + k) % 4], Qf(rb, ks), "0" if ks == 0 else d))
    return out
def sregs(rb, par): return [G[rb][par] + i for i in range(4)] + [X[rb][par] + i for i in range(4)]
def sm(rb, par, half):
    ops = []; s = sregs(rb, par)
    for i in (4 * half, 4 * half + 2):
        ops.append("v_exp_f32 %s, %s" % (V(s[i]), V(s[i])))
        ops.append("v_exp_f32 %s, %s" % (V(s[i + 1]), V(s[i + 1])))
        ops.append("v_add_f32 %s, %s, %s" % (V(vL[rb]), V(vL[rb]), V(s[i])))
        ops.append("v_add_f32 %s, %s, %s" % (V(vL[rb]), V(vL[rb]), V(s[i + 1])))
        ops.append("v_cvt_pk_bf16_f32 %s, %s, %s" % (V(G[rb][par] + i // 2), V(s[i]), V(s[i + 1])))
    return ops
def last_write_slot(mf, reg): return max(g for g, t in enumerate(mf) if reg in Ins(t).wr)
def paced(ops, g0, g1, floor=0, dead=10 ** 9):
    os_ = [Op(t) for t in ops]; tot = sum(o.cost for o in os_); acc = 0
    for o in os_:
        o.ming = max(floor, int(g0 + (g1 - g0) * acc / tot)); o.dead = dead; acc += o.cost
    return os_
def pin_qk(pinned, qk, tile_par, nq):
    def pin(g, t): pinned.setdefault(g, []).append(t)
    for g in range(1, 6):
        for k in range(2): pin(12 * (g - 1) + 2 * k, k_read(FB[(2 * g + k) % 4], tile_par, 2 * (g >> 1) + k, g & 1))
    lastq = {}
    for g, t in enumerate(qk):
        for rb in LATE:
            for k in range(2):
                if FQ[rb][k] in t: lastq[(g // 24, rb, k)] = g
    for p in range(nq):
        g = 0
        for (lg, rb, k) in sorted((lastq[(p, rb, k)], rb, k) for rb in LATE for k in range(2)):
            g = max(g, lg + 1)
            while g in pinned: g += 1
            pin(g, q_read(FQ[rb][k], rb - 4, (2 * p + 2 + k) % 6)); g += 2

def body(par, ds_in, peel=False):
    np_ = par ^ 1
    qk = qk_mfmas(np_)
    mf = qk + ["%s %s, %s, %s, %s" % (MF, O4(rb, db), FB[db % 4], V(G[rb][par], 4), O4(rb, db)) for db in range(12) for rb in range(6)]
    pinned = {}
    def pin(g, t): pinned.setdefault(g, []).append(t)
    for db in range(12):
        for t in v_read(96 + 4 * (db % 4), 0, db): pin({0: 60, 1: 63, 2: 72, 3: 75}.get(db, 72 + 6 * (db - 3)), t)
    pin(127, k_read(FB[0], 0, 0, 0)); pin(133, k_read(FB[1], 0, 1, 0))
    pin_qk(pinned, qk, 0, 3)
    scal = [(57, ["s_waitcnt vmcnt(%d) lgkmcnt(0)" % (7 - par)], True), (58, ["s_barrier"], True)]
    if par == 1:
        scal.append((61, ["s_mov_b32 m0, %s" % sXm], True))
        pin(62, "buffer_load_dwordx4 %s, %s, %s offen %s lds" % (V(vDMA), sVX, sXoff, NT))
        scal.append((82, ["s_cmp_eq_u32 %s, 3" % sIT, "s_cselect_b32 %s, s94, s95" % sTmp, "s_cselect_b32 s84, s24, s84", "s_cselect_b32 s85, s25, s85",
                          "s_cselect_b32 s3, %d, 0" % (KX - VX - SLOT)], False))
        scal.append((106, ["s_add_u32 %s, %s, %s" % (sXoff, sXoff, sTmp), "s_add_u32 %s, %s, 4096" % (sXm, sXm), "s_add_u32 %s, %s, s3" % (sXm, sXm)], False))
        scal.append((14, ["s_cmp_eq_u32 %s, 6" % sIT, "s_cselect_b32 s24, s28, s24", "s_cselect_b32 s25, s29, s25",
                          "s_cselect_b32 %s, %d, %s" % (sVoff, 14 * SLOT, sVoff)], False))
    adv = []
    for cnt, d in ((sVr, sVd), (sKr, sKd)):
        adv += ["s_add_u32 %s, %s, 1" % (cnt, cnt), "s_cmp_eq_u32 %s, 3" % cnt, "s_cselect_b32 %s, 0, %s" % (cnt, cnt),
                "s_cselect_b32 %s, s90, s91" % d]
    if peel: adv = ["s_mov_b32 %s, 0" % sVr, "s_mov_b32 %s, s90" % sVd, "s_mov_b32 %s, 2" % sKr, "s_mov_b32 %s, s91" % sKd]
    scal.append((1, adv, False))
    if peel:
        xg = [int(x) for x in opts.get("xg", "5,21,33,45,67,77").split(",")]
        xl = [(k, x, cb) for k, x in (("V", 1), ("K", 3))[XP:] for cb in range(3)]
        xg = xg[3 * XP:]
        for g, (k, x, cb) in zip(xg, xl):
            srd_, beg = (sK, sKbeg) if k == "K" else (sV, sVbeg)
            assert g not in pinned and (g - 2) not in xg and (g - 1) not in xg, g
            if cb == 0: scal.append((g - 2, ["s_mov_b32 %s, %d" % (sTmp, x * SLOT)], True))
            scal.append((g - 1, ["s_add_u32 m0, %s, %d" % (beg, (x % 3) * SLOT + cb * (4096 - 128))], True))
            pin(g, "buffer_load_dwordx4 %s, %s, %s offen offset:%d %s lds" % (V(vDMA), srd_, sTmp, cb * 128, NT))
        dgp = [int(x) for x in opts.get("dgp", "71,81,93,105,117,130").split(",")]
        scal[0] = (57, ["s_waitcnt vmcnt(%d) lgkmcnt(0)" % (3 + 3 * XP + sum(1 for g in xg if g < 57))], True)
        scal.append((121, ["s_waitcnt vmcnt(%d)" % (3 * XP + sum(1 for g in xg + dgp if g < 121))], True)); scal.append((122, ["s_barrier"], True))
    if par == 0 and not peel and int(opts.get("keep", 0)):
        scal.append((2, ["s_cmp_eq_u32 %s, 6" % sIT, "s_cselect_b32 %s, 0, %s" % (sVoff, sVoff)], False))
    for i in range(int(opts.get("slow", 0))):
        g = [30, 101, 54, 138, 10, 83][i]
        if peel: scal.append((g, ["s_sleep 1"], True))
        else: scal.append((g, ["s_cmp_lt_u32 %s, %d" % (sIT, int(opts.get("slowit", 3))), "s_cbranch_scc0 L_sl%d_%d" % (par, i), "s_sleep 1", "L_sl%d_%d:" % (par, i)], True))
    OW = int(opts.get("ow", 0))
    if par == 0 and OW:
        scal.append((2, ["s_cmp_eq_u32 %s, 6" % sIT, "s_cselect_b32 s28, s32, s28", "s_cselect_b32 s29, s33, s29", "s_cselect_b32 s30, s34, s30",
                         "s_cselect_b32 %s, 0, %s" % (sVoff, sVoff), "s_cselect_b32 s86, %d, 0" % (61440 if OW == 2 else 0)], False))
        scal.append((107, ["s_add_u32 %s, %s, s86" % (sVoff, sVoff)], False)); scal.append((119, ["s_add_u32 %s, %s, s86" % (sVoff, sVoff)], False))
    dg = [int(x) for x in opts.get("dg", "71,81,93,105,117,130").split(",")] if not peel else dgp
    for i in range(6):
        srd_, so, sm_ = (sV, sVoff, sVm) if i < 3 else (sK, sKoff, sKm)
        assert dg[i] not in pinned
        scal.append((dg[i] - 1, ["s_add_u32 m0, %s, %d" % (sm_, (i % 3) * (4096 - 128))], True))
        pin(dg[i], "buffer_load_dwordx4 %s, %s, %s offen offset:%d %s lds" % (V(vDMA), srd_, so, (i % 3) * 128, NT))
    for g, so, m, end, beg in () if peel else ((dg[2] + 1 if dg[3] - dg[2] > 8 else dg[5] + 8, sVoff, sVm, sVend, sVbeg), (dg[5] + 1, sKoff, sKm, sKend, sKbeg)):
        scal.append((g, ["s_add_u32 %s, %s, %d" % (so, so, SLOT), "s_add_u32 %s, %s, %d" % (m, m, SLOT),
                         "s_cmp_eq_u32 %s, %s" % (m, end), "s_cselect_b32 %s, %s, %s" % (m, beg, m)], False))
    if par == 0 and not peel: scal.append((139, ["s_add_u32 %s, %s, 1" % (sIT, sIT), "s_cmp_lt_u32 %s, 7" % sIT], False))
    st = paced(sum([sm(rb, par, h) for rb in LATE for h in range(2)], []), 0, 50, dead=70)
    st += [Op("v_add_u32 %s, %s, %s" % (V(a), sVd, V(a)), 44, 56) for a in vVA]
    st += [Op("v_add_u32 %s, %s, %s" % (V(a), sKd, V(a)), 52, 125) for a in vKA]
    E0, E1 = 55, 140
    for n, (rb, h) in enumerate([(0, 0), (1, 0), (2, 0), (3, 0), (3, 1), (2, 1), (1, 1), (0, 1)]):
        ready = last_write_slot(qk, "v%d" % sregs(rb, np_)[4 * h]) + 5
        st += paced(sm(rb, np_, h), E0 + (E1 - E0) * n / 8, E0 + (E1 - E0) * (n + 1) / 8, floor=ready)
    def capf(cap, sc, pin_):
        for g in range(144):
            if "s_barrier" in sc.get(g, []): cap[g] = 0
    return schedule(mf, pinned, scal, st, ds_in, "body%d" % par, next_first=qk_mfmas(par)[0], excl=True, capf=capf)

def stamp(i):
    if STAMP in (1, 3): return ["s_memrealtime s[%d:%d]" % (60 + 2 * i, 61 + 2 * i)]
    if STAMP == 7:
        o = ["s_memrealtime s[%d:%d]" % (60 + 2 * i, 61 + 2 * i)] if i in (0, 2, 3, 6, 7) else []
        c = {2: 1, 7: 4, 3: 5}.get(i)
        return o + (["s_memtime s[%d:%d]" % (60 + 2 * c, 61 + 2 * c)] if c else [])
    if STAMP == 6: return ["s_memtime s[%d:%d]" % (60 + 2 * i, 61 + 2 * i)]
    return []

P = []
A = P.append
A("s_cmp_ge_u32 s2, 256")
A("s_cbranch_scc1 L_end")
A("s_load_dwordx4 s[4:7], s[0:1], 0")
A("s_load_dwordx4 s[8:11], s[0:1], 16")
if STAMP: A("s_load_dwordx2 s[12:13], s[0:1], 40")
P += stamp(0)
A("s_getpc_b64 s[18:19]")
A("v_lshlrev_b32 v240, 7, v0")
A("L_pc:")
A("v_min_u32 v240, CODELEN, v240")
A("v_add_u32 v240, CODEOFF, v240")
A("global_load_dword v241, v240, s[18:19]")
vLN = 242; t2 = 243; t3 = 244; t4 = 245; t5 = 246; t6 = 247
A("v_lshrrev_b32 v%d, 6, v0" % t2)
A("v_and_b32 v%d, 63, v0" % vLN)
A("s_mul_i32 s14, s2, 147456")
A("v_readfirstlane_b32 %s, v%d" % (sWave, t2))
A("s_mul_i32 s15, s2, 196608")
if STG2: A("s_bfe_u32 %s, s2, 0x30003" % sCls)
A("v_lshrrev_b32 v%d, 3, v%d" % (t5, vLN))
A("v_mul_u32_u24 v%d, 384, v%d" % (t6, t5))
A("v_lshrrev_b32 v%d, 4, v%d" % (t3, vLN))
A("v_lshlrev_b32 v%d, 1, v%d" % (t4, t3))
A("v_xor_b32 v%d, v%d, v%d" % (t4, t4, vLN))
A("v_and_b32 v%d, 7, v%d" % (t4, t4))
A("v_lshl_add_u32 v%d, v%d, 4, v%d" % (vDMA, t4, t6))
A("s_mul_i32 %s, %s, 3072" % (sTmp, sWave))
A("v_add_u32 v%d, %s, v%d" % (vDMA, sTmp, vDMA))
A("v_and_b32 v%d, 7, v%d" % (t4, vLN))
A("v_lshl_add_u32 v%d, v%d, 4, v%d" % (vQG, t4, t6))
A("s_mul_i32 %s, %s, 36864" % (sRow, sWave))
A("v_add_u32 v%d, %s, v%d" % (vQG, sRow, vQG))
A("s_lshl_b32 %s, %s, 10" % (sVbeg, sWave))
A("s_add_u32 %s, %s, %d" % (sKbeg, sVbeg, KRING))
for rb in range(1, 6): A("s_mov_b32 %s, %d" % (sRB(rb), rb * 6144))
if STG2:
    A("s_mov_b32 s3, 0")
    for i, (lo, hi, k, cnt) in enumerate(STG2):
        A("s_sub_u32 %s, %s, %d" % (sTmp, sCls, lo)); A("s_cmp_lt_u32 %s, %d" % (sTmp, hi - lo)); A("s_cselect_b32 s3, %d, s3" % (1 << i))
A("s_waitcnt lgkmcnt(0)")
def srd(base, src, off, size):
    A("s_add_u32 s%d, s%d, %s" % (base, src, off)); A("s_addc_u32 s%d, s%d, 0" % (base + 1, src + 1))
    A("s_mov_b32 s%d, %d" % (base + 2, size)); A("s_mov_b32 s%d, 0x20000" % (base + 3))
vm = []
def raw(rb, i): return 96 + rb * 24 + i * 4
def issue(k, x, i):
    if k == "Q":
        A("buffer_load_dwordx4 %s, v%d, %s, %s offen offset:%d %s" % (V(raw(x, i), 4), vQG, sQ, sRB(x), (i & 1) * 3072 + (i >> 1) * 128, NT))
        vm.append("Q%d.%d" % (x, i))
    else:
        srd_, beg = (sK, sKbeg) if k == "K" else (sV, sVbeg)
        A("s_add_u32 m0, %s, %d" % (beg, (3 if (k, x) == ("K", 0) else x % 3) * SLOT + i * (4096 - 128)))
        A("s_mov_b32 %s, %d" % (sTmp, x * SLOT))
        A("buffer_load_dwordx4 %s, %s, %s offen offset:%d %s lds" % (V(vDMA), srd_, sTmp, i * 128, NT))
        vm.append("%s%d" % (k, x))
    n = len(vm) - 1
    for ci, (lo, hi, kk, cnt) in enumerate(STG2):
        if kk <= n < cnt:
            A("s_bitcmp1_b32 s3, %d" % ci); A("s_cbranch_scc0 L_sg%d_%d" % (n, ci)); A("s_waitcnt vmcnt(%d)" % kk); A("L_sg%d_%d:" % (n, ci))
def vwait(name):
    last = max(i for i, x in enumerate(vm) if x == name)
    A("s_waitcnt vmcnt(%d)" % (len(vm) - 1 - last))
TLB = int(opts.get("tlb", 0))
srd(24, 6, "s15", 196608)
issue("K", 0, 0)
if TLB & 1:
    srd(32, 10, "s14", 147456); srd(28, 8, "s15", 196608)
    A("v_lshlrev_b32 v240, 9, v%d" % vLN)
    A("buffer_load_dword v250, v240, %s, %s offen nt" % (sO, sRow)); vm.append("t")
    A("buffer_load_dword v251, v%d, %s, 0 offen nt" % (vDMA, sV)); vm.append("t")
for cb in range(1, 3): issue("K", 0, cb)
K1E = int(opts.get("k1e", 0))
if K1E:
    for cb in range(3): issue("K", 1, cb)
srd(20, 4, "s14", 147456)
for rb in range(QD):
    for i in range(6): issue("Q", rb, i)
HOP = int(opts.get("hop", 1))
if HOP: A("s_branch L_main"); A(".p2align 12"); A("L_main:")
srd(28, 8, "s15", 15 * SLOT); srd(32, 10, "s14", 147456); srd(84, 8, "s15", 196608)
if STAMP:
    A("s_mov_b32 s36, s12"); A("s_mov_b32 s37, s13"); A("s_mov_b32 s38, 0x100000"); A("s_mov_b32 s39, 0x20000")
A("s_add_u32 %s, %s, %d" % (sKend, sKbeg, 3 * SLOT))
A("s_add_u32 %s, %s, %d" % (sVend, sVbeg, 3 * SLOT))
A("s_mul_i32 %s, %s, %d" % (sQL, sWave, QWAVE))
A("s_add_u32 %s, %s, %d" % (sQL, sQL, QLDS))
A("v_xor_b32 v%d, v%d, v%d" % (t2, t5, t4))
A("v_lshlrev_b32 v%d, 4, v%d" % (t2, t2))
A("v_lshl_add_u32 v%d, v%d, 7, v%d" % (t2, t5, t2))
A("s_mul_i32 %s, %s, 6144" % (sTmp, sWave))
A("s_cmp_lt_u32 %s, 2" % sWave)
A("s_cselect_b32 s3, 0, 4")
A("s_mul_i32 s3, s3, %d" % SLOT)
A("s_add_u32 %s, %s, s3" % (sTmp, sTmp))
A("v_add_u32 v249, %s, v%d" % (sTmp, t2))
A("v_and_b32 v%d, 3, v%d" % (t4, vLN))
A("v_xor_b32 v%d, v%d, v%d" % (t2, t5, t4))
A("v_lshlrev_b32 v%d, 4, v%d" % (t2, t2))
A("v_lshl_add_u32 v%d, v%d, 8, v%d" % (t2, t4, t2))
A("v_bfe_u32 v%d, v%d, 2, 1" % (t4, vLN))
A("v_mul_u32_u24 v%d, %d, v%d" % (t4, QKS, t4))
A("v_add3_u32 v%d, v%d, v%d, %s" % (vQW, t2, t4, sQL))
A("v_and_b32 v%d, 15, v%d" % (t2, vLN))
A("v_xor_b32 v%d, v%d, v%d" % (t4, t2, t3))
A("v_lshlrev_b32 v%d, 4, v%d" % (t4, t4))
A("v_lshl_add_u32 v%d, v%d, 8, v%d" % (t4, t3, t4))
A("v_add_u32 v%d, %s, v%d" % (vQA, sQL, t4))
A("v_lshlrev_b32 v%d, 7, v%d" % (t6, t2))
A("v_lshrrev_b32 v%d, 5, v%d" % (t4, vLN))
A("v_xor_b32 v%d, v%d, v%d" % (t4, t4, vLN))
A("v_and_b32 v%d, 7, v%d" % (t4, t4))
A("v_lshl_add_u32 v%d, v%d, 4, v%d" % (t6, t4, t6))
A("v_xor_b32 v%d, v%d, v%d" % (t4, t3, t5))
A("v_and_b32 v%d, 1, v%d" % (t4, t4))
A("v_lshl_add_u32 v%d, v%d, 3, v%d" % (t6, t4, t6))
A("v_add_u32 v248, %s, v%d" % (sTmp, t6))
A("ds_write_b64 v%d, v[248:249] offset:%d" % (vQA, 2 * QRB))
A("v_and_b32 v%d, 6, v%d" % (t4, vLN))
A("v_xor_b32 v%d, v%d, v%d" % (t4, t4, t3))
A("v_lshlrev_b32 v%d, 4, v%d" % (t4, t4))
A("v_lshl_add_u32 v%d, v%d, 7, v%d" % (vKA[0], t2, t4))
A("v_add_u32 v%d, %d, v%d" % (vKA[0], KRING, vKA[0]))
A("v_xor_b32 v%d, 64, v%d" % (vKA[1], vKA[0]))
A("v_lshrrev_b32 v%d, 2, v%d" % (t4, vLN))
A("v_lshlrev_b32 v%d, 7, v%d" % (t4, t4))
A("v_and_b32 v%d, 3, v%d" % (t2, vLN))
A("v_lshl_add_u32 v%d, v%d, 3, v%d" % (t4, t2, t4))
A("v_bfe_u32 v%d, v%d, 3, 2" % (t2, vLN))
A("v_lshl_add_u32 v%d, v%d, 5, v%d" % (t4, t2, t4))
A("v_add_u32 v%d, %d, v%d" % (vVA[0], VRING + 2 * SLOT, t4))
for x in range(1, 4): A("v_xor_b32 v%d, %d, v%d" % (vVA[x], 32 * x, vVA[0]))
A("s_mov_b32 s40, 0x%x" % CSCALE); A("s_mov_b32 s41, 0x%x" % CSCALE)
A("s_mov_b32 %s, 0xffff0000" % sMask)
A("s_mov_b32 %s, 0" % sIT)
A("s_mov_b32 %s, %d" % (sKoff, 4 * SLOT))
A("s_mov_b32 %s, %d" % (sVoff, 2 * SLOT))
A("s_add_u32 %s, %s, %d" % (sKm, sKbeg, SLOT))
A("s_mov_b32 %s, %d" % (sXoff, 13 * SLOT)); A("s_add_u32 %s, %s, %d" % (sXm, sVbeg, VX))
A("s_mov_b32 s90, %d" % (-2 * SLOT)); A("s_mov_b32 s91, %d" % SLOT); A("s_mov_b32 s94, %d" % (2 * SLOT - 256)); A("s_movk_i32 s95, 128")
A("s_add_u32 %s, %s, %d" % (sVm, sVbeg, 2 * SLOT))
A("s_mov_b32 %s, 0x%x" % (sLo, f2u(2.0 ** float(opts.get("llo", -20)))))
A("s_mov_b32 %s, 0x%x" % (sHi, f2u(2.0 ** float(opts.get("lhi", 24)))))
A("s_mov_b64 %s, 0" % sBad)
for i in vL: A("v_mov_b32 v%d, 0" % i)
ZR = FQ[5][1]
for i in range(4): A("v_accvgpr_write_b32 a%d, 0" % (124 + i))
A("v_mov_b32 v%d, %d" % (t2, FLAG))
A("ds_write_b32 v%d, v%d" % (t2, vL[0]))
def zero16(f, i): A("v_mfma_f32_32x32x16_bf16 %s[%d:%d], %s, %s, 0" % (f, i, i + 15, ZR, ZR))
for i in range(128, 256, 16): zero16("a", i)
A("HOPS0")
vwait("K1" if K1E else "K0")
A("s_waitcnt lgkmcnt(0)")
A("s_barrier")
K0F = [V(G[rb][1], 4) for rb in range(6)] + [V(X[rb][1], 4) for rb in LATE] + FB
for n in range(12): A(k_read(K0F[n], 3, n >> 1, n & 1))
def pro_sm(rb):
    ops = sm(rb, 0, 0) + sm(rb, 0, 1)
    for t in [t for t in ops if t.startswith("v_exp")] + ["s_nop 0"] + [t for t in ops if not t.startswith("v_exp")]: A(t)
pend = [("Q", rb, i) for rb in range(QD, 6) for i in range(6)]
pend += [(k, x, cb) for k, x in (("K", 1), ("V", 0), ("K", 2), ("V", 1), ("K", 3))[K1E:3 + XP] for cb in range(3)]
deferred = pend[len(pend) - 3 * DEF:]; pend = pend[:len(pend) - 3 * DEF]
def qdst(rb, ks): return Ac(rb * 24 + ks * 4, 4) if rb < 4 else V(raw(rb, ks), 4)
def st_read(s_):
    rb, cb = divmod(s_, 3)
    for ks in (2 * cb, 2 * cb + 1): A(q_read(qdst(rb, ks), rb & 1, ks))
def st_mfma(s_):
    rb, cb = divmod(s_, 3)
    for hf in range(2):
        for ks in (2 * cb, 2 * cb + 1):
            d = V((G[rb][0] if hf == 0 else X[rb][0]), 4)
            A("%s %s, %s, %s, %s" % (MF, d, K0F[2 * ks + hf], qdst(rb, ks), "0" if ks == 0 else d))
nleft = 36
for s_ in range(18):
    rb, cb = divmod(s_, 3)
    for rh in range(2):
        i = 2 * cb + rh
        vwait("Q%d.%d" % (rb, i))
        if s_ == 17 and rh == 1: P += stamp(1)
        r0 = raw(rb, i); tb = 240 + 8 * rh
        for k in range(4):
            A("v_lshlrev_b32 v%d, 16, v%d" % (tb + 2 * k, r0 + k)); A("v_and_b32 v%d, %s, v%d" % (tb + 2 * k + 1, sMask, r0 + k))
        for k in range(4): A("v_pk_mul_f32 %s, %s, %s" % (V(tb + 2 * k, 2), V(tb + 2 * k, 2), sC2))
        for k in range(4): A("v_cvt_pk_bf16_f32 v%d, v%d, v%d" % (r0 + k, tb + 2 * k, tb + 2 * k + 1))
        if rh == 0 and s_ >= 1: st_read(s_ - 1)
        A("ds_write_b128 v%d, %s offset:%d" % (vQW, V(r0, 4), (rb & 1) * QRB + cb * 2 * QKS + rh * 128))
        if s_ == 17 and rh == 1: st_read(17)
        if pend and (pend[0][0] == "Q" or len(pend) >= nleft - int(opts.get("kvl", 3))):
            for _ in range(-(-len(pend) // nleft)): issue(*pend.pop(0))
        nleft -= 1
        if nleft == 0:
            for x in deferred[:3]: issue(*x)
    if s_ >= 1:
        A("s_waitcnt lgkmcnt(%d)" % (2 if s_ < 17 else 4)); st_mfma(s_ - 1)
        if "dum" in opts and s_ < 17:
            d0, d1 = [int(x) for x in opts["dum"].split(",")]
            rbp, cbp = divmod(s_ - 1, 3)
            for i in range(d0 + (d1 - d0) * s_ // 16):
                A("%s a[112:115], %s, %s, a[112:115]" % (MF, K0F[i % 12], qdst(rbp, 2 * cbp + (i & 1))))
    if cb == 1 and rb >= 1 and rb - 1 in EARLY: pro_sm(rb - 1)
    if s_ == int(opts.get("hs", 2)) and int(opts.get("hskip", 3)) < 2: A("HOPS1")
    for i in {7: (96, 112, 128), 13: (144, 160, 176), 16: (192, 208)}.get(s_, ()): zero16("v", i)
A("s_waitcnt lgkmcnt(0)")
st_mfma(17)
for i in (240, 224): zero16("v", i)
for x in deferred[3:]: issue(*x)
if not K1E:
    vwait("K1")
    A("s_barrier")
for a_ in vKA: A("v_add_u32 %s, %d, %s" % (V(a_), SLOT, V(a_)))
A(k_read(FB[0], 0, 0, 0)); A(k_read(FB[1], 0, 1, 0))
for rb in LATE:
    for k in range(2): A(q_read(FQ[rb][k], rb - 4, k))
if TLB & 2: A("buffer_load_dword v%d, v%d, %s, 0 offen nt" % (vQW, vQG, sO))
assert vm[-6 - 3 * XP:] == sum([[x] * 3 for x in ("V0", "K2", "V1", "K3")[:2 + XP]], []), vm
A("s_waitcnt lgkmcnt(0)")
P += stamp(2)

B0, q0 = body(0, [])
B1, q1 = body(1, q0)
B0, q0b = body(0, q1)
assert q0 == q0b
BP, qp_ = body(0, [], peel=True)
assert qp_ == q0
BP += ["s_add_u32 %s, %s, %d" % (sKoff, sKoff, SLOT), "s_add_u32 %s, %s, %d" % (sKm, sKm, SLOT),
       "s_add_u32 %s, %s, %d" % (sVoff, sVoff, SLOT), "s_mov_b32 %s, %s" % (sVm, sVbeg), "s_mov_b32 %s, 1" % sIT]
if STAMP == 7: BP += stamp(7)
if STAMP == 3:
    pre3 = ["s_mov_b32 m0, s13", "s_add_u32 s13, s13, 1", "v_writelane_b32 v15, s88, m0", "s_memrealtime s[88:89]"]
    BP = ["s_mov_b32 s13, 0", "s_mov_b32 s88, 0"] + pre3 + BP; B0 = pre3 + B0; B1 = pre3 + B1

T = []
A = T.append
T += stamp(3)
if STAMP == 3:
    T += pre3 + ["s_waitcnt lgkmcnt(0)"] + pre3[:3]
    A("v_mbcnt_lo_u32_b32 v16, -1, 0"); A("v_mbcnt_hi_u32_b32 v16, -1, v16"); A("v_lshlrev_b32 v16, 2, v16")
    A("s_lshl_b32 s3, s2, 2"); A("s_add_u32 s3, s3, %s" % sWave); A("s_lshl_b32 s3, s3, 8"); A("s_add_u32 s3, s3, 65536")
    A("buffer_store_dword v15, v16, %s, s3 offen" % sW)
eW = [16, 17, 18, 19]; eR = vQW; eS = vQG
for a_ in vKA: A("v_subrev_u32 %s, %d, %s" % (V(a_), 2 * SLOT, V(a_)))
def R4(x): return "%s[%d:%d]" % (x[0], x[1], x[1] + 3)
def R2(x, h): return "%s[%d:%d]" % (x[0], x[1] + 2 * h, x[1] + 2 * h + 1)
def vrd(dst, tile, db):
    return ["ds_read_b64_tr_b16 %s, %s offset:%d" % (R2(dst, i), V(vVA[db & 3]), {13: 3, 14: 1, 15: 4}[tile] * SLOT + (db >> 2) * 4096 + i * 2048) for i in range(2)]
X15 = {0: X[4][0], 1: X[5][0], 2: G[5][0], 3: X[0][0], 4: X[4][1], 5: X[5][1]}
G15 = {0: G[0][1], 1: G[1][1], 2: G[2][1], 3: G[1][0], 4: G[1][1], 5: G[2][0]}
def fs(rb, t): return [(G[rb][0] if t == 14 else G15[rb]) + i for i in range(4)] + [(X[rb][0] if t == 14 else X15[rb]) + i for i in range(4)]
def fsm(rb, t, half):
    ops = []; s_ = fs(rb, t)
    for i in (4 * half, 4 * half + 2):
        ops += ["v_exp_f32 %s, %s" % (V(s_[i]), V(s_[i])), "v_exp_f32 %s, %s" % (V(s_[i + 1]), V(s_[i + 1])),
                "v_add_f32 %s, %s, %s" % (V(vL[rb]), V(vL[rb]), V(s_[i])), "v_add_f32 %s, %s, %s" % (V(vL[rb]), V(vL[rb]), V(s_[i + 1])),
                "v_cvt_pk_bf16_f32 %s, %s, %s" % (V(s_[i // 2]), V(s_[i]), V(s_[i + 1]))]
    return ops
def qp(p): return [("a", rb * 24 + 8 * p + 4 * k) for rb in range(3) for k in range(2)]
def sb(*l): return [("a", 96 + 4 * i) for i in l]
vres = qp(0) + sb(4, 5) + qp(1) + sb(6, 7, 0, 1) + qp(2)
def v13(db): return ("v", 192 + 4 * db)
def phase_mf(rb):
    o = ["%s %s, %s, %s, %s" % (MF, O4(rb, db), R4(v13(db)), V(G[rb][1], 4), O4(rb, db)) for db in range(12)] if rb >= 3 else []
    return o + ["%s %s, %s, %s, %s" % (MF, O4(rb, db), R4(vres[12 * t + db]), V(fs(rb, 14 + t)[0], 4), O4(rb, db)) for t in range(2) for db in range(12)]
def lfin(rb):
    tmp = X15[rb]; l = vL[rb]; o = []
    for sw in ("v_permlane32_swap_b32", "v_permlane16_swap_b32"):
        o += ["v_mov_b32 v%d, v%d" % (tmp, l), "%s v%d, v%d" % (sw, l, tmp), "v_add_f32 v%d, v%d, v%d" % (l, l, tmp)]
    o += ["v_cmp_nle_f32 vcc, %s, v%d" % (sLo, l), "v_cmp_nge_f32 %s, %s, v%d" % (sB2, sHi, l), "v_rcp_f32 v%d, v%d" % (l, l)]
    return [Op(t) for t in o]
def wreg(n):
    fl, i0 = Oreg(n // 3, 4 * (n % 3))
    return i0 if fl == "v" else 96 + 16 * (n % 6)
def stg(n): return (n % 3) * 2048
def ep_st(n, rh):
    rb, cb = divmod(n, 3)
    return "buffer_store_dwordx4 %s, v%d, %s, %s offen offset:%d %s" % (V(wreg(n) + 8 + 4 * rh, 4), eS, sO, sRB(rb), rh * 3072 + cb * 128, "" if n >= int(opts.get("plain", 99)) else "nt sc1" if str(rb) in opts.get("ntrb", "") or ("nth" in opts and rh == 1 and rb < int(opts["nth"])) else SPOL)
def ep_rd(n):
    return ["ds_read_b128 %s, v%d offset:%d" % (V(wreg(n) + 8, 4), eR, stg(n))] + \
           ["ds_read_b64 %s, v%d offset:%d" % (V(wreg(n) + 12 + 2 * k, 2), eR, stg(n) + 1024 + 8 * (1 - k)) for k in range(2)]
ROWS = int(opts.get("rows", 0))
def burst(rb):
    A("s_or_b64 %s, %s, vcc" % (sBad, sBad)); A("s_or_b64 %s, %s, %s" % (sBad, sBad, sB2))
    lp = vL[rb] & ~1; sel = vL[rb] & 1
    for cb in range(3):
        n = 3 * rb + cb
        fl, i0 = Oreg(rb, 4 * cb); w = wreg(n)
        if fl == "a":
            for i in range(16):
                if rb < 5 or 4 * cb + i // 4 >= PRE5: A("v_accvgpr_read_b32 %s, %s" % (V(w + i), Ac(i0 + i)))
        for i in range(0, 16, 2):
            A("v_pk_mul_f32 %s, %s, %s op_sel:[0,%d] op_sel_hi:[1,%d]" % (V(w + i, 2), V(w + i, 2), V(lp, 2), sel, sel))
        if cb == 2 and not ROWS: A("s_waitcnt lgkmcnt(4)"); A(ep_st(n - 2, 0))
        for i in range(8): A("v_cvt_pk_bf16_f32 %s, %s, %s" % (V(w + i), V(w + 2 * i), V(w + 2 * i + 1)))
        if cb == 2 and not ROWS: A(ep_st(n - 2, 1))
        if cb >= 1:
            for t in ep_rd(n - 1): A(t)
        for x in range(4):
            A("ds_write_b64 v%d, %s offset:%d" % (eW[x], V(w + 2 * x, 2), stg(n)))
def group_block(rbs, buf, qf, first):
    mf = []; frag = []
    for t in ((14, 13, 15) if first else (14, 15)):
        if t == 13:
            for db in range(12):
                b = buf[len(frag) % 8]; frag.append((len(mf), vrd(b, 13, db), len(mf) + 2))
                mf += ["%s %s, %s, %s, %s" % (MF, O4(rb, db), R4(b), V(G[rb][1], 4), O4(rb, db)) for rb in rbs]
        else:
            for g in range(6):
                p, hf = (g >> 1, g & 1) if (t == 15 and first) else (g % 3, g // 3)
                bs = [buf[(len(frag) + k) % 8] for k in range(2)]
                for k in range(2): frag.append((len(mf), [k_read(R4(bs[k]), t - 12, 2 * p + k, hf)], len(mf) + 5))
                for rb in rbs:
                    for k in range(2):
                        d = V(fs(rb, t)[4 * hf], 4)
                        mf.append("%s %s, %s, %s, %s" % (MF, d, R4(bs[k]), qf(rb, 2 * p + k), "0" if p + k == 0 else d))
    return mf + phase_mf(rbs[0]), frag
def place(pinned, g, ins):
    while len(pinned.get(g, [])) + len(ins) > 2 or any(t.startswith("buffer") for t in pinned.get(g, [])): g += 1
    pinned.setdefault(g, []).extend(ins); return g
def block_stream(mf, rbs, lag):
    st = []
    r0_, r1_, r2_ = rbs
    for rb, t, h in ((r0_, 14, 0), (r1_, 14, 0), (r2_, 14, 0), (r0_, 14, 1), (r1_, 14, 1), (r2_, 14, 1), (r0_, 15, 0), (r0_, 15, 1), (-1, 0, 0), (r1_, 15, 0)):
        if rb < 0: st += lfin(r0_); continue
        ready = last_write_slot(mf[:108], "v%d" % fs(rb, t)[4 * h]) + lag
        dead = 131 if rb != r0_ else (105 if t == 14 else 117)
        st += [Op(x, ready, dead) for x in fsm(rb, t, h)]
    return st
def leftovers(n):
    rd = ep_rd(n)
    if ROWS:
        d = {4: rd[:2], 5: rd[2:]}
        for i in range(6): d[11 + i + (i // 3) * int(opts.get("rgap", 2))] = [ep_st(n - 2 + i % 3, i // 3)]
        return d
    return {1: [ep_st(n - 1, 0)], 4: [ep_st(n - 1, 1)], 7: rd[:2], 8: rd[2:], 17: [ep_st(n, 0)], 20: [ep_st(n, 1)]}
def small_phase(rb, nxt, extra=()):
    scal = [(0, ["s_waitcnt lgkmcnt(4)"], True), (16, ["s_waitcnt lgkmcnt(0)"], True)] if not ROWS else [(10, ["s_waitcnt lgkmcnt(0)"], True)]
    st = [Op(t, 0, 10) for t in fsm(rb, 15, 1)] + lfin(rb)
    if nxt is not None: st += [Op(t) for t in fsm(nxt, 15, 0)]
    pinned = leftovers(3 * rb - 1)
    for g, ins in extra: pinned[g] = ins
    if extra: scal[1] = (16, ["s_waitcnt lgkmcnt(%d)" % sum(len(ins) for g, ins in extra if g < 16)], True)
    blk, _ = schedule(phase_mf(rb), pinned, scal, st, [], "phase%d" % rb, excl=True)
    return blk
bufA = [("a", 96 + 4 * i) for i in range(8)]
mf, frag = group_block([0, 1, 2], bufA, Qf, True)
pinned = {}
for i, (use, ins, _) in enumerate(frag):
    if i < 2: continue
    place(pinned, max(0 if i < 8 else frag[i - 8][2], use - 15 + (i & 1)), ins)
g = 80; gv = {}
for n in range(24):
    free = 1 + max(k for k, t in enumerate(mf[:108]) if ("a%d" % vres[n][1]) in Ins(t).rd)
    g = place(pinned, max(g, free), vrd(vres[n], 14 + n // 12, n % 12))
    gv[n] = g; g += (1 if n < 17 else 2)
place(pinned, 124, ["ds_read_b64 v[16:17], v%d offset:%d" % (vQA, 2 * QRB)])
scal = [(51, ["s_waitcnt vmcnt(12)", "s_barrier"], False), (74, ["s_waitcnt vmcnt(9)", "s_barrier"], False), (90, ["s_waitcnt vmcnt(0)", "s_barrier"], False)]
st = [Op(t) for h in range(2) for t in sm(4, 1, h)] + block_stream(mf, [0, 1, 2], 5)
blk, _ = schedule(mf, pinned, scal, st, q0, "blockA", excl=True)
T += blk
if "fine" in opts: T += stamp(1)
A("s_waitcnt lgkmcnt(0)")
A("v_mov_b32 v%d, v17" % eR)
for x in (1, 2, 3): A("v_xor_b32 v%d, %d, v16" % (eW[x], 32 * x))
burst(0)
T += small_phase(1, 2); burst(1)
bufB = [("v", 96 + 4 * i) for i in range(8)]
def qfB(rb, ks): return Qf(rb, ks) if rb < 4 else V(128 + 24 * (rb - 4) + 4 * ks, 4)
mfB, fragB = group_block([3, 4, 5], bufB, qfB, False)
pre = [fragB[i][1][0] for i in range(4)] + [q_read(qfB(rb, k), rb - 4, k) for k in range(6) for rb in LATE]
T += small_phase(2, None, [(g, pre[2 * i:2 * i + 2]) for i, g in enumerate((11, 14, 18, 19, 21, 22, 23))])
for t in pre[14:]: A(t)
for x in range(4): A("v_mov_b32 v%d, v%d" % (G[0][0] + x, eW[x]))
eW = [G[0][0] + x for x in range(4)]
burst(2)
if "fine" in opts: T += stamp(2)
pinned = leftovers(8)
for i, (use, ins, _) in enumerate(fragB):
    if i < 4: continue
    g = place(pinned, max(0 if i < 8 else fragB[i - 8][2], use - 15 + (i & 1)), ins)
g = 22
for db in range(12): g = place(pinned, g, vrd(v13(db), 13, db)) + 3
if ROWS:
    later = sum(1 for g in range(6, 10) for t in pinned.get(g, []) if t.startswith("ds_")) + len(pinned[5]) - 1
    scal = [(10, ["s_waitcnt lgkmcnt(%d)" % later], True)]
else:
    later = sum(1 for g in range(9, 16) for t in pinned.get(g, []) if t.startswith("ds_")) + len(pinned[8]) - 1
    scal = [(0, ["s_waitcnt lgkmcnt(4)"], True), (16, ["s_waitcnt lgkmcnt(%d)" % later], True)]
st = [Op(t, 0, 50) for h in range(2) for t in sm(5, 1, h)]
for rb, t, h, dead in ((3, 14, 0, 81), (4, 14, 0, 107), (5, 14, 0, 107), (3, 14, 1, 81), (4, 14, 1, 107), (3, 15, 0, 93), (3, 15, 1, 93), (-1, 0, 0, 0), (5, 14, 1, 107)):
    if rb < 0: st += lfin(3); continue
    st += [Op(x, last_write_slot(mfB[:72], "v%d" % fs(rb, t)[4 * h]) + 7, dead) for x in fsm(rb, t, h)]
if ROWS: A("s_waitcnt lgkmcnt(7)")
blk, _ = schedule(mfB, pinned, scal, st, [], "blockB", excl=True)
T += blk
if "fine" in opts: T += stamp(0)
burst(3)
scal = [(0, ["s_waitcnt lgkmcnt(4)"], True), (16, ["s_waitcnt lgkmcnt(0)"], True)] if not ROWS else [(10, ["s_waitcnt lgkmcnt(0)"], True)]
st = [Op(t, 0, 22) for h in range(2) for t in fsm(4, 15, h)] + lfin(4) + [Op(t) for h in range(2) for t in fsm(5, 15, h)]
blk, _ = schedule(phase_mf(4), leftovers(11), scal, st, [], "phase4", excl=True)
T += blk
burst(4)
m5 = phase_mf(5); m5 = [m5[12 * t + db] for db in range(12) for t in range(3)]
st = lfin(5)
PRE5 = 9
for db in range(PRE5):
    st += [Op("v_accvgpr_read_b32 %s, %s" % (V(wreg(15 + db // 4) + 4 * (db % 4) + i), Ac(Oreg(5, db)[1] + i)), 3 * db + 2 + 5) for i in range(4)]
blk, _ = schedule(m5, leftovers(14), scal, st, [], "phase5", excl=True)
T += blk
T += stamp(4)
burst(5)
if not ROWS:
    A("s_waitcnt lgkmcnt(4)")
    A(ep_st(16, 0)); A(ep_st(16, 1))
for t in ep_rd(17): A(t)
A("s_cmp_eq_u64 %s, 0" % sBad)
A("s_cbranch_scc1 L_good")
A("v_mov_b32 v2, %d" % FLAG); A("v_mov_b32 v3, 1")
A("ds_write_b32 v2, v3")
A("L_good:")
A("s_waitcnt lgkmcnt(0)")
if ROWS:
    for i in range(6): A(ep_st(15 + i % 3, i // 3))
else: A(ep_st(17, 0)); A(ep_st(17, 1))
if STAMP:
    T += stamp(5)
    A("s_waitcnt vmcnt(0)")
    T += stamp(6)
    A("s_waitcnt lgkmcnt(0)")
    if "probe" in opts:
        pi, pj = [int(x) for x in opts["probe"].split(",")]
        A("s_sub_u32 s84, s%d, s%d" % (60 + 2 * pj, 60 + 2 * pi))
        if "pneg" in opts: A("s_sub_u32 s84, %s, s84" % opts["pneg"])
        if STAMP == 6:
            A("s_min_u32 s84, s84, 40000"); A("s_memrealtime s[72:73]"); A("s_waitcnt lgkmcnt(0)")
        else:
            A("s_min_u32 s84, s84, 10000")
            A("s_lshl_b32 s84, s84, 2")
        if "pcls" in opts:
            A("s_bfe_u32 s85, s2, 0x%x" % int(opts["pbits"], 16)); A("s_cmp_eq_u32 s85, %s" % opts["pcls"]); A("s_cselect_b32 s84, s84, 0")
        A("L_spin:"); A("s_sleep 2"); A("s_memrealtime s[82:83]"); A("s_waitcnt lgkmcnt(0)")
        A("s_sub_u32 s85, s82, s72"); A("s_cmp_lt_u32 s85, s84"); A("s_cbranch_scc1 L_spin")
    A("s_lshl_b32 s3, s2, 2"); A("s_add_u32 s3, s3, %s" % sWave); A("s_lshl_b32 s3, s3, 6")
    A("v_mov_b32 v10, s3")
    for i in range(16): A("v_mov_b32 v%d, s%d" % (16 + i, 60 + i))
    for i in range(4): A("buffer_store_dwordx4 v[%d:%d], v10, %s, 0 offen offset:%d" % (16 + 4 * i, 19 + 4 * i, sW, 16 * i))
A("s_barrier")
A("v_mov_b32 v0, %d" % FLAG)
A("ds_read_b32 v0, v0")
A("s_waitcnt lgkmcnt(0)")
A("v_readfirstlane_b32 %s, v0" % sTmp)
A("s_cmp_eq_u32 %s, 0" % sTmp)
A("s_cbranch_scc0 L_redo")
A("L_end:")
A("s_endpgm")
A("L_hotend:")
A("L_redo:")
A("s_waitcnt vmcnt(0)")
A("s_barrier")
A("v_mbcnt_lo_u32_b32 v0, -1, 0"); A("v_mbcnt_hi_u32_b32 v0, -1, v0")
A("s_lshl_b32 %s, %s, 6" % (sTmp, sWave))
A("v_add_u32 v0, %s, v0" % sTmp)

if "cap" in opts:
    T2 = []
    for t in T:
        if t.startswith("buffer_store") and sO in t: T2.append("s_waitcnt vmcnt(%d)" % int(opts["cap"]))
        T2.append(t)
    T = T2
if "skiprb" in opts:
    sk = [sRB(int(x)) for x in opts["skiprb"].split(",")]
    T = [t for t in T if not (t.startswith("buffer_store") and sO in t and any((", %s offen" % x) in t for x in sk))]
if "nost" in opts: T = [t for t in T if not (t.startswith("buffer_store") and sO in t)]
if "nowr" in opts: T = [t for t in T if not t.startswith("ds_write_b64")]
def I(l): return [Ins(t) for t in l if not t.startswith("HOPS")]
seq = I(P + BP + B1 + B0 + ["s_cbranch_scc1 L_loop"] + B1 + B0 + ["s_cbranch_scc1 L_loop"] + T)
errs = check_hazards(seq, "main") + check_waits(seq, "main") + check_scc(seq, "main")
for e in errs[:30]: sys.stderr.write(e + "\n")
if errs and "nost" not in opts and "skiprb" not in opts:
    print("!!! %d hazard problems" % len(errs)); sys.exit(1)
S, lds2, e2_ = gen_safe.build_safe({"qd": "3", "nt": NT})
assert lds2 <= LDS_BYTES and e2_ == 0

hdr = open("standalone__gqa_softmax__near_ridge.s.ref").read().split("; Override")[0]
code = P + ["; ---- iteration 0 (also completes the first K/V prefetch)"] + BP + ["; ---- iterations 1..12: QK(j+1) | PV(j)", ".p2align 3", "L_loop:"] + B1 + B0 + ["s_cbranch_scc1 L_loop",
       "; ---- tiles 13..15: row blocks 0-2 to the end, then 3-5; normalise, stage through LDS, store"] + T + ["; ---- online-max path (taken only when a row sum left the checked range)"]
NH = 8
DOC = """;
; Attention forward, one workgroup per (batch, head): 4 waves x 96 query rows, 16x16x32 bf16 MFMA, 32-key tiles.
;   S^T = K Q^T and O^T = V^T P^T, so a lane owns one query row; K/V tiles stream HBM -> LDS (LDS-DMA, XOR-swizzled),
;   softmax VALU work is interleaved with the MFMAs of the neighbouring tile.
; Fast path: Q is scaled by log2(e)/sqrt(192) once, p = 2^s is taken against the reference point 0 (softmax is shift
;   invariant).  Every row sum is checked against [2^-20, 2^24] (NaN and inf fail the check); if any row of the head
;   fails, the whole workgroup recomputes the head on the path labelled S_* which subtracts the running row maximum.
; The last tiles are processed row block by row block so that output stores overlap the remaining matrix work.
; Generated by the author's own script (instruction scheduling and hazard checking included).""".split("\n")
def render(code, nh):
    out = [hdr.rstrip(), "; @launch grid=(256,1,1) block=(256,1,1) lds=%d" % LDS_BYTES] + DOC + [
           '.amdgcn_target "amdgcn-amd-amdhsa--gfx950"', ".text", ".globl %s" % KN, ".p2align 8", ".type %s,@function" % KN, "%s:" % KN, "L_start:"]
    for t in code + S:
        if t.startswith("HOPS"):
            if not HOP: continue
            r_ = int(t[4:])
            out += ["; visit the first line of later code pages (no lane active, no memory instruction on that path)", "    s_mov_b64 exec, 0"]
            for w in range(4):
                k = 4 * r_ + w
                out += ["    s_cmp_eq_u32 %s, %d" % (sWave, w), "    s_cbranch_scc1 %s" % ("L_hop%d" % k if k < nh else "L_hopback%d" % r_)]
            out += ["L_hopback%d:" % r_, "    s_mov_b64 exec, -1"]
            continue
        t = t.replace("CODELEN", "L_hotend-L_main" if HOP else "L_hotend-L_pc").replace("CODEOFF", "L_main-L_pc+4" if HOP else "0")
        out.append(t if t.endswith(":") or t.startswith((".", ";")) else "    " + t)
    out += ['.section .rodata,"a"', ".p2align 6", ".amdhsa_kernel %s" % KN, "  .amdhsa_next_free_vgpr 512", "  .amdhsa_next_free_sgpr 96",
            "  .amdhsa_accum_offset 256", "  .amdhsa_group_segment_fixed_size 0", "  .amdhsa_kernarg_size 48", "  .amdhsa_user_sgpr_count 2",
            "  .amdhsa_user_sgpr_kernarg_segment_ptr 1", "  .amdhsa_system_sgpr_workgroup_id_x 1", ".end_amdhsa_kernel", ""]
    return "\n".join(out)
import subprocess, re as _re
def addresses(code, nh):
    marked = []
    for i, t in enumerate(code): marked += ["M_%d:" % i, t]
    open("_g7.s", "w").write(render(marked, nh))
    subprocess.run(["clang", "-x", "assembler", "-target", "amdgcn-amd-amdhsa", "-mcpu=gfx950", "-c", "_g7.s", "-o", "_g7.o"], check=True)
    sy = subprocess.run(["llvm-objdump", "-t", "_g7.o"], capture_output=True, text=True).stdout
    ad = {m.group(2): int(m.group(1), 16) for m in _re.finditer(r"^([0-9a-f]+) .* (\S+)$", sy, _re.M)}
    return [ad["M_%d" % i] - ad["L_main"] for i in range(len(code))]
nh = 0
if HOP:
    STEP = int(opts.get("hstep", 4096))
    while nh < NH:
        ad = addresses(code, nh)
        lo = STEP * (nh + 1 + int(opts.get("hskip", 3)))
        if lo >= ad[code.index("L_end:")]: break
        cand = [i for i in range(1, len(code)) if lo <= ad[i] < lo + 56]
        good = [i for i in cand if code[i - 1].startswith("v_mfma") and not code[i].startswith("s_")]
        i = (good or cand)[0]
        code[i:i] = ["L_hop%d:" % nh, "s_cbranch_execz L_hopback%d" % (nh // 4), "s_nop 0"][:2 + (1 if "L_loop:" in code[:i] and "s_cbranch_scc1 L_loop" in code[i:] and False else 0)]
        nh += 1
    sys.stderr.write("hops: %d\n" % nh)
open(sys.argv[1], "w").write(render(code, nh))
```

```python
import sys, math, struct
from asmlib import *
from sched import *
import gen_safe

opts = dict(a.split("=") for a in sys.argv[2:])
STAMP = int(opts.get("stamp", 0))
NT = opts.get("nt", "nt").replace("+", " ")
SPOL = opts.get("spol", "sc1").replace("+", " ")
QD = int(opts.get("qd", 3))
DEF = int(opts.get("defer", 2))
STG2 = [tuple(int(y) for y in x.split(":")) for x in opts.get("stg2", "").split(",") if x]
XP = int(opts.get("xp", 2))
KN = "standalone__gqa_softmax__near_ridge_kernel"
def f2u(x): return struct.unpack("<I", struct.pack("<f", x))[0]
CSCALE = f2u(math.log2(math.e) / math.sqrt(192.0))

VRING = 0; VX = 36864; KRING = 49152; KX = 86016; QLDS = 98304; SLOT = 12288
QKS = 1088; QRB = 6 * QKS; QWAVE = 2 * QRB + 1024
FLAG = QLDS + 4 * QWAVE
LDS_BYTES = FLAG + 64
def V(i, n=1): return "v%d" % i if n == 1 else "v[%d:%d]" % (i, i + n - 1)
def Ac(i, n=1): return "a%d" % i if n == 1 else "a[%d:%d]" % (i, i + n - 1)
vKA = [0, 1]; vVA = [2, 3, 4, 5]; vQA = 6; vDMA = 7
vL = [8 + i for i in range(6)]; vQG = 14; vQW = 15
FB = [Ac(96 + 4 * i, 4) for i in range(4)]
FQ = {4: [Ac(112, 4), Ac(116, 4)], 5: [Ac(120, 4), Ac(124, 4)]}
EARLY = [0, 1, 2, 3]; LATE = [4, 5]
G = {}; X = {}
r = 16
for rb in LATE:
    G[rb] = [r, r + 4]; X[rb] = [r + 8, r + 12]; r += 16
for rb in EARLY:
    G[rb] = [r, r + 4]; X[rb] = [r + 8, r + 8]; r += 12
assert r == 96
def Oreg(rb, db):
    b = rb * 12 + db
    return ("v", 96 + 4 * b) if b < 40 else ("a", 128 + 4 * (b - 40))
def O4(rb, db):
    f, i = Oreg(rb, db); return "%s[%d:%d]" % (f, i, i + 3)
def Qf(rb, ks): return Ac(rb * 24 + ks * 4, 4) if rb < 4 else FQ[rb][ks & 1]
sQ = "s[20:23]"; sK = "s[24:27]"; sV = "s[28:31]"; sO = "s[32:35]"; sW = "s[36:39]"
sC2 = "s[40:41]"; sIT = "s42"; sKoff = "s43"; sVoff = "s44"; sKm = "s45"; sVm = "s46"; sWave = "s47"
sTmp = "s48"; sRow = "s49"; sKend = "s50"; sVend = "s51"; sKbeg = "s52"; sVbeg = "s53"; sQL = "s16"; sCls = "s17"
sVX = "s[84:87]"; sXoff = "s74"; sXm = "s75"; sKr = "s82"; sVr = "s83"; sKd = "s92"; sVd = "s93"
sMask = "s54"; sLo = "s76"; sHi = "s77"; sBad = "s[78:79]"; sB2 = "s[80:81]"
def sRB(rb): return "0" if rb == 0 else "s%d" % (54 + rb)
MF = "v_mfma_f32_16x16x32_bf16"

def k_read(dst, tile_par, ks, hf):
    return "ds_read_b128 %s, %s offset:%d" % (dst, V(vKA[ks & 1]), tile_par * SLOT + (ks >> 1) * 4096 + hf * 2048)
def v_read(a0, tile_par, db):
    return ["ds_read_b64_tr_b16 %s, %s offset:%d" % (Ac(a0 + 2 * i, 2), V(vVA[db & 3]), tile_par * SLOT + (db >> 2) * 4096 + i * 2048) for i in range(2)]
def q_read(dst, area, ks):
    return "ds_read_b128 %s, %s offset:%d" % (dst, V(vQA), area * QRB + ks * QKS)
def qk_mfmas(par, last_up=False):
    out = []
    for g in range(6):
        p, hf = g >> 1, g & 1
        for rb in (range(6) if hf == 0 or (last_up and g == 5) else range(5, -1, -1)):
            for k in range(2):
                ks = 2 * p + k
                d = V((G[rb][par] if hf == 0 else X[rb][par]), 4)
                out.append("%s %s, %s, %s, %s" % (MF, d, FB[(2 * g + k) % 4], Qf(rb, ks), "0" if ks == 0 else d))
    return out
def sregs(rb, par): return [G[rb][par] + i for i in range(4)] + [X[rb][par] + i for i in range(4)]
def sm(rb, par, half):
    ops = []; s = sregs(rb, par)
    for i in (4 * half, 4 * half + 2):
        ops.append("v_exp_f32 %s, %s" % (V(s[i]), V(s[i])))
        ops.append("v_exp_f32 %s, %s" % (V(s[i + 1]), V(s[i + 1])))
        ops.append("v_add_f32 %s, %s, %s" % (V(vL[rb]), V(vL[rb]), V(s[i])))
        ops.append("v_add_f32 %s, %s, %s" % (V(vL[rb]), V(vL[rb]), V(s[i + 1])))
        ops.append("v_cvt_pk_bf16_f32 %s, %s, %s" % (V(G[rb][par] + i // 2), V(s[i]), V(s[i + 1])))
    return ops
def last_write_slot(mf, reg): return max(g for g, t in enumerate(mf) if reg in Ins(t).wr)
def paced(ops, g0, g1, floor=0, dead=10 ** 9):
    os_ = [Op(t) for t in ops]; tot = sum(o.cost for o in os_); acc = 0
    for o in os_:
        o.ming = max(floor, int(g0 + (g1 - g0) * acc / tot)); o.dead = dead; acc += o.cost
    return os_
def pin_qk(pinned, qk, tile_par, nq):
    def pin(g, t): pinned.setdefault(g, []).append(t)
    for g in range(1, 6):
        for k in range(2): pin(12 * (g - 1) + 2 * k, k_read(FB[(2 * g + k) % 4], tile_par, 2 * (g >> 1) + k, g & 1))
    lastq = {}
    for g, t in enumerate(qk):
        for rb in LATE:
            for k in range(2):
                if FQ[rb][k] in t: lastq[(g // 24, rb, k)] = g
    for p in range(nq):
        g = 0
        for (lg, rb, k) in sorted((lastq[(p, rb, k)], rb, k) for rb in LATE for k in range(2)):
            g = max(g, lg + 1)
            while g in pinned: g += 1
            pin(g, q_read(FQ[rb][k], rb - 4, (2 * p + 2 + k) % 6)); g += 2

def body(par, ds_in, peel=False):
    np_ = par ^ 1
    qk = qk_mfmas(np_)
    mf = qk + ["%s %s, %s, %s, %s" % (MF, O4(rb, db), FB[db % 4], V(G[rb][par], 4), O4(rb, db)) for db in range(12) for rb in range(6)]
    pinned = {}
    def pin(g, t): pinned.setdefault(g, []).append(t)
    for db in range(12):
        for t in v_read(96 + 4 * (db % 4), 0, db): pin({0: 60, 1: 63, 2: 72, 3: 75}.get(db, 72 + 6 * (db - 3)), t)
    pin(127, k_read(FB[0], 0, 0, 0)); pin(133, k_read(FB[1], 0, 1, 0))
    pin_qk(pinned, qk, 0, 3)
    scal = [(57, ["s_waitcnt vmcnt(%d) lgkmcnt(0)" % (7 - par)], True), (58, ["s_barrier"], True)]
    if par == 1:
        scal.append((61, ["s_mov_b32 m0, %s" % sXm], True))
        pin(62, "buffer_load_dwordx4 %s, %s, %s offen %s lds" % (V(vDMA), sVX, sXoff, NT))
        scal.append((82, ["s_cmp_eq_u32 %s, 3" % sIT, "s_cselect_b32 %s, s94, s95" % sTmp, "s_cselect_b32 s84, s24, s84", "s_cselect_b32 s85, s25, s85",
                          "s_cselect_b32 s3, %d, 0" % (KX - VX - SLOT)], False))
        scal.append((106, ["s_add_u32 %s, %s, %s" % (sXoff, sXoff, sTmp), "s_add_u32 %s, %s, 4096" % (sXm, sXm), "s_add_u32 %s, %s, s3" % (sXm, sXm)], False))
        scal.append((14, ["s_cmp_eq_u32 %s, 6" % sIT, "s_cselect_b32 s24, s28, s24", "s_cselect_b32 s25, s29, s25",
                          "s_cselect_b32 %s, %d, %s" % (sVoff, 14 * SLOT, sVoff)], False))
    adv = []
    for cnt, d in ((sVr, sVd), (sKr, sKd)):
        adv += ["s_add_u32 %s, %s, 1" % (cnt, cnt), "s_cmp_eq_u32 %s, 3" % cnt, "s_cselect_b32 %s, 0, %s" % (cnt, cnt),
                "s_cselect_b32 %s, s90, s91" % d]
    if peel: adv = ["s_mov_b32 %s, 0" % sVr, "s_mov_b32 %s, s90" % sVd, "s_mov_b32 %s, 2" % sKr, "s_mov_b32 %s, s91" % sKd]
    scal.append((1, adv, False))
    if peel:
        xg = [int(x) for x in opts.get("xg", "5,21,33,45,67,77").split(",")]
        xl = [(k, x, cb) for k, x in (("V", 1), ("K", 3))[XP:] for cb in range(3)]
        xg = xg[3 * XP:]
        for g, (k, x, cb) in zip(xg, xl):
            srd_, beg = (sK, sKbeg) if k == "K" else (sV, sVbeg)
            assert g not in pinned and (g - 2) not in xg and (g - 1) not in xg, g
            if cb == 0: scal.append((g - 2, ["s_mov_b32 %s, %d" % (sTmp, x * SLOT)], True))
            scal.append((g - 1, ["s_add_u32 m0, %s, %d" % (beg, (x % 3) * SLOT + cb * (4096 - 128))], True))
            pin(g, "buffer_load_dwordx4 %s, %s, %s offen offset:%d %s lds" % (V(vDMA), srd_, sTmp, cb * 128, NT))
        dgp = [int(x) for x in opts.get("dgp", "71,81,93,105,117,130").split(",")]
        scal[0] = (57, ["s_waitcnt vmcnt(%d) lgkmcnt(0)" % (3 + 3 * XP + sum(1 for g in xg if g < 57))], True)
        scal.append((121, ["s_waitcnt vmcnt(%d)" % (3 * XP + sum(1 for g in xg + dgp if g < 121))], True)); scal.append((122, ["s_barrier"], True))
    if par == 0 and not peel and int(opts.get("keep", 0)):
        scal.append((2, ["s_cmp_eq_u32 %s, 6" % sIT, "s_cselect_b32 %s, 0, %s" % (sVoff, sVoff)], False))
    for i in range(int(opts.get("slow", 0))):
        g = [30, 101, 54, 138, 10, 83][i]
        if peel: scal.append((g, ["s_sleep 1"], True))
        else: scal.append((g, ["s_cmp_lt_u32 %s, %d" % (sIT, int(opts.get("slowit", 3))), "s_cbranch_scc0 L_sl%d_%d" % (par, i), "s_sleep 1", "L_sl%d_%d:" % (par, i)], True))
    OW = int(opts.get("ow", 0))
    if par == 0 and OW:
        scal.append((2, ["s_cmp_eq_u32 %s, 6" % sIT, "s_cselect_b32 s28, s32, s28", "s_cselect_b32 s29, s33, s29", "s_cselect_b32 s30, s34, s30",
                         "s_cselect_b32 %s, 0, %s" % (sVoff, sVoff), "s_cselect_b32 s86, %d, 0" % (61440 if OW == 2 else 0)], False))
        scal.append((107, ["s_add_u32 %s, %s, s86" % (sVoff, sVoff)], False)); scal.append((119, ["s_add_u32 %s, %s, s86" % (sVoff, sVoff)], False))
    dg = [int(x) for x in opts.get("dg", "71,81,93,105,117,130").split(",")] if not peel else dgp
    for i in range(6):
        srd_, so, sm_ = (sV, sVoff, sVm) if i < 3 else (sK, sKoff, sKm)
        assert dg[i] not in pinned
        scal.append((dg[i] - 1, ["s_add_u32 m0, %s, %d" % (sm_, (i % 3) * (4096 - 128))], True))
        pin(dg[i], "buffer_load_dwordx4 %s, %s, %s offen offset:%d %s lds" % (V(vDMA), srd_, so, (i % 3) * 128, NT))
    for g, so, m, end, beg in () if peel else ((dg[2] + 1 if dg[3] - dg[2] > 8 else dg[5] + 8, sVoff, sVm, sVend, sVbeg), (dg[5] + 1, sKoff, sKm, sKend, sKbeg)):
        scal.append((g, ["s_add_u32 %s, %s, %d" % (so, so, SLOT), "s_add_u32 %s, %s, %d" % (m, m, SLOT),
                         "s_cmp_eq_u32 %s, %s" % (m, end), "s_cselect_b32 %s, %s, %s" % (m, beg, m)], False))
    if par == 0 and not peel: scal.append((139, ["s_add_u32 %s, %s, 1" % (sIT, sIT), "s_cmp_lt_u32 %s, 7" % sIT], False))
    st = paced(sum([sm(rb, par, h) for rb in LATE for h in range(2)], []), 0, 50, dead=70)
    st += [Op("v_add_u32 %s, %s, %s" % (V(a), sVd, V(a)), 44, 56) for a in vVA]
    st += [Op("v_add_u32 %s, %s, %s" % (V(a), sKd, V(a)), 52, 125) for a in vKA]
    E0, E1 = 55, 140
    for n, (rb, h) in enumerate([(0, 0), (1, 0), (2, 0), (3, 0), (3, 1), (2, 1), (1, 1), (0, 1)]):
        ready = last_write_slot(qk, "v%d" % sregs(rb, np_)[4 * h]) + 5
        st += paced(sm(rb, np_, h), E0 + (E1 - E0) * n / 8, E0 + (E1 - E0) * (n + 1) / 8, floor=ready)
    def capf(cap, sc, pin_):
        for g in range(144):
            if "s_barrier" in sc.get(g, []): cap[g] = 0
    return schedule(mf, pinned, scal, st, ds_in, "body%d" % par, next_first=qk_mfmas(par)[0], excl=True, capf=capf)

def stamp(i):
    if STAMP in (1, 3): return ["s_memrealtime s[%d:%d]" % (60 + 2 * i, 61 + 2 * i)]
    if STAMP == 7:
        o = ["s_memrealtime s[%d:%d]" % (60 + 2 * i, 61 + 2 * i)] if i in (0, 2, 3, 6, 7) else []
        c = {2: 1, 7: 4, 3: 5}.get(i)
        return o + (["s_memtime s[%d:%d]" % (60 + 2 * c, 61 + 2 * c)] if c else [])
    if STAMP == 6: return ["s_memtime s[%d:%d]" % (60 + 2 * i, 61 + 2 * i)]
    return []

P = []
A = P.append
A("s_cmp_ge_u32 s2, 256")
A("s_cbranch_scc1 L_end")
A("s_load_dwordx4 s[4:7], s[0:1], 0")
A("s_load_dwordx4 s[8:11], s[0:1], 16")
if STAMP: A("s_load_dwordx2 s[12:13], s[0:1], 40")
P += stamp(0)
A("s_getpc_b64 s[18:19]")
A("v_lshlrev_b32 v240, 7, v0")
A("L_pc:")
A("v_min_u32 v240, CODELEN, v240")
A("v_add_u32 v240, CODEOFF, v240")
A("global_load_dword v241, v240, s[18:19]")
vLN = 242; t2 = 243; t3 = 244; t4 = 245; t5 = 246; t6 = 247
A("v_lshrrev_b32 v%d, 6, v0" % t2)
A("v_and_b32 v%d, 63, v0" % vLN)
A("s_mul_i32 s14, s2, 147456")
A("v_readfirstlane_b32 %s, v%d" % (sWave, t2))
A("s_mul_i32 s15, s2, 196608")
if STG2: A("s_bfe_u32 %s, s2, 0x30003" % sCls)
A("v_lshrrev_b32 v%d, 3, v%d" % (t5, vLN))
A("v_mul_u32_u24 v%d, 384, v%d" % (t6, t5))
A("v_lshrrev_b32 v%d, 4, v%d" % (t3, vLN))
A("v_lshlrev_b32 v%d, 1, v%d" % (t4, t3))
A("v_xor_b32 v%d, v%d, v%d" % (t4, t4, vLN))
A("v_and_b32 v%d, 7, v%d" % (t4, t4))
A("v_lshl_add_u32 v%d, v%d, 4, v%d" % (vDMA, t4, t6))
A("s_mul_i32 %s, %s, 3072" % (sTmp, sWave))
A("v_add_u32 v%d, %s, v%d" % (vDMA, sTmp, vDMA))
A("v_and_b32 v%d, 7, v%d" % (t4, vLN))
A("v_lshl_add_u32 v%d, v%d, 4, v%d" % (vQG, t4, t6))
A("s_mul_i32 %s, %s, 36864" % (sRow, sWave))
A("v_add_u32 v%d, %s, v%d" % (vQG, sRow, vQG))
A("s_lshl_b32 %s, %s, 10" % (sVbeg, sWave))
A("s_add_u32 %s, %s, %d" % (sKbeg, sVbeg, KRING))
for rb in range(1, 6): A("s_mov_b32 %s, %d" % (sRB(rb), rb * 6144))
if STG2:
    A("s_mov_b32 s3, 0")
    for i, (lo, hi, k, cnt) in enumerate(STG2):
        A("s_sub_u32 %s, %s, %d" % (sTmp, sCls, lo)); A("s_cmp_lt_u32 %s, %d" % (sTmp, hi - lo)); A("s_cselect_b32 s3, %d, s3" % (1 << i))
A("s_waitcnt lgkmcnt(0)")
def srd(base, src, off, size):
    A("s_add_u32 s%d, s%d, %s" % (base, src, off)); A("s_addc_u32 s%d, s%d, 0" % (base + 1, src + 1))
    A("s_mov_b32 s%d, %d" % (base + 2, size)); A("s_mov_b32 s%d, 0x20000" % (base + 3))
vm = []
def raw(rb, i): return 96 + rb * 24 + i * 4
def issue(k, x, i):
    if k == "Q":
        A("buffer_load_dwordx4 %s, v%d, %s, %s offen offset:%d %s" % (V(raw(x, i), 4), vQG, sQ, sRB(x), (i & 1) * 3072 + (i >> 1) * 128, NT))
        vm.append("Q%d.%d" % (x, i))
    else:
        srd_, beg = (sK, sKbeg) if k == "K" else (sV, sVbeg)
        A("s_add_u32 m0, %s, %d" % (beg, (3 if (k, x) == ("K", 0) else x % 3) * SLOT + i * (4096 - 128)))
        A("s_mov_b32 %s, %d" % (sTmp, x * SLOT))
        A("buffer_load_dwordx4 %s, %s, %s offen offset:%d %s lds" % (V(vDMA), srd_, sTmp, i * 128, NT))
        vm.append("%s%d" % (k, x))
    n = len(vm) - 1
    for ci, (lo, hi, kk, cnt) in enumerate(STG2):
        if kk <= n < cnt:
            A("s_bitcmp1_b32 s3, %d" % ci); A("s_cbranch_scc0 L_sg%d_%d" % (n, ci)); A("s_waitcnt vmcnt(%d)" % kk); A("L_sg%d_%d:" % (n, ci))
def vwait(name):
    last = max(i for i, x in enumerate(vm) if x == name)
    A("s_waitcnt vmcnt(%d)" % (len(vm) - 1 - last))
TLB = int(opts.get("tlb", 0))
srd(24, 6, "s15", 196608)
issue("K", 0, 0)
if TLB & 1:
    srd(32, 10, "s14", 147456); srd(28, 8, "s15", 196608)
    A("v_lshlrev_b32 v240, 9, v%d" % vLN)
    A("buffer_load_dword v250, v240, %s, %s offen nt" % (sO, sRow)); vm.append("t")
    A("buffer_load_dword v251, v%d, %s, 0 offen nt" % (vDMA, sV)); vm.append("t")
for cb in range(1, 3): issue("K", 0, cb)
K1E = int(opts.get("k1e", 0))
if K1E:
    for cb in range(3): issue("K", 1, cb)
srd(20, 4, "s14", 147456)
for rb in range(QD):
    for i in range(6): issue("Q", rb, i)
HOP = int(opts.get("hop", 1))
if HOP: A("s_branch L_main"); A(".p2align 12"); A("L_main:")
srd(28, 8, "s15", 15 * SLOT); srd(32, 10, "s14", 147456); srd(84, 8, "s15", 196608)
if STAMP:
    A("s_mov_b32 s36, s12"); A("s_mov_b32 s37, s13"); A("s_mov_b32 s38, 0x100000"); A("s_mov_b32 s39, 0x20000")
A("s_add_u32 %s, %s, %d" % (sKend, sKbeg, 3 * SLOT))
A("s_add_u32 %s, %s, %d" % (sVend, sVbeg, 3 * SLOT))
A("s_mul_i32 %s, %s, %d" % (sQL, sWave, QWAVE))
A("s_add_u32 %s, %s, %d" % (sQL, sQL, QLDS))
A("v_xor_b32 v%d, v%d, v%d" % (t2, t5, t4))
A("v_lshlrev_b32 v%d, 4, v%d" % (t2, t2))
A("v_lshl_add_u32 v%d, v%d, 7, v%d" % (t2, t5, t2))
A("s_mul_i32 %s, %s, 6144" % (sTmp, sWave))
A("s_cmp_lt_u32 %s, 2" % sWave)
A("s_cselect_b32 s3, 0, 4")
A("s_mul_i32 s3, s3, %d" % SLOT)
A("s_add_u32 %s, %s, s3" % (sTmp, sTmp))
A("v_add_u32 v249, %s, v%d" % (sTmp, t2))
A("v_and_b32 v%d, 3, v%d" % (t4, vLN))
A("v_xor_b32 v%d, v%d, v%d" % (t2, t5, t4))
A("v_lshlrev_b32 v%d, 4, v%d" % (t2, t2))
A("v_lshl_add_u32 v%d, v%d, 8, v%d" % (t2, t4, t2))
A("v_bfe_u32 v%d, v%d, 2, 1" % (t4, vLN))
A("v_mul_u32_u24 v%d, %d, v%d" % (t4, QKS, t4))
A("v_add3_u32 v%d, v%d, v%d, %s" % (vQW, t2, t4, sQL))
A("v_and_b32 v%d, 15, v%d" % (t2, vLN))
A("v_xor_b32 v%d, v%d, v%d" % (t4, t2, t3))
A("v_lshlrev_b32 v%d, 4, v%d" % (t4, t4))
A("v_lshl_add_u32 v%d, v%d, 8, v%d" % (t4, t3, t4))
A("v_add_u32 v%d, %s, v%d" % (vQA, sQL, t4))
A("v_lshlrev_b32 v%d, 7, v%d" % (t6, t2))
A("v_lshrrev_b32 v%d, 5, v%d" % (t4, vLN))
A("v_xor_b32 v%d, v%d, v%d" % (t4, t4, vLN))
A("v_and_b32 v%d, 7, v%d" % (t4, t4))
A("v_lshl_add_u32 v%d, v%d, 4, v%d" % (t6, t4, t6))
A("v_xor_b32 v%d, v%d, v%d" % (t4, t3, t5))
A("v_and_b32 v%d, 1, v%d" % (t4, t4))
A("v_lshl_add_u32 v%d, v%d, 3, v%d" % (t6, t4, t6))
A("v_add_u32 v248, %s, v%d" % (sTmp, t6))
A("ds_write_b64 v%d, v[248:249] offset:%d" % (vQA, 2 * QRB))
A("v_and_b32 v%d, 6, v%d" % (t4, vLN))
A("v_xor_b32 v%d, v%d, v%d" % (t4, t4, t3))
A("v_lshlrev_b32 v%d, 4, v%d" % (t4, t4))
A("v_lshl_add_u32 v%d, v%d, 7, v%d" % (vKA[0], t2, t4))
A("v_add_u32 v%d, %d, v%d" % (vKA[0], KRING, vKA[0]))
A("v_xor_b32 v%d, 64, v%d" % (vKA[1], vKA[0]))
A("v_lshrrev_b32 v%d, 2, v%d" % (t4, vLN))
A("v_lshlrev_b32 v%d, 7, v%d" % (t4, t4))
A("v_and_b32 v%d, 3, v%d" % (t2, vLN))
A("v_lshl_add_u32 v%d, v%d, 3, v%d" % (t4, t2, t4))
A("v_bfe_u32 v%d, v%d, 3, 2" % (t2, vLN))
A("v_lshl_add_u32 v%d, v%d, 5, v%d" % (t4, t2, t4))
A("v_add_u32 v%d, %d, v%d" % (vVA[0], VRING + 2 * SLOT, t4))
for x in range(1, 4): A("v_xor_b32 v%d, %d, v%d" % (vVA[x], 32 * x, vVA[0]))
A("s_mov_b32 s40, 0x%x" % CSCALE); A("s_mov_b32 s41, 0x%x" % CSCALE)
A("s_mov_b32 %s, 0xffff0000" % sMask)
A("s_mov_b32 %s, 0" % sIT)
A("s_mov_b32 %s, %d" % (sKoff, 4 * SLOT))
A("s_mov_b32 %s, %d" % (sVoff, 2 * SLOT))
A("s_add_u32 %s, %s, %d" % (sKm, sKbeg, SLOT))
A("s_mov_b32 %s, %d" % (sXoff, 13 * SLOT)); A("s_add_u32 %s, %s, %d" % (sXm, sVbeg, VX))
A("s_mov_b32 s90, %d" % (-2 * SLOT)); A("s_mov_b32 s91, %d" % SLOT); A("s_mov_b32 s94, %d" % (2 * SLOT - 256)); A("s_movk_i32 s95, 128")
A("s_add_u32 %s, %s, %d" % (sVm, sVbeg, 2 * SLOT))
A("s_mov_b32 %s, 0x%x" % (sLo, f2u(2.0 ** float(opts.get("llo", -20)))))
A("s_mov_b32 %s, 0x%x" % (sHi, f2u(2.0 ** float(opts.get("lhi", 24)))))
A("s_mov_b64 %s, 0" % sBad)
for i in vL: A("v_mov_b32 v%d, 0" % i)
ZR = FQ[5][1]
for i in range(4): A("v_accvgpr_write_b32 a%d, 0" % (124 + i))
A("v_mov_b32 v%d, %d" % (t2, FLAG))
A("ds_write_b32 v%d, v%d" % (t2, vL[0]))
def zero16(f, i): A("v_mfma_f32_32x32x16_bf16 %s[%d:%d], %s, %s, 0" % (f, i, i + 15, ZR, ZR))
for i in range(128, 256, 16): zero16("a", i)
A("HOPS0")
vwait("K1" if K1E else "K0")
A("s_waitcnt lgkmcnt(0)")
A("s_barrier")
K0F = [V(G[rb][1], 4) for rb in range(6)] + [V(X[rb][1], 4) for rb in LATE] + FB
for n in range(12): A(k_read(K0F[n], 3, n >> 1, n & 1))
def pro_sm(rb):
    ops = sm(rb, 0, 0) + sm(rb, 0, 1)
    for t in [t for t in ops if t.startswith("v_exp")] + ["s_nop 0"] + [t for t in ops if not t.startswith("v_exp")]: A(t)
pend = [("Q", rb, i) for rb in range(QD, 6) for i in range(6)]
pend += [(k, x, cb) for k, x in (("K", 1), ("V", 0), ("K", 2), ("V", 1), ("K", 3))[K1E:3 + XP] for cb in range(3)]
deferred = pend[len(pend) - 3 * DEF:]; pend = pend[:len(pend) - 3 * DEF]
def qdst(rb, ks): return Ac(rb * 24 + ks * 4, 4) if rb < 4 else V(raw(rb, ks), 4)
def st_read(s_):
    rb, cb = divmod(s_, 3)
    for ks in (2 * cb, 2 * cb + 1): A(q_read(qdst(rb, ks), rb & 1, ks))
def st_mfma(s_):
    rb, cb = divmod(s_, 3)
    for hf in range(2):
        for ks in (2 * cb, 2 * cb + 1):
            d = V((G[rb][0] if hf == 0 else X[rb][0]), 4)
            A("%s %s, %s, %s, %s" % (MF, d, K0F[2 * ks + hf], qdst(rb, ks), "0" if ks == 0 else d))
nleft = 36
for s_ in range(18):
    rb, cb = divmod(s_, 3)
    for rh in range(2):
        i = 2 * cb + rh
        vwait("Q%d.%d" % (rb, i))
        if s_ == 17 and rh == 1: P += stamp(1)
        r0 = raw(rb, i); tb = 240 + 8 * rh
        for k in range(4):
            A("v_lshlrev_b32 v%d, 16, v%d" % (tb + 2 * k, r0 + k)); A("v_and_b32 v%d, %s, v%d" % (tb + 2 * k + 1, sMask, r0 + k))
        for k in range(4): A("v_pk_mul_f32 %s, %s, %s" % (V(tb + 2 * k, 2), V(tb + 2 * k, 2), sC2))
        for k in range(4): A("v_cvt_pk_bf16_f32 v%d, v%d, v%d" % (r0 + k, tb + 2 * k, tb + 2 * k + 1))
        if rh == 0 and s_ >= 1: st_read(s_ - 1)
        A("ds_write_b128 v%d, %s offset:%d" % (vQW, V(r0, 4), (rb & 1) * QRB + cb * 2 * QKS + rh * 128))
        if s_ == 17 and rh == 1: st_read(17)
        if pend and (pend[0][0] == "Q" or len(pend) >= nleft - int(opts.get("kvl", 3))):
            for _ in range(-(-len(pend) // nleft)): issue(*pend.pop(0))
        nleft -= 1
        if nleft == 0:
            for x in deferred[:3]: issue(*x)
    if s_ >= 1:
        A("s_waitcnt lgkmcnt(%d)" % (2 if s_ < 17 else 4)); st_mfma(s_ - 1)
        if "dum" in opts and s_ < 17:
            d0, d1 = [int(x) for x in opts["dum"].split(",")]
            rbp, cbp = divmod(s_ - 1, 3)
            for i in range(d0 + (d1 - d0) * s_ // 16):
                A("%s a[112:115], %s, %s, a[112:115]" % (MF, K0F[i % 12], qdst(rbp, 2 * cbp + (i & 1))))
    if cb == 1 and rb >= 1 and rb - 1 in EARLY: pro_sm(rb - 1)
    if s_ == int(opts.get("hs", 2)) and (int(opts.get("hskip", 3)) < 2 or len(opts.get("pages", "").split(",")) > 4): A("HOPS1")
    for i in {7: (96, 112, 128), 13: (144, 160, 176), 16: (192, 208)}.get(s_, ()): zero16("v", i)
A("s_waitcnt lgkmcnt(0)")
st_mfma(17)
for i in (240, 224): zero16("v", i)
for x in deferred[3:]: issue(*x)
if not K1E:
    vwait("K1")
    A("s_barrier")
for a_ in vKA: A("v_add_u32 %s, %d, %s" % (V(a_), SLOT, V(a_)))
A(k_read(FB[0], 0, 0, 0)); A(k_read(FB[1], 0, 1, 0))
for rb in LATE:
    for k in range(2): A(q_read(FQ[rb][k], rb - 4, k))
if TLB & 2: A("buffer_load_dword v%d, v%d, %s, 0 offen nt" % (vQW, vQG, sO))
assert vm[-6 - 3 * XP:] == sum([[x] * 3 for x in ("V0", "K2", "V1", "K3")[:2 + XP]], []), vm
A("s_waitcnt lgkmcnt(0)")
P += stamp(2)

B0, q0 = body(0, [])
B1, q1 = body(1, q0)
B0, q0b = body(0, q1)
assert q0 == q0b
BP, qp_ = body(0, [], peel=True)
assert qp_ == q0
BP += ["s_add_u32 %s, %s, %d" % (sKoff, sKoff, SLOT), "s_add_u32 %s, %s, %d" % (sKm, sKm, SLOT),
       "s_add_u32 %s, %s, %d" % (sVoff, sVoff, SLOT), "s_mov_b32 %s, %s" % (sVm, sVbeg), "s_mov_b32 %s, 1" % sIT]
if STAMP == 7: BP += stamp(7)
if STAMP == 3:
    pre3 = ["s_mov_b32 m0, s13", "s_add_u32 s13, s13, 1", "v_writelane_b32 v15, s88, m0", "s_memrealtime s[88:89]"]
    BP = ["s_mov_b32 s13, 0", "s_mov_b32 s88, 0"] + pre3 + BP; B0 = pre3 + B0; B1 = pre3 + B1

T = []
A = T.append
T += stamp(3)
if STAMP == 3:
    T += pre3 + ["s_waitcnt lgkmcnt(0)"] + pre3[:3]
    A("v_mbcnt_lo_u32_b32 v16, -1, 0"); A("v_mbcnt_hi_u32_b32 v16, -1, v16"); A("v_lshlrev_b32 v16, 2, v16")
    A("s_lshl_b32 s3, s2, 2"); A("s_add_u32 s3, s3, %s" % sWave); A("s_lshl_b32 s3, s3, 8"); A("s_add_u32 s3, s3, 65536")
    A("buffer_store_dword v15, v16, %s, s3 offen" % sW)
eW = [16, 17, 18, 19]; eR = vQW; eS = vQG
for a_ in vKA: A("v_subrev_u32 %s, %d, %s" % (V(a_), 2 * SLOT, V(a_)))
def R4(x): return "%s[%d:%d]" % (x[0], x[1], x[1] + 3)
def R2(x, h): return "%s[%d:%d]" % (x[0], x[1] + 2 * h, x[1] + 2 * h + 1)
def vrd(dst, tile, db):
    return ["ds_read_b64_tr_b16 %s, %s offset:%d" % (R2(dst, i), V(vVA[db & 3]), {13: 3, 14: 1, 15: 4}[tile] * SLOT + (db >> 2) * 4096 + i * 2048) for i in range(2)]
X15 = {0: X[4][0], 1: X[5][0], 2: G[5][0], 3: X[0][0], 4: X[4][1], 5: X[5][1]}
G15 = {0: G[0][1], 1: G[1][1], 2: G[2][1], 3: G[1][0], 4: G[1][1], 5: G[2][0]}
def fs(rb, t): return [(G[rb][0] if t == 14 else G15[rb]) + i for i in range(4)] + [(X[rb][0] if t == 14 else X15[rb]) + i for i in range(4)]
def fsm(rb, t, half):
    ops = []; s_ = fs(rb, t)
    for i in (4 * half, 4 * half + 2):
        ops += ["v_exp_f32 %s, %s" % (V(s_[i]), V(s_[i])), "v_exp_f32 %s, %s" % (V(s_[i + 1]), V(s_[i + 1])),
                "v_add_f32 %s, %s, %s" % (V(vL[rb]), V(vL[rb]), V(s_[i])), "v_add_f32 %s, %s, %s" % (V(vL[rb]), V(vL[rb]), V(s_[i + 1])),
                "v_cvt_pk_bf16_f32 %s, %s, %s" % (V(s_[i // 2]), V(s_[i]), V(s_[i + 1]))]
    return ops
def qp(p): return [("a", rb * 24 + 8 * p + 4 * k) for rb in range(3) for k in range(2)]
def sb(*l): return [("a", 96 + 4 * i) for i in l]
vres = qp(0) + sb(4, 5) + qp(1) + sb(6, 7, 0, 1) + qp(2)
def v13(db): return ("v", 192 + 4 * db)
def phase_mf(rb):
    o = ["%s %s, %s, %s, %s" % (MF, O4(rb, db), R4(v13(db)), V(G[rb][1], 4), O4(rb, db)) for db in range(12)] if rb >= 3 else []
    return o + ["%s %s, %s, %s, %s" % (MF, O4(rb, db), R4(vres[12 * t + db]), V(fs(rb, 14 + t)[0], 4), O4(rb, db)) for t in range(2) for db in range(12)]
def lfin(rb):
    tmp = X15[rb]; l = vL[rb]; o = []
    for sw in ("v_permlane32_swap_b32", "v_permlane16_swap_b32"):
        o += ["v_mov_b32 v%d, v%d" % (tmp, l), "%s v%d, v%d" % (sw, l, tmp), "v_add_f32 v%d, v%d, v%d" % (l, l, tmp)]
    o += ["v_cmp_nle_f32 vcc, %s, v%d" % (sLo, l), "v_cmp_nge_f32 %s, %s, v%d" % (sB2, sHi, l), "v_rcp_f32 v%d, v%d" % (l, l)]
    return [Op(t) for t in o]
def wreg(n):
    fl, i0 = Oreg(n // 3, 4 * (n % 3))
    return i0 if fl == "v" else 96 + 16 * (n % 6)
def stg(n): return (n % 3) * 2048
def ep_st(n, rh):
    rb, cb = divmod(n, 3)
    return "buffer_store_dwordx4 %s, v%d, %s, %s offen offset:%d %s" % (V(wreg(n) + 8 + 4 * rh, 4), eS, sO, sRB(rb), rh * 3072 + cb * 128, "" if n >= int(opts.get("plain", 99)) else "nt sc1" if str(rb) in opts.get("ntrb", "") or ("nth" in opts and rh == 1 and rb < int(opts["nth"])) else SPOL)
def ep_rd(n):
    return ["ds_read_b128 %s, v%d offset:%d" % (V(wreg(n) + 8, 4), eR, stg(n))] + \
           ["ds_read_b64 %s, v%d offset:%d" % (V(wreg(n) + 12 + 2 * k, 2), eR, stg(n) + 1024 + 8 * (1 - k)) for k in range(2)]
ROWS = int(opts.get("rows", 0))
def burst(rb):
    A("s_or_b64 %s, %s, vcc" % (sBad, sBad)); A("s_or_b64 %s, %s, %s" % (sBad, sBad, sB2))
    lp = vL[rb] & ~1; sel = vL[rb] & 1
    for cb in range(3):
        n = 3 * rb + cb
        fl, i0 = Oreg(rb, 4 * cb); w = wreg(n)
        if fl == "a":
            for i in range(16):
                if rb < 5 or 4 * cb + i // 4 >= PRE5: A("v_accvgpr_read_b32 %s, %s" % (V(w + i), Ac(i0 + i)))
        for i in range(0, 16, 2):
            A("v_pk_mul_f32 %s, %s, %s op_sel:[0,%d] op_sel_hi:[1,%d]" % (V(w + i, 2), V(w + i, 2), V(lp, 2), sel, sel))
        if cb == 2 and not ROWS: A("s_waitcnt lgkmcnt(4)"); A(ep_st(n - 2, 0))
        for i in range(8): A("v_cvt_pk_bf16_f32 %s, %s, %s" % (V(w + i), V(w + 2 * i), V(w + 2 * i + 1)))
        if cb == 2 and not ROWS: A(ep_st(n - 2, 1))
        if cb >= 1:
            for t in ep_rd(n - 1): A(t)
        for x in range(4):
            A("ds_write_b64 v%d, %s offset:%d" % (eW[x], V(w + 2 * x, 2), stg(n)))
def group_block(rbs, buf, qf, first):
    mf = []; frag = []
    for t in ((14, 13, 15) if first else (14, 15)):
        if t == 13:
            for db in range(12):
                b = buf[len(frag) % 8]; frag.append((len(mf), vrd(b, 13, db), len(mf) + 2))
                mf += ["%s %s, %s, %s, %s" % (MF, O4(rb, db), R4(b), V(G[rb][1], 4), O4(rb, db)) for rb in rbs]
        else:
            for g in range(6):
                p, hf = (g >> 1, g & 1) if (t == 15 and first) else (g % 3, g // 3)
                bs = [buf[(len(frag) + k) % 8] for k in range(2)]
                for k in range(2): frag.append((len(mf), [k_read(R4(bs[k]), t - 12, 2 * p + k, hf)], len(mf) + 5))
                for rb in rbs:
                    for k in range(2):
                        d = V(fs(rb, t)[4 * hf], 4)
                        mf.append("%s %s, %s, %s, %s" % (MF, d, R4(bs[k]), qf(rb, 2 * p + k), "0" if p + k == 0 else d))
    return mf + phase_mf(rbs[0]), frag
def place(pinned, g, ins):
    while len(pinned.get(g, [])) + len(ins) > 2 or any(t.startswith("buffer") for t in pinned.get(g, [])): g += 1
    pinned.setdefault(g, []).extend(ins); return g
def block_stream(mf, rbs, lag):
    st = []
    r0_, r1_, r2_ = rbs
    for rb, t, h in ((r0_, 14, 0), (r1_, 14, 0), (r2_, 14, 0), (r0_, 14, 1), (r1_, 14, 1), (r2_, 14, 1), (r0_, 15, 0), (r0_, 15, 1), (-1, 0, 0), (r1_, 15, 0)):
        if rb < 0: st += lfin(r0_); continue
        ready = last_write_slot(mf[:108], "v%d" % fs(rb, t)[4 * h]) + lag
        dead = 131 if rb != r0_ else (105 if t == 14 else 117)
        st += [Op(x, ready, dead) for x in fsm(rb, t, h)]
    return st
def leftovers(n):
    rd = ep_rd(n)
    if ROWS:
        d = {4: rd[:2], 5: rd[2:]}
        for i in range(6): d[11 + i + (i // 3) * int(opts.get("rgap", 2))] = [ep_st(n - 2 + i % 3, i // 3)]
        return d
    return {1: [ep_st(n - 1, 0)], 4: [ep_st(n - 1, 1)], 7: rd[:2], 8: rd[2:], 17: [ep_st(n, 0)], 20: [ep_st(n, 1)]}
def small_phase(rb, nxt, extra=()):
    scal = [(0, ["s_waitcnt lgkmcnt(4)"], True), (16, ["s_waitcnt lgkmcnt(0)"], True)] if not ROWS else [(10, ["s_waitcnt lgkmcnt(0)"], True)]
    st = [Op(t, 0, 10) for t in fsm(rb, 15, 1)] + lfin(rb)
    if nxt is not None: st += [Op(t) for t in fsm(nxt, 15, 0)]
    pinned = leftovers(3 * rb - 1)
    for g, ins in extra: pinned[g] = ins
    if extra: scal[1] = (16, ["s_waitcnt lgkmcnt(%d)" % sum(len(ins) for g, ins in extra if g < 16)], True)
    blk, _ = schedule(phase_mf(rb), pinned, scal, st, [], "phase%d" % rb, excl=True)
    return blk
bufA = [("a", 96 + 4 * i) for i in range(8)]
mf, frag = group_block([0, 1, 2], bufA, Qf, True)
pinned = {}
for i, (use, ins, _) in enumerate(frag):
    if i < 2: continue
    place(pinned, max(0 if i < 8 else frag[i - 8][2], use - 15 + (i & 1)), ins)
g = 80; gv = {}
for n in range(24):
    free = 1 + max(k for k, t in enumerate(mf[:108]) if ("a%d" % vres[n][1]) in Ins(t).rd)
    g = place(pinned, max(g, free), vrd(vres[n], 14 + n // 12, n % 12))
    gv[n] = g; g += (1 if n < 17 else 2)
place(pinned, 124, ["ds_read_b64 v[16:17], v%d offset:%d" % (vQA, 2 * QRB)])
scal = [(51, ["s_waitcnt vmcnt(12)", "s_barrier"], False), (74, ["s_waitcnt vmcnt(9)", "s_barrier"], False), (90, ["s_waitcnt vmcnt(0)", "s_barrier"], False)]
st = [Op(t) for h in range(2) for t in sm(4, 1, h)] + block_stream(mf, [0, 1, 2], 5)
blk, _ = schedule(mf, pinned, scal, st, q0, "blockA", excl=True)
T += blk
if "fine" in opts: T += stamp(1)
A("s_waitcnt lgkmcnt(0)")
A("v_mov_b32 v%d, v17" % eR)
for x in (1, 2, 3): A("v_xor_b32 v%d, %d, v16" % (eW[x], 32 * x))
burst(0)
T += small_phase(1, 2); burst(1)
bufB = [("v", 96 + 4 * i) for i in range(8)]
def qfB(rb, ks): return Qf(rb, ks) if rb < 4 else V(128 + 24 * (rb - 4) + 4 * ks, 4)
mfB, fragB = group_block([3, 4, 5], bufB, qfB, False)
pre = [fragB[i][1][0] for i in range(4)] + [q_read(qfB(rb, k), rb - 4, k) for k in range(6) for rb in LATE]
T += small_phase(2, None, [(g, pre[2 * i:2 * i + 2]) for i, g in enumerate((11, 14, 18, 19, 21, 22, 23))])
for t in pre[14:]: A(t)
for x in range(4): A("v_mov_b32 v%d, v%d" % (G[0][0] + x, eW[x]))
eW = [G[0][0] + x for x in range(4)]
burst(2)
if "fine" in opts: T += stamp(2)
pinned = leftovers(8)
for i, (use, ins, _) in enumerate(fragB):
    if i < 4: continue
    g = place(pinned, max(0 if i < 8 else fragB[i - 8][2], use - 15 + (i & 1)), ins)
g = 22
for db in range(12): g = place(pinned, g, vrd(v13(db), 13, db)) + 3
if ROWS:
    later = sum(1 for g in range(6, 10) for t in pinned.get(g, []) if t.startswith("ds_")) + len(pinned[5]) - 1
    scal = [(10, ["s_waitcnt lgkmcnt(%d)" % later], True)]
else:
    later = sum(1 for g in range(9, 16) for t in pinned.get(g, []) if t.startswith("ds_")) + len(pinned[8]) - 1
    scal = [(0, ["s_waitcnt lgkmcnt(4)"], True), (16, ["s_waitcnt lgkmcnt(%d)" % later], True)]
st = [Op(t, 0, 50) for h in range(2) for t in sm(5, 1, h)]
for rb, t, h, dead in ((3, 14, 0, 81), (4, 14, 0, 107), (5, 14, 0, 107), (3, 14, 1, 81), (4, 14, 1, 107), (3, 15, 0, 93), (3, 15, 1, 93), (-1, 0, 0, 0), (5, 14, 1, 107)):
    if rb < 0: st += lfin(3); continue
    st += [Op(x, last_write_slot(mfB[:72], "v%d" % fs(rb, t)[4 * h]) + 7, dead) for x in fsm(rb, t, h)]
if ROWS: A("s_waitcnt lgkmcnt(7)")
blk, _ = schedule(mfB, pinned, scal, st, [], "blockB", excl=True)
T += blk
if "fine" in opts: T += stamp(0)
burst(3)
scal = [(0, ["s_waitcnt lgkmcnt(4)"], True), (16, ["s_waitcnt lgkmcnt(0)"], True)] if not ROWS else [(10, ["s_waitcnt lgkmcnt(0)"], True)]
st = [Op(t, 0, 22) for h in range(2) for t in fsm(4, 15, h)] + lfin(4) + [Op(t) for h in range(2) for t in fsm(5, 15, h)]
blk, _ = schedule(phase_mf(4), leftovers(11), scal, st, [], "phase4", excl=True)
T += blk
burst(4)
m5 = phase_mf(5); m5 = [m5[12 * t + db] for db in range(12) for t in range(3)]
st = lfin(5)
PRE5 = 9
for db in range(PRE5):
    st += [Op("v_accvgpr_read_b32 %s, %s" % (V(wreg(15 + db // 4) + 4 * (db % 4) + i), Ac(Oreg(5, db)[1] + i)), 3 * db + 2 + 5) for i in range(4)]
blk, _ = schedule(m5, leftovers(14), scal, st, [], "phase5", excl=True)
T += blk
T += stamp(4)
burst(5)
if not ROWS:
    A("s_waitcnt lgkmcnt(4)")
    A(ep_st(16, 0)); A(ep_st(16, 1))
for t in ep_rd(17): A(t)
A("s_cmp_eq_u64 %s, 0" % sBad)
A("s_cbranch_scc1 L_good")
A("v_mov_b32 v2, %d" % FLAG); A("v_mov_b32 v3, 1")
A("ds_write_b32 v2, v3")
A("L_good:")
A("s_waitcnt lgkmcnt(0)")
if ROWS:
    for i in range(6): A(ep_st(15 + i % 3, i // 3))
else: A(ep_st(17, 0)); A(ep_st(17, 1))
if STAMP:
    T += stamp(5)
    A("s_waitcnt vmcnt(0)")
    T += stamp(6)
    A("s_waitcnt lgkmcnt(0)")
    if "probe" in opts:
        pi, pj = [int(x) for x in opts["probe"].split(",")]
        A("s_sub_u32 s84, s%d, s%d" % (60 + 2 * pj, 60 + 2 * pi))
        if "pneg" in opts: A("s_sub_u32 s84, %s, s84" % opts["pneg"])
        if STAMP == 6:
            A("s_min_u32 s84, s84, 40000"); A("s_memrealtime s[72:73]"); A("s_waitcnt lgkmcnt(0)")
        else:
            A("s_min_u32 s84, s84, 10000")
            A("s_lshl_b32 s84, s84, 2")
        if "pcls" in opts:
            A("s_bfe_u32 s85, s2, 0x%x" % int(opts["pbits"], 16)); A("s_cmp_eq_u32 s85, %s" % opts["pcls"]); A("s_cselect_b32 s84, s84, 0")
        A("L_spin:"); A("s_sleep 2"); A("s_memrealtime s[82:83]"); A("s_waitcnt lgkmcnt(0)")
        A("s_sub_u32 s85, s82, s72"); A("s_cmp_lt_u32 s85, s84"); A("s_cbranch_scc1 L_spin")
    A("s_lshl_b32 s3, s2, 2"); A("s_add_u32 s3, s3, %s" % sWave); A("s_lshl_b32 s3, s3, 6")
    A("v_mov_b32 v10, s3")
    for i in range(16): A("v_mov_b32 v%d, s%d" % (16 + i, 60 + i))
    for i in range(4): A("buffer_store_dwordx4 v[%d:%d], v10, %s, 0 offen offset:%d" % (16 + 4 * i, 19 + 4 * i, sW, 16 * i))
A("s_barrier")
A("v_mov_b32 v0, %d" % FLAG)
A("ds_read_b32 v0, v0")
A("s_waitcnt lgkmcnt(0)")
A("v_readfirstlane_b32 %s, v0" % sTmp)
A("s_cmp_eq_u32 %s, 0" % sTmp)
A("s_cbranch_scc0 L_redo")
A("L_end:")
A("s_endpgm")
A("L_hotend:")
A("L_redo:")
A("s_waitcnt vmcnt(0)")
A("s_barrier")
A("v_mbcnt_lo_u32_b32 v0, -1, 0"); A("v_mbcnt_hi_u32_b32 v0, -1, v0")
A("s_lshl_b32 %s, %s, 6" % (sTmp, sWave))
A("v_add_u32 v0, %s, v0" % sTmp)

if "cap" in opts:
    T2 = []
    for t in T:
        if t.startswith("buffer_store") and sO in t: T2.append("s_waitcnt vmcnt(%d)" % int(opts["cap"]))
        T2.append(t)
    T = T2
if "skiprb" in opts:
    sk = [sRB(int(x)) for x in opts["skiprb"].split(",")]
    T = [t for t in T if not (t.startswith("buffer_store") and sO in t and any((", %s offen" % x) in t for x in sk))]
if "nost" in opts: T = [t for t in T if not (t.startswith("buffer_store") and sO in t)]
if "nowr" in opts: T = [t for t in T if not t.startswith("ds_write_b64")]
def I(l): return [Ins(t) for t in l if not t.startswith("HOPS")]
seq = I(P + BP + B1 + B0 + ["s_cbranch_scc1 L_loop"] + B1 + B0 + ["s_cbranch_scc1 L_loop"] + T)
errs = check_hazards(seq, "main") + check_waits(seq, "main") + check_scc(seq, "main")
for e in errs[:30]: sys.stderr.write(e + "\n")
if errs and "nost" not in opts and "skiprb" not in opts:
    print("!!! %d hazard problems" % len(errs)); sys.exit(1)
S, lds2, e2_ = gen_safe.build_safe({"qd": "3", "nt": NT})
assert lds2 <= LDS_BYTES and e2_ == 0

hdr = open("standalone__gqa_softmax__near_ridge.s.ref").read().split("; Override")[0]
code = P + ["; ---- iteration 0 (also completes the first K/V prefetch)"] + BP + ["; ---- iterations 1..12: QK(j+1) | PV(j)", ".p2align 3", "L_loop:"] + B1 + B0 + ["s_cbranch_scc1 L_loop",
       "; ---- tiles 13..15: row blocks 0-2 to the end, then 3-5; normalise, stage through LDS, store"] + T + ["; ---- online-max path (taken only when a row sum left the checked range)"]
NH = 8
DOC = """;
; Attention forward, one workgroup per (batch, head): 4 waves x 96 query rows, 16x16x32 bf16 MFMA, 32-key tiles.
;   S^T = K Q^T and O^T = V^T P^T, so a lane owns one query row; K/V tiles stream HBM -> LDS (LDS-DMA, XOR-swizzled),
;   softmax VALU work is interleaved with the MFMAs of the neighbouring tile.
; Fast path: Q is scaled by log2(e)/sqrt(192) once, p = 2^s is taken against the reference point 0 (softmax is shift
;   invariant).  Every row sum is checked against [2^-20, 2^24] (NaN and inf fail the check); if any row of the head
;   fails, the whole workgroup recomputes the head on the path labelled S_* which subtracts the running row maximum.
; The last tiles are processed row block by row block so that output stores overlap the remaining matrix work.
; Generated by the author's own script (instruction scheduling and hazard checking included).""".split("\n")
def render(code, nh):
    out = [hdr.rstrip(), "; @launch grid=(256,1,1) block=(256,1,1) lds=%d" % LDS_BYTES] + DOC + [
           '.amdgcn_target "amdgcn-amd-amdhsa--gfx950"', ".text", ".globl %s" % KN, ".p2align 8", ".type %s,@function" % KN, "%s:" % KN, "L_start:"]
    for t in code + S:
        if t.startswith("HOPS"):
            if not HOP: continue
            r_ = int(t[4:])
            out += ["; visit the first line of later code pages (no lane active, no memory instruction on that path)", "    s_mov_b64 exec, 0"]
            for w in range(4):
                k = 4 * r_ + w
                out += ["    s_cmp_eq_u32 %s, %d" % (sWave, w), "    s_cbranch_scc1 %s" % ("L_hop%d" % k if k < nh else "L_hopback%d" % r_)]
            out += ["L_hopback%d:" % r_, "    s_mov_b64 exec, -1"]
            continue
        t = t.replace("CODELEN", "L_hotend-L_main" if HOP else "L_hotend-L_pc").replace("CODEOFF", "L_main-L_pc+4" if HOP else "0")
        out.append(t if t.endswith(":") or t.startswith((".", ";")) else "    " + t)
    out += ['.section .rodata,"a"', ".p2align 6", ".amdhsa_kernel %s" % KN, "  .amdhsa_next_free_vgpr 512", "  .amdhsa_next_free_sgpr 96",
            "  .amdhsa_accum_offset 256", "  .amdhsa_group_segment_fixed_size 0", "  .amdhsa_kernarg_size 48", "  .amdhsa_user_sgpr_count 2",
            "  .amdhsa_user_sgpr_kernarg_segment_ptr 1", "  .amdhsa_system_sgpr_workgroup_id_x 1", ".end_amdhsa_kernel", ""]
    return "\n".join(out)
import subprocess, re as _re
def addresses(code, nh):
    marked = []
    for i, t in enumerate(code): marked += ["M_%d:" % i, t]
    open("_g7.s", "w").write(render(marked, nh))
    subprocess.run(["clang", "-x", "assembler", "-target", "amdgcn-amd-amdhsa", "-mcpu=gfx950", "-c", "_g7.s", "-o", "_g7.o"], check=True)
    sy = subprocess.run(["llvm-objdump", "-t", "_g7.o"], capture_output=True, text=True).stdout
    ad = {m.group(2): int(m.group(1), 16) for m in _re.finditer(r"^([0-9a-f]+) .* (\S+)$", sy, _re.M)}
    return [ad["M_%d" % i] - ad["L_main"] for i in range(len(code))]
nh = 0
if HOP:
    STEP = int(opts.get("hstep", 4096))
    while nh < NH:
        ad = addresses(code, nh)
        pages = [int(x) for x in opts.get("pages", "").split(",") if x] or list(range(1 + int(opts.get("hskip", 3)), 20))
        if nh >= len(pages): break
        lo = STEP * pages[nh]
        if lo >= ad[code.index("L_end:")]: break
        cand = [i for i in range(1, len(code)) if lo <= ad[i] < lo + 56]
        good = [i for i in cand if code[i - 1].startswith("v_mfma") and not code[i].startswith("s_")]
        i = (good or cand)[0]
        code[i:i] = ["L_hop%d:" % nh, "s_cbranch_execz L_hopback%d" % (nh // 4), "s_nop 0"][:2 + (1 if "L_loop:" in code[:i] and "s_cbranch_scc1 L_loop" in code[i:] and False else 0)]
        nh += 1
    sys.stderr.write("hops: %d\n" % nh)
open(sys.argv[1], "w").write(render(code, nh))
```

```python
import sys, math, struct
from asmlib import *
from sched import *
import gen_safe

opts = dict(a.split("=") for a in sys.argv[2:])
STAMP = int(opts.get("stamp", 0))
NT = opts.get("nt", "nt").replace("+", " ")
SPOL = opts.get("spol", "sc1").replace("+", " ")
QD = int(opts.get("qd", 3))
DEF = int(opts.get("defer", 2))
STG2 = [tuple(int(y) for y in x.split(":")) for x in opts.get("stg2", "").split(",") if x]
XP = int(opts.get("xp", 2))
KN = "standalone__gqa_softmax__near_ridge_kernel"
def f2u(x): return struct.unpack("<I", struct.pack("<f", x))[0]
CSCALE = f2u(math.log2(math.e) / math.sqrt(192.0))

VRING = 0; VX = 36864; KRING = 49152; KX = 86016; QLDS = 98304; SLOT = 12288
QKS = 1088; QRB = 6 * QKS; QWAVE = 2 * QRB + 1024
FLAG = QLDS + 4 * QWAVE
LDS_BYTES = FLAG + 64
def V(i, n=1): return "v%d" % i if n == 1 else "v[%d:%d]" % (i, i + n - 1)
def Ac(i, n=1): return "a%d" % i if n == 1 else "a[%d:%d]" % (i, i + n - 1)
vKA = [0, 1]; vVA = [2, 3, 4, 5]; vQA = 6; vDMA = 7
vL = [8 + i for i in range(6)]; vQG = 14; vQW = 15
FB = [Ac(96 + 4 * i, 4) for i in range(4)]
FQ = {4: [Ac(112, 4), Ac(116, 4)], 5: [Ac(120, 4), Ac(124, 4)]}
EARLY = [0, 1, 2, 3]; LATE = [4, 5]
G = {}; X = {}
r = 16
for rb in LATE:
    G[rb] = [r, r + 4]; X[rb] = [r + 8, r + 12]; r += 16
for rb in EARLY:
    G[rb] = [r, r + 4]; X[rb] = [r + 8, r + 8]; r += 12
assert r == 96
def Oreg(rb, db):
    b = rb * 12 + db
    return ("v", 96 + 4 * b) if b < 40 else ("a", 128 + 4 * (b - 40))
def O4(rb, db):
    f, i = Oreg(rb, db); return "%s[%d:%d]" % (f, i, i + 3)
def Qf(rb, ks): return Ac(rb * 24 + ks * 4, 4) if rb < 4 else FQ[rb][ks & 1]
sQ = "s[20:23]"; sK = "s[24:27]"; sV = "s[28:31]"; sO = "s[32:35]"; sW = "s[36:39]"
sC2 = "s[40:41]"; sIT = "s42"; sKoff = "s43"; sVoff = "s44"; sKm = "s45"; sVm = "s46"; sWave = "s47"
sTmp = "s48"; sRow = "s49"; sKend = "s50"; sVend = "s51"; sKbeg = "s52"; sVbeg = "s53"; sQL = "s16"; sCls = "s17"
sVX = "s[84:87]"; sXoff = "s74"; sXm = "s75"; sKr = "s82"; sVr = "s83"; sKd = "s92"; sVd = "s93"
sMask = "s54"; sLo = "s76"; sHi = "s77"; sBad = "s[78:79]"; sB2 = "s[80:81]"
def sRB(rb): return "0" if rb == 0 else "s%d" % (54 + rb)
MF = "v_mfma_f32_16x16x32_bf16"

def k_read(dst, tile_par, ks, hf):
    return "ds_read_b128 %s, %s offset:%d" % (dst, V(vKA[ks & 1]), tile_par * SLOT + (ks >> 1) * 4096 + hf * 2048)
def v_read(a0, tile_par, db):
    return ["ds_read_b64_tr_b16 %s, %s offset:%d" % (Ac(a0 + 2 * i, 2), V(vVA[db & 3]), tile_par * SLOT + (db >> 2) * 4096 + i * 2048) for i in range(2)]
def q_read(dst, area, ks):
    return "ds_read_b128 %s, %s offset:%d" % (dst, V(vQA), area * QRB + ks * QKS)
def qk_mfmas(par, last_up=False):
    out = []
    for g in range(6):
        p, hf = g >> 1, g & 1
        for rb in (range(6) if hf == 0 or (last_up and g == 5) else range(5, -1, -1)):
            for k in range(2):
                ks = 2 * p + k
                d = V((G[rb][par] if hf == 0 else X[rb][par]), 4)
                out.append("%s %s, %s, %s, %s" % (MF, d, FB[(2 * g + k) % 4], Qf(rb, ks), "0" if ks == 0 else d))
    return out
def sregs(rb, par): return [G[rb][par] + i for i in range(4)] + [X[rb][par] + i for i in range(4)]
def sm(rb, par, half):
    ops = []; s = sregs(rb, par)
    for i in (4 * half, 4 * half + 2):
        ops.append("v_exp_f32 %s, %s" % (V(s[i]), V(s[i])))
        ops.append("v_exp_f32 %s, %s" % (V(s[i + 1]), V(s[i + 1])))
        ops.append("v_add_f32 %s, %s, %s" % (V(vL[rb]), V(vL[rb]), V(s[i])))
        ops.append("v_add_f32 %s, %s, %s" % (V(vL[rb]), V(vL[rb]), V(s[i + 1])))
        ops.append("v_cvt_pk_bf16_f32 %s, %s, %s" % (V(G[rb][par] + i // 2), V(s[i]), V(s[i + 1])))
    return ops
def last_write_slot(mf, reg): return max(g for g, t in enumerate(mf) if reg in Ins(t).wr)
def paced(ops, g0, g1, floor=0, dead=10 ** 9):
    os_ = [Op(t) for t in ops]; tot = sum(o.cost for o in os_); acc = 0
    for o in os_:
        o.ming = max(floor, int(g0 + (g1 - g0) * acc / tot)); o.dead = dead; acc += o.cost
    return os_
def pin_qk(pinned, qk, tile_par, nq):
    def pin(g, t): pinned.setdefault(g, []).append(t)
    for g in range(1, 6):
        for k in range(2): pin(12 * (g - 1) + 2 * k, k_read(FB[(2 * g + k) % 4], tile_par, 2 * (g >> 1) + k, g & 1))
    lastq = {}
    for g, t in enumerate(qk):
        for rb in LATE:
            for k in range(2):
                if FQ[rb][k] in t: lastq[(g // 24, rb, k)] = g
    for p in range(nq):
        g = 0
        for (lg, rb, k) in sorted((lastq[(p, rb, k)], rb, k) for rb in LATE for k in range(2)):
            g = max(g, lg + 1)
            while g in pinned: g += 1
            pin(g, q_read(FQ[rb][k], rb - 4, (2 * p + 2 + k) % 6)); g += 2

def body(par, ds_in, peel=False):
    np_ = par ^ 1
    qk = qk_mfmas(np_)
    mf = qk + ["%s %s, %s, %s, %s" % (MF, O4(rb, db), FB[db % 4], V(G[rb][par], 4), O4(rb, db)) for db in range(12) for rb in range(6)]
    pinned = {}
    def pin(g, t): pinned.setdefault(g, []).append(t)
    for db in range(12):
        for t in v_read(96 + 4 * (db % 4), 0, db): pin({0: 60, 1: 63, 2: 72, 3: 75}.get(db, 72 + 6 * (db - 3)), t)
    pin(127, k_read(FB[0], 0, 0, 0)); pin(133, k_read(FB[1], 0, 1, 0))
    pin_qk(pinned, qk, 0, 3)
    scal = [(57, ["s_waitcnt vmcnt(%d) lgkmcnt(0)" % (7 - par)], True), (58, ["s_barrier"], True)]
    if par == 1:
        scal.append((61, ["s_mov_b32 m0, %s" % sXm], True))
        pin(62, "buffer_load_dwordx4 %s, %s, %s offen %s lds" % (V(vDMA), sVX, sXoff, NT))
        scal.append((82, ["s_cmp_eq_u32 %s, 3" % sIT, "s_cselect_b32 %s, s94, s95" % sTmp, "s_cselect_b32 s84, s24, s84", "s_cselect_b32 s85, s25, s85",
                          "s_cselect_b32 s3, %d, 0" % (KX - VX - SLOT)], False))
        scal.append((106, ["s_add_u32 %s, %s, %s" % (sXoff, sXoff, sTmp), "s_add_u32 %s, %s, 4096" % (sXm, sXm), "s_add_u32 %s, %s, s3" % (sXm, sXm)], False))
        scal.append((14, ["s_cmp_eq_u32 %s, 6" % sIT, "s_cselect_b32 s24, s28, s24", "s_cselect_b32 s25, s29, s25",
                          "s_cselect_b32 %s, %d, %s" % (sVoff, 14 * SLOT, sVoff)], False))
    adv = []
    for cnt, d in ((sVr, sVd), (sKr, sKd)):
        adv += ["s_add_u32 %s, %s, 1" % (cnt, cnt), "s_cmp_eq_u32 %s, 3" % cnt, "s_cselect_b32 %s, 0, %s" % (cnt, cnt),
                "s_cselect_b32 %s, s90, s91" % d]
    if peel: adv = ["s_mov_b32 %s, 0" % sVr, "s_mov_b32 %s, s90" % sVd, "s_mov_b32 %s, 2" % sKr, "s_mov_b32 %s, s91" % sKd]
    scal.append((1, adv, False))
    if peel:
        xg = [int(x) for x in opts.get("xg", "5,21,33,45,67,77").split(",")]
        xl = [(k, x, cb) for k, x in (("V", 1), ("K", 3))[XP:] for cb in range(3)]
        xg = xg[3 * XP:]
        for g, (k, x, cb) in zip(xg, xl):
            srd_, beg = (sK, sKbeg) if k == "K" else (sV, sVbeg)
            assert g not in pinned and (g - 2) not in xg and (g - 1) not in xg, g
            if cb == 0: scal.append((g - 2, ["s_mov_b32 %s, %d" % (sTmp, x * SLOT)], True))
            scal.append((g - 1, ["s_add_u32 m0, %s, %d" % (beg, (x % 3) * SLOT + cb * (4096 - 128))], True))
            pin(g, "buffer_load_dwordx4 %s, %s, %s offen offset:%d %s lds" % (V(vDMA), srd_, sTmp, cb * 128, NT))
        dgp = [int(x) for x in opts.get("dgp", "71,81,93,105,117,130").split(",")]
        scal[0] = (57, ["s_waitcnt vmcnt(%d) lgkmcnt(0)" % (3 + 3 * XP + sum(1 for g in xg if g < 57))], True)
        scal.append((121, ["s_waitcnt vmcnt(%d)" % (3 * XP + sum(1 for g in xg + dgp if g < 121))], True)); scal.append((122, ["s_barrier"], True))
    if par == 0 and not peel and int(opts.get("keep", 0)):
        scal.append((2, ["s_cmp_eq_u32 %s, 6" % sIT, "s_cselect_b32 %s, 0, %s" % (sVoff, sVoff)], False))
    for i in range(int(opts.get("slow", 0))):
        g = [30, 101, 54, 138, 10, 83][i]
        if peel: scal.append((g, ["s_sleep 1"], True))
        else: scal.append((g, ["s_cmp_lt_u32 %s, %d" % (sIT, int(opts.get("slowit", 3))), "s_cbranch_scc0 L_sl%d_%d" % (par, i), "s_sleep 1", "L_sl%d_%d:" % (par, i)], True))
    OW = int(opts.get("ow", 0))
    if par == 0 and OW:
        scal.append((2, ["s_cmp_eq_u32 %s, 6" % sIT, "s_cselect_b32 s28, s32, s28", "s_cselect_b32 s29, s33, s29", "s_cselect_b32 s30, s34, s30",
                         "s_cselect_b32 %s, 0, %s" % (sVoff, sVoff), "s_cselect_b32 s86, %d, 0" % (61440 if OW == 2 else 0)], False))
        scal.append((107, ["s_add_u32 %s, %s, s86" % (sVoff, sVoff)], False)); scal.append((119, ["s_add_u32 %s, %s, s86" % (sVoff, sVoff)], False))
    dg = [int(x) for x in opts.get("dg", "71,81,93,105,117,130").split(",")] if not peel else dgp
    for i in range(6):
        srd_, so, sm_ = (sV, sVoff, sVm) if i < 3 else (sK, sKoff, sKm)
        assert dg[i] not in pinned
        scal.append((dg[i] - 1, ["s_add_u32 m0, %s, %d" % (sm_, (i % 3) * (4096 - 128))], True))
        pin(dg[i], "buffer_load_dwordx4 %s, %s, %s offen offset:%d %s lds" % (V(vDMA), srd_, so, (i % 3) * 128, NT))
    for g, so, m, end, beg in () if peel else ((dg[2] + 1 if dg[3] - dg[2] > 8 else dg[5] + 8, sVoff, sVm, sVend, sVbeg), (dg[5] + 1, sKoff, sKm, sKend, sKbeg)):
        scal.append((g, ["s_add_u32 %s, %s, %d" % (so, so, SLOT), "s_add_u32 %s, %s, %d" % (m, m, SLOT),
                         "s_cmp_eq_u32 %s, %s" % (m, end), "s_cselect_b32 %s, %s, %s" % (m, beg, m)], False))
    if par == 0 and not peel: scal.append((139, ["s_add_u32 %s, %s, 1" % (sIT, sIT), "s_cmp_lt_u32 %s, 7" % sIT], False))
    st = paced(sum([sm(rb, par, h) for rb in LATE for h in range(2)], []), 0, 50, dead=70)
    st += [Op("v_add_u32 %s, %s, %s" % (V(a), sVd, V(a)), 44, 56) for a in vVA]
    st += [Op("v_add_u32 %s, %s, %s" % (V(a), sKd, V(a)), 52, 125) for a in vKA]
    E0, E1 = 55, 140
    for n, (rb, h) in enumerate([(0, 0), (1, 0), (2, 0), (3, 0), (3, 1), (2, 1), (1, 1), (0, 1)]):
        ready = last_write_slot(qk, "v%d" % sregs(rb, np_)[4 * h]) + 5
        st += paced(sm(rb, np_, h), E0 + (E1 - E0) * n / 8, E0 + (E1 - E0) * (n + 1) / 8, floor=ready)
    def capf(cap, sc, pin_):
        for g in range(144):
            if "s_barrier" in sc.get(g, []): cap[g] = 0
    return schedule(mf, pinned, scal, st, ds_in, "body%d" % par, next_first=qk_mfmas(par)[0], excl=True, capf=capf)

def stamp(i):
    if STAMP in (1, 3): return ["s_memrealtime s[%d:%d]" % (60 + 2 * i, 61 + 2 * i)]
    if STAMP == 7:
        o = ["s_memrealtime s[%d:%d]" % (60 + 2 * i, 61 + 2 * i)] if i in (0, 2, 3, 6, 7) else []
        c = {2: 1, 7: 4, 3: 5}.get(i)
        return o + (["s_memtime s[%d:%d]" % (60 + 2 * c, 61 + 2 * c)] if c else [])
    if STAMP == 6: return ["s_memtime s[%d:%d]" % (60 + 2 * i, 61 + 2 * i)]
    return []

P = []
A = P.append
A("s_cmp_ge_u32 s2, 256")
A("s_cbranch_scc1 L_end")
A("s_load_dwordx4 s[4:7], s[0:1], 0")
A("s_load_dwordx4 s[8:11], s[0:1], 16")
if STAMP: A("s_load_dwordx2 s[12:13], s[0:1], 40")
P += stamp(0)
A("s_getpc_b64 s[18:19]")
A("v_lshlrev_b32 v240, 7, v0")
A("L_pc:")
A("v_min_u32 v240, CODELEN, v240")
A("v_add_u32 v240, CODEOFF, v240")
A("global_load_dword v241, v240, s[18:19]")
vLN = 242; t2 = 243; t3 = 244; t4 = 245; t5 = 246; t6 = 247
A("v_lshrrev_b32 v%d, 6, v0" % t2)
A("v_and_b32 v%d, 63, v0" % vLN)
A("s_mul_i32 s14, s2, 147456")
A("v_readfirstlane_b32 %s, v%d" % (sWave, t2))
A("s_mul_i32 s15, s2, 196608")
if STG2 and "clsbit" in opts: A("s_bfe_u32 %s, s2, 0x%x" % (sCls, (int(opts.get("clsw", 3)) << 16) + int(opts.get("clsbit", 3))))
elif STG2: A("s_getreg_b32 %s, hwreg(HW_REG_XCC_ID, 0, 1)" % sCls)
A("v_lshrrev_b32 v%d, 3, v%d" % (t5, vLN))
A("v_mul_u32_u24 v%d, 384, v%d" % (t6, t5))
A("v_lshrrev_b32 v%d, 4, v%d" % (t3, vLN))
A("v_lshlrev_b32 v%d, 1, v%d" % (t4, t3))
A("v_xor_b32 v%d, v%d, v%d" % (t4, t4, vLN))
A("v_and_b32 v%d, 7, v%d" % (t4, t4))
A("v_lshl_add_u32 v%d, v%d, 4, v%d" % (vDMA, t4, t6))
A("s_mul_i32 %s, %s, 3072" % (sTmp, sWave))
A("v_add_u32 v%d, %s, v%d" % (vDMA, sTmp, vDMA))
A("v_and_b32 v%d, 7, v%d" % (t4, vLN))
A("v_lshl_add_u32 v%d, v%d, 4, v%d" % (vQG, t4, t6))
A("s_mul_i32 %s, %s, 36864" % (sRow, sWave))
A("v_add_u32 v%d, %s, v%d" % (vQG, sRow, vQG))
A("s_lshl_b32 %s, %s, 10" % (sVbeg, sWave))
A("s_add_u32 %s, %s, %d" % (sKbeg, sVbeg, KRING))
for rb in range(1, 6): A("s_mov_b32 %s, %d" % (sRB(rb), rb * 6144))
if STG2:
    A("s_mov_b32 s3, 0")
    for i, (lo, hi, k, cnt) in enumerate(STG2):
        A("s_sub_u32 %s, %s, %d" % (sTmp, sCls, lo)); A("s_cmp_lt_u32 %s, %d" % (sTmp, hi - lo)); A("s_cselect_b32 s3, %d, s3" % (1 << i))
A("s_waitcnt lgkmcnt(0)")
def srd(base, src, off, size):
    A("s_add_u32 s%d, s%d, %s" % (base, src, off)); A("s_addc_u32 s%d, s%d, 0" % (base + 1, src + 1))
    A("s_mov_b32 s%d, %d" % (base + 2, size)); A("s_mov_b32 s%d, 0x20000" % (base + 3))
vm = []
def raw(rb, i): return 96 + rb * 24 + i * 4
def issue(k, x, i):
    if k == "Q":
        A("buffer_load_dwordx4 %s, v%d, %s, %s offen offset:%d %s" % (V(raw(x, i), 4), vQG, sQ, sRB(x), (i & 1) * 3072 + (i >> 1) * 128, NT))
        vm.append("Q%d.%d" % (x, i))
    else:
        srd_, beg = (sK, sKbeg) if k == "K" else (sV, sVbeg)
        A("s_add_u32 m0, %s, %d" % (beg, (3 if (k, x) == ("K", 0) else x % 3) * SLOT + i * (4096 - 128)))
        A("s_mov_b32 %s, %d" % (sTmp, x * SLOT))
        A("buffer_load_dwordx4 %s, %s, %s offen offset:%d %s lds" % (V(vDMA), srd_, sTmp, i * 128, NT))
        vm.append("%s%d" % (k, x))
    n = len(vm) - 1
    for ci, (lo, hi, kk, cnt) in enumerate(STG2):
        if kk <= n < cnt:
            A("s_bitcmp1_b32 s3, %d" % ci); A("s_cbranch_scc0 L_sg%d_%d" % (n, ci)); A("s_waitcnt vmcnt(%d)" % kk); A("L_sg%d_%d:" % (n, ci))
def vwait(name):
    last = max(i for i, x in enumerate(vm) if x == name)
    A("s_waitcnt vmcnt(%d)" % (len(vm) - 1 - last))
TLB = int(opts.get("tlb", 0))
srd(24, 6, "s15", 196608)
issue("K", 0, 0)
if TLB & 1:
    srd(32, 10, "s14", 147456); srd(28, 8, "s15", 196608)
    A("v_lshlrev_b32 v240, 9, v%d" % vLN)
    A("buffer_load_dword v250, v240, %s, %s offen nt" % (sO, sRow)); vm.append("t")
    A("buffer_load_dword v251, v%d, %s, 0 offen nt" % (vDMA, sV)); vm.append("t")
for cb in range(1, 3): issue("K", 0, cb)
K1E = int(opts.get("k1e", 0))
if K1E:
    for cb in range(3): issue("K", 1, cb)
srd(20, 4, "s14", 147456)
for rb in range(QD):
    for i in range(6): issue("Q", rb, i)
HOP = int(opts.get("hop", 1))
if HOP: A("s_branch L_main"); A(".p2align 12"); A("L_main:")
srd(28, 8, "s15", 15 * SLOT); srd(32, 10, "s14", 147456); srd(84, 8, "s15", 196608)
if STAMP:
    A("s_mov_b32 s36, s12"); A("s_mov_b32 s37, s13"); A("s_mov_b32 s38, 0x100000"); A("s_mov_b32 s39, 0x20000")
A("s_add_u32 %s, %s, %d" % (sKend, sKbeg, 3 * SLOT))
A("s_add_u32 %s, %s, %d" % (sVend, sVbeg, 3 * SLOT))
A("s_mul_i32 %s, %s, %d" % (sQL, sWave, QWAVE))
A("s_add_u32 %s, %s, %d" % (sQL, sQL, QLDS))
A("v_xor_b32 v%d, v%d, v%d" % (t2, t5, t4))
A("v_lshlrev_b32 v%d, 4, v%d" % (t2, t2))
A("v_lshl_add_u32 v%d, v%d, 7, v%d" % (t2, t5, t2))
A("s_mul_i32 %s, %s, 6144" % (sTmp, sWave))
A("s_cmp_lt_u32 %s, 2" % sWave)
A("s_cselect_b32 s3, 0, 4")
A("s_mul_i32 s3, s3, %d" % SLOT)
A("s_add_u32 %s, %s, s3" % (sTmp, sTmp))
A("v_add_u32 v249, %s, v%d" % (sTmp, t2))
A("v_and_b32 v%d, 3, v%d" % (t4, vLN))
A("v_xor_b32 v%d, v%d, v%d" % (t2, t5, t4))
A("v_lshlrev_b32 v%d, 4, v%d" % (t2, t2))
A("v_lshl_add_u32 v%d, v%d, 8, v%d" % (t2, t4, t2))
A("v_bfe_u32 v%d, v%d, 2, 1" % (t4, vLN))
A("v_mul_u32_u24 v%d, %d, v%d" % (t4, QKS, t4))
A("v_add3_u32 v%d, v%d, v%d, %s" % (vQW, t2, t4, sQL))
A("v_and_b32 v%d, 15, v%d" % (t2, vLN))
A("v_xor_b32 v%d, v%d, v%d" % (t4, t2, t3))
A("v_lshlrev_b32 v%d, 4, v%d" % (t4, t4))
A("v_lshl_add_u32 v%d, v%d, 8, v%d" % (t4, t3, t4))
A("v_add_u32 v%d, %s, v%d" % (vQA, sQL, t4))
A("v_lshlrev_b32 v%d, 7, v%d" % (t6, t2))
A("v_lshrrev_b32 v%d, 5, v%d" % (t4, vLN))
A("v_xor_b32 v%d, v%d, v%d" % (t4, t4, vLN))
A("v_and_b32 v%d, 7, v%d" % (t4, t4))
A("v_lshl_add_u32 v%d, v%d, 4, v%d" % (t6, t4, t6))
A("v_xor_b32 v%d, v%d, v%d" % (t4, t3, t5))
A("v_and_b32 v%d, 1, v%d" % (t4, t4))
A("v_lshl_add_u32 v%d, v%d, 3, v%d" % (t6, t4, t6))
A("v_add_u32 v248, %s, v%d" % (sTmp, t6))
A("ds_write_b64 v%d, v[248:249] offset:%d" % (vQA, 2 * QRB))
A("v_and_b32 v%d, 6, v%d" % (t4, vLN))
A("v_xor_b32 v%d, v%d, v%d" % (t4, t4, t3))
A("v_lshlrev_b32 v%d, 4, v%d" % (t4, t4))
A("v_lshl_add_u32 v%d, v%d, 7, v%d" % (vKA[0], t2, t4))
A("v_add_u32 v%d, %d, v%d" % (vKA[0], KRING, vKA[0]))
A("v_xor_b32 v%d, 64, v%d" % (vKA[1], vKA[0]))
A("v_lshrrev_b32 v%d, 2, v%d" % (t4, vLN))
A("v_lshlrev_b32 v%d, 7, v%d" % (t4, t4))
A("v_and_b32 v%d, 3, v%d" % (t2, vLN))
A("v_lshl_add_u32 v%d, v%d, 3, v%d" % (t4, t2, t4))
A("v_bfe_u32 v%d, v%d, 3, 2" % (t2, vLN))
A("v_lshl_add_u32 v%d, v%d, 5, v%d" % (t4, t2, t4))
A("v_add_u32 v%d, %d, v%d" % (vVA[0], VRING + 2 * SLOT, t4))
for x in range(1, 4): A("v_xor_b32 v%d, %d, v%d" % (vVA[x], 32 * x, vVA[0]))
A("s_mov_b32 s40, 0x%x" % CSCALE); A("s_mov_b32 s41, 0x%x" % CSCALE)
A("s_mov_b32 %s, 0xffff0000" % sMask)
A("s_mov_b32 %s, 0" % sIT)
A("s_mov_b32 %s, %d" % (sKoff, 4 * SLOT))
A("s_mov_b32 %s, %d" % (sVoff, 2 * SLOT))
A("s_add_u32 %s, %s, %d" % (sKm, sKbeg, SLOT))
A("s_mov_b32 %s, %d" % (sXoff, 13 * SLOT)); A("s_add_u32 %s, %s, %d" % (sXm, sVbeg, VX))
A("s_mov_b32 s90, %d" % (-2 * SLOT)); A("s_mov_b32 s91, %d" % SLOT); A("s_mov_b32 s94, %d" % (2 * SLOT - 256)); A("s_movk_i32 s95, 128")
A("s_add_u32 %s, %s, %d" % (sVm, sVbeg, 2 * SLOT))
A("s_mov_b32 %s, 0x%x" % (sLo, f2u(2.0 ** float(opts.get("llo", -20)))))
A("s_mov_b32 %s, 0x%x" % (sHi, f2u(2.0 ** float(opts.get("lhi", 24)))))
A("s_mov_b64 %s, 0" % sBad)
for i in vL: A("v_mov_b32 v%d, 0" % i)
ZR = FQ[5][1]
for i in range(4): A("v_accvgpr_write_b32 a%d, 0" % (124 + i))
A("v_mov_b32 v%d, %d" % (t2, FLAG))
A("ds_write_b32 v%d, v%d" % (t2, vL[0]))
def zero16(f, i): A("v_mfma_f32_32x32x16_bf16 %s[%d:%d], %s, %s, 0" % (f, i, i + 15, ZR, ZR))
for i in range(128, 256, 16): zero16("a", i)
A("HOPS0")
vwait("K1" if K1E else "K0")
A("s_waitcnt lgkmcnt(0)")
A("s_barrier")
K0F = [V(G[rb][1], 4) for rb in range(6)] + [V(X[rb][1], 4) for rb in LATE] + FB
for n in range(12): A(k_read(K0F[n], 3, n >> 1, n & 1))
def pro_sm(rb):
    ops = sm(rb, 0, 0) + sm(rb, 0, 1)
    for t in [t for t in ops if t.startswith("v_exp")] + ["s_nop 0"] + [t for t in ops if not t.startswith("v_exp")]: A(t)
pend = [("Q", rb, i) for rb in range(QD, 6) for i in range(6)]
pend += [(k, x, cb) for k, x in (("K", 1), ("V", 0), ("K", 2), ("V", 1), ("K", 3))[K1E:3 + XP] for cb in range(3)]
deferred = pend[len(pend) - 3 * DEF:]; pend = pend[:len(pend) - 3 * DEF]
def qdst(rb, ks): return Ac(rb * 24 + ks * 4, 4) if rb < 4 else V(raw(rb, ks), 4)
def st_read(s_):
    rb, cb = divmod(s_, 3)
    for ks in (2 * cb, 2 * cb + 1): A(q_read(qdst(rb, ks), rb & 1, ks))
def st_mfma(s_):
    rb, cb = divmod(s_, 3)
    for hf in range(2):
        for ks in (2 * cb, 2 * cb + 1):
            d = V((G[rb][0] if hf == 0 else X[rb][0]), 4)
            A("%s %s, %s, %s, %s" % (MF, d, K0F[2 * ks + hf], qdst(rb, ks), "0" if ks == 0 else d))
nleft = 36
for s_ in range(18):
    rb, cb = divmod(s_, 3)
    for rh in range(2):
        i = 2 * cb + rh
        vwait("Q%d.%d" % (rb, i))
        if s_ == 17 and rh == 1: P += stamp(1)
        r0 = raw(rb, i); tb = 240 + 8 * rh
        for k in range(4):
            A("v_lshlrev_b32 v%d, 16, v%d" % (tb + 2 * k, r0 + k)); A("v_and_b32 v%d, %s, v%d" % (tb + 2 * k + 1, sMask, r0 + k))
        for k in range(4): A("v_pk_mul_f32 %s, %s, %s" % (V(tb + 2 * k, 2), V(tb + 2 * k, 2), sC2))
        for k in range(4): A("v_cvt_pk_bf16_f32 v%d, v%d, v%d" % (r0 + k, tb + 2 * k, tb + 2 * k + 1))
        if rh == 0 and s_ >= 1: st_read(s_ - 1)
        A("ds_write_b128 v%d, %s offset:%d" % (vQW, V(r0, 4), (rb & 1) * QRB + cb * 2 * QKS + rh * 128))
        if s_ == 17 and rh == 1: st_read(17)
        if pend and (pend[0][0] == "Q" or len(pend) >= nleft - int(opts.get("kvl", 3))):
            for _ in range(-(-len(pend) // nleft)): issue(*pend.pop(0))
        nleft -= 1
        if nleft == 0:
            for x in deferred[:3]: issue(*x)
    if s_ >= 1:
        A("s_waitcnt lgkmcnt(%d)" % (2 if s_ < 17 else 4)); st_mfma(s_ - 1)
        if "dum" in opts and s_ < 17:
            d0, d1 = [int(x) for x in opts["dum"].split(",")]
            rbp, cbp = divmod(s_ - 1, 3)
            for i in range(d0 + (d1 - d0) * s_ // 16):
                A("%s a[112:115], %s, %s, a[112:115]" % (MF, K0F[i % 12], qdst(rbp, 2 * cbp + (i & 1))))
    if cb == 1 and rb >= 1 and rb - 1 in EARLY: pro_sm(rb - 1)
    if s_ == int(opts.get("hs", 2)) and (int(opts.get("hskip", 3)) < 2 or len(opts.get("pages", "1,2,4,5,6").split(",")) > 4): A("HOPS1")
    for i in {7: (96, 112, 128), 13: (144, 160, 176), 16: (192, 208)}.get(s_, ()): zero16("v", i)
A("s_waitcnt lgkmcnt(0)")
st_mfma(17)
for i in (240, 224): zero16("v", i)
for x in deferred[3:]: issue(*x)
if not K1E:
    vwait("K1")
    A("s_barrier")
for a_ in vKA: A("v_add_u32 %s, %d, %s" % (V(a_), SLOT, V(a_)))
A(k_read(FB[0], 0, 0, 0)); A(k_read(FB[1], 0, 1, 0))
for rb in LATE:
    for k in range(2): A(q_read(FQ[rb][k], rb - 4, k))
if TLB & 2: A("buffer_load_dword v%d, v%d, %s, 0 offen nt" % (vQW, vQG, sO))
assert vm[-6 - 3 * XP:] == sum([[x] * 3 for x in ("V0", "K2", "V1", "K3")[:2 + XP]], []), vm
A("s_waitcnt lgkmcnt(0)")
P += stamp(2)

B0, q0 = body(0, [])
B1, q1 = body(1, q0)
B0, q0b = body(0, q1)
assert q0 == q0b
BP, qp_ = body(0, [], peel=True)
assert qp_ == q0
BP += ["s_add_u32 %s, %s, %d" % (sKoff, sKoff, SLOT), "s_add_u32 %s, %s, %d" % (sKm, sKm, SLOT),
       "s_add_u32 %s, %s, %d" % (sVoff, sVoff, SLOT), "s_mov_b32 %s, %s" % (sVm, sVbeg), "s_mov_b32 %s, 1" % sIT]
if STAMP == 7: BP += stamp(7)
if STAMP == 3:
    pre3 = ["s_mov_b32 m0, s13", "s_add_u32 s13, s13, 1", "v_writelane_b32 v15, s88, m0", "s_memrealtime s[88:89]"]
    BP = ["s_mov_b32 s13, 0", "s_mov_b32 s88, 0"] + pre3 + BP; B0 = pre3 + B0; B1 = pre3 + B1

T = []
A = T.append
T += stamp(3)
if STAMP == 3:
    T += pre3 + ["s_waitcnt lgkmcnt(0)"] + pre3[:3]
    A("v_mbcnt_lo_u32_b32 v16, -1, 0"); A("v_mbcnt_hi_u32_b32 v16, -1, v16"); A("v_lshlrev_b32 v16, 2, v16")
    A("s_lshl_b32 s3, s2, 2"); A("s_add_u32 s3, s3, %s" % sWave); A("s_lshl_b32 s3, s3, 8"); A("s_add_u32 s3, s3, 65536")
    A("buffer_store_dword v15, v16, %s, s3 offen" % sW)
eW = [16, 17, 18, 19]; eR = vQW; eS = vQG
for a_ in vKA: A("v_subrev_u32 %s, %d, %s" % (V(a_), 2 * SLOT, V(a_)))
def R4(x): return "%s[%d:%d]" % (x[0], x[1], x[1] + 3)
def R2(x, h): return "%s[%d:%d]" % (x[0], x[1] + 2 * h, x[1] + 2 * h + 1)
def vrd(dst, tile, db):
    return ["ds_read_b64_tr_b16 %s, %s offset:%d" % (R2(dst, i), V(vVA[db & 3]), {13: 3, 14: 1, 15: 4}[tile] * SLOT + (db >> 2) * 4096 + i * 2048) for i in range(2)]
X15 = {0: X[4][0], 1: X[5][0], 2: G[5][0], 3: X[0][0], 4: X[4][1], 5: X[5][1]}
G15 = {0: G[0][1], 1: G[1][1], 2: G[2][1], 3: G[1][0], 4: G[1][1], 5: G[2][0]}
def fs(rb, t): return [(G[rb][0] if t == 14 else G15[rb]) + i for i in range(4)] + [(X[rb][0] if t == 14 else X15[rb]) + i for i in range(4)]
def fsm(rb, t, half):
    ops = []; s_ = fs(rb, t)
    for i in (4 * half, 4 * half + 2):
        ops += ["v_exp_f32 %s, %s" % (V(s_[i]), V(s_[i])), "v_exp_f32 %s, %s" % (V(s_[i + 1]), V(s_[i + 1])),
                "v_add_f32 %s, %s, %s" % (V(vL[rb]), V(vL[rb]), V(s_[i])), "v_add_f32 %s, %s, %s" % (V(vL[rb]), V(vL[rb]), V(s_[i + 1])),
                "v_cvt_pk_bf16_f32 %s, %s, %s" % (V(s_[i // 2]), V(s_[i]), V(s_[i + 1]))]
    return ops
def qp(p): return [("a", rb * 24 + 8 * p + 4 * k) for rb in range(3) for k in range(2)]
def sb(*l): return [("a", 96 + 4 * i) for i in l]
vres = qp(0) + sb(4, 5) + qp(1) + sb(6, 7, 0, 1) + qp(2)
def v13(db): return ("v", 192 + 4 * db)
def phase_mf(rb):
    o = ["%s %s, %s, %s, %s" % (MF, O4(rb, db), R4(v13(db)), V(G[rb][1], 4), O4(rb, db)) for db in range(12)] if rb >= 3 else []
    return o + ["%s %s, %s, %s, %s" % (MF, O4(rb, db), R4(vres[12 * t + db]), V(fs(rb, 14 + t)[0], 4), O4(rb, db)) for t in range(2) for db in range(12)]
def lfin(rb):
    tmp = X15[rb]; l = vL[rb]; o = []
    for sw in ("v_permlane32_swap_b32", "v_permlane16_swap_b32"):
        o += ["v_mov_b32 v%d, v%d" % (tmp, l), "%s v%d, v%d" % (sw, l, tmp), "v_add_f32 v%d, v%d, v%d" % (l, l, tmp)]
    o += ["v_cmp_nle_f32 vcc, %s, v%d" % (sLo, l), "v_cmp_nge_f32 %s, %s, v%d" % (sB2, sHi, l), "v_rcp_f32 v%d, v%d" % (l, l)]
    return [Op(t) for t in o]
def wreg(n):
    fl, i0 = Oreg(n // 3, 4 * (n % 3))
    return i0 if fl == "v" else 96 + 16 * (n % 6)
def stg(n): return (n % 3) * 2048
def ep_st(n, rh):
    rb, cb = divmod(n, 3)
    return "buffer_store_dwordx4 %s, v%d, %s, %s offen offset:%d %s" % (V(wreg(n) + 8 + 4 * rh, 4), eS, sO, sRB(rb), rh * 3072 + cb * 128, "" if n >= int(opts.get("plain", 99)) else "nt sc1" if str(rb) in opts.get("ntrb", "") or ("nth" in opts and rh == 1 and rb < int(opts["nth"])) else SPOL)
def ep_rd(n):
    return ["ds_read_b128 %s, v%d offset:%d" % (V(wreg(n) + 8, 4), eR, stg(n))] + \
           ["ds_read_b64 %s, v%d offset:%d" % (V(wreg(n) + 12 + 2 * k, 2), eR, stg(n) + 1024 + 8 * (1 - k)) for k in range(2)]
ROWS = int(opts.get("rows", 0))
def burst(rb):
    A("s_or_b64 %s, %s, vcc" % (sBad, sBad)); A("s_or_b64 %s, %s, %s" % (sBad, sBad, sB2))
    lp = vL[rb] & ~1; sel = vL[rb] & 1
    for cb in range(3):
        n = 3 * rb + cb
        fl, i0 = Oreg(rb, 4 * cb); w = wreg(n)
        if fl == "a":
            for i in range(16):
                if rb < 5 or 4 * cb + i // 4 >= PRE5: A("v_accvgpr_read_b32 %s, %s" % (V(w + i), Ac(i0 + i)))
        for i in range(0, 16, 2):
            A("v_pk_mul_f32 %s, %s, %s op_sel:[0,%d] op_sel_hi:[1,%d]" % (V(w + i, 2), V(w + i, 2), V(lp, 2), sel, sel))
        if cb == 2 and not ROWS: A("s_waitcnt lgkmcnt(4)"); A(ep_st(n - 2, 0))
        for i in range(8): A("v_cvt_pk_bf16_f32 %s, %s, %s" % (V(w + i), V(w + 2 * i), V(w + 2 * i + 1)))
        if cb == 2 and not ROWS: A(ep_st(n - 2, 1))
        if cb >= 1:
            for t in ep_rd(n - 1): A(t)
        for x in range(4):
            A("ds_write_b64 v%d, %s offset:%d" % (eW[x], V(w + 2 * x, 2), stg(n)))
def group_block(rbs, buf, qf, first):
    mf = []; frag = []
    for t in ((14, 13, 15) if first else (14, 15)):
        if t == 13:
            for db in range(12):
                b = buf[len(frag) % 8]; frag.append((len(mf), vrd(b, 13, db), len(mf) + 2))
                mf += ["%s %s, %s, %s, %s" % (MF, O4(rb, db), R4(b), V(G[rb][1], 4), O4(rb, db)) for rb in rbs]
        else:
            for g in range(6):
                p, hf = (g >> 1, g & 1) if (t == 15 and first) else (g % 3, g // 3)
                bs = [buf[(len(frag) + k) % 8] for k in range(2)]
                for k in range(2): frag.append((len(mf), [k_read(R4(bs[k]), t - 12, 2 * p + k, hf)], len(mf) + 5))
                for rb in rbs:
                    for k in range(2):
                        d = V(fs(rb, t)[4 * hf], 4)
                        mf.append("%s %s, %s, %s, %s" % (MF, d, R4(bs[k]), qf(rb, 2 * p + k), "0" if p + k == 0 else d))
    return mf + phase_mf(rbs[0]), frag
def place(pinned, g, ins):
    while len(pinned.get(g, [])) + len(ins) > 2 or any(t.startswith("buffer") for t in pinned.get(g, [])): g += 1
    pinned.setdefault(g, []).extend(ins); return g
def block_stream(mf, rbs, lag):
    st = []
    r0_, r1_, r2_ = rbs
    for rb, t, h in ((r0_, 14, 0), (r1_, 14, 0), (r2_, 14, 0), (r0_, 14, 1), (r1_, 14, 1), (r2_, 14, 1), (r0_, 15, 0), (r0_, 15, 1), (-1, 0, 0), (r1_, 15, 0)):
        if rb < 0: st += lfin(r0_); continue
        ready = last_write_slot(mf[:108], "v%d" % fs(rb, t)[4 * h]) + lag
        dead = 131 if rb != r0_ else (105 if t == 14 else 117)
        st += [Op(x, ready, dead) for x in fsm(rb, t, h)]
    return st
def leftovers(n):
    rd = ep_rd(n)
    if ROWS:
        d = {4: rd[:2], 5: rd[2:]}
        for i in range(6): d[11 + i + (i // 3) * int(opts.get("rgap", 2))] = [ep_st(n - 2 + i % 3, i // 3)]
        return d
    return {1: [ep_st(n - 1, 0)], 4: [ep_st(n - 1, 1)], 7: rd[:2], 8: rd[2:], 17: [ep_st(n, 0)], 20: [ep_st(n, 1)]}
def small_phase(rb, nxt, extra=()):
    scal = [(0, ["s_waitcnt lgkmcnt(4)"], True), (16, ["s_waitcnt lgkmcnt(0)"], True)] if not ROWS else [(10, ["s_waitcnt lgkmcnt(0)"], True)]
    st = [Op(t, 0, 10) for t in fsm(rb, 15, 1)] + lfin(rb)
    if nxt is not None: st += [Op(t) for t in fsm(nxt, 15, 0)]
    pinned = leftovers(3 * rb - 1)
    for g, ins in extra: pinned[g] = ins
    if extra: scal[1] = (16, ["s_waitcnt lgkmcnt(%d)" % sum(len(ins) for g, ins in extra if g < 16)], True)
    blk, _ = schedule(phase_mf(rb), pinned, scal, st, [], "phase%d" % rb, excl=True)
    return blk
bufA = [("a", 96 + 4 * i) for i in range(8)]
mf, frag = group_block([0, 1, 2], bufA, Qf, True)
pinned = {}
for i, (use, ins, _) in enumerate(frag):
    if i < 2: continue
    place(pinned, max(0 if i < 8 else frag[i - 8][2], use - 15 + (i & 1)), ins)
g = 80; gv = {}
for n in range(24):
    free = 1 + max(k for k, t in enumerate(mf[:108]) if ("a%d" % vres[n][1]) in Ins(t).rd)
    g = place(pinned, max(g, free), vrd(vres[n], 14 + n // 12, n % 12))
    gv[n] = g; g += (1 if n < 17 else 2)
place(pinned, 124, ["ds_read_b64 v[16:17], v%d offset:%d" % (vQA, 2 * QRB)])
scal = [(51, ["s_waitcnt vmcnt(12)", "s_barrier"], False), (74, ["s_waitcnt vmcnt(9)", "s_barrier"], False), (90, ["s_waitcnt vmcnt(0)", "s_barrier"], False)]
st = [Op(t) for h in range(2) for t in sm(4, 1, h)] + block_stream(mf, [0, 1, 2], 5)
blk, _ = schedule(mf, pinned, scal, st, q0, "blockA", excl=True)
T += blk
if "fine" in opts: T += stamp(1)
A("s_waitcnt lgkmcnt(0)")
A("v_mov_b32 v%d, v17" % eR)
for x in (1, 2, 3): A("v_xor_b32 v%d, %d, v16" % (eW[x], 32 * x))
burst(0)
T += small_phase(1, 2); burst(1)
bufB = [("v", 96 + 4 * i) for i in range(8)]
def qfB(rb, ks): return Qf(rb, ks) if rb < 4 else V(128 + 24 * (rb - 4) + 4 * ks, 4)
mfB, fragB = group_block([3, 4, 5], bufB, qfB, False)
pre = [fragB[i][1][0] for i in range(4)] + [q_read(qfB(rb, k), rb - 4, k) for k in range(6) for rb in LATE]
T += small_phase(2, None, [(g, pre[2 * i:2 * i + 2]) for i, g in enumerate((11, 14, 18, 19, 21, 22, 23))])
for t in pre[14:]: A(t)
for x in range(4): A("v_mov_b32 v%d, v%d" % (G[0][0] + x, eW[x]))
eW = [G[0][0] + x for x in range(4)]
burst(2)
if "fine" in opts: T += stamp(2)
pinned = leftovers(8)
for i, (use, ins, _) in enumerate(fragB):
    if i < 4: continue
    g = place(pinned, max(0 if i < 8 else fragB[i - 8][2], use - 15 + (i & 1)), ins)
g = 22
for db in range(12): g = place(pinned, g, vrd(v13(db), 13, db)) + 3
if ROWS:
    later = sum(1 for g in range(6, 10) for t in pinned.get(g, []) if t.startswith("ds_")) + len(pinned[5]) - 1
    scal = [(10, ["s_waitcnt lgkmcnt(%d)" % later], True)]
else:
    later = sum(1 for g in range(9, 16) for t in pinned.get(g, []) if t.startswith("ds_")) + len(pinned[8]) - 1
    scal = [(0, ["s_waitcnt lgkmcnt(4)"], True), (16, ["s_waitcnt lgkmcnt(%d)" % later], True)]
st = [Op(t, 0, 50) for h in range(2) for t in sm(5, 1, h)]
for rb, t, h, dead in ((3, 14, 0, 81), (4, 14, 0, 107), (5, 14, 0, 107), (3, 14, 1, 81), (4, 14, 1, 107), (3, 15, 0, 93), (3, 15, 1, 93), (-1, 0, 0, 0), (5, 14, 1, 107)):
    if rb < 0: st += lfin(3); continue
    st += [Op(x, last_write_slot(mfB[:72], "v%d" % fs(rb, t)[4 * h]) + 7, dead) for x in fsm(rb, t, h)]
if ROWS: A("s_waitcnt lgkmcnt(7)")
blk, _ = schedule(mfB, pinned, scal, st, [], "blockB", excl=True)
T += blk
if "fine" in opts: T += stamp(0)
burst(3)
scal = [(0, ["s_waitcnt lgkmcnt(4)"], True), (16, ["s_waitcnt lgkmcnt(0)"], True)] if not ROWS else [(10, ["s_waitcnt lgkmcnt(0)"], True)]
st = [Op(t, 0, 22) for h in range(2) for t in fsm(4, 15, h)] + lfin(4) + [Op(t) for h in range(2) for t in fsm(5, 15, h)]
blk, _ = schedule(phase_mf(4), leftovers(11), scal, st, [], "phase4", excl=True)
T += blk
burst(4)
m5 = phase_mf(5); m5 = [m5[12 * t + db] for db in range(12) for t in range(3)]
st = lfin(5)
PRE5 = 9
for db in range(PRE5):
    st += [Op("v_accvgpr_read_b32 %s, %s" % (V(wreg(15 + db // 4) + 4 * (db % 4) + i), Ac(Oreg(5, db)[1] + i)), 3 * db + 2 + 5) for i in range(4)]
blk, _ = schedule(m5, leftovers(14), scal, st, [], "phase5", excl=True)
T += blk
T += stamp(4)
burst(5)
if not ROWS:
    A("s_waitcnt lgkmcnt(4)")
    A(ep_st(16, 0)); A(ep_st(16, 1))
for t in ep_rd(17): A(t)
A("s_cmp_eq_u64 %s, 0" % sBad)
A("s_cbranch_scc1 L_good")
A("v_mov_b32 v2, %d" % FLAG); A("v_mov_b32 v3, 1")
A("ds_write_b32 v2, v3")
A("L_good:")
A("s_waitcnt lgkmcnt(0)")
if ROWS:
    for i in range(6): A(ep_st(15 + i % 3, i // 3))
else: A(ep_st(17, 0)); A(ep_st(17, 1))
if STAMP:
    T += stamp(5)
    A("s_waitcnt vmcnt(0)")
    T += stamp(6)
    A("s_waitcnt lgkmcnt(0)")
    if "probe" in opts:
        pi, pj = [int(x) for x in opts["probe"].split(",")]
        A("s_sub_u32 s84, s%d, s%d" % (60 + 2 * pj, 60 + 2 * pi))
        if "pneg" in opts: A("s_sub_u32 s84, %s, s84" % opts["pneg"])
        if STAMP == 6:
            A("s_min_u32 s84, s84, 40000"); A("s_memrealtime s[72:73]"); A("s_waitcnt lgkmcnt(0)")
        else:
            A("s_min_u32 s84, s84, 10000")
            A("s_lshl_b32 s84, s84, 2")
        if "pcls" in opts:
            A("s_bfe_u32 s85, s2, 0x%x" % int(opts["pbits"], 16)); A("s_cmp_eq_u32 s85, %s" % opts["pcls"]); A("s_cselect_b32 s84, s84, 0")
        A("L_spin:"); A("s_sleep 2"); A("s_memrealtime s[82:83]"); A("s_waitcnt lgkmcnt(0)")
        A("s_sub_u32 s85, s82, s72"); A("s_cmp_lt_u32 s85, s84"); A("s_cbranch_scc1 L_spin")
    A("s_lshl_b32 s3, s2, 2"); A("s_add_u32 s3, s3, %s" % sWave); A("s_lshl_b32 s3, s3, 6")
    A("v_mov_b32 v10, s3")
    for i in range(16): A("v_mov_b32 v%d, s%d" % (16 + i, 60 + i))
    for i in range(4): A("buffer_store_dwordx4 v[%d:%d], v10, %s, 0 offen offset:%d" % (16 + 4 * i, 19 + 4 * i, sW, 16 * i))
A("s_barrier")
A("v_mov_b32 v0, %d" % FLAG)
A("ds_read_b32 v0, v0")
A("s_waitcnt lgkmcnt(0)")
A("v_readfirstlane_b32 %s, v0" % sTmp)
A("s_cmp_eq_u32 %s, 0" % sTmp)
A("s_cbranch_scc0 L_redo")
A("L_end:")
A("s_endpgm")
A("L_hotend:")
A("L_redo:")
A("s_waitcnt vmcnt(0)")
A("s_barrier")
A("v_mbcnt_lo_u32_b32 v0, -1, 0"); A("v_mbcnt_hi_u32_b32 v0, -1, v0")
A("s_lshl_b32 %s, %s, 6" % (sTmp, sWave))
A("v_add_u32 v0, %s, v0" % sTmp)

if "cap" in opts:
    T2 = []
    for t in T:
        if t.startswith("buffer_store") and sO in t: T2.append("s_waitcnt vmcnt(%d)" % int(opts["cap"]))
        T2.append(t)
    T = T2
if "skiprb" in opts:
    sk = [sRB(int(x)) for x in opts["skiprb"].split(",")]
    T = [t for t in T if not (t.startswith("buffer_store") and sO in t and any((", %s offen" % x) in t for x in sk))]
if "nost" in opts: T = [t for t in T if not (t.startswith("buffer_store") and sO in t)]
if "nowr" in opts: T = [t for t in T if not t.startswith("ds_write_b64")]
def I(l): return [Ins(t) for t in l if not t.startswith("HOPS")]
seq = I(P + BP + B1 + B0 + ["s_cbranch_scc1 L_loop"] + B1 + B0 + ["s_cbranch_scc1 L_loop"] + T)
errs = check_hazards(seq, "main") + check_waits(seq, "main") + check_scc(seq, "main")
for e in errs[:30]: sys.stderr.write(e + "\n")
if errs and "nost" not in opts and "skiprb" not in opts:
    print("!!! %d hazard problems" % len(errs)); sys.exit(1)
S, lds2, e2_ = gen_safe.build_safe({"qd": "3", "nt": NT})
assert lds2 <= LDS_BYTES and e2_ == 0

hdr = open("standalone__gqa_softmax__near_ridge.s.ref").read().split("; Override")[0]
code = P + ["; ---- iteration 0 (also completes the first K/V prefetch)"] + BP + ["; ---- iterations 1..12: QK(j+1) | PV(j)", ".p2align 3", "L_loop:"] + B1 + B0 + ["s_cbranch_scc1 L_loop",
       "; ---- tiles 13..15: row blocks 0-2 to the end, then 3-5; normalise, stage through LDS, store"] + T + ["; ---- online-max path (taken only when a row sum left the checked range)"]
NH = 8
DOC = """;
; Attention forward, one workgroup per (batch, head): 4 waves x 96 query rows, 16x16x32 bf16 MFMA, 32-key tiles.
;   S^T = K Q^T and O^T = V^T P^T, so a lane owns one query row; K/V tiles stream HBM -> LDS (LDS-DMA, XOR-swizzled),
;   softmax VALU work is interleaved with the MFMAs of the neighbouring tile.
; Fast path: Q is scaled by log2(e)/sqrt(192) once, p = 2^s is taken against the reference point 0 (softmax is shift
;   invariant).  Every row sum is checked against [2^-20, 2^24] (NaN and inf fail the check); if any row of the head
;   fails, the whole workgroup recomputes the head on the path labelled S_* which subtracts the running row maximum.
; The last tiles are processed row block by row block so that output stores overlap the remaining matrix work.
; Generated by the author's own script (instruction scheduling and hazard checking included).""".split("\n")
def render(code, nh):
    out = [hdr.rstrip(), "; @launch grid=(256,1,1) block=(256,1,1) lds=%d" % LDS_BYTES] + DOC + [
           '.amdgcn_target "amdgcn-amd-amdhsa--gfx950"', ".text", ".globl %s" % KN, ".p2align 8", ".type %s,@function" % KN, "%s:" % KN, "L_start:"]
    for t in code + S:
        if t.startswith("HOPS"):
            if not HOP: continue
            r_ = int(t[4:])
            out += ["; visit the first line of later code pages (no lane active, no memory instruction on that path)", "    s_mov_b64 exec, 0"]
            for w in range(4):
                k = 4 * r_ + w
                out += ["    s_cmp_eq_u32 %s, %d" % (sWave, w), "    s_cbranch_scc1 %s" % ("L_hop%d" % k if k < nh else "L_hopback%d" % r_)]
            out += ["L_hopback%d:" % r_, "    s_mov_b64 exec, -1"]
            continue
        t = t.replace("CODELEN", "L_hotend-L_main" if HOP else "L_hotend-L_pc").replace("CODEOFF", "L_main-L_pc+4" if HOP else "0")
        out.append(t if t.endswith(":") or t.startswith((".", ";")) else "    " + t)
    out += ['.section .rodata,"a"', ".p2align 6", ".amdhsa_kernel %s" % KN, "  .amdhsa_next_free_vgpr 512", "  .amdhsa_next_free_sgpr 96",
            "  .amdhsa_accum_offset 256", "  .amdhsa_group_segment_fixed_size 0", "  .amdhsa_kernarg_size 48", "  .amdhsa_user_sgpr_count 2",
            "  .amdhsa_user_sgpr_kernarg_segment_ptr 1", "  .amdhsa_system_sgpr_workgroup_id_x 1", ".end_amdhsa_kernel", ""]
    return "\n".join(out)
import subprocess, re as _re
def addresses(code, nh):
    marked = []
    for i, t in enumerate(code): marked += ["M_%d:" % i, t]
    open("_g7.s", "w").write(render(marked, nh))
    subprocess.run(["clang", "-x", "assembler", "-target", "amdgcn-amd-amdhsa", "-mcpu=gfx950", "-c", "_g7.s", "-o", "_g7.o"], check=True)
    sy = subprocess.run(["llvm-objdump", "-t", "_g7.o"], capture_output=True, text=True).stdout
    ad = {m.group(2): int(m.group(1), 16) for m in _re.finditer(r"^([0-9a-f]+) .* (\S+)$", sy, _re.M)}
    return [ad["M_%d" % i] - ad["L_main"] for i in range(len(code))]
nh = 0
if HOP:
    STEP = int(opts.get("hstep", 4096))
    while nh < NH:
        ad = addresses(code, nh)
        pages = [int(x) for x in opts.get("pages", "1,2,4,5,6").split(",") if x] or list(range(1 + int(opts.get("hskip", 3)), 20))
        if nh >= len(pages): break
        lo = STEP * pages[nh]
        if lo >= ad[code.index("L_end:")]: break
        cand = [i for i in range(1, len(code)) if lo <= ad[i] < lo + 56]
        good = [i for i in cand if code[i - 1].startswith("v_mfma") and not code[i].startswith("s_")]
        i = (good or cand)[0]
        code[i:i] = ["L_hop%d:" % nh, "s_cbranch_execz L_hopback%d" % (nh // 4), "s_nop 0"][:2 + (1 if "L_loop:" in code[:i] and "s_cbranch_scc1 L_loop" in code[i:] and False else 0)]
        nh += 1
    sys.stderr.write("hops: %d\n" % nh)
open(sys.argv[1], "w").write(render(code, nh))
```

```python
import sys, math, struct
from asmlib import *
from sched import *
import gen_safe

opts = dict(a.split("=") for a in sys.argv[2:])
STAMP = int(opts.get("stamp", 0))
NT = opts.get("nt", "nt").replace("+", " ")
SPOL = opts.get("spol", "sc1").replace("+", " ")
QD = int(opts.get("qd", 3))
DEF = int(opts.get("defer", 2))
STG2 = [tuple(int(y) for y in x.split(":")) for x in opts.get("stg2", "0:1:3:21").split(",") if x]
XP = int(opts.get("xp", 2))
KN = "standalone__gqa_softmax__near_ridge_kernel"
def f2u(x): return struct.unpack("<I", struct.pack("<f", x))[0]
CSCALE = f2u(math.log2(math.e) / math.sqrt(192.0))

VRING = 0; VX = 36864; KRING = 49152; KX = 86016; QLDS = 98304; SLOT = 12288
QKS = 1088; QRB = 6 * QKS; QWAVE = 2 * QRB + 1024
FLAG = QLDS + 4 * QWAVE
LDS_BYTES = FLAG + 64
def V(i, n=1): return "v%d" % i if n == 1 else "v[%d:%d]" % (i, i + n - 1)
def Ac(i, n=1): return "a%d" % i if n == 1 else "a[%d:%d]" % (i, i + n - 1)
vKA = [0, 1]; vVA = [2, 3, 4, 5]; vQA = 6; vDMA = 7
vL = [8 + i for i in range(6)]; vQG = 14; vQW = 15
FB = [Ac(96 + 4 * i, 4) for i in range(4)]
FQ = {4: [Ac(112, 4), Ac(116, 4)], 5: [Ac(120, 4), Ac(124, 4)]}
EARLY = [0, 1, 2, 3]; LATE = [4, 5]
G = {}; X = {}
r = 16
for rb in LATE:
    G[rb] = [r, r + 4]; X[rb] = [r + 8, r + 12]; r += 16
for rb in EARLY:
    G[rb] = [r, r + 4]; X[rb] = [r + 8, r + 8]; r += 12
assert r == 96
def Oreg(rb, db):
    b = rb * 12 + db
    return ("v", 96 + 4 * b) if b < 40 else ("a", 128 + 4 * (b - 40))
def O4(rb, db):
    f, i = Oreg(rb, db); return "%s[%d:%d]" % (f, i, i + 3)
def Qf(rb, ks): return Ac(rb * 24 + ks * 4, 4) if rb < 4 else FQ[rb][ks & 1]
sQ = "s[20:23]"; sK = "s[24:27]"; sV = "s[28:31]"; sO = "s[32:35]"; sW = "s[36:39]"
sC2 = "s[40:41]"; sIT = "s42"; sKoff = "s43"; sVoff = "s44"; sKm = "s45"; sVm = "s46"; sWave = "s47"
sTmp = "s48"; sRow = "s49"; sKend = "s50"; sVend = "s51"; sKbeg = "s52"; sVbeg = "s53"; sQL = "s16"; sCls = "s17"
sVX = "s[84:87]"; sXoff = "s74"; sXm = "s75"; sKr = "s82"; sVr = "s83"; sKd = "s92"; sVd = "s93"
sMask = "s54"; sLo = "s76"; sHi = "s77"; sBad = "s[78:79]"; sB2 = "s[80:81]"
def sRB(rb): return "0" if rb == 0 else "s%d" % (54 + rb)
MF = "v_mfma_f32_16x16x32_bf16"

def k_read(dst, tile_par, ks, hf):
    return "ds_read_b128 %s, %s offset:%d" % (dst, V(vKA[ks & 1]), tile_par * SLOT + (ks >> 1) * 4096 + hf * 2048)
def v_read(a0, tile_par, db):
    return ["ds_read_b64_tr_b16 %s, %s offset:%d" % (Ac(a0 + 2 * i, 2), V(vVA[db & 3]), tile_par * SLOT + (db >> 2) * 4096 + i * 2048) for i in range(2)]
def q_read(dst, area, ks):
    return "ds_read_b128 %s, %s offset:%d" % (dst, V(vQA), area * QRB + ks * QKS)
def qk_mfmas(par, last_up=False):
    out = []
    for g in range(6):
        p, hf = g >> 1, g & 1
        for rb in (range(6) if hf == 0 or (last_up and g == 5) else range(5, -1, -1)):
            for k in range(2):
                ks = 2 * p + k
                d = V((G[rb][par] if hf == 0 else X[rb][par]), 4)
                out.append("%s %s, %s, %s, %s" % (MF, d, FB[(2 * g + k) % 4], Qf(rb, ks), "0" if ks == 0 else d))
    return out
def sregs(rb, par): return [G[rb][par] + i for i in range(4)] + [X[rb][par] + i for i in range(4)]
def sm(rb, par, half):
    ops = []; s = sregs(rb, par)
    for i in (4 * half, 4 * half + 2):
        ops.append("v_exp_f32 %s, %s" % (V(s[i]), V(s[i])))
        ops.append("v_exp_f32 %s, %s" % (V(s[i + 1]), V(s[i + 1])))
        ops.append("v_add_f32 %s, %s, %s" % (V(vL[rb]), V(vL[rb]), V(s[i])))
        ops.append("v_add_f32 %s, %s, %s" % (V(vL[rb]), V(vL[rb]), V(s[i + 1])))
        ops.append("v_cvt_pk_bf16_f32 %s, %s, %s" % (V(G[rb][par] + i // 2), V(s[i]), V(s[i + 1])))
    return ops
def last_write_slot(mf, reg): return max(g for g, t in enumerate(mf) if reg in Ins(t).wr)
def paced(ops, g0, g1, floor=0, dead=10 ** 9):
    os_ = [Op(t) for t in ops]; tot = sum(o.cost for o in os_); acc = 0
    for o in os_:
        o.ming = max(floor, int(g0 + (g1 - g0) * acc / tot)); o.dead = dead; acc += o.cost
    return os_
def pin_qk(pinned, qk, tile_par, nq):
    def pin(g, t): pinned.setdefault(g, []).append(t)
    for g in range(1, 6):
        for k in range(2): pin(12 * (g - 1) + 2 * k, k_read(FB[(2 * g + k) % 4], tile_par, 2 * (g >> 1) + k, g & 1))
    lastq = {}
    for g, t in enumerate(qk):
        for rb in LATE:
            for k in range(2):
                if FQ[rb][k] in t: lastq[(g // 24, rb, k)] = g
    for p in range(nq):
        g = 0
        for (lg, rb, k) in sorted((lastq[(p, rb, k)], rb, k) for rb in LATE for k in range(2)):
            g = max(g, lg + 1)
            while g in pinned: g += 1
            pin(g, q_read(FQ[rb][k], rb - 4, (2 * p + 2 + k) % 6)); g += 2

def body(par, ds_in, peel=False):
    np_ = par ^ 1
    qk = qk_mfmas(np_)
    mf = qk + ["%s %s, %s, %s, %s" % (MF, O4(rb, db), FB[db % 4], V(G[rb][par], 4), O4(rb, db)) for db in range(12) for rb in range(6)]
    pinned = {}
    def pin(g, t): pinned.setdefault(g, []).append(t)
    for db in range(12):
        for t in v_read(96 + 4 * (db % 4), 0, db): pin({0: 60, 1: 63, 2: 72, 3: 75}.get(db, 72 + 6 * (db - 3)), t)
    pin(127, k_read(FB[0], 0, 0, 0)); pin(133, k_read(FB[1], 0, 1, 0))
    pin_qk(pinned, qk, 0, 3)
    scal = [(57, ["s_waitcnt vmcnt(%d) lgkmcnt(0)" % (7 - par)], True), (58, ["s_barrier"], True)]
    if par == 1:
        scal.append((61, ["s_mov_b32 m0, %s" % sXm], True))
        pin(62, "buffer_load_dwordx4 %s, %s, %s offen %s lds" % (V(vDMA), sVX, sXoff, NT))
        scal.append((82, ["s_cmp_eq_u32 %s, 3" % sIT, "s_cselect_b32 %s, s94, s95" % sTmp, "s_cselect_b32 s84, s24, s84", "s_cselect_b32 s85, s25, s85",
                          "s_cselect_b32 s3, %d, 0" % (KX - VX - SLOT)], False))
        scal.append((106, ["s_add_u32 %s, %s, %s" % (sXoff, sXoff, sTmp), "s_add_u32 %s, %s, 4096" % (sXm, sXm), "s_add_u32 %s, %s, s3" % (sXm, sXm)], False))
        scal.append((14, ["s_cmp_eq_u32 %s, 6" % sIT, "s_cselect_b32 s24, s28, s24", "s_cselect_b32 s25, s29, s25",
                          "s_cselect_b32 %s, %d, %s" % (sVoff, 14 * SLOT, sVoff)], False))
    adv = []
    for cnt, d in ((sVr, sVd), (sKr, sKd)):
        adv += ["s_add_u32 %s, %s, 1" % (cnt, cnt), "s_cmp_eq_u32 %s, 3" % cnt, "s_cselect_b32 %s, 0, %s" % (cnt, cnt),
                "s_cselect_b32 %s, s90, s91" % d]
    if peel: adv = ["s_mov_b32 %s, 0" % sVr, "s_mov_b32 %s, s90" % sVd, "s_mov_b32 %s, 2" % sKr, "s_mov_b32 %s, s91" % sKd]
    scal.append((1, adv, False))
    if peel:
        xg = [int(x) for x in opts.get("xg", "5,21,33,45,67,77").split(",")]
        xl = [(k, x, cb) for k, x in (("V", 1), ("K", 3))[XP:] for cb in range(3)]
        xg = xg[3 * XP:]
        for g, (k, x, cb) in zip(xg, xl):
            srd_, beg = (sK, sKbeg) if k == "K" else (sV, sVbeg)
            assert g not in pinned and (g - 2) not in xg and (g - 1) not in xg, g
            if cb == 0: scal.append((g - 2, ["s_mov_b32 %s, %d" % (sTmp, x * SLOT)], True))
            scal.append((g - 1, ["s_add_u32 m0, %s, %d" % (beg, (x % 3) * SLOT + cb * (4096 - 128))], True))
            pin(g, "buffer_load_dwordx4 %s, %s, %s offen offset:%d %s lds" % (V(vDMA), srd_, sTmp, cb * 128, NT))
        dgp = [int(x) for x in opts.get("dgp", "71,81,93,105,117,130").split(",")]
        scal[0] = (57, ["s_waitcnt vmcnt(%d) lgkmcnt(0)" % (3 + 3 * XP + sum(1 for g in xg if g < 57))], True)
        scal.append((121, ["s_waitcnt vmcnt(%d)" % (3 * XP + sum(1 for g in xg + dgp if g < 121))], True)); scal.append((122, ["s_barrier"], True))
    if par == 0 and not peel and int(opts.get("keep", 0)):
        scal.append((2, ["s_cmp_eq_u32 %s, 6" % sIT, "s_cselect_b32 %s, 0, %s" % (sVoff, sVoff)], False))
    for i in range(int(opts.get("slow", 0))):
        g = [30, 101, 54, 138, 10, 83][i]
        if peel: scal.append((g, ["s_sleep 1"], True))
        else: scal.append((g, ["s_cmp_lt_u32 %s, %d" % (sIT, int(opts.get("slowit", 3))), "s_cbranch_scc0 L_sl%d_%d" % (par, i), "s_sleep 1", "L_sl%d_%d:" % (par, i)], True))
    OW = int(opts.get("ow", 0))
    if par == 0 and OW:
        scal.append((2, ["s_cmp_eq_u32 %s, 6" % sIT, "s_cselect_b32 s28, s32, s28", "s_cselect_b32 s29, s33, s29", "s_cselect_b32 s30, s34, s30",
                         "s_cselect_b32 %s, 0, %s" % (sVoff, sVoff), "s_cselect_b32 s86, %d, 0" % (61440 if OW == 2 else 0)], False))
        scal.append((107, ["s_add_u32 %s, %s, s86" % (sVoff, sVoff)], False)); scal.append((119, ["s_add_u32 %s, %s, s86" % (sVoff, sVoff)], False))
    dg = [int(x) for x in opts.get("dg", "71,81,93,105,117,130").split(",")] if not peel else dgp
    for i in range(6):
        srd_, so, sm_ = (sV, sVoff, sVm) if i < 3 else (sK, sKoff, sKm)
        assert dg[i] not in pinned
        scal.append((dg[i] - 1, ["s_add_u32 m0, %s, %d" % (sm_, (i % 3) * (4096 - 128))], True))
        pin(dg[i], "buffer_load_dwordx4 %s, %s, %s offen offset:%d %s lds" % (V(vDMA), srd_, so, (i % 3) * 128, NT))
    for g, so, m, end, beg in () if peel else ((dg[2] + 1 if dg[3] - dg[2] > 8 else dg[5] + 8, sVoff, sVm, sVend, sVbeg), (dg[5] + 1, sKoff, sKm, sKend, sKbeg)):
        scal.append((g, ["s_add_u32 %s, %s, %d" % (so, so, SLOT), "s_add_u32 %s, %s, %d" % (m, m, SLOT),
                         "s_cmp_eq_u32 %s, %s" % (m, end), "s_cselect_b32 %s, %s, %s" % (m, beg, m)], False))
    if par == 0 and not peel: scal.append((139, ["s_add_u32 %s, %s, 1" % (sIT, sIT), "s_cmp_lt_u32 %s, 7" % sIT], False))
    st = paced(sum([sm(rb, par, h) for rb in LATE for h in range(2)], []), 0, 50, dead=70)
    st += [Op("v_add_u32 %s, %s, %s" % (V(a), sVd, V(a)), 44, 56) for a in vVA]
    st += [Op("v_add_u32 %s, %s, %s" % (V(a), sKd, V(a)), 52, 125) for a in vKA]
    E0, E1 = 55, 140
    for n, (rb, h) in enumerate([(0, 0), (1, 0), (2, 0), (3, 0), (3, 1), (2, 1), (1, 1), (0, 1)]):
        ready = last_write_slot(qk, "v%d" % sregs(rb, np_)[4 * h]) + 5
        st += paced(sm(rb, np_, h), E0 + (E1 - E0) * n / 8, E0 + (E1 - E0) * (n + 1) / 8, floor=ready)
    def capf(cap, sc, pin_):
        for g in range(144):
            if "s_barrier" in sc.get(g, []): cap[g] = 0
    return schedule(mf, pinned, scal, st, ds_in, "body%d" % par, next_first=qk_mfmas(par)[0], excl=True, capf=capf)

def stamp(i):
    if STAMP in (1, 3): return ["s_memrealtime s[%d:%d]" % (60 + 2 * i, 61 + 2 * i)]
    if STAMP == 7:
        o = ["s_memrealtime s[%d:%d]" % (60 + 2 * i, 61 + 2 * i)] if i in (0, 2, 3, 6, 7) else []
        c = {2: 1, 7: 4, 3: 5}.get(i)
        return o + (["s_memtime s[%d:%d]" % (60 + 2 * c, 61 + 2 * c)] if c else [])
    if STAMP == 6: return ["s_memtime s[%d:%d]" % (60 + 2 * i, 61 + 2 * i)]
    return []

P = []
A = P.append
A("s_cmp_ge_u32 s2, 256")
A("s_cbranch_scc1 L_end")
A("s_load_dwordx4 s[4:7], s[0:1], 0")
A("s_load_dwordx4 s[8:11], s[0:1], 16")
if STAMP: A("s_load_dwordx2 s[12:13], s[0:1], 40")
P += stamp(0)
A("s_getpc_b64 s[18:19]")
A("v_lshlrev_b32 v240, 7, v0")
A("L_pc:")
A("v_min_u32 v240, CODELEN, v240")
A("v_add_u32 v240, CODEOFF, v240")
A("global_load_dword v241, v240, s[18:19]")
vLN = 242; t2 = 243; t3 = 244; t4 = 245; t5 = 246; t6 = 247
A("v_lshrrev_b32 v%d, 6, v0" % t2)
A("v_and_b32 v%d, 63, v0" % vLN)
A("s_mul_i32 s14, s2, 147456")
A("v_readfirstlane_b32 %s, v%d" % (sWave, t2))
A("s_mul_i32 s15, s2, 196608")
if STG2 and "clsbit" in opts: A("s_bfe_u32 %s, s2, 0x%x" % (sCls, (int(opts.get("clsw", 3)) << 16) + int(opts.get("clsbit", 3))))
elif STG2: A("s_getreg_b32 %s, hwreg(HW_REG_XCC_ID, 0, 1)" % sCls)
A("v_lshrrev_b32 v%d, 3, v%d" % (t5, vLN))
A("v_mul_u32_u24 v%d, 384, v%d" % (t6, t5))
A("v_lshrrev_b32 v%d, 4, v%d" % (t3, vLN))
A("v_lshlrev_b32 v%d, 1, v%d" % (t4, t3))
A("v_xor_b32 v%d, v%d, v%d" % (t4, t4, vLN))
A("v_and_b32 v%d, 7, v%d" % (t4, t4))
A("v_lshl_add_u32 v%d, v%d, 4, v%d" % (vDMA, t4, t6))
A("s_mul_i32 %s, %s, 3072" % (sTmp, sWave))
A("v_add_u32 v%d, %s, v%d" % (vDMA, sTmp, vDMA))
A("v_and_b32 v%d, 7, v%d" % (t4, vLN))
A("v_lshl_add_u32 v%d, v%d, 4, v%d" % (vQG, t4, t6))
A("s_mul_i32 %s, %s, 36864" % (sRow, sWave))
A("v_add_u32 v%d, %s, v%d" % (vQG, sRow, vQG))
A("s_lshl_b32 %s, %s, 10" % (sVbeg, sWave))
A("s_add_u32 %s, %s, %d" % (sKbeg, sVbeg, KRING))
for rb in range(1, 6): A("s_mov_b32 %s, %d" % (sRB(rb), rb * 6144))
if STG2:
    A("s_mov_b32 s3, 0")
    for i, (lo, hi, k, cnt) in enumerate(STG2):
        A("s_sub_u32 %s, %s, %d" % (sTmp, sCls, lo)); A("s_cmp_lt_u32 %s, %d" % (sTmp, hi - lo)); A("s_cselect_b32 s3, %d, s3" % (1 << i))
A("s_waitcnt lgkmcnt(0)")
def srd(base, src, off, size):
    A("s_add_u32 s%d, s%d, %s" % (base, src, off)); A("s_addc_u32 s%d, s%d, 0" % (base + 1, src + 1))
    A("s_mov_b32 s%d, %d" % (base + 2, size)); A("s_mov_b32 s%d, 0x20000" % (base + 3))
vm = []
def raw(rb, i): return 96 + rb * 24 + i * 4
def issue(k, x, i):
    if k == "Q":
        A("buffer_load_dwordx4 %s, v%d, %s, %s offen offset:%d %s" % (V(raw(x, i), 4), vQG, sQ, sRB(x), (i & 1) * 3072 + (i >> 1) * 128, NT))
        vm.append("Q%d.%d" % (x, i))
    else:
        srd_, beg = (sK, sKbeg) if k == "K" else (sV, sVbeg)
        A("s_add_u32 m0, %s, %d" % (beg, (3 if (k, x) == ("K", 0) else x % 3) * SLOT + i * (4096 - 128)))
        A("s_mov_b32 %s, %d" % (sTmp, x * SLOT))
        A("buffer_load_dwordx4 %s, %s, %s offen offset:%d %s lds" % (V(vDMA), srd_, sTmp, i * 128, NT))
        vm.append("%s%d" % (k, x))
    n = len(vm) - 1
    for ci, (lo, hi, kk, cnt) in enumerate(STG2):
        if kk <= n < cnt:
            A("s_bitcmp1_b32 s3, %d" % ci); A("s_cbranch_scc0 L_sg%d_%d" % (n, ci)); A("s_waitcnt vmcnt(%d)" % kk); A("L_sg%d_%d:" % (n, ci))
def vwait(name):
    last = max(i for i, x in enumerate(vm) if x == name)
    A("s_waitcnt vmcnt(%d)" % (len(vm) - 1 - last))
TLB = int(opts.get("tlb", 0))
srd(24, 6, "s15", 196608)
issue("K", 0, 0)
if TLB & 1:
    srd(32, 10, "s14", 147456); srd(28, 8, "s15", 196608)
    A("v_lshlrev_b32 v240, 9, v%d" % vLN)
    A("buffer_load_dword v250, v240, %s, %s offen nt" % (sO, sRow)); vm.append("t")
    A("buffer_load_dword v251, v%d, %s, 0 offen nt" % (vDMA, sV)); vm.append("t")
for cb in range(1, 3): issue("K", 0, cb)
K1E = int(opts.get("k1e", 0))
if K1E:
    for cb in range(3): issue("K", 1, cb)
srd(20, 4, "s14", 147456)
for rb in range(QD):
    for i in range(6): issue("Q", rb, i)
HOP = int(opts.get("hop", 1))
if HOP: A("s_branch L_main"); A(".p2align 12"); A("L_main:")
srd(28, 8, "s15", 15 * SLOT); srd(32, 10, "s14", 147456); srd(84, 8, "s15", 196608)
if STAMP:
    A("s_mov_b32 s36, s12"); A("s_mov_b32 s37, s13"); A("s_mov_b32 s38, 0x100000"); A("s_mov_b32 s39, 0x20000")
A("s_add_u32 %s, %s, %d" % (sKend, sKbeg, 3 * SLOT))
A("s_add_u32 %s, %s, %d" % (sVend, sVbeg, 3 * SLOT))
A("s_mul_i32 %s, %s, %d" % (sQL, sWave, QWAVE))
A("s_add_u32 %s, %s, %d" % (sQL, sQL, QLDS))
A("v_xor_b32 v%d, v%d, v%d" % (t2, t5, t4))
A("v_lshlrev_b32 v%d, 4, v%d" % (t2, t2))
A("v_lshl_add_u32 v%d, v%d, 7, v%d" % (t2, t5, t2))
A("s_mul_i32 %s, %s, 6144" % (sTmp, sWave))
A("s_cmp_lt_u32 %s, 2" % sWave)
A("s_cselect_b32 s3, 0, 4")
A("s_mul_i32 s3, s3, %d" % SLOT)
A("s_add_u32 %s, %s, s3" % (sTmp, sTmp))
A("v_add_u32 v249, %s, v%d" % (sTmp, t2))
A("v_and_b32 v%d, 3, v%d" % (t4, vLN))
A("v_xor_b32 v%d, v%d, v%d" % (t2, t5, t4))
A("v_lshlrev_b32 v%d, 4, v%d" % (t2, t2))
A("v_lshl_add_u32 v%d, v%d, 8, v%d" % (t2, t4, t2))
A("v_bfe_u32 v%d, v%d, 2, 1" % (t4, vLN))
A("v_mul_u32_u24 v%d, %d, v%d" % (t4, QKS, t4))
A("v_add3_u32 v%d, v%d, v%d, %s" % (vQW, t2, t4, sQL))
A("v_and_b32 v%d, 15, v%d" % (t2, vLN))
A("v_xor_b32 v%d, v%d, v%d" % (t4, t2, t3))
A("v_lshlrev_b32 v%d, 4, v%d" % (t4, t4))
A("v_lshl_add_u32 v%d, v%d, 8, v%d" % (t4, t3, t4))
A("v_add_u32 v%d, %s, v%d" % (vQA, sQL, t4))
A("v_lshlrev_b32 v%d, 7, v%d" % (t6, t2))
A("v_lshrrev_b32 v%d, 5, v%d" % (t4, vLN))
A("v_xor_b32 v%d, v%d, v%d" % (t4, t4, vLN))
A("v_and_b32 v%d, 7, v%d" % (t4, t4))
A("v_lshl_add_u32 v%d, v%d, 4, v%d" % (t6, t4, t6))
A("v_xor_b32 v%d, v%d, v%d" % (t4, t3, t5))
A("v_and_b32 v%d, 1, v%d" % (t4, t4))
A("v_lshl_add_u32 v%d, v%d, 3, v%d" % (t6, t4, t6))
A("v_add_u32 v248, %s, v%d" % (sTmp, t6))
A("ds_write_b64 v%d, v[248:249] offset:%d" % (vQA, 2 * QRB))
A("v_and_b32 v%d, 6, v%d" % (t4, vLN))
A("v_xor_b32 v%d, v%d, v%d" % (t4, t4, t3))
A("v_lshlrev_b32 v%d, 4, v%d" % (t4, t4))
A("v_lshl_add_u32 v%d, v%d, 7, v%d" % (vKA[0], t2, t4))
A("v_add_u32 v%d, %d, v%d" % (vKA[0], KRING, vKA[0]))
A("v_xor_b32 v%d, 64, v%d" % (vKA[1], vKA[0]))
A("v_lshrrev_b32 v%d, 2, v%d" % (t4, vLN))
A("v_lshlrev_b32 v%d, 7, v%d" % (t4, t4))
A("v_and_b32 v%d, 3, v%d" % (t2, vLN))
A("v_lshl_add_u32 v%d, v%d, 3, v%d" % (t4, t2, t4))
A("v_bfe_u32 v%d, v%d, 3, 2" % (t2, vLN))
A("v_lshl_add_u32 v%d, v%d, 5, v%d" % (t4, t2, t4))
A("v_add_u32 v%d, %d, v%d" % (vVA[0], VRING + 2 * SLOT, t4))
for x in range(1, 4): A("v_xor_b32 v%d, %d, v%d" % (vVA[x], 32 * x, vVA[0]))
A("s_mov_b32 s40, 0x%x" % CSCALE); A("s_mov_b32 s41, 0x%x" % CSCALE)
A("s_mov_b32 %s, 0xffff0000" % sMask)
A("s_mov_b32 %s, 0" % sIT)
A("s_mov_b32 %s, %d" % (sKoff, 4 * SLOT))
A("s_mov_b32 %s, %d" % (sVoff, 2 * SLOT))
A("s_add_u32 %s, %s, %d" % (sKm, sKbeg, SLOT))
A("s_mov_b32 %s, %d" % (sXoff, 13 * SLOT)); A("s_add_u32 %s, %s, %d" % (sXm, sVbeg, VX))
A("s_mov_b32 s90, %d" % (-2 * SLOT)); A("s_mov_b32 s91, %d" % SLOT); A("s_mov_b32 s94, %d" % (2 * SLOT - 256)); A("s_movk_i32 s95, 128")
A("s_add_u32 %s, %s, %d" % (sVm, sVbeg, 2 * SLOT))
A("s_mov_b32 %s, 0x%x" % (sLo, f2u(2.0 ** float(opts.get("llo", -20)))))
A("s_mov_b32 %s, 0x%x" % (sHi, f2u(2.0 ** float(opts.get("lhi", 24)))))
A("s_mov_b64 %s, 0" % sBad)
for i in vL: A("v_mov_b32 v%d, 0" % i)
ZR = FQ[5][1]
for i in range(4): A("v_accvgpr_write_b32 a%d, 0" % (124 + i))
A("v_mov_b32 v%d, %d" % (t2, FLAG))
A("ds_write_b32 v%d, v%d" % (t2, vL[0]))
def zero16(f, i): A("v_mfma_f32_32x32x16_bf16 %s[%d:%d], %s, %s, 0" % (f, i, i + 15, ZR, ZR))
for i in range(128, 256, 16): zero16("a", i)
A("HOPS0")
vwait("K1" if K1E else "K0")
A("s_waitcnt lgkmcnt(0)")
A("s_barrier")
K0F = [V(G[rb][1], 4) for rb in range(6)] + [V(X[rb][1], 4) for rb in LATE] + FB
for n in range(12): A(k_read(K0F[n], 3, n >> 1, n & 1))
def pro_sm(rb):
    ops = sm(rb, 0, 0) + sm(rb, 0, 1)
    for t in [t for t in ops if t.startswith("v_exp")] + ["s_nop 0"] + [t for t in ops if not t.startswith("v_exp")]: A(t)
pend = [("Q", rb, i) for rb in range(QD, 6) for i in range(6)]
pend += [(k, x, cb) for k, x in (("K", 1), ("V", 0), ("K", 2), ("V", 1), ("K", 3))[K1E:3 + XP] for cb in range(3)]
deferred = pend[len(pend) - 3 * DEF:]; pend = pend[:len(pend) - 3 * DEF]
def qdst(rb, ks): return Ac(rb * 24 + ks * 4, 4) if rb < 4 else V(raw(rb, ks), 4)
def st_read(s_):
    rb, cb = divmod(s_, 3)
    for ks in (2 * cb, 2 * cb + 1): A(q_read(qdst(rb, ks), rb & 1, ks))
def st_mfma(s_):
    rb, cb = divmod(s_, 3)
    for hf in range(2):
        for ks in (2 * cb, 2 * cb + 1):
            d = V((G[rb][0] if hf == 0 else X[rb][0]), 4)
            A("%s %s, %s, %s, %s" % (MF, d, K0F[2 * ks + hf], qdst(rb, ks), "0" if ks == 0 else d))
nleft = 36
for s_ in range(18):
    rb, cb = divmod(s_, 3)
    for rh in range(2):
        i = 2 * cb + rh
        vwait("Q%d.%d" % (rb, i))
        if s_ == 17 and rh == 1: P += stamp(1)
        r0 = raw(rb, i); tb = 240 + 8 * rh
        for k in range(4):
            A("v_lshlrev_b32 v%d, 16, v%d" % (tb + 2 * k, r0 + k)); A("v_and_b32 v%d, %s, v%d" % (tb + 2 * k + 1, sMask, r0 + k))
        for k in range(4): A("v_pk_mul_f32 %s, %s, %s" % (V(tb + 2 * k, 2), V(tb + 2 * k, 2), sC2))
        for k in range(4): A("v_cvt_pk_bf16_f32 v%d, v%d, v%d" % (r0 + k, tb + 2 * k, tb + 2 * k + 1))
        if rh == 0 and s_ >= 1: st_read(s_ - 1)
        A("ds_write_b128 v%d, %s offset:%d" % (vQW, V(r0, 4), (rb & 1) * QRB + cb * 2 * QKS + rh * 128))
        if s_ == 17 and rh == 1: st_read(17)
        if pend and (pend[0][0] == "Q" or len(pend) >= nleft - int(opts.get("kvl", 3))):
            for _ in range(-(-len(pend) // nleft)): issue(*pend.pop(0))
        nleft -= 1
        if nleft == 0:
            for x in deferred[:3]: issue(*x)
    if s_ >= 1:
        A("s_waitcnt lgkmcnt(%d)" % (2 if s_ < 17 else 4)); st_mfma(s_ - 1)
        if "dum" in opts and s_ < 17:
            d0, d1 = [int(x) for x in opts["dum"].split(",")]
            rbp, cbp = divmod(s_ - 1, 3)
            for i in range(d0 + (d1 - d0) * s_ // 16):
                A("%s a[112:115], %s, %s, a[112:115]" % (MF, K0F[i % 12], qdst(rbp, 2 * cbp + (i & 1))))
    if cb == 1 and rb >= 1 and rb - 1 in EARLY: pro_sm(rb - 1)
    if s_ == int(opts.get("hs", 2)) and (int(opts.get("hskip", 3)) < 2 or len(opts.get("pages", "4,5,6").split(",")) > 4): A("HOPS1")
    for i in {7: (96, 112, 128), 13: (144, 160, 176), 16: (192, 208)}.get(s_, ()): zero16("v", i)
A("s_waitcnt lgkmcnt(0)")
st_mfma(17)
for i in (240, 224): zero16("v", i)
for x in deferred[3:]: issue(*x)
if not K1E:
    vwait("K1")
    A("s_barrier")
for a_ in vKA: A("v_add_u32 %s, %d, %s" % (V(a_), SLOT, V(a_)))
A(k_read(FB[0], 0, 0, 0)); A(k_read(FB[1], 0, 1, 0))
for rb in LATE:
    for k in range(2): A(q_read(FQ[rb][k], rb - 4, k))
if TLB & 2: A("buffer_load_dword v%d, v%d, %s, 0 offen nt" % (vQW, vQG, sO))
assert vm[-6 - 3 * XP:] == sum([[x] * 3 for x in ("V0", "K2", "V1", "K3")[:2 + XP]], []), vm
A("s_waitcnt lgkmcnt(0)")
P += stamp(2)

B0, q0 = body(0, [])
B1, q1 = body(1, q0)
B0, q0b = body(0, q1)
assert q0 == q0b
BP, qp_ = body(0, [], peel=True)
assert qp_ == q0
BP += ["s_add_u32 %s, %s, %d" % (sKoff, sKoff, SLOT), "s_add_u32 %s, %s, %d" % (sKm, sKm, SLOT),
       "s_add_u32 %s, %s, %d" % (sVoff, sVoff, SLOT), "s_mov_b32 %s, %s" % (sVm, sVbeg), "s_mov_b32 %s, 1" % sIT]
if STAMP == 7: BP += stamp(7)
if STAMP == 3:
    pre3 = ["s_mov_b32 m0, s13", "s_add_u32 s13, s13, 1", "v_writelane_b32 v15, s88, m0", "s_memrealtime s[88:89]"]
    BP = ["s_mov_b32 s13, 0", "s_mov_b32 s88, 0"] + pre3 + BP; B0 = pre3 + B0; B1 = pre3 + B1

T = []
A = T.append
T += stamp(3)
if STAMP == 3:
    T += pre3 + ["s_waitcnt lgkmcnt(0)"] + pre3[:3]
    A("v_mbcnt_lo_u32_b32 v16, -1, 0"); A("v_mbcnt_hi_u32_b32 v16, -1, v16"); A("v_lshlrev_b32 v16, 2, v16")
    A("s_lshl_b32 s3, s2, 2"); A("s_add_u32 s3, s3, %s" % sWave); A("s_lshl_b32 s3, s3, 8"); A("s_add_u32 s3, s3, 65536")
    A("buffer_store_dword v15, v16, %s, s3 offen" % sW)
eW = [16, 17, 18, 19]; eR = vQW; eS = vQG
for a_ in vKA: A("v_subrev_u32 %s, %d, %s" % (V(a_), 2 * SLOT, V(a_)))
def R4(x): return "%s[%d:%d]" % (x[0], x[1], x[1] + 3)
def R2(x, h): return "%s[%d:%d]" % (x[0], x[1] + 2 * h, x[1] + 2 * h + 1)
def vrd(dst, tile, db):
    return ["ds_read_b64_tr_b16 %s, %s offset:%d" % (R2(dst, i), V(vVA[db & 3]), {13: 3, 14: 1, 15: 4}[tile] * SLOT + (db >> 2) * 4096 + i * 2048) for i in range(2)]
X15 = {0: X[4][0], 1: X[5][0], 2: G[5][0], 3: X[0][0], 4: X[4][1], 5: X[5][1]}
G15 = {0: G[0][1], 1: G[1][1], 2: G[2][1], 3: G[1][0], 4: G[1][1], 5: G[2][0]}
def fs(rb, t): return [(G[rb][0] if t == 14 else G15[rb]) + i for i in range(4)] + [(X[rb][0] if t == 14 else X15[rb]) + i for i in range(4)]
def fsm(rb, t, half):
    ops = []; s_ = fs(rb, t)
    for i in (4 * half, 4 * half + 2):
        ops += ["v_exp_f32 %s, %s" % (V(s_[i]), V(s_[i])), "v_exp_f32 %s, %s" % (V(s_[i + 1]), V(s_[i + 1])),
                "v_add_f32 %s, %s, %s" % (V(vL[rb]), V(vL[rb]), V(s_[i])), "v_add_f32 %s, %s, %s" % (V(vL[rb]), V(vL[rb]), V(s_[i + 1])),
                "v_cvt_pk_bf16_f32 %s, %s, %s" % (V(s_[i // 2]), V(s_[i]), V(s_[i + 1]))]
    return ops
def qp(p): return [("a", rb * 24 + 8 * p + 4 * k) for rb in range(3) for k in range(2)]
def sb(*l): return [("a", 96 + 4 * i) for i in l]
vres = qp(0) + sb(4, 5) + qp(1) + sb(6, 7, 0, 1) + qp(2)
def v13(db): return ("v", 192 + 4 * db)
def phase_mf(rb):
    o = ["%s %s, %s, %s, %s" % (MF, O4(rb, db), R4(v13(db)), V(G[rb][1], 4), O4(rb, db)) for db in range(12)] if rb >= 3 else []
    return o + ["%s %s, %s, %s, %s" % (MF, O4(rb, db), R4(vres[12 * t + db]), V(fs(rb, 14 + t)[0], 4), O4(rb, db)) for t in range(2) for db in range(12)]
def lfin(rb):
    tmp = X15[rb]; l = vL[rb]; o = []
    for sw in ("v_permlane32_swap_b32", "v_permlane16_swap_b32"):
        o += ["v_mov_b32 v%d, v%d" % (tmp, l), "%s v%d, v%d" % (sw, l, tmp), "v_add_f32 v%d, v%d, v%d" % (l, l, tmp)]
    o += ["v_cmp_nle_f32 vcc, %s, v%d" % (sLo, l), "v_cmp_nge_f32 %s, %s, v%d" % (sB2, sHi, l), "v_rcp_f32 v%d, v%d" % (l, l)]
    return [Op(t) for t in o]
def wreg(n):
    fl, i0 = Oreg(n // 3, 4 * (n % 3))
    return i0 if fl == "v" else 96 + 16 * (n % 6)
def stg(n): return (n % 3) * 2048
def ep_st(n, rh):
    rb, cb = divmod(n, 3)
    return "buffer_store_dwordx4 %s, v%d, %s, %s offen offset:%d %s" % (V(wreg(n) + 8 + 4 * rh, 4), eS, sO, sRB(rb), rh * 3072 + cb * 128, "" if n >= int(opts.get("plain", 99)) else "nt sc1" if str(rb) in opts.get("ntrb", "") or ("nth" in opts and rh == 1 and rb < int(opts["nth"])) else SPOL)
def ep_rd(n):
    return ["ds_read_b128 %s, v%d offset:%d" % (V(wreg(n) + 8, 4), eR, stg(n))] + \
           ["ds_read_b64 %s, v%d offset:%d" % (V(wreg(n) + 12 + 2 * k, 2), eR, stg(n) + 1024 + 8 * (1 - k)) for k in range(2)]
ROWS = int(opts.get("rows", 0))
def burst(rb):
    A("s_or_b64 %s, %s, vcc" % (sBad, sBad)); A("s_or_b64 %s, %s, %s" % (sBad, sBad, sB2))
    lp = vL[rb] & ~1; sel = vL[rb] & 1
    for cb in range(3):
        n = 3 * rb + cb
        fl, i0 = Oreg(rb, 4 * cb); w = wreg(n)
        if fl == "a":
            for i in range(16):
                if rb < 5 or 4 * cb + i // 4 >= PRE5: A("v_accvgpr_read_b32 %s, %s" % (V(w + i), Ac(i0 + i)))
        for i in range(0, 16, 2):
            A("v_pk_mul_f32 %s, %s, %s op_sel:[0,%d] op_sel_hi:[1,%d]" % (V(w + i, 2), V(w + i, 2), V(lp, 2), sel, sel))
        if cb == 2 and not ROWS: A("s_waitcnt lgkmcnt(4)"); A(ep_st(n - 2, 0))
        for i in range(8): A("v_cvt_pk_bf16_f32 %s, %s, %s" % (V(w + i), V(w + 2 * i), V(w + 2 * i + 1)))
        if cb == 2 and not ROWS: A(ep_st(n - 2, 1))
        if cb >= 1:
            for t in ep_rd(n - 1): A(t)
        for x in range(4):
            A("ds_write_b64 v%d, %s offset:%d" % (eW[x], V(w + 2 * x, 2), stg(n)))
def group_block(rbs, buf, qf, first):
    mf = []; frag = []
    for t in ((14, 13, 15) if first else (14, 15)):
        if t == 13:
            for db in range(12):
                b = buf[len(frag) % 8]; frag.append((len(mf), vrd(b, 13, db), len(mf) + 2))
                mf += ["%s %s, %s, %s, %s" % (MF, O4(rb, db), R4(b), V(G[rb][1], 4), O4(rb, db)) for rb in rbs]
        else:
            for g in range(6):
                p, hf = (g >> 1, g & 1) if (t == 15 and first) else (g % 3, g // 3)
                bs = [buf[(len(frag) + k) % 8] for k in range(2)]
                for k in range(2): frag.append((len(mf), [k_read(R4(bs[k]), t - 12, 2 * p + k, hf)], len(mf) + 5))
                for rb in rbs:
                    for k in range(2):
                        d = V(fs(rb, t)[4 * hf], 4)
                        mf.append("%s %s, %s, %s, %s" % (MF, d, R4(bs[k]), qf(rb, 2 * p + k), "0" if p + k == 0 else d))
    return mf + phase_mf(rbs[0]), frag
def place(pinned, g, ins):
    while len(pinned.get(g, [])) + len(ins) > 2 or any(t.startswith("buffer") for t in pinned.get(g, [])): g += 1
    pinned.setdefault(g, []).extend(ins); return g
def block_stream(mf, rbs, lag):
    st = []
    r0_, r1_, r2_ = rbs
    for rb, t, h in ((r0_, 14, 0), (r1_, 14, 0), (r2_, 14, 0), (r0_, 14, 1), (r1_, 14, 1), (r2_, 14, 1), (r0_, 15, 0), (r0_, 15, 1), (-1, 0, 0), (r1_, 15, 0)):
        if rb < 0: st += lfin(r0_); continue
        ready = last_write_slot(mf[:108], "v%d" % fs(rb, t)[4 * h]) + lag
        dead = 131 if rb != r0_ else (105 if t == 14 else 117)
        st += [Op(x, ready, dead) for x in fsm(rb, t, h)]
    return st
def leftovers(n):
    rd = ep_rd(n)
    if ROWS:
        d = {4: rd[:2], 5: rd[2:]}
        for i in range(6): d[11 + i + (i // 3) * int(opts.get("rgap", 2))] = [ep_st(n - 2 + i % 3, i // 3)]
        return d
    return {1: [ep_st(n - 1, 0)], 4: [ep_st(n - 1, 1)], 7: rd[:2], 8: rd[2:], 17: [ep_st(n, 0)], 20: [ep_st(n, 1)]}
def small_phase(rb, nxt, extra=()):
    scal = [(0, ["s_waitcnt lgkmcnt(4)"], True), (16, ["s_waitcnt lgkmcnt(0)"], True)] if not ROWS else [(10, ["s_waitcnt lgkmcnt(0)"], True)]
    st = [Op(t, 0, 10) for t in fsm(rb, 15, 1)] + lfin(rb)
    if nxt is not None: st += [Op(t) for t in fsm(nxt, 15, 0)]
    pinned = leftovers(3 * rb - 1)
    for g, ins in extra: pinned[g] = ins
    if extra: scal[1] = (16, ["s_waitcnt lgkmcnt(%d)" % sum(len(ins) for g, ins in extra if g < 16)], True)
    blk, _ = schedule(phase_mf(rb), pinned, scal, st, [], "phase%d" % rb, excl=True)
    return blk
bufA = [("a", 96 + 4 * i) for i in range(8)]
mf, frag = group_block([0, 1, 2], bufA, Qf, True)
pinned = {}
for i, (use, ins, _) in enumerate(frag):
    if i < 2: continue
    place(pinned, max(0 if i < 8 else frag[i - 8][2], use - 15 + (i & 1)), ins)
g = 80; gv = {}
for n in range(24):
    free = 1 + max(k for k, t in enumerate(mf[:108]) if ("a%d" % vres[n][1]) in Ins(t).rd)
    g = place(pinned, max(g, free), vrd(vres[n], 14 + n // 12, n % 12))
    gv[n] = g; g += (1 if n < 17 else 2)
place(pinned, 124, ["ds_read_b64 v[16:17], v%d offset:%d" % (vQA, 2 * QRB)])
scal = [(51, ["s_waitcnt vmcnt(12)", "s_barrier"], False), (74, ["s_waitcnt vmcnt(9)", "s_barrier"], False), (90, ["s_waitcnt vmcnt(0)", "s_barrier"], False)]
st = [Op(t) for h in range(2) for t in sm(4, 1, h)] + block_stream(mf, [0, 1, 2], 5)
blk, _ = schedule(mf, pinned, scal, st, q0, "blockA", excl=True)
T += blk
if "fine" in opts: T += stamp(1)
A("s_waitcnt lgkmcnt(0)")
A("v_mov_b32 v%d, v17" % eR)
for x in (1, 2, 3): A("v_xor_b32 v%d, %d, v16" % (eW[x], 32 * x))
burst(0)
T += small_phase(1, 2); burst(1)
bufB = [("v", 96 + 4 * i) for i in range(8)]
def qfB(rb, ks): return Qf(rb, ks) if rb < 4 else V(128 + 24 * (rb - 4) + 4 * ks, 4)
mfB, fragB = group_block([3, 4, 5], bufB, qfB, False)
pre = [fragB[i][1][0] for i in range(4)] + [q_read(qfB(rb, k), rb - 4, k) for k in range(6) for rb in LATE]
T += small_phase(2, None, [(g, pre[2 * i:2 * i + 2]) for i, g in enumerate((11, 14, 18, 19, 21, 22, 23))])
for t in pre[14:]: A(t)
for x in range(4): A("v_mov_b32 v%d, v%d" % (G[0][0] + x, eW[x]))
eW = [G[0][0] + x for x in range(4)]
burst(2)
if "fine" in opts: T += stamp(2)
pinned = leftovers(8)
for i, (use, ins, _) in enumerate(fragB):
    if i < 4: continue
    g = place(pinned, max(0 if i < 8 else fragB[i - 8][2], use - 15 + (i & 1)), ins)
g = 22
for db in range(12): g = place(pinned, g, vrd(v13(db), 13, db)) + 3
if ROWS:
    later = sum(1 for g in range(6, 10) for t in pinned.get(g, []) if t.startswith("ds_")) + len(pinned[5]) - 1
    scal = [(10, ["s_waitcnt lgkmcnt(%d)" % later], True)]
else:
    later = sum(1 for g in range(9, 16) for t in pinned.get(g, []) if t.startswith("ds_")) + len(pinned[8]) - 1
    scal = [(0, ["s_waitcnt lgkmcnt(4)"], True), (16, ["s_waitcnt lgkmcnt(%d)" % later], True)]
st = [Op(t, 0, 50) for h in range(2) for t in sm(5, 1, h)]
for rb, t, h, dead in ((3, 14, 0, 81), (4, 14, 0, 107), (5, 14, 0, 107), (3, 14, 1, 81), (4, 14, 1, 107), (3, 15, 0, 93), (3, 15, 1, 93), (-1, 0, 0, 0), (5, 14, 1, 107)):
    if rb < 0: st += lfin(3); continue
    st += [Op(x, last_write_slot(mfB[:72], "v%d" % fs(rb, t)[4 * h]) + 7, dead) for x in fsm(rb, t, h)]
if ROWS: A("s_waitcnt lgkmcnt(7)")
blk, _ = schedule(mfB, pinned, scal, st, [], "blockB", excl=True)
T += blk
if "fine" in opts: T += stamp(0)
burst(3)
scal = [(0, ["s_waitcnt lgkmcnt(4)"], True), (16, ["s_waitcnt lgkmcnt(0)"], True)] if not ROWS else [(10, ["s_waitcnt lgkmcnt(0)"], True)]
st = [Op(t, 0, 22) for h in range(2) for t in fsm(4, 15, h)] + lfin(4) + [Op(t) for h in range(2) for t in fsm(5, 15, h)]
blk, _ = schedule(phase_mf(4), leftovers(11), scal, st, [], "phase4", excl=True)
T += blk
burst(4)
m5 = phase_mf(5); m5 = [m5[12 * t + db] for db in range(12) for t in range(3)]
st = lfin(5)
PRE5 = 9
for db in range(PRE5):
    st += [Op("v_accvgpr_read_b32 %s, %s" % (V(wreg(15 + db // 4) + 4 * (db % 4) + i), Ac(Oreg(5, db)[1] + i)), 3 * db + 2 + 5) for i in range(4)]
blk, _ = schedule(m5, leftovers(14), scal, st, [], "phase5", excl=True)
T += blk
T += stamp(4)
burst(5)
if not ROWS:
    A("s_waitcnt lgkmcnt(4)")
    A(ep_st(16, 0)); A(ep_st(16, 1))
for t in ep_rd(17): A(t)
A("s_cmp_eq_u64 %s, 0" % sBad)
A("s_cbranch_scc1 L_good")
A("v_mov_b32 v2, %d" % FLAG); A("v_mov_b32 v3, 1")
A("ds_write_b32 v2, v3")
A("L_good:")
A("s_waitcnt lgkmcnt(0)")
if ROWS:
    for i in range(6): A(ep_st(15 + i % 3, i // 3))
else: A(ep_st(17, 0)); A(ep_st(17, 1))
if STAMP:
    T += stamp(5)
    A("s_waitcnt vmcnt(0)")
    T += stamp(6)
    A("s_waitcnt lgkmcnt(0)")
    if "probe" in opts:
        pi, pj = [int(x) for x in opts["probe"].split(",")]
        A("s_sub_u32 s84, s%d, s%d" % (60 + 2 * pj, 60 + 2 * pi))
        if "pneg" in opts: A("s_sub_u32 s84, %s, s84" % opts["pneg"])
        if STAMP == 6:
            A("s_min_u32 s84, s84, 40000"); A("s_memrealtime s[72:73]"); A("s_waitcnt lgkmcnt(0)")
        else:
            A("s_min_u32 s84, s84, 10000")
            A("s_lshl_b32 s84, s84, 2")
        if "pcls" in opts:
            A("s_bfe_u32 s85, s2, 0x%x" % int(opts["pbits"], 16)); A("s_cmp_eq_u32 s85, %s" % opts["pcls"]); A("s_cselect_b32 s84, s84, 0")
        A("L_spin:"); A("s_sleep 2"); A("s_memrealtime s[82:83]"); A("s_waitcnt lgkmcnt(0)")
        A("s_sub_u32 s85, s82, s72"); A("s_cmp_lt_u32 s85, s84"); A("s_cbranch_scc1 L_spin")
    A("s_lshl_b32 s3, s2, 2"); A("s_add_u32 s3, s3, %s" % sWave); A("s_lshl_b32 s3, s3, 6")
    A("v_mov_b32 v10, s3")
    for i in range(16): A("v_mov_b32 v%d, s%d" % (16 + i, 60 + i))
    for i in range(4): A("buffer_store_dwordx4 v[%d:%d], v10, %s, 0 offen offset:%d" % (16 + 4 * i, 19 + 4 * i, sW, 16 * i))
A("s_barrier")
A("v_mov_b32 v0, %d" % FLAG)
A("ds_read_b32 v0, v0")
A("s_waitcnt lgkmcnt(0)")
A("v_readfirstlane_b32 %s, v0" % sTmp)
A("s_cmp_eq_u32 %s, 0" % sTmp)
A("s_cbranch_scc0 L_redo")
A("L_end:")
A("s_endpgm")
A("L_hotend:")
A("L_redo:")
A("s_waitcnt vmcnt(0)")
A("s_barrier")
A("v_mbcnt_lo_u32_b32 v0, -1, 0"); A("v_mbcnt_hi_u32_b32 v0, -1, v0")
A("s_lshl_b32 %s, %s, 6" % (sTmp, sWave))
A("v_add_u32 v0, %s, v0" % sTmp)

if "cap" in opts:
    T2 = []
    for t in T:
        if t.startswith("buffer_store") and sO in t: T2.append("s_waitcnt vmcnt(%d)" % int(opts["cap"]))
        T2.append(t)
    T = T2
if "skiprb" in opts:
    sk = [sRB(int(x)) for x in opts["skiprb"].split(",")]
    T = [t for t in T if not (t.startswith("buffer_store") and sO in t and any((", %s offen" % x) in t for x in sk))]
if "nost" in opts: T = [t for t in T if not (t.startswith("buffer_store") and sO in t)]
if "nowr" in opts: T = [t for t in T if not t.startswith("ds_write_b64")]
def I(l): return [Ins(t) for t in l if not t.startswith("HOPS")]
seq = I(P + BP + B1 + B0 + ["s_cbranch_scc1 L_loop"] + B1 + B0 + ["s_cbranch_scc1 L_loop"] + T)
errs = check_hazards(seq, "main") + check_waits(seq, "main") + check_scc(seq, "main")
for e in errs[:30]: sys.stderr.write(e + "\n")
if errs and "nost" not in opts and "skiprb" not in opts:
    print("!!! %d hazard problems" % len(errs)); sys.exit(1)
S, lds2, e2_ = gen_safe.build_safe({"qd": "3", "nt": NT})
assert lds2 <= LDS_BYTES and e2_ == 0

hdr = open("standalone__gqa_softmax__near_ridge.s.ref").read().split("; Override")[0]
code = P + ["; ---- iteration 0 (also completes the first K/V prefetch)"] + BP + ["; ---- iterations 1..12: QK(j+1) | PV(j)", ".p2align 3", "L_loop:"] + B1 + B0 + ["s_cbranch_scc1 L_loop",
       "; ---- tiles 13..15: row blocks 0-2 to the end, then 3-5; normalise, stage through LDS, store"] + T + ["; ---- online-max path (taken only when a row sum left the checked range)"]
NH = 8
DOC = """;
; Attention forward, one workgroup per (batch, head): 4 waves x 96 query rows, 16x16x32 bf16 MFMA, 32-key tiles.
;   S^T = K Q^T and O^T = V^T P^T, so a lane owns one query row; K/V tiles stream HBM -> LDS (LDS-DMA, XOR-swizzled),
;   softmax VALU work is interleaved with the MFMAs of the neighbouring tile.
; Fast path: Q is scaled by log2(e)/sqrt(192) once, p = 2^s is taken against the reference point 0 (softmax is shift
;   invariant).  Every row sum is checked against [2^-20, 2^24] (NaN and inf fail the check); if any row of the head
;   fails, the whole workgroup recomputes the head on the path labelled S_* which subtracts the running row maximum.
; Workgroups on even compute dies hold their first loads to four in flight per wave, which lets the odd dies (slower
;   to load and to compute) finish Q first; this changes speed only.
; The last tiles are processed row block by row block so that output stores overlap the remaining matrix work.
; Generated by the author's own script (instruction scheduling and hazard checking included).""".split("\n")
def render(code, nh):
    out = [hdr.rstrip(), "; @launch grid=(256,1,1) block=(256,1,1) lds=%d" % LDS_BYTES] + DOC + [
           '.amdgcn_target "amdgcn-amd-amdhsa--gfx950"', ".text", ".globl %s" % KN, ".p2align 8", ".type %s,@function" % KN, "%s:" % KN, "L_start:"]
    for t in code + S:
        if t.startswith("HOPS"):
            if not HOP: continue
            r_ = int(t[4:])
            out += ["; visit the first line of later code pages (no lane active, no memory instruction on that path)", "    s_mov_b64 exec, 0"]
            for w in range(4):
                k = 4 * r_ + w
                out += ["    s_cmp_eq_u32 %s, %d" % (sWave, w), "    s_cbranch_scc1 %s" % ("L_hop%d" % k if k < nh else "L_hopback%d" % r_)]
            out += ["L_hopback%d:" % r_, "    s_mov_b64 exec, -1"]
            continue
        t = t.replace("CODELEN", "L_hotend-L_main" if HOP else "L_hotend-L_pc").replace("CODEOFF", "L_main-L_pc+4" if HOP else "0")
        out.append(t if t.endswith(":") or t.startswith((".", ";")) else "    " + t)
    out += ['.section .rodata,"a"', ".p2align 6", ".amdhsa_kernel %s" % KN, "  .amdhsa_next_free_vgpr 512", "  .amdhsa_next_free_sgpr 96",
            "  .amdhsa_accum_offset 256", "  .amdhsa_group_segment_fixed_size 0", "  .amdhsa_kernarg_size 48", "  .amdhsa_user_sgpr_count 2",
            "  .amdhsa_user_sgpr_kernarg_segment_ptr 1", "  .amdhsa_system_sgpr_workgroup_id_x 1", ".end_amdhsa_kernel", ""]
    return "\n".join(out)
import subprocess, re as _re
def addresses(code, nh):
    marked = []
    for i, t in enumerate(code): marked += ["M_%d:" % i, t]
    open("_g7.s", "w").write(render(marked, nh))
    subprocess.run(["clang", "-x", "assembler", "-target", "amdgcn-amd-amdhsa", "-mcpu=gfx950", "-c", "_g7.s", "-o", "_g7.o"], check=True)
    sy = subprocess.run(["llvm-objdump", "-t", "_g7.o"], capture_output=True, text=True).stdout
    ad = {m.group(2): int(m.group(1), 16) for m in _re.finditer(r"^([0-9a-f]+) .* (\S+)$", sy, _re.M)}
    return [ad["M_%d" % i] - ad["L_main"] for i in range(len(code))]
nh = 0
if HOP:
    STEP = int(opts.get("hstep", 4096))
    while nh < NH:
        ad = addresses(code, nh)
        pages = [int(x) for x in opts.get("pages", "4,5,6").split(",") if x] or list(range(1 + int(opts.get("hskip", 3)), 20))
        if nh >= len(pages): break
        lo = STEP * pages[nh]
        if lo >= ad[code.index("L_end:")]: break
        cand = [i for i in range(1, len(code)) if lo <= ad[i] < lo + 56]
        good = [i for i in cand if code[i - 1].startswith("v_mfma") and not code[i].startswith("s_")]
        i = (good or cand)[0]
        code[i:i] = ["L_hop%d:" % nh, "s_cbranch_execz L_hopback%d" % (nh // 4), "s_nop 0"][:2 + (1 if "L_loop:" in code[:i] and "s_cbranch_scc1 L_loop" in code[i:] and False else 0)]
        nh += 1
    sys.stderr.write("hops: %d\n" % nh)
open(sys.argv[1], "w").write(render(code, nh))
```

```python
import sys, math, struct
from asmlib import *
from sched import *
import gen_safe

opts = dict(a.split("=") for a in sys.argv[2:])
STAMP = int(opts.get("stamp", 0))
NT = opts.get("nt", "nt").replace("+", " ")
SPOL = opts.get("spol", "sc1").replace("+", " ")
QD = int(opts.get("qd", 3))
DEF = int(opts.get("defer", 2))
STG2 = [tuple(int(y) for y in x.split(":")) for x in opts.get("stg2", "0:1:3:21").split(",") if x]
XP = int(opts.get("xp", 2))
KN = "standalone__gqa_softmax__near_ridge_kernel"
def f2u(x): return struct.unpack("<I", struct.pack("<f", x))[0]
CSCALE = f2u(math.log2(math.e) / math.sqrt(192.0))

VRING = 0; VX = 36864; KRING = 49152; KX = 86016; QLDS = 98304; SLOT = 12288
QKS = 1088; QRB = 6 * QKS; QWAVE = 2 * QRB + 1024
FLAG = QLDS + 4 * QWAVE
LDS_BYTES = FLAG + 64
def V(i, n=1): return "v%d" % i if n == 1 else "v[%d:%d]" % (i, i + n - 1)
def Ac(i, n=1): return "a%d" % i if n == 1 else "a[%d:%d]" % (i, i + n - 1)
vKA = [0, 1]; vVA = [2, 3, 4, 5]; vQA = 6; vDMA = 7
vL = [8 + i for i in range(6)]; vQG = 14; vQW = 15
FB = [Ac(96 + 4 * i, 4) for i in range(4)]
FQ = {4: [Ac(112, 4), Ac(116, 4)], 5: [Ac(120, 4), Ac(124, 4)]}
EARLY = [0, 1, 2, 3]; LATE = [4, 5]
G = {}; X = {}
r = 16
for rb in LATE:
    G[rb] = [r, r + 4]; X[rb] = [r + 8, r + 12]; r += 16
for rb in EARLY:
    G[rb] = [r, r + 4]; X[rb] = [r + 8, r + 8]; r += 12
assert r == 96
def Oreg(rb, db):
    b = rb * 12 + db
    return ("v", 96 + 4 * b) if b < 40 else ("a", 128 + 4 * (b - 40))
def O4(rb, db):
    f, i = Oreg(rb, db); return "%s[%d:%d]" % (f, i, i + 3)
def Qf(rb, ks): return Ac(rb * 24 + ks * 4, 4) if rb < 4 else FQ[rb][ks & 1]
sQ = "s[20:23]"; sK = "s[24:27]"; sV = "s[28:31]"; sO = "s[32:35]"; sW = "s[36:39]"
sC2 = "s[40:41]"; sIT = "s42"; sKoff = "s43"; sVoff = "s44"; sKm = "s45"; sVm = "s46"; sWave = "s47"
sTmp = "s48"; sRow = "s49"; sKend = "s50"; sVend = "s51"; sKbeg = "s52"; sVbeg = "s53"; sQL = "s16"; sCls = "s17"
sVX = "s[84:87]"; sXoff = "s74"; sXm = "s75"; sKr = "s82"; sVr = "s83"; sKd = "s92"; sVd = "s93"
sMask = "s54"; sLo = "s76"; sHi = "s77"; sBad = "s[78:79]"; sB2 = "s[80:81]"
def sRB(rb): return "0" if rb == 0 else "s%d" % (54 + rb)
MF = "v_mfma_f32_16x16x32_bf16"

def k_read(dst, tile_par, ks, hf):
    return "ds_read_b128 %s, %s offset:%d" % (dst, V(vKA[ks & 1]), tile_par * SLOT + (ks >> 1) * 4096 + hf * 2048)
def v_read(a0, tile_par, db):
    return ["ds_read_b64_tr_b16 %s, %s offset:%d" % (Ac(a0 + 2 * i, 2), V(vVA[db & 3]), tile_par * SLOT + (db >> 2) * 4096 + i * 2048) for i in range(2)]
def q_read(dst, area, ks):
    return "ds_read_b128 %s, %s offset:%d" % (dst, V(vQA), area * QRB + ks * QKS)
def qk_mfmas(par, last_up=False):
    out = []
    for g in range(6):
        p, hf = g >> 1, g & 1
        for rb in (range(6) if hf == 0 or (last_up and g == 5) else range(5, -1, -1)):
            for k in range(2):
                ks = 2 * p + k
                d = V((G[rb][par] if hf == 0 else X[rb][par]), 4)
                out.append("%s %s, %s, %s, %s" % (MF, d, FB[(2 * g + k) % 4], Qf(rb, ks), "0" if ks == 0 else d))
    return out
def sregs(rb, par): return [G[rb][par] + i for i in range(4)] + [X[rb][par] + i for i in range(4)]
def sm(rb, par, half):
    ops = []; s = sregs(rb, par)
    for i in (4 * half, 4 * half + 2):
        ops.append("v_exp_f32 %s, %s" % (V(s[i]), V(s[i])))
        ops.append("v_exp_f32 %s, %s" % (V(s[i + 1]), V(s[i + 1])))
        ops.append("v_add_f32 %s, %s, %s" % (V(vL[rb]), V(vL[rb]), V(s[i])))
        ops.append("v_add_f32 %s, %s, %s" % (V(vL[rb]), V(vL[rb]), V(s[i + 1])))
        ops.append("v_cvt_pk_bf16_f32 %s, %s, %s" % (V(G[rb][par] + i // 2), V(s[i]), V(s[i + 1])))
    return ops
def last_write_slot(mf, reg): return max(g for g, t in enumerate(mf) if reg in Ins(t).wr)
def paced(ops, g0, g1, floor=0, dead=10 ** 9):
    os_ = [Op(t) for t in ops]; tot = sum(o.cost for o in os_); acc = 0
    for o in os_:
        o.ming = max(floor, int(g0 + (g1 - g0) * acc / tot)); o.dead = dead; acc += o.cost
    return os_
def pin_qk(pinned, qk, tile_par, nq):
    def pin(g, t): pinned.setdefault(g, []).append(t)
    for g in range(1, 6):
        for k in range(2): pin(12 * (g - 1) + 2 * k, k_read(FB[(2 * g + k) % 4], tile_par, 2 * (g >> 1) + k, g & 1))
    lastq = {}
    for g, t in enumerate(qk):
        for rb in LATE:
            for k in range(2):
                if FQ[rb][k] in t: lastq[(g // 24, rb, k)] = g
    for p in range(nq):
        g = 0
        for (lg, rb, k) in sorted((lastq[(p, rb, k)], rb, k) for rb in LATE for k in range(2)):
            g = max(g, lg + 1)
            while g in pinned: g += 1
            pin(g, q_read(FQ[rb][k], rb - 4, (2 * p + 2 + k) % 6)); g += 2

def body(par, ds_in, peel=False):
    np_ = par ^ 1
    qk = qk_mfmas(np_)
    mf = qk + ["%s %s, %s, %s, %s" % (MF, O4(rb, db), FB[db % 4], V(G[rb][par], 4), O4(rb, db)) for db in range(12) for rb in range(6)]
    pinned = {}
    def pin(g, t): pinned.setdefault(g, []).append(t)
    for db in range(12):
        for t in v_read(96 + 4 * (db % 4), 0, db): pin({0: 60, 1: 63, 2: 72, 3: 75}.get(db, 72 + 6 * (db - 3)), t)
    pin(127, k_read(FB[0], 0, 0, 0)); pin(133, k_read(FB[1], 0, 1, 0))
    pin_qk(pinned, qk, 0, 3)
    scal = [(57, ["s_waitcnt vmcnt(%d) lgkmcnt(0)" % (7 - par)], True), (58, ["s_barrier"], True)]
    if par == 1:
        scal.append((61, ["s_mov_b32 m0, %s" % sXm], True))
        pin(62, "buffer_load_dwordx4 %s, %s, %s offen %s lds" % (V(vDMA), sVX, sXoff, NT))
        scal.append((82, ["s_cmp_eq_u32 %s, 3" % sIT, "s_cselect_b32 %s, s94, s95" % sTmp, "s_cselect_b32 s84, s24, s84", "s_cselect_b32 s85, s25, s85",
                          "s_cselect_b32 s3, %d, 0" % (KX - VX - SLOT)], False))
        scal.append((106, ["s_add_u32 %s, %s, %s" % (sXoff, sXoff, sTmp), "s_add_u32 %s, %s, 4096" % (sXm, sXm), "s_add_u32 %s, %s, s3" % (sXm, sXm)], False))
        scal.append((14, ["s_cmp_eq_u32 %s, 6" % sIT, "s_cselect_b32 s24, s28, s24", "s_cselect_b32 s25, s29, s25",
                          "s_cselect_b32 %s, %d, %s" % (sVoff, 14 * SLOT, sVoff)], False))
    adv = []
    for cnt, d in ((sVr, sVd), (sKr, sKd)):
        adv += ["s_add_u32 %s, %s, 1" % (cnt, cnt), "s_cmp_eq_u32 %s, 3" % cnt, "s_cselect_b32 %s, 0, %s" % (cnt, cnt),
                "s_cselect_b32 %s, s90, s91" % d]
    if peel: adv = ["s_mov_b32 %s, 0" % sVr, "s_mov_b32 %s, s90" % sVd, "s_mov_b32 %s, 2" % sKr, "s_mov_b32 %s, s91" % sKd]
    scal.append((1, adv, False))
    if peel:
        xg = [int(x) for x in opts.get("xg", "5,21,33,45,67,77").split(",")]
        xl = [(k, x, cb) for k, x in (("V", 1), ("K", 3))[XP:] for cb in range(3)]
        xg = xg[3 * XP:]
        for g, (k, x, cb) in zip(xg, xl):
            srd_, beg = (sK, sKbeg) if k == "K" else (sV, sVbeg)
            assert g not in pinned and (g - 2) not in xg and (g - 1) not in xg, g
            if cb == 0: scal.append((g - 2, ["s_mov_b32 %s, %d" % (sTmp, x * SLOT)], True))
            scal.append((g - 1, ["s_add_u32 m0, %s, %d" % (beg, (x % 3) * SLOT + cb * (4096 - 128))], True))
            pin(g, "buffer_load_dwordx4 %s, %s, %s offen offset:%d %s lds" % (V(vDMA), srd_, sTmp, cb * 128, NT))
        dgp = [int(x) for x in opts.get("dgp", "71,81,93,105,117,130").split(",")]
        scal[0] = (57, ["s_waitcnt vmcnt(%d) lgkmcnt(0)" % (3 + 3 * XP + sum(1 for g in xg if g < 57))], True)
        scal.append((121, ["s_waitcnt vmcnt(%d)" % (3 * XP + sum(1 for g in xg + dgp if g < 121))], True)); scal.append((122, ["s_barrier"], True))
    if par == 0 and not peel and int(opts.get("keep", 0)):
        scal.append((2, ["s_cmp_eq_u32 %s, 6" % sIT, "s_cselect_b32 %s, 0, %s" % (sVoff, sVoff)], False))
    for i in range(int(opts.get("slow", 0))):
        g = [30, 101, 54, 138, 10, 83][i]
        if peel: scal.append((g, ["s_sleep 1"], True))
        else: scal.append((g, ["s_cmp_lt_u32 %s, %d" % (sIT, int(opts.get("slowit", 3))), "s_cbranch_scc0 L_sl%d_%d" % (par, i), "s_sleep 1", "L_sl%d_%d:" % (par, i)], True))
    OW = int(opts.get("ow", 0))
    if par == 0 and OW:
        scal.append((2, ["s_cmp_eq_u32 %s, 6" % sIT, "s_cselect_b32 s28, s32, s28", "s_cselect_b32 s29, s33, s29", "s_cselect_b32 s30, s34, s30",
                         "s_cselect_b32 %s, 0, %s" % (sVoff, sVoff), "s_cselect_b32 s86, %d, 0" % (61440 if OW == 2 else 0)], False))
        scal.append((107, ["s_add_u32 %s, %s, s86" % (sVoff, sVoff)], False)); scal.append((119, ["s_add_u32 %s, %s, s86" % (sVoff, sVoff)], False))
    dg = [int(x) for x in opts.get("dg", "71,81,93,105,117,130").split(",")] if not peel else dgp
    for i in range(6):
        srd_, so, sm_ = (sV, sVoff, sVm) if i < 3 else (sK, sKoff, sKm)
        assert dg[i] not in pinned
        scal.append((dg[i] - 1, ["s_add_u32 m0, %s, %d" % (sm_, (i % 3) * (4096 - 128))], True))
        pin(dg[i], "buffer_load_dwordx4 %s, %s, %s offen offset:%d %s lds" % (V(vDMA), srd_, so, (i % 3) * 128, NT))
    for g, so, m, end, beg in () if peel else ((dg[2] + 1 if dg[3] - dg[2] > 8 else dg[5] + 8, sVoff, sVm, sVend, sVbeg), (dg[5] + 1, sKoff, sKm, sKend, sKbeg)):
        scal.append((g, ["s_add_u32 %s, %s, %d" % (so, so, SLOT), "s_add_u32 %s, %s, %d" % (m, m, SLOT),
                         "s_cmp_eq_u32 %s, %s" % (m, end), "s_cselect_b32 %s, %s, %s" % (m, beg, m)], False))
    if par == 0 and not peel: scal.append((139, ["s_add_u32 %s, %s, 1" % (sIT, sIT), "s_cmp_lt_u32 %s, 7" % sIT], False))
    st = paced(sum([sm(rb, par, h) for rb in LATE for h in range(2)], []), 0, 50, dead=70)
    st += [Op("v_add_u32 %s, %s, %s" % (V(a), sVd, V(a)), 44, 56) for a in vVA]
    st += [Op("v_add_u32 %s, %s, %s" % (V(a), sKd, V(a)), 52, 125) for a in vKA]
    E0, E1 = 55, 140
    for n, (rb, h) in enumerate([(0, 0), (1, 0), (2, 0), (3, 0), (3, 1), (2, 1), (1, 1), (0, 1)]):
        ready = last_write_slot(qk, "v%d" % sregs(rb, np_)[4 * h]) + 5
        st += paced(sm(rb, np_, h), E0 + (E1 - E0) * n / 8, E0 + (E1 - E0) * (n + 1) / 8, floor=ready)
    def capf(cap, sc, pin_):
        for g in range(144):
            if "s_barrier" in sc.get(g, []): cap[g] = 0
    return schedule(mf, pinned, scal, st, ds_in, "body%d" % par, next_first=qk_mfmas(par)[0], excl=True, capf=capf)

def stamp(i):
    if STAMP in (1, 3): return ["s_memrealtime s[%d:%d]" % (60 + 2 * i, 61 + 2 * i)]
    if STAMP == 7:
        o = ["s_memrealtime s[%d:%d]" % (60 + 2 * i, 61 + 2 * i)] if i in (0, 2, 3, 6, 7) else []
        c = {2: 1, 7: 4, 3: 5}.get(i)
        return o + (["s_memtime s[%d:%d]" % (60 + 2 * c, 61 + 2 * c)] if c else [])
    if STAMP == 6: return ["s_memtime s[%d:%d]" % (60 + 2 * i, 61 + 2 * i)]
    return []

P = []
A = P.append
A("s_cmp_ge_u32 s2, 256")
A("s_cbranch_scc1 L_end")
A("s_load_dwordx4 s[4:7], s[0:1], 0")
A("s_load_dwordx4 s[8:11], s[0:1], 16")
if STAMP: A("s_load_dwordx2 s[12:13], s[0:1], 40")
P += stamp(0)
A("s_getpc_b64 s[18:19]")
A("v_lshrrev_b32 v240, 5, v0")
A("L_pc:")
if int(opts.get("cslice", 1)):
    A("s_and_b32 s3, s2, 0xf8"); A("v_add_u32 v240, s3, v240")
else: A("v_mov_b32 v240, v0")
A("v_lshlrev_b32 v240, 7, v240")

A("v_min_u32 v240, CODELEN, v240")
A("v_add_u32 v240, CODEOFF, v240")
A("global_load_dword v241, v240, s[18:19]")
vLN = 242; t2 = 243; t3 = 244; t4 = 245; t5 = 246; t6 = 247
A("v_lshrrev_b32 v%d, 6, v0" % t2)
A("v_and_b32 v%d, 63, v0" % vLN)
A("s_mul_i32 s14, s2, 147456")
A("v_readfirstlane_b32 %s, v%d" % (sWave, t2))
A("s_mul_i32 s15, s2, 196608")
if STG2 and "clsbit" in opts: A("s_bfe_u32 %s, s2, 0x%x" % (sCls, (int(opts.get("clsw", 3)) << 16) + int(opts.get("clsbit", 3))))
elif STG2: A("s_getreg_b32 %s, hwreg(HW_REG_XCC_ID, 0, 1)" % sCls)
A("v_lshrrev_b32 v%d, 3, v%d" % (t5, vLN))
A("v_mul_u32_u24 v%d, 384, v%d" % (t6, t5))
A("v_lshrrev_b32 v%d, 4, v%d" % (t3, vLN))
A("v_lshlrev_b32 v%d, 1, v%d" % (t4, t3))
A("v_xor_b32 v%d, v%d, v%d" % (t4, t4, vLN))
A("v_and_b32 v%d, 7, v%d" % (t4, t4))
A("v_lshl_add_u32 v%d, v%d, 4, v%d" % (vDMA, t4, t6))
A("s_mul_i32 %s, %s, 3072" % (sTmp, sWave))
A("v_add_u32 v%d, %s, v%d" % (vDMA, sTmp, vDMA))
A("v_and_b32 v%d, 7, v%d" % (t4, vLN))
A("v_lshl_add_u32 v%d, v%d, 4, v%d" % (vQG, t4, t6))
A("s_mul_i32 %s, %s, 36864" % (sRow, sWave))
A("v_add_u32 v%d, %s, v%d" % (vQG, sRow, vQG))
A("s_lshl_b32 %s, %s, 10" % (sVbeg, sWave))
A("s_add_u32 %s, %s, %d" % (sKbeg, sVbeg, KRING))
for rb in range(1, 6): A("s_mov_b32 %s, %d" % (sRB(rb), rb * 6144))
if STG2:
    A("s_mov_b32 s3, 0")
    for i, (lo, hi, k, cnt) in enumerate(STG2):
        A("s_sub_u32 %s, %s, %d" % (sTmp, sCls, lo)); A("s_cmp_lt_u32 %s, %d" % (sTmp, hi - lo)); A("s_cselect_b32 s3, %d, s3" % (1 << i))
A("s_waitcnt lgkmcnt(0)")
def srd(base, src, off, size):
    A("s_add_u32 s%d, s%d, %s" % (base, src, off)); A("s_addc_u32 s%d, s%d, 0" % (base + 1, src + 1))
    A("s_mov_b32 s%d, %d" % (base + 2, size)); A("s_mov_b32 s%d, 0x20000" % (base + 3))
vm = []
def raw(rb, i): return 96 + rb * 24 + i * 4
def issue(k, x, i):
    if k == "Q":
        A("buffer_load_dwordx4 %s, v%d, %s, %s offen offset:%d %s" % (V(raw(x, i), 4), vQG, sQ, sRB(x), (i & 1) * 3072 + (i >> 1) * 128, NT))
        vm.append("Q%d.%d" % (x, i))
    else:
        srd_, beg = (sK, sKbeg) if k == "K" else (sV, sVbeg)
        A("s_add_u32 m0, %s, %d" % (beg, (3 if (k, x) == ("K", 0) else x % 3) * SLOT + i * (4096 - 128)))
        A("s_mov_b32 %s, %d" % (sTmp, x * SLOT))
        A("buffer_load_dwordx4 %s, %s, %s offen offset:%d %s lds" % (V(vDMA), srd_, sTmp, i * 128, NT))
        vm.append("%s%d" % (k, x))
    n = len(vm) - 1
    for ci, (lo, hi, kk, cnt) in enumerate(STG2):
        if kk <= n < cnt:
            A("s_bitcmp1_b32 s3, %d" % ci); A("s_cbranch_scc0 L_sg%d_%d" % (n, ci)); A("s_waitcnt vmcnt(%d)" % kk); A("L_sg%d_%d:" % (n, ci))
def vwait(name):
    last = max(i for i, x in enumerate(vm) if x == name)
    A("s_waitcnt vmcnt(%d)" % (len(vm) - 1 - last))
TLB = int(opts.get("tlb", 0))
srd(24, 6, "s15", 196608)
issue("K", 0, 0)
if TLB & 1:
    srd(32, 10, "s14", 147456); srd(28, 8, "s15", 196608)
    A("v_lshlrev_b32 v240, 9, v%d" % vLN)
    A("buffer_load_dword v250, v240, %s, %s offen nt" % (sO, sRow)); vm.append("t")
    A("buffer_load_dword v251, v%d, %s, 0 offen nt" % (vDMA, sV)); vm.append("t")
for cb in range(1, 3): issue("K", 0, cb)
K1E = int(opts.get("k1e", 0))
if K1E:
    for cb in range(3): issue("K", 1, cb)
srd(20, 4, "s14", 147456)
for rb in range(QD):
    for i in range(6): issue("Q", rb, i)
HOP = int(opts.get("hop", 1))
if HOP: A("s_branch L_main"); A(".p2align 12"); A("L_main:")
srd(28, 8, "s15", 15 * SLOT); srd(32, 10, "s14", 147456); srd(84, 8, "s15", 196608)
if STAMP:
    A("s_mov_b32 s36, s12"); A("s_mov_b32 s37, s13"); A("s_mov_b32 s38, 0x100000"); A("s_mov_b32 s39, 0x20000")
A("s_add_u32 %s, %s, %d" % (sKend, sKbeg, 3 * SLOT))
A("s_add_u32 %s, %s, %d" % (sVend, sVbeg, 3 * SLOT))
A("s_mul_i32 %s, %s, %d" % (sQL, sWave, QWAVE))
A("s_add_u32 %s, %s, %d" % (sQL, sQL, QLDS))
A("v_xor_b32 v%d, v%d, v%d" % (t2, t5, t4))
A("v_lshlrev_b32 v%d, 4, v%d" % (t2, t2))
A("v_lshl_add_u32 v%d, v%d, 7, v%d" % (t2, t5, t2))
A("s_mul_i32 %s, %s, 6144" % (sTmp, sWave))
A("s_cmp_lt_u32 %s, 2" % sWave)
A("s_cselect_b32 s3, 0, 4")
A("s_mul_i32 s3, s3, %d" % SLOT)
A("s_add_u32 %s, %s, s3" % (sTmp, sTmp))
A("v_add_u32 v249, %s, v%d" % (sTmp, t2))
A("v_and_b32 v%d, 3, v%d" % (t4, vLN))
A("v_xor_b32 v%d, v%d, v%d" % (t2, t5, t4))
A("v_lshlrev_b32 v%d, 4, v%d" % (t2, t2))
A("v_lshl_add_u32 v%d, v%d, 8, v%d" % (t2, t4, t2))
A("v_bfe_u32 v%d, v%d, 2, 1" % (t4, vLN))
A("v_mul_u32_u24 v%d, %d, v%d" % (t4, QKS, t4))
A("v_add3_u32 v%d, v%d, v%d, %s" % (vQW, t2, t4, sQL))
A("v_and_b32 v%d, 15, v%d" % (t2, vLN))
A("v_xor_b32 v%d, v%d, v%d" % (t4, t2, t3))
A("v_lshlrev_b32 v%d, 4, v%d" % (t4, t4))
A("v_lshl_add_u32 v%d, v%d, 8, v%d" % (t4, t3, t4))
A("v_add_u32 v%d, %s, v%d" % (vQA, sQL, t4))
A("v_lshlrev_b32 v%d, 7, v%d" % (t6, t2))
A("v_lshrrev_b32 v%d, 5, v%d" % (t4, vLN))
A("v_xor_b32 v%d, v%d, v%d" % (t4, t4, vLN))
A("v_and_b32 v%d, 7, v%d" % (t4, t4))
A("v_lshl_add_u32 v%d, v%d, 4, v%d" % (t6, t4, t6))
A("v_xor_b32 v%d, v%d, v%d" % (t4, t3, t5))
A("v_and_b32 v%d, 1, v%d" % (t4, t4))
A("v_lshl_add_u32 v%d, v%d, 3, v%d" % (t6, t4, t6))
A("v_add_u32 v248, %s, v%d" % (sTmp, t6))
A("ds_write_b64 v%d, v[248:249] offset:%d" % (vQA, 2 * QRB))
A("v_and_b32 v%d, 6, v%d" % (t4, vLN))
A("v_xor_b32 v%d, v%d, v%d" % (t4, t4, t3))
A("v_lshlrev_b32 v%d, 4, v%d" % (t4, t4))
A("v_lshl_add_u32 v%d, v%d, 7, v%d" % (vKA[0], t2, t4))
A("v_add_u32 v%d, %d, v%d" % (vKA[0], KRING, vKA[0]))
A("v_xor_b32 v%d, 64, v%d" % (vKA[1], vKA[0]))
A("v_lshrrev_b32 v%d, 2, v%d" % (t4, vLN))
A("v_lshlrev_b32 v%d, 7, v%d" % (t4, t4))
A("v_and_b32 v%d, 3, v%d" % (t2, vLN))
A("v_lshl_add_u32 v%d, v%d, 3, v%d" % (t4, t2, t4))
A("v_bfe_u32 v%d, v%d, 3, 2" % (t2, vLN))
A("v_lshl_add_u32 v%d, v%d, 5, v%d" % (t4, t2, t4))
A("v_add_u32 v%d, %d, v%d" % (vVA[0], VRING + 2 * SLOT, t4))
for x in range(1, 4): A("v_xor_b32 v%d, %d, v%d" % (vVA[x], 32 * x, vVA[0]))
A("s_mov_b32 s40, 0x%x" % CSCALE); A("s_mov_b32 s41, 0x%x" % CSCALE)
A("s_mov_b32 %s, 0xffff0000" % sMask)
A("s_mov_b32 %s, 0" % sIT)
A("s_mov_b32 %s, %d" % (sKoff, 4 * SLOT))
A("s_mov_b32 %s, %d" % (sVoff, 2 * SLOT))
A("s_add_u32 %s, %s, %d" % (sKm, sKbeg, SLOT))
A("s_mov_b32 %s, %d" % (sXoff, 13 * SLOT)); A("s_add_u32 %s, %s, %d" % (sXm, sVbeg, VX))
A("s_mov_b32 s90, %d" % (-2 * SLOT)); A("s_mov_b32 s91, %d" % SLOT); A("s_mov_b32 s94, %d" % (2 * SLOT - 256)); A("s_movk_i32 s95, 128")
A("s_add_u32 %s, %s, %d" % (sVm, sVbeg, 2 * SLOT))
A("s_mov_b32 %s, 0x%x" % (sLo, f2u(2.0 ** float(opts.get("llo", -20)))))
A("s_mov_b32 %s, 0x%x" % (sHi, f2u(2.0 ** float(opts.get("lhi", 24)))))
A("s_mov_b64 %s, 0" % sBad)
for i in vL: A("v_mov_b32 v%d, 0" % i)
ZR = FQ[5][1]
for i in range(4): A("v_accvgpr_write_b32 a%d, 0" % (124 + i))
A("v_mov_b32 v%d, %d" % (t2, FLAG))
A("ds_write_b32 v%d, v%d" % (t2, vL[0]))
def zero16(f, i): A("v_mfma_f32_32x32x16_bf16 %s[%d:%d], %s, %s, 0" % (f, i, i + 15, ZR, ZR))
for i in range(128, 256, 16): zero16("a", i)
A("HOPS0")
vwait("K1" if K1E else "K0")
A("s_waitcnt lgkmcnt(0)")
A("s_barrier")
K0F = [V(G[rb][1], 4) for rb in range(6)] + [V(X[rb][1], 4) for rb in LATE] + FB
for n in range(12): A(k_read(K0F[n], 3, n >> 1, n & 1))
def pro_sm(rb):
    ops = sm(rb, 0, 0) + sm(rb, 0, 1)
    for t in [t for t in ops if t.startswith("v_exp")] + ["s_nop 0"] + [t for t in ops if not t.startswith("v_exp")]: A(t)
pend = [("Q", rb, i) for rb in range(QD, 6) for i in range(6)]
pend += [(k, x, cb) for k, x in (("K", 1), ("V", 0), ("K", 2), ("V", 1), ("K", 3))[K1E:3 + XP] for cb in range(3)]
deferred = pend[len(pend) - 3 * DEF:]; pend = pend[:len(pend) - 3 * DEF]
def qdst(rb, ks): return Ac(rb * 24 + ks * 4, 4) if rb < 4 else V(raw(rb, ks), 4)
def st_read(s_):
    rb, cb = divmod(s_, 3)
    for ks in (2 * cb, 2 * cb + 1): A(q_read(qdst(rb, ks), rb & 1, ks))
def st_mfma(s_):
    rb, cb = divmod(s_, 3)
    for hf in range(2):
        for ks in (2 * cb, 2 * cb + 1):
            d = V((G[rb][0] if hf == 0 else X[rb][0]), 4)
            A("%s %s, %s, %s, %s" % (MF, d, K0F[2 * ks + hf], qdst(rb, ks), "0" if ks == 0 else d))
nleft = 36
for s_ in range(18):
    rb, cb = divmod(s_, 3)
    for rh in range(2):
        i = 2 * cb + rh
        vwait("Q%d.%d" % (rb, i))
        if s_ == 17 and rh == 1: P += stamp(1)
        r0 = raw(rb, i); tb = 240 + 8 * rh
        for k in range(4):
            A("v_lshlrev_b32 v%d, 16, v%d" % (tb + 2 * k, r0 + k)); A("v_and_b32 v%d, %s, v%d" % (tb + 2 * k + 1, sMask, r0 + k))
        for k in range(4): A("v_pk_mul_f32 %s, %s, %s" % (V(tb + 2 * k, 2), V(tb + 2 * k, 2), sC2))
        for k in range(4): A("v_cvt_pk_bf16_f32 v%d, v%d, v%d" % (r0 + k, tb + 2 * k, tb + 2 * k + 1))
        if rh == 0 and s_ >= 1: st_read(s_ - 1)
        A("ds_write_b128 v%d, %s offset:%d" % (vQW, V(r0, 4), (rb & 1) * QRB + cb * 2 * QKS + rh * 128))
        if s_ == 17 and rh == 1: st_read(17)
        if pend and (pend[0][0] == "Q" or len(pend) >= nleft - int(opts.get("kvl", 3))):
            for _ in range(-(-len(pend) // nleft)): issue(*pend.pop(0))
        nleft -= 1
        if nleft == 0:
            for x in deferred[:3]: issue(*x)
    if s_ >= 1:
        A("s_waitcnt lgkmcnt(%d)" % (2 if s_ < 17 else 4)); st_mfma(s_ - 1)
        if "dum" in opts and s_ < 17:
            d0, d1 = [int(x) for x in opts["dum"].split(",")]
            rbp, cbp = divmod(s_ - 1, 3)
            for i in range(d0 + (d1 - d0) * s_ // 16):
                A("%s a[112:115], %s, %s, a[112:115]" % (MF, K0F[i % 12], qdst(rbp, 2 * cbp + (i & 1))))
    if cb == 1 and rb >= 1 and rb - 1 in EARLY: pro_sm(rb - 1)
    if s_ == int(opts.get("hs", 2)) and (int(opts.get("hskip", 3)) < 2 or len(opts.get("pages", "4,5,6").split(",")) > 4): A("HOPS1")
    for i in {7: (96, 112, 128), 13: (144, 160, 176), 16: (192, 208)}.get(s_, ()): zero16("v", i)
A("s_waitcnt lgkmcnt(0)")
st_mfma(17)
for i in (240, 224): zero16("v", i)
for x in deferred[3:]: issue(*x)
if not K1E:
    vwait("K1")
    A("s_barrier")
for a_ in vKA: A("v_add_u32 %s, %d, %s" % (V(a_), SLOT, V(a_)))
A(k_read(FB[0], 0, 0, 0)); A(k_read(FB[1], 0, 1, 0))
for rb in LATE:
    for k in range(2): A(q_read(FQ[rb][k], rb - 4, k))
if TLB & 2: A("buffer_load_dword v%d, v%d, %s, 0 offen nt" % (vQW, vQG, sO))
assert vm[-6 - 3 * XP:] == sum([[x] * 3 for x in ("V0", "K2", "V1", "K3")[:2 + XP]], []), vm
A("s_waitcnt lgkmcnt(0)")
P += stamp(2)

B0, q0 = body(0, [])
B1, q1 = body(1, q0)
B0, q0b = body(0, q1)
assert q0 == q0b
BP, qp_ = body(0, [], peel=True)
assert qp_ == q0
BP += ["s_add_u32 %s, %s, %d" % (sKoff, sKoff, SLOT), "s_add_u32 %s, %s, %d" % (sKm, sKm, SLOT),
       "s_add_u32 %s, %s, %d" % (sVoff, sVoff, SLOT), "s_mov_b32 %s, %s" % (sVm, sVbeg), "s_mov_b32 %s, 1" % sIT]
if STAMP == 7: BP += stamp(7)
if STAMP == 3:
    pre3 = ["s_mov_b32 m0, s13", "s_add_u32 s13, s13, 1", "v_writelane_b32 v15, s88, m0", "s_memrealtime s[88:89]"]
    BP = ["s_mov_b32 s13, 0", "s_mov_b32 s88, 0"] + pre3 + BP; B0 = pre3 + B0; B1 = pre3 + B1

T = []
A = T.append
T += stamp(3)
if STAMP == 3:
    T += pre3 + ["s_waitcnt lgkmcnt(0)"] + pre3[:3]
    A("v_mbcnt_lo_u32_b32 v16, -1, 0"); A("v_mbcnt_hi_u32_b32 v16, -1, v16"); A("v_lshlrev_b32 v16, 2, v16")
    A("s_lshl_b32 s3, s2, 2"); A("s_add_u32 s3, s3, %s" % sWave); A("s_lshl_b32 s3, s3, 8"); A("s_add_u32 s3, s3, 65536")
    A("buffer_store_dword v15, v16, %s, s3 offen" % sW)
eW = [16, 17, 18, 19]; eR = vQW; eS = vQG
for a_ in vKA: A("v_subrev_u32 %s, %d, %s" % (V(a_), 2 * SLOT, V(a_)))
def R4(x): return "%s[%d:%d]" % (x[0], x[1], x[1] + 3)
def R2(x, h): return "%s[%d:%d]" % (x[0], x[1] + 2 * h, x[1] + 2 * h + 1)
def vrd(dst, tile, db):
    return ["ds_read_b64_tr_b16 %s, %s offset:%d" % (R2(dst, i), V(vVA[db & 3]), {13: 3, 14: 1, 15: 4}[tile] * SLOT + (db >> 2) * 4096 + i * 2048) for i in range(2)]
X15 = {0: X[4][0], 1: X[5][0], 2: G[5][0], 3: X[0][0], 4: X[4][1], 5: X[5][1]}
G15 = {0: G[0][1], 1: G[1][1], 2: G[2][1], 3: G[1][0], 4: G[1][1], 5: G[2][0]}
def fs(rb, t): return [(G[rb][0] if t == 14 else G15[rb]) + i for i in range(4)] + [(X[rb][0] if t == 14 else X15[rb]) + i for i in range(4)]
def fsm(rb, t, half):
    ops = []; s_ = fs(rb, t)
    for i in (4 * half, 4 * half + 2):
        ops += ["v_exp_f32 %s, %s" % (V(s_[i]), V(s_[i])), "v_exp_f32 %s, %s" % (V(s_[i + 1]), V(s_[i + 1])),
                "v_add_f32 %s, %s, %s" % (V(vL[rb]), V(vL[rb]), V(s_[i])), "v_add_f32 %s, %s, %s" % (V(vL[rb]), V(vL[rb]), V(s_[i + 1])),
                "v_cvt_pk_bf16_f32 %s, %s, %s" % (V(s_[i // 2]), V(s_[i]), V(s_[i + 1]))]
    return ops
def qp(p): return [("a", rb * 24 + 8 * p + 4 * k) for rb in range(3) for k in range(2)]
def sb(*l): return [("a", 96 + 4 * i) for i in l]
vres = qp(0) + sb(4, 5) + qp(1) + sb(6, 7, 0, 1) + qp(2)
def v13(db): return ("v", 192 + 4 * db)
def phase_mf(rb):
    o = ["%s %s, %s, %s, %s" % (MF, O4(rb, db), R4(v13(db)), V(G[rb][1], 4), O4(rb, db)) for db in range(12)] if rb >= 3 else []
    return o + ["%s %s, %s, %s, %s" % (MF, O4(rb, db), R4(vres[12 * t + db]), V(fs(rb, 14 + t)[0], 4), O4(rb, db)) for t in range(2) for db in range(12)]
def lfin(rb):
    tmp = X15[rb]; l = vL[rb]; o = []
    for sw in ("v_permlane32_swap_b32", "v_permlane16_swap_b32"):
        o += ["v_mov_b32 v%d, v%d" % (tmp, l), "%s v%d, v%d" % (sw, l, tmp), "v_add_f32 v%d, v%d, v%d" % (l, l, tmp)]
    o += ["v_cmp_nle_f32 vcc, %s, v%d" % (sLo, l), "v_cmp_nge_f32 %s, %s, v%d" % (sB2, sHi, l), "v_rcp_f32 v%d, v%d" % (l, l)]
    return [Op(t) for t in o]
def wreg(n):
    fl, i0 = Oreg(n // 3, 4 * (n % 3))
    return i0 if fl == "v" else 96 + 16 * (n % 6)
def stg(n): return (n % 3) * 2048
def ep_st(n, rh):
    rb, cb = divmod(n, 3)
    return "buffer_store_dwordx4 %s, v%d, %s, %s offen offset:%d %s" % (V(wreg(n) + 8 + 4 * rh, 4), eS, sO, sRB(rb), rh * 3072 + cb * 128, "" if n >= int(opts.get("plain", 99)) else "nt sc1" if str(rb) in opts.get("ntrb", "") or ("nth" in opts and rh == 1 and rb < int(opts["nth"])) else SPOL)
def ep_rd(n):
    return ["ds_read_b128 %s, v%d offset:%d" % (V(wreg(n) + 8, 4), eR, stg(n))] + \
           ["ds_read_b64 %s, v%d offset:%d" % (V(wreg(n) + 12 + 2 * k, 2), eR, stg(n) + 1024 + 8 * (1 - k)) for k in range(2)]
ROWS = int(opts.get("rows", 0))
def burst(rb):
    A("s_or_b64 %s, %s, vcc" % (sBad, sBad)); A("s_or_b64 %s, %s, %s" % (sBad, sBad, sB2))
    lp = vL[rb] & ~1; sel = vL[rb] & 1
    for cb in range(3):
        n = 3 * rb + cb
        fl, i0 = Oreg(rb, 4 * cb); w = wreg(n)
        if fl == "a":
            for i in range(16):
                if rb < 5 or 4 * cb + i // 4 >= PRE5: A("v_accvgpr_read_b32 %s, %s" % (V(w + i), Ac(i0 + i)))
        for i in range(0, 16, 2):
            A("v_pk_mul_f32 %s, %s, %s op_sel:[0,%d] op_sel_hi:[1,%d]" % (V(w + i, 2), V(w + i, 2), V(lp, 2), sel, sel))
        if cb == 2 and not ROWS: A("s_waitcnt lgkmcnt(4)"); A(ep_st(n - 2, 0))
        for i in range(8): A("v_cvt_pk_bf16_f32 %s, %s, %s" % (V(w + i), V(w + 2 * i), V(w + 2 * i + 1)))
        if cb == 2 and not ROWS: A(ep_st(n - 2, 1))
        if cb >= 1:
            for t in ep_rd(n - 1): A(t)
        for x in range(4):
            A("ds_write_b64 v%d, %s offset:%d" % (eW[x], V(w + 2 * x, 2), stg(n)))
def group_block(rbs, buf, qf, first):
    mf = []; frag = []
    for t in ((14, 13, 15) if first else (14, 15)):
        if t == 13:
            for db in range(12):
                b = buf[len(frag) % 8]; frag.append((len(mf), vrd(b, 13, db), len(mf) + 2))
                mf += ["%s %s, %s, %s, %s" % (MF, O4(rb, db), R4(b), V(G[rb][1], 4), O4(rb, db)) for rb in rbs]
        else:
            for g in range(6):
                p, hf = (g >> 1, g & 1) if (t == 15 and first) else (g % 3, g // 3)
                bs = [buf[(len(frag) + k) % 8] for k in range(2)]
                for k in range(2): frag.append((len(mf), [k_read(R4(bs[k]), t - 12, 2 * p + k, hf)], len(mf) + 5))
                for rb in rbs:
                    for k in range(2):
                        d = V(fs(rb, t)[4 * hf], 4)
                        mf.append("%s %s, %s, %s, %s" % (MF, d, R4(bs[k]), qf(rb, 2 * p + k), "0" if p + k == 0 else d))
    return mf + phase_mf(rbs[0]), frag
def place(pinned, g, ins):
    while len(pinned.get(g, [])) + len(ins) > 2 or any(t.startswith("buffer") for t in pinned.get(g, [])): g += 1
    pinned.setdefault(g, []).extend(ins); return g
def block_stream(mf, rbs, lag):
    st = []
    r0_, r1_, r2_ = rbs
    for rb, t, h in ((r0_, 14, 0), (r1_, 14, 0), (r2_, 14, 0), (r0_, 14, 1), (r1_, 14, 1), (r2_, 14, 1), (r0_, 15, 0), (r0_, 15, 1), (-1, 0, 0), (r1_, 15, 0)):
        if rb < 0: st += lfin(r0_); continue
        ready = last_write_slot(mf[:108], "v%d" % fs(rb, t)[4 * h]) + lag
        dead = 131 if rb != r0_ else (105 if t == 14 else 117)
        st += [Op(x, ready, dead) for x in fsm(rb, t, h)]
    return st
def leftovers(n):
    rd = ep_rd(n)
    if ROWS:
        d = {4: rd[:2], 5: rd[2:]}
        for i in range(6): d[11 + i + (i // 3) * int(opts.get("rgap", 2))] = [ep_st(n - 2 + i % 3, i // 3)]
        return d
    return {1: [ep_st(n - 1, 0)], 4: [ep_st(n - 1, 1)], 7: rd[:2], 8: rd[2:], 17: [ep_st(n, 0)], 20: [ep_st(n, 1)]}
def small_phase(rb, nxt, extra=()):
    scal = [(0, ["s_waitcnt lgkmcnt(4)"], True), (16, ["s_waitcnt lgkmcnt(0)"], True)] if not ROWS else [(10, ["s_waitcnt lgkmcnt(0)"], True)]
    st = [Op(t, 0, 10) for t in fsm(rb, 15, 1)] + lfin(rb)
    if nxt is not None: st += [Op(t) for t in fsm(nxt, 15, 0)]
    pinned = leftovers(3 * rb - 1)
    for g, ins in extra: pinned[g] = ins
    if extra: scal[1] = (16, ["s_waitcnt lgkmcnt(%d)" % sum(len(ins) for g, ins in extra if g < 16)], True)
    blk, _ = schedule(phase_mf(rb), pinned, scal, st, [], "phase%d" % rb, excl=True)
    return blk
bufA = [("a", 96 + 4 * i) for i in range(8)]
mf, frag = group_block([0, 1, 2], bufA, Qf, True)
pinned = {}
for i, (use, ins, _) in enumerate(frag):
    if i < 2: continue
    place(pinned, max(0 if i < 8 else frag[i - 8][2], use - 15 + (i & 1)), ins)
g = 80; gv = {}
for n in range(24):
    free = 1 + max(k for k, t in enumerate(mf[:108]) if ("a%d" % vres[n][1]) in Ins(t).rd)
    g = place(pinned, max(g, free), vrd(vres[n], 14 + n // 12, n % 12))
    gv[n] = g; g += (1 if n < 17 else 2)
place(pinned, 124, ["ds_read_b64 v[16:17], v%d offset:%d" % (vQA, 2 * QRB)])
scal = [(51, ["s_waitcnt vmcnt(12)", "s_barrier"], False), (74, ["s_waitcnt vmcnt(9)", "s_barrier"], False), (90, ["s_waitcnt vmcnt(0)", "s_barrier"], False)]
st = [Op(t) for h in range(2) for t in sm(4, 1, h)] + block_stream(mf, [0, 1, 2], 5)
blk, _ = schedule(mf, pinned, scal, st, q0, "blockA", excl=True)
T += blk
if "fine" in opts: T += stamp(1)
A("s_waitcnt lgkmcnt(0)")
A("v_mov_b32 v%d, v17" % eR)
for x in (1, 2, 3): A("v_xor_b32 v%d, %d, v16" % (eW[x], 32 * x))
burst(0)
T += small_phase(1, 2); burst(1)
bufB = [("v", 96 + 4 * i) for i in range(8)]
def qfB(rb, ks): return Qf(rb, ks) if rb < 4 else V(128 + 24 * (rb - 4) + 4 * ks, 4)
mfB, fragB = group_block([3, 4, 5], bufB, qfB, False)
pre = [fragB[i][1][0] for i in range(4)] + [q_read(qfB(rb, k), rb - 4, k) for k in range(6) for rb in LATE]
T += small_phase(2, None, [(g, pre[2 * i:2 * i + 2]) for i, g in enumerate((11, 14, 18, 19, 21, 22, 23))])
for t in pre[14:]: A(t)
for x in range(4): A("v_mov_b32 v%d, v%d" % (G[0][0] + x, eW[x]))
eW = [G[0][0] + x for x in range(4)]
burst(2)
if "fine" in opts: T += stamp(2)
pinned = leftovers(8)
for i, (use, ins, _) in enumerate(fragB):
    if i < 4: continue
    g = place(pinned, max(0 if i < 8 else fragB[i - 8][2], use - 15 + (i & 1)), ins)
g = 22
for db in range(12): g = place(pinned, g, vrd(v13(db), 13, db)) + 3
if ROWS:
    later = sum(1 for g in range(6, 10) for t in pinned.get(g, []) if t.startswith("ds_")) + len(pinned[5]) - 1
    scal = [(10, ["s_waitcnt lgkmcnt(%d)" % later], True)]
else:
    later = sum(1 for g in range(9, 16) for t in pinned.get(g, []) if t.startswith("ds_")) + len(pinned[8]) - 1
    scal = [(0, ["s_waitcnt lgkmcnt(4)"], True), (16, ["s_waitcnt lgkmcnt(%d)" % later], True)]
st = [Op(t, 0, 50) for h in range(2) for t in sm(5, 1, h)]
for rb, t, h, dead in ((3, 14, 0, 81), (4, 14, 0, 107), (5, 14, 0, 107), (3, 14, 1, 81), (4, 14, 1, 107), (3, 15, 0, 93), (3, 15, 1, 93), (-1, 0, 0, 0), (5, 14, 1, 107)):
    if rb < 0: st += lfin(3); continue
    st += [Op(x, last_write_slot(mfB[:72], "v%d" % fs(rb, t)[4 * h]) + 7, dead) for x in fsm(rb, t, h)]
if ROWS: A("s_waitcnt lgkmcnt(7)")
blk, _ = schedule(mfB, pinned, scal, st, [], "blockB", excl=True)
T += blk
if "fine" in opts: T += stamp(0)
burst(3)
scal = [(0, ["s_waitcnt lgkmcnt(4)"], True), (16, ["s_waitcnt lgkmcnt(0)"], True)] if not ROWS else [(10, ["s_waitcnt lgkmcnt(0)"], True)]
st = [Op(t, 0, 22) for h in range(2) for t in fsm(4, 15, h)] + lfin(4) + [Op(t) for h in range(2) for t in fsm(5, 15, h)]
blk, _ = schedule(phase_mf(4), leftovers(11), scal, st, [], "phase4", excl=True)
T += blk
burst(4)
m5 = phase_mf(5); m5 = [m5[12 * t + db] for db in range(12) for t in range(3)]
st = lfin(5)
PRE5 = 9
for db in range(PRE5):
    st += [Op("v_accvgpr_read_b32 %s, %s" % (V(wreg(15 + db // 4) + 4 * (db % 4) + i), Ac(Oreg(5, db)[1] + i)), 3 * db + 2 + 5) for i in range(4)]
blk, _ = schedule(m5, leftovers(14), scal, st, [], "phase5", excl=True)
T += blk
T += stamp(4)
burst(5)
if not ROWS:
    A("s_waitcnt lgkmcnt(4)")
    A(ep_st(16, 0)); A(ep_st(16, 1))
for t in ep_rd(17): A(t)
A("s_cmp_eq_u64 %s, 0" % sBad)
A("s_cbranch_scc1 L_good")
A("v_mov_b32 v2, %d" % FLAG); A("v_mov_b32 v3, 1")
A("ds_write_b32 v2, v3")
A("L_good:")
A("s_waitcnt lgkmcnt(0)")
if ROWS:
    for i in range(6): A(ep_st(15 + i % 3, i // 3))
else: A(ep_st(17, 0)); A(ep_st(17, 1))
if STAMP:
    T += stamp(5)
    A("s_waitcnt vmcnt(0)")
    T += stamp(6)
    A("s_waitcnt lgkmcnt(0)")
    if "probe" in opts:
        pi, pj = [int(x) for x in opts["probe"].split(",")]
        A("s_sub_u32 s84, s%d, s%d" % (60 + 2 * pj, 60 + 2 * pi))
        if "pneg" in opts: A("s_sub_u32 s84, %s, s84" % opts["pneg"])
        if STAMP == 6:
            A("s_min_u32 s84, s84, 40000"); A("s_memrealtime s[72:73]"); A("s_waitcnt lgkmcnt(0)")
        else:
            A("s_min_u32 s84, s84, 10000")
            A("s_lshl_b32 s84, s84, 2")
        if "pcls" in opts:
            A("s_bfe_u32 s85, s2, 0x%x" % int(opts["pbits"], 16)); A("s_cmp_eq_u32 s85, %s" % opts["pcls"]); A("s_cselect_b32 s84, s84, 0")
        A("L_spin:"); A("s_sleep 2"); A("s_memrealtime s[82:83]"); A("s_waitcnt lgkmcnt(0)")
        A("s_sub_u32 s85, s82, s72"); A("s_cmp_lt_u32 s85, s84"); A("s_cbranch_scc1 L_spin")
    A("s_lshl_b32 s3, s2, 2"); A("s_add_u32 s3, s3, %s" % sWave); A("s_lshl_b32 s3, s3, 6")
    A("v_mov_b32 v10, s3")
    for i in range(16): A("v_mov_b32 v%d, s%d" % (16 + i, 60 + i))
    for i in range(4): A("buffer_store_dwordx4 v[%d:%d], v10, %s, 0 offen offset:%d" % (16 + 4 * i, 19 + 4 * i, sW, 16 * i))
A("s_barrier")
A("v_mov_b32 v0, %d" % FLAG)
A("ds_read_b32 v0, v0")
A("s_waitcnt lgkmcnt(0)")
A("v_readfirstlane_b32 %s, v0" % sTmp)
A("s_cmp_eq_u32 %s, 0" % sTmp)
A("s_cbranch_scc0 L_redo")
A("L_end:")
A("s_endpgm")
A("L_hotend:")
A("L_redo:")
A("s_waitcnt vmcnt(0)")
A("s_barrier")
A("v_mbcnt_lo_u32_b32 v0, -1, 0"); A("v_mbcnt_hi_u32_b32 v0, -1, v0")
A("s_lshl_b32 %s, %s, 6" % (sTmp, sWave))
A("v_add_u32 v0, %s, v0" % sTmp)

if "cap" in opts:
    T2 = []
    for t in T:
        if t.startswith("buffer_store") and sO in t: T2.append("s_waitcnt vmcnt(%d)" % int(opts["cap"]))
        T2.append(t)
    T = T2
if "skiprb" in opts:
    sk = [sRB(int(x)) for x in opts["skiprb"].split(",")]
    T = [t for t in T if not (t.startswith("buffer_store") and sO in t and any((", %s offen" % x) in t for x in sk))]
if "nost" in opts: T = [t for t in T if not (t.startswith("buffer_store") and sO in t)]
if "nowr" in opts: T = [t for t in T if not t.startswith("ds_write_b64")]
def I(l): return [Ins(t) for t in l if not t.startswith("HOPS")]
seq = I(P + BP + B1 + B0 + ["s_cbranch_scc1 L_loop"] + B1 + B0 + ["s_cbranch_scc1 L_loop"] + T)
errs = check_hazards(seq, "main") + check_waits(seq, "main") + check_scc(seq, "main")
for e in errs[:30]: sys.stderr.write(e + "\n")
if errs and "nost" not in opts and "skiprb" not in opts:
    print("!!! %d hazard problems" % len(errs)); sys.exit(1)
S, lds2, e2_ = gen_safe.build_safe({"qd": "3", "nt": NT})
assert lds2 <= LDS_BYTES and e2_ == 0

hdr = open("standalone__gqa_softmax__near_ridge.s.ref").read().split("; Override")[0]
code = P + ["; ---- iteration 0 (also completes the first K/V prefetch)"] + BP + ["; ---- iterations 1..12: QK(j+1) | PV(j)", ".p2align 3", "L_loop:"] + B1 + B0 + ["s_cbranch_scc1 L_loop",
       "; ---- tiles 13..15: row blocks 0-2 to the end, then 3-5; normalise, stage through LDS, store"] + T + ["; ---- online-max path (taken only when a row sum left the checked range)"]
NH = 8
DOC = """;
; Attention forward, one workgroup per (batch, head): 4 waves x 96 query rows, 16x16x32 bf16 MFMA, 32-key tiles.
;   S^T = K Q^T and O^T = V^T P^T, so a lane owns one query row; K/V tiles stream HBM -> LDS (LDS-DMA, XOR-swizzled),
;   softmax VALU work is interleaved with the MFMAs of the neighbouring tile.
; Fast path: Q is scaled by log2(e)/sqrt(192) once, p = 2^s is taken against the reference point 0 (softmax is shift
;   invariant).  Every row sum is checked against [2^-20, 2^24] (NaN and inf fail the check); if any row of the head
;   fails, the whole workgroup recomputes the head on the path labelled S_* which subtracts the running row maximum.
; Workgroups on even compute dies hold their first loads to four in flight per wave, which lets the odd dies (slower
;   to load and to compute) finish Q first; this changes speed only.
; The last tiles are processed row block by row block so that output stores overlap the remaining matrix work.
; Generated by the author's own script (instruction scheduling and hazard checking included).""".split("\n")
def render(code, nh):
    out = [hdr.rstrip(), "; @launch grid=(256,1,1) block=(256,1,1) lds=%d" % LDS_BYTES] + DOC + [
           '.amdgcn_target "amdgcn-amd-amdhsa--gfx950"', ".text", ".globl %s" % KN, ".p2align 8", ".type %s,@function" % KN, "%s:" % KN, "L_start:"]
    for t in code + S:
        if t.startswith("HOPS"):
            if not HOP: continue
            r_ = int(t[4:])
            out += ["; visit the first line of later code pages (no lane active, no memory instruction on that path)", "    s_mov_b64 exec, 0"]
            for w in range(4):
                k = 4 * r_ + w
                out += ["    s_cmp_eq_u32 %s, %d" % (sWave, w), "    s_cbranch_scc1 %s" % ("L_hop%d" % k if k < nh else "L_hopback%d" % r_)]
            out += ["L_hopback%d:" % r_, "    s_mov_b64 exec, -1"]
            continue
        t = t.replace("CODELEN", "L_hotend-L_main" if HOP else "L_hotend-L_pc").replace("CODEOFF", "L_main-L_pc+4" if HOP else "0")
        out.append(t if t.endswith(":") or t.startswith((".", ";")) else "    " + t)
    out += ['.section .rodata,"a"', ".p2align 6", ".amdhsa_kernel %s" % KN, "  .amdhsa_next_free_vgpr 512", "  .amdhsa_next_free_sgpr 96",
            "  .amdhsa_accum_offset 256", "  .amdhsa_group_segment_fixed_size 0", "  .amdhsa_kernarg_size 48", "  .amdhsa_user_sgpr_count 2",
            "  .amdhsa_user_sgpr_kernarg_segment_ptr 1", "  .amdhsa_system_sgpr_workgroup_id_x 1", ".end_amdhsa_kernel", ""]
    return "\n".join(out)
import subprocess, re as _re
def addresses(code, nh):
    marked = []
    for i, t in enumerate(code): marked += ["M_%d:" % i, t]
    open("_g7.s", "w").write(render(marked, nh))
    subprocess.run(["clang", "-x", "assembler", "-target", "amdgcn-amd-amdhsa", "-mcpu=gfx950", "-c", "_g7.s", "-o", "_g7.o"], check=True)
    sy = subprocess.run(["llvm-objdump", "-t", "_g7.o"], capture_output=True, text=True).stdout
    ad = {m.group(2): int(m.group(1), 16) for m in _re.finditer(r"^([0-9a-f]+) .* (\S+)$", sy, _re.M)}
    return [ad["M_%d" % i] - ad["L_main"] for i in range(len(code))]
nh = 0
if HOP:
    STEP = int(opts.get("hstep", 4096))
    while nh < NH:
        ad = addresses(code, nh)
        pages = [int(x) for x in opts.get("pages", "4,5,6").split(",") if x] or list(range(1 + int(opts.get("hskip", 3)), 20))
        if nh >= len(pages): break
        lo = STEP * pages[nh]
        if lo >= ad[code.index("L_end:")]: break
        cand = [i for i in range(1, len(code)) if lo <= ad[i] < lo + 56]
        good = [i for i in cand if code[i - 1].startswith("v_mfma") and not code[i].startswith("s_")]
        i = (good or cand)[0]
        code[i:i] = ["L_hop%d:" % nh, "s_cbranch_execz L_hopback%d" % (nh // 4), "s_nop 0"][:2 + (1 if "L_loop:" in code[:i] and "s_cbranch_scc1 L_loop" in code[i:] and False else 0)]
        nh += 1
    sys.stderr.write("hops: %d\n" % nh)
open(sys.argv[1], "w").write(render(code, nh))
```

```python
import sys, math, struct
from asmlib import *
from sched import *
import gen_safe

opts = dict(a.split("=") for a in sys.argv[2:])
STAMP = int(opts.get("stamp", 0))
NT = opts.get("nt", "nt").replace("+", " ")
SPOL = opts.get("spol", "sc1").replace("+", " ")
QD = int(opts.get("qd", 3))
DEF = int(opts.get("defer", 2))
STG2 = [tuple(int(y) for y in x.split(":")) for x in opts.get("stg2", "0:1:3:21").split(",") if x]
XP = int(opts.get("xp", 2))
KN = "standalone__gqa_softmax__near_ridge_kernel"
def f2u(x): return struct.unpack("<I", struct.pack("<f", x))[0]
CSCALE = f2u(math.log2(math.e) / math.sqrt(192.0))

VRING = 0; VX = 36864; KRING = 49152; KX = 86016; QLDS = 98304; SLOT = 12288
QKS = 1088; QRB = 6 * QKS; QWAVE = 2 * QRB + 1024
FLAG = QLDS + 4 * QWAVE
LDS_BYTES = FLAG + 64
def V(i, n=1): return "v%d" % i if n == 1 else "v[%d:%d]" % (i, i + n - 1)
def Ac(i, n=1): return "a%d" % i if n == 1 else "a[%d:%d]" % (i, i + n - 1)
vKA = [0, 1]; vVA = [2, 3, 4, 5]; vQA = 6; vDMA = 7
vL = [8 + i for i in range(6)]; vQG = 14; vQW = 15
FB = [Ac(96 + 4 * i, 4) for i in range(4)]
FQ = {4: [Ac(112, 4), Ac(116, 4)], 5: [Ac(120, 4), Ac(124, 4)]}
EARLY = [0, 1, 2, 3]; LATE = [4, 5]
G = {}; X = {}
r = 16
for rb in LATE:
    G[rb] = [r, r + 4]; X[rb] = [r + 8, r + 12]; r += 16
for rb in EARLY:
    G[rb] = [r, r + 4]; X[rb] = [r + 8, r + 8]; r += 12
assert r == 96
def Oreg(rb, db):
    b = rb * 12 + db
    return ("v", 96 + 4 * b) if b < 40 else ("a", 128 + 4 * (b - 40))
def O4(rb, db):
    f, i = Oreg(rb, db); return "%s[%d:%d]" % (f, i, i + 3)
def Qf(rb, ks): return Ac(rb * 24 + ks * 4, 4) if rb < 4 else FQ[rb][ks & 1]
sQ = "s[20:23]"; sK = "s[24:27]"; sV = "s[28:31]"; sO = "s[32:35]"; sW = "s[36:39]"
sC2 = "s[40:41]"; sIT = "s42"; sKoff = "s43"; sVoff = "s44"; sKm = "s45"; sVm = "s46"; sWave = "s47"
sTmp = "s48"; sRow = "s49"; sKend = "s50"; sVend = "s51"; sKbeg = "s52"; sVbeg = "s53"; sQL = "s16"; sCls = "s17"
sVX = "s[84:87]"; sXoff = "s74"; sXm = "s75"; sKr = "s82"; sVr = "s83"; sKd = "s92"; sVd = "s93"
sMask = "s54"; sLo = "s76"; sHi = "s77"; sBad = "s[78:79]"; sB2 = "s[80:81]"
def sRB(rb): return "0" if rb == 0 else "s%d" % (54 + rb)
MF = "v_mfma_f32_16x16x32_bf16"

def k_read(dst, tile_par, ks, hf):
    return "ds_read_b128 %s, %s offset:%d" % (dst, V(vKA[ks & 1]), tile_par * SLOT + (ks >> 1) * 4096 + hf * 2048)
def v_read(a0, tile_par, db):
    return ["ds_read_b64_tr_b16 %s, %s offset:%d" % (Ac(a0 + 2 * i, 2), V(vVA[db & 3]), tile_par * SLOT + (db >> 2) * 4096 + i * 2048) for i in range(2)]
def q_read(dst, area, ks):
    return "ds_read_b128 %s, %s offset:%d" % (dst, V(vQA), area * QRB + ks * QKS)
def qk_mfmas(par, last_up=False):
    out = []
    for g in range(6):
        p, hf = g >> 1, g & 1
        for rb in (range(6) if hf == 0 or (last_up and g == 5) else range(5, -1, -1)):
            for k in range(2):
                ks = 2 * p + k
                d = V((G[rb][par] if hf == 0 else X[rb][par]), 4)
                out.append("%s %s, %s, %s, %s" % (MF, d, FB[(2 * g + k) % 4], Qf(rb, ks), "0" if ks == 0 else d))
    return out
def sregs(rb, par): return [G[rb][par] + i for i in range(4)] + [X[rb][par] + i for i in range(4)]
def sm(rb, par, half):
    ops = []; s = sregs(rb, par)
    for i in (4 * half, 4 * half + 2):
        ops.append("v_exp_f32 %s, %s" % (V(s[i]), V(s[i])))
        ops.append("v_exp_f32 %s, %s" % (V(s[i + 1]), V(s[i + 1])))
        ops.append("v_add_f32 %s, %s, %s" % (V(vL[rb]), V(vL[rb]), V(s[i])))
        ops.append("v_add_f32 %s, %s, %s" % (V(vL[rb]), V(vL[rb]), V(s[i + 1])))
        ops.append("v_cvt_pk_bf16_f32 %s, %s, %s" % (V(G[rb][par] + i // 2), V(s[i]), V(s[i + 1])))
    return ops
def last_write_slot(mf, reg): return max(g for g, t in enumerate(mf) if reg in Ins(t).wr)
def paced(ops, g0, g1, floor=0, dead=10 ** 9):
    os_ = [Op(t) for t in ops]; tot = sum(o.cost for o in os_); acc = 0
    for o in os_:
        o.ming = max(floor, int(g0 + (g1 - g0) * acc / tot)); o.dead = dead; acc += o.cost
    return os_
def pin_qk(pinned, qk, tile_par, nq):
    def pin(g, t): pinned.setdefault(g, []).append(t)
    for g in range(1, 6):
        for k in range(2): pin(12 * (g - 1) + 2 * k, k_read(FB[(2 * g + k) % 4], tile_par, 2 * (g >> 1) + k, g & 1))
    lastq = {}
    for g, t in enumerate(qk):
        for rb in LATE:
            for k in range(2):
                if FQ[rb][k] in t: lastq[(g // 24, rb, k)] = g
    for p in range(nq):
        g = 0
        for (lg, rb, k) in sorted((lastq[(p, rb, k)], rb, k) for rb in LATE for k in range(2)):
            g = max(g, lg + 1)
            while g in pinned: g += 1
            pin(g, q_read(FQ[rb][k], rb - 4, (2 * p + 2 + k) % 6)); g += 2

def body(par, ds_in, peel=False):
    np_ = par ^ 1
    qk = qk_mfmas(np_)
    mf = qk + ["%s %s, %s, %s, %s" % (MF, O4(rb, db), FB[db % 4], V(G[rb][par], 4), O4(rb, db)) for db in range(12) for rb in range(6)]
    pinned = {}
    def pin(g, t): pinned.setdefault(g, []).append(t)
    for db in range(12):
        for t in v_read(96 + 4 * (db % 4), 0, db): pin({0: 60, 1: 63, 2: 72, 3: 75}.get(db, 72 + 6 * (db - 3)), t)
    pin(127, k_read(FB[0], 0, 0, 0)); pin(133, k_read(FB[1], 0, 1, 0))
    pin_qk(pinned, qk, 0, 3)
    scal = [(57, ["s_waitcnt vmcnt(%d) lgkmcnt(0)" % (7 - par)], True), (58, ["s_barrier"], True)]
    if par == 1:
        scal.append((61, ["s_mov_b32 m0, %s" % sXm], True))
        pin(62, "buffer_load_dwordx4 %s, %s, %s offen %s lds" % (V(vDMA), sVX, sXoff, NT))
        scal.append((82, ["s_cmp_eq_u32 %s, 3" % sIT, "s_cselect_b32 %s, s94, s95" % sTmp, "s_cselect_b32 s84, s24, s84", "s_cselect_b32 s85, s25, s85",
                          "s_cselect_b32 s3, %d, 0" % (KX - VX - SLOT)], False))
        scal.append((106, ["s_add_u32 %s, %s, %s" % (sXoff, sXoff, sTmp), "s_add_u32 %s, %s, 4096" % (sXm, sXm), "s_add_u32 %s, %s, s3" % (sXm, sXm)], False))
        scal.append((14, ["s_cmp_eq_u32 %s, 6" % sIT, "s_cselect_b32 s24, s28, s24", "s_cselect_b32 s25, s29, s25",
                          "s_cselect_b32 %s, %d, %s" % (sVoff, 14 * SLOT, sVoff)], False))
    adv = []
    for cnt, d in ((sVr, sVd), (sKr, sKd)):
        adv += ["s_add_u32 %s, %s, 1" % (cnt, cnt), "s_cmp_eq_u32 %s, 3" % cnt, "s_cselect_b32 %s, 0, %s" % (cnt, cnt),
                "s_cselect_b32 %s, s90, s91" % d]
    if peel: adv = ["s_mov_b32 %s, 0" % sVr, "s_mov_b32 %s, s90" % sVd, "s_mov_b32 %s, 2" % sKr, "s_mov_b32 %s, s91" % sKd]
    scal.append((1, adv, False))
    if peel:
        xg = [int(x) for x in opts.get("xg", "5,21,33,45,67,77").split(",")]
        xl = [(k, x, cb) for k, x in (("V", 1), ("K", 3))[XP:] for cb in range(3)]
        xg = xg[3 * XP:]
        for g, (k, x, cb) in zip(xg, xl):
            srd_, beg = (sK, sKbeg) if k == "K" else (sV, sVbeg)
            assert g not in pinned and (g - 2) not in xg and (g - 1) not in xg, g
            if cb == 0: scal.append((g - 2, ["s_mov_b32 %s, %d" % (sTmp, x * SLOT)], True))
            scal.append((g - 1, ["s_add_u32 m0, %s, %d" % (beg, (x % 3) * SLOT + cb * (4096 - 128))], True))
            pin(g, "buffer_load_dwordx4 %s, %s, %s offen offset:%d %s lds" % (V(vDMA), srd_, sTmp, cb * 128, NT))
        dgp = [int(x) for x in opts.get("dgp", "71,81,93,105,117,130").split(",")]
        scal[0] = (57, ["s_waitcnt vmcnt(%d) lgkmcnt(0)" % (3 + 3 * XP + sum(1 for g in xg if g < 57))], True)
        scal.append((121, ["s_waitcnt vmcnt(%d)" % (3 * XP + sum(1 for g in xg + dgp if g < 121))], True)); scal.append((122, ["s_barrier"], True))
    if par == 0 and not peel and int(opts.get("keep", 0)):
        scal.append((2, ["s_cmp_eq_u32 %s, 6" % sIT, "s_cselect_b32 %s, 0, %s" % (sVoff, sVoff)], False))
    for i in range(int(opts.get("slow", 0))):
        g = [30, 101, 54, 138, 10, 83][i]
        if peel: scal.append((g, ["s_sleep 1"], True))
        else: scal.append((g, ["s_cmp_lt_u32 %s, %d" % (sIT, int(opts.get("slowit", 3))), "s_cbranch_scc0 L_sl%d_%d" % (par, i), "s_sleep 1", "L_sl%d_%d:" % (par, i)], True))
    if "rel" in opts and not peel:
        scal.append((28, ["s_bitcmp1_b32 s12, %s" % sIT], True)); scal.append((29, ["s_cbranch_scc1 L_rel%d" % par, "L_relback%d:" % par], True))
    OW = int(opts.get("ow", 0))
    if par == 0 and OW:
        scal.append((2, ["s_cmp_eq_u32 %s, 6" % sIT, "s_cselect_b32 s28, s32, s28", "s_cselect_b32 s29, s33, s29", "s_cselect_b32 s30, s34, s30",
                         "s_cselect_b32 %s, 0, %s" % (sVoff, sVoff), "s_cselect_b32 s86, %d, 0" % (61440 if OW == 2 else 0)], False))
        scal.append((107, ["s_add_u32 %s, %s, s86" % (sVoff, sVoff)], False)); scal.append((119, ["s_add_u32 %s, %s, s86" % (sVoff, sVoff)], False))
    dg = [int(x) for x in opts.get("dg", "71,81,93,105,117,130").split(",")] if not peel else dgp
    for i in range(6):
        srd_, so, sm_ = (sV, sVoff, sVm) if i < 3 else (sK, sKoff, sKm)
        assert dg[i] not in pinned
        scal.append((dg[i] - 1, ["s_add_u32 m0, %s, %d" % (sm_, (i % 3) * (4096 - 128))], True))
        pin(dg[i], "buffer_load_dwordx4 %s, %s, %s offen offset:%d %s lds" % (V(vDMA), srd_, so, (i % 3) * 128, NT))
    for g, so, m, end, beg in () if peel else ((dg[2] + 1 if dg[3] - dg[2] > 8 else dg[5] + 8, sVoff, sVm, sVend, sVbeg), (dg[5] + 1, sKoff, sKm, sKend, sKbeg)):
        scal.append((g, ["s_add_u32 %s, %s, %d" % (so, so, SLOT), "s_add_u32 %s, %s, %d" % (m, m, SLOT),
                         "s_cmp_eq_u32 %s, %s" % (m, end), "s_cselect_b32 %s, %s, %s" % (m, beg, m)], False))
    if par == 0 and not peel: scal.append((139, ["s_add_u32 %s, %s, 1" % (sIT, sIT), "s_cmp_lt_u32 %s, 7" % sIT], False))
    st = paced(sum([sm(rb, par, h) for rb in LATE for h in range(2)], []), 0, 50, dead=70)
    st += [Op("v_add_u32 %s, %s, %s" % (V(a), sVd, V(a)), 44, 56) for a in vVA]
    st += [Op("v_add_u32 %s, %s, %s" % (V(a), sKd, V(a)), 52, 125) for a in vKA]
    E0, E1 = 55, 140
    for n, (rb, h) in enumerate([(0, 0), (1, 0), (2, 0), (3, 0), (3, 1), (2, 1), (1, 1), (0, 1)]):
        ready = last_write_slot(qk, "v%d" % sregs(rb, np_)[4 * h]) + 5
        st += paced(sm(rb, np_, h), E0 + (E1 - E0) * n / 8, E0 + (E1 - E0) * (n + 1) / 8, floor=ready)
    def capf(cap, sc, pin_):
        for g in range(144):
            if "s_barrier" in sc.get(g, []): cap[g] = 0
    return schedule(mf, pinned, scal, st, ds_in, "body%d" % par, next_first=qk_mfmas(par)[0], excl=True, capf=capf)

def stamp(i):
    if STAMP in (1, 3): return ["s_memrealtime s[%d:%d]" % (60 + 2 * i, 61 + 2 * i)]
    if STAMP == 7:
        o = ["s_memrealtime s[%d:%d]" % (60 + 2 * i, 61 + 2 * i)] if i in (0, 2, 3, 6, 7) else []
        c = {2: 1, 7: 4, 3: 5}.get(i)
        return o + (["s_memtime s[%d:%d]" % (60 + 2 * c, 61 + 2 * c)] if c else [])
    if STAMP == 6: return ["s_memtime s[%d:%d]" % (60 + 2 * i, 61 + 2 * i)]
    return []

P = []
A = P.append
A("s_cmp_ge_u32 s2, 256")
A("s_cbranch_scc1 L_end")
A("s_load_dwordx4 s[4:7], s[0:1], 0")
A("s_load_dwordx4 s[8:11], s[0:1], 16")
if STAMP: A("s_load_dwordx2 s[12:13], s[0:1], 40")
P += stamp(0)
A("s_getpc_b64 s[18:19]")
A("v_lshrrev_b32 v240, 5, v0")
A("L_pc:")
if int(opts.get("cslice", 1)):
    A("s_and_b32 s3, s2, 0xf8"); A("v_add_u32 v240, s3, v240")
else: A("v_mov_b32 v240, v0")
A("v_lshlrev_b32 v240, 7, v240")

A("v_min_u32 v240, CODELEN, v240")
A("v_add_u32 v240, CODEOFF, v240")
A("global_load_dword v241, v240, s[18:19]")
vLN = 242; t2 = 243; t3 = 244; t4 = 245; t5 = 246; t6 = 247
A("v_lshrrev_b32 v%d, 6, v0" % t2)
A("v_and_b32 v%d, 63, v0" % vLN)
A("s_mul_i32 s14, s2, 147456")
A("v_readfirstlane_b32 %s, v%d" % (sWave, t2))
A("s_mul_i32 s15, s2, 196608")
if STG2 and "clsbit" in opts: A("s_bfe_u32 %s, s2, 0x%x" % (sCls, (int(opts.get("clsw", 3)) << 16) + int(opts.get("clsbit", 3))))
elif STG2: A("s_getreg_b32 %s, hwreg(HW_REG_XCC_ID, 0, %d)" % (sCls, int(opts.get("xw", 1))))
A("v_lshrrev_b32 v%d, 3, v%d" % (t5, vLN))
A("v_mul_u32_u24 v%d, 384, v%d" % (t6, t5))
A("v_lshrrev_b32 v%d, 4, v%d" % (t3, vLN))
A("v_lshlrev_b32 v%d, 1, v%d" % (t4, t3))
A("v_xor_b32 v%d, v%d, v%d" % (t4, t4, vLN))
A("v_and_b32 v%d, 7, v%d" % (t4, t4))
A("v_lshl_add_u32 v%d, v%d, 4, v%d" % (vDMA, t4, t6))
A("s_mul_i32 %s, %s, 3072" % (sTmp, sWave))
A("v_add_u32 v%d, %s, v%d" % (vDMA, sTmp, vDMA))
A("v_and_b32 v%d, 7, v%d" % (t4, vLN))
A("v_lshl_add_u32 v%d, v%d, 4, v%d" % (vQG, t4, t6))
A("s_mul_i32 %s, %s, 36864" % (sRow, sWave))
A("v_add_u32 v%d, %s, v%d" % (vQG, sRow, vQG))
A("s_lshl_b32 %s, %s, 10" % (sVbeg, sWave))
A("s_add_u32 %s, %s, %d" % (sKbeg, sVbeg, KRING))
for rb in range(1, 6): A("s_mov_b32 %s, %d" % (sRB(rb), rb * 6144))
if STG2:
    A("s_mov_b32 s3, 0")
    for i, (lo, hi, k, cnt) in enumerate(STG2):
        A("s_sub_u32 %s, %s, %d" % (sTmp, sCls, lo)); A("s_cmp_lt_u32 %s, %d" % (sTmp, hi - lo)); A("s_cselect_b32 s3, %d, s3" % (1 << i))
A("s_waitcnt lgkmcnt(0)")
def srd(base, src, off, size):
    A("s_add_u32 s%d, s%d, %s" % (base, src, off)); A("s_addc_u32 s%d, s%d, 0" % (base + 1, src + 1))
    A("s_mov_b32 s%d, %d" % (base + 2, size)); A("s_mov_b32 s%d, 0x20000" % (base + 3))
vm = []
def raw(rb, i): return 96 + rb * 24 + i * 4
def issue(k, x, i):
    if k == "Q":
        A("buffer_load_dwordx4 %s, v%d, %s, %s offen offset:%d %s" % (V(raw(x, i), 4), vQG, sQ, sRB(x), (i & 1) * 3072 + (i >> 1) * 128, NT))
        vm.append("Q%d.%d" % (x, i))
    else:
        srd_, beg = (sK, sKbeg) if k == "K" else (sV, sVbeg)
        A("s_add_u32 m0, %s, %d" % (beg, (3 if (k, x) == ("K", 0) else x % 3) * SLOT + i * (4096 - 128)))
        A("s_mov_b32 %s, %d" % (sTmp, x * SLOT))
        A("buffer_load_dwordx4 %s, %s, %s offen offset:%d %s lds" % (V(vDMA), srd_, sTmp, i * 128, NT))
        vm.append("%s%d" % (k, x))
    n = len(vm) - 1
    for ci, (lo, hi, kk, cnt) in enumerate(STG2):
        if kk <= n < cnt:
            A("s_bitcmp1_b32 s3, %d" % ci); A("s_cbranch_scc0 L_sg%d_%d" % (n, ci)); A("s_waitcnt vmcnt(%d)" % kk); A("L_sg%d_%d:" % (n, ci))
def vwait(name):
    last = max(i for i, x in enumerate(vm) if x == name)
    A("s_waitcnt vmcnt(%d)" % (len(vm) - 1 - last))
TLB = int(opts.get("tlb", 0))
srd(24, 6, "s15", 196608)
issue("K", 0, 0)
if TLB & 1:
    srd(32, 10, "s14", 147456); srd(28, 8, "s15", 196608)
    A("v_lshlrev_b32 v240, 9, v%d" % vLN)
    A("buffer_load_dword v250, v240, %s, %s offen nt" % (sO, sRow)); vm.append("t")
    A("buffer_load_dword v251, v%d, %s, 0 offen nt" % (vDMA, sV)); vm.append("t")
for cb in range(1, 3): issue("K", 0, cb)
K1E = int(opts.get("k1e", 0))
if K1E:
    for cb in range(3): issue("K", 1, cb)
srd(20, 4, "s14", 147456)
for rb in range(QD):
    for i in range(6): issue("Q", rb, i)
HOP = int(opts.get("hop", 1))
if HOP: A("s_branch L_main"); A(".p2align 12"); A("L_main:")
srd(28, 8, "s15", 15 * SLOT); srd(32, 10, "s14", 147456); srd(84, 8, "s15", 196608)
if STAMP:
    A("s_mov_b32 s36, s12"); A("s_mov_b32 s37, s13"); A("s_mov_b32 s38, 0x100000"); A("s_mov_b32 s39, 0x20000")
A("s_add_u32 %s, %s, %d" % (sKend, sKbeg, 3 * SLOT))
A("s_add_u32 %s, %s, %d" % (sVend, sVbeg, 3 * SLOT))
A("s_mul_i32 %s, %s, %d" % (sQL, sWave, QWAVE))
A("s_add_u32 %s, %s, %d" % (sQL, sQL, QLDS))
A("v_xor_b32 v%d, v%d, v%d" % (t2, t5, t4))
A("v_lshlrev_b32 v%d, 4, v%d" % (t2, t2))
A("v_lshl_add_u32 v%d, v%d, 7, v%d" % (t2, t5, t2))
A("s_mul_i32 %s, %s, 6144" % (sTmp, sWave))
A("s_cmp_lt_u32 %s, 2" % sWave)
A("s_cselect_b32 s3, 0, 4")
A("s_mul_i32 s3, s3, %d" % SLOT)
A("s_add_u32 %s, %s, s3" % (sTmp, sTmp))
A("v_add_u32 v249, %s, v%d" % (sTmp, t2))
A("v_and_b32 v%d, 3, v%d" % (t4, vLN))
A("v_xor_b32 v%d, v%d, v%d" % (t2, t5, t4))
A("v_lshlrev_b32 v%d, 4, v%d" % (t2, t2))
A("v_lshl_add_u32 v%d, v%d, 8, v%d" % (t2, t4, t2))
A("v_bfe_u32 v%d, v%d, 2, 1" % (t4, vLN))
A("v_mul_u32_u24 v%d, %d, v%d" % (t4, QKS, t4))
A("v_add3_u32 v%d, v%d, v%d, %s" % (vQW, t2, t4, sQL))
A("v_and_b32 v%d, 15, v%d" % (t2, vLN))
A("v_xor_b32 v%d, v%d, v%d" % (t4, t2, t3))
A("v_lshlrev_b32 v%d, 4, v%d" % (t4, t4))
A("v_lshl_add_u32 v%d, v%d, 8, v%d" % (t4, t3, t4))
A("v_add_u32 v%d, %s, v%d" % (vQA, sQL, t4))
A("v_lshlrev_b32 v%d, 7, v%d" % (t6, t2))
A("v_lshrrev_b32 v%d, 5, v%d" % (t4, vLN))
A("v_xor_b32 v%d, v%d, v%d" % (t4, t4, vLN))
A("v_and_b32 v%d, 7, v%d" % (t4, t4))
A("v_lshl_add_u32 v%d, v%d, 4, v%d" % (t6, t4, t6))
A("v_xor_b32 v%d, v%d, v%d" % (t4, t3, t5))
A("v_and_b32 v%d, 1, v%d" % (t4, t4))
A("v_lshl_add_u32 v%d, v%d, 3, v%d" % (t6, t4, t6))
A("v_add_u32 v248, %s, v%d" % (sTmp, t6))
A("ds_write_b64 v%d, v[248:249] offset:%d" % (vQA, 2 * QRB))
A("v_and_b32 v%d, 6, v%d" % (t4, vLN))
A("v_xor_b32 v%d, v%d, v%d" % (t4, t4, t3))
A("v_lshlrev_b32 v%d, 4, v%d" % (t4, t4))
A("v_lshl_add_u32 v%d, v%d, 7, v%d" % (vKA[0], t2, t4))
A("v_add_u32 v%d, %d, v%d" % (vKA[0], KRING, vKA[0]))
A("v_xor_b32 v%d, 64, v%d" % (vKA[1], vKA[0]))
A("v_lshrrev_b32 v%d, 2, v%d" % (t4, vLN))
A("v_lshlrev_b32 v%d, 7, v%d" % (t4, t4))
A("v_and_b32 v%d, 3, v%d" % (t2, vLN))
A("v_lshl_add_u32 v%d, v%d, 3, v%d" % (t4, t2, t4))
A("v_bfe_u32 v%d, v%d, 3, 2" % (t2, vLN))
A("v_lshl_add_u32 v%d, v%d, 5, v%d" % (t4, t2, t4))
A("v_add_u32 v%d, %d, v%d" % (vVA[0], VRING + 2 * SLOT, t4))
for x in range(1, 4): A("v_xor_b32 v%d, %d, v%d" % (vVA[x], 32 * x, vVA[0]))
A("s_mov_b32 s40, 0x%x" % CSCALE); A("s_mov_b32 s41, 0x%x" % CSCALE)
A("s_mov_b32 %s, 0xffff0000" % sMask)
A("s_mov_b32 %s, 0" % sIT)
A("s_mov_b32 %s, %d" % (sKoff, 4 * SLOT))
A("s_mov_b32 %s, %d" % (sVoff, 2 * SLOT))
A("s_add_u32 %s, %s, %d" % (sKm, sKbeg, SLOT))
A("s_mov_b32 %s, %d" % (sXoff, 13 * SLOT)); A("s_add_u32 %s, %s, %d" % (sXm, sVbeg, VX))
A("s_mov_b32 s90, %d" % (-2 * SLOT)); A("s_mov_b32 s91, %d" % SLOT); A("s_mov_b32 s94, %d" % (2 * SLOT - 256)); A("s_movk_i32 s95, 128")
A("s_add_u32 %s, %s, %d" % (sVm, sVbeg, 2 * SLOT))
A("s_mov_b32 %s, 0x%x" % (sLo, f2u(2.0 ** float(opts.get("llo", -20)))))
A("s_mov_b32 %s, 0x%x" % (sHi, f2u(2.0 ** float(opts.get("lhi", 24)))))
A("s_mov_b64 %s, 0" % sBad)
if "rel" in opts: A("s_mul_i32 s12, %s, %d" % (sCls, int(opts.get("relmask", "12"))))
for i in vL: A("v_mov_b32 v%d, 0" % i)
ZR = FQ[5][1]
for i in range(4): A("v_accvgpr_write_b32 a%d, 0" % (124 + i))
A("v_mov_b32 v%d, %d" % (t2, FLAG))
A("ds_write_b32 v%d, v%d" % (t2, vL[0]))
def zero16(f, i): A("v_mfma_f32_32x32x16_bf16 %s[%d:%d], %s, %s, 0" % (f, i, i + 15, ZR, ZR))
for i in range(128, 256, 16): zero16("a", i)
A("HOPS0")
vwait("K1" if K1E else "K0")
A("s_waitcnt lgkmcnt(0)")
A("s_barrier")
K0F = [V(G[rb][1], 4) for rb in range(6)] + [V(X[rb][1], 4) for rb in LATE] + FB
for n in range(12): A(k_read(K0F[n], 3, n >> 1, n & 1))
def pro_sm(rb):
    ops = sm(rb, 0, 0) + sm(rb, 0, 1)
    for t in [t for t in ops if t.startswith("v_exp")] + ["s_nop 0"] + [t for t in ops if not t.startswith("v_exp")]: A(t)
pend = [("Q", rb, i) for rb in range(QD, 6) for i in range(6)]
pend += [(k, x, cb) for k, x in (("K", 1), ("V", 0), ("K", 2), ("V", 1), ("K", 3))[K1E:3 + XP] for cb in range(3)]
deferred = pend[len(pend) - 3 * DEF:]; pend = pend[:len(pend) - 3 * DEF]
def qdst(rb, ks): return Ac(rb * 24 + ks * 4, 4) if rb < 4 else V(raw(rb, ks), 4)
def st_read(s_):
    rb, cb = divmod(s_, 3)
    for ks in (2 * cb, 2 * cb + 1): A(q_read(qdst(rb, ks), rb & 1, ks))
def st_mfma(s_):
    rb, cb = divmod(s_, 3)
    for hf in range(2):
        for ks in (2 * cb, 2 * cb + 1):
            d = V((G[rb][0] if hf == 0 else X[rb][0]), 4)
            A("%s %s, %s, %s, %s" % (MF, d, K0F[2 * ks + hf], qdst(rb, ks), "0" if ks == 0 else d))
nleft = 36
for s_ in range(18):
    rb, cb = divmod(s_, 3)
    for rh in range(2):
        i = 2 * cb + rh
        vwait("Q%d.%d" % (rb, i))
        if s_ == 17 and rh == 1: P += stamp(1)
        r0 = raw(rb, i); tb = 240 + 8 * rh
        for k in range(4):
            A("v_lshlrev_b32 v%d, 16, v%d" % (tb + 2 * k, r0 + k)); A("v_and_b32 v%d, %s, v%d" % (tb + 2 * k + 1, sMask, r0 + k))
        for k in range(4): A("v_pk_mul_f32 %s, %s, %s" % (V(tb + 2 * k, 2), V(tb + 2 * k, 2), sC2))
        for k in range(4): A("v_cvt_pk_bf16_f32 v%d, v%d, v%d" % (r0 + k, tb + 2 * k, tb + 2 * k + 1))
        if rh == 0 and s_ >= 1: st_read(s_ - 1)
        A("ds_write_b128 v%d, %s offset:%d" % (vQW, V(r0, 4), (rb & 1) * QRB + cb * 2 * QKS + rh * 128))
        if s_ == 17 and rh == 1: st_read(17)
        if pend and (pend[0][0] == "Q" or len(pend) >= nleft - int(opts.get("kvl", 3))):
            for _ in range(-(-len(pend) // nleft)): issue(*pend.pop(0))
        nleft -= 1
        if nleft == 0:
            for x in deferred[:3]: issue(*x)
    if s_ >= 1:
        A("s_waitcnt lgkmcnt(%d)" % (2 if s_ < 17 else 4)); st_mfma(s_ - 1)
        if "dum" in opts and s_ < 17:
            d0, d1 = [int(x) for x in opts["dum"].split(",")]
            rbp, cbp = divmod(s_ - 1, 3)
            for i in range(d0 + (d1 - d0) * s_ // 16):
                A("%s a[112:115], %s, %s, a[112:115]" % (MF, K0F[i % 12], qdst(rbp, 2 * cbp + (i & 1))))
    if cb == 1 and rb >= 1 and rb - 1 in EARLY: pro_sm(rb - 1)
    if s_ == int(opts.get("hs", 2)) and (int(opts.get("hskip", 3)) < 2 or len(opts.get("pages", "3,4,5,6").split(",")) > 4): A("HOPS1")
    for i in {7: (96, 112, 128), 13: (144, 160, 176), 16: (192, 208)}.get(s_, ()): zero16("v", i)
A("s_waitcnt lgkmcnt(0)")
st_mfma(17)
for i in (240, 224): zero16("v", i)
for x in deferred[3:]: issue(*x)
if not K1E:
    vwait("K1")
    A("s_barrier")
for a_ in vKA: A("v_add_u32 %s, %d, %s" % (V(a_), SLOT, V(a_)))
A(k_read(FB[0], 0, 0, 0)); A(k_read(FB[1], 0, 1, 0))
for rb in LATE:
    for k in range(2): A(q_read(FQ[rb][k], rb - 4, k))
if TLB & 2: A("buffer_load_dword v%d, v%d, %s, 0 offen nt" % (vQW, vQG, sO))
assert vm[-6 - 3 * XP:] == sum([[x] * 3 for x in ("V0", "K2", "V1", "K3")[:2 + XP]], []), vm
A("s_waitcnt lgkmcnt(0)")
P += stamp(2)

B0, q0 = body(0, [])
B1, q1 = body(1, q0)
B0, q0b = body(0, q1)
assert q0 == q0b
BP, qp_ = body(0, [], peel=True)
assert qp_ == q0
BP += ["s_add_u32 %s, %s, %d" % (sKoff, sKoff, SLOT), "s_add_u32 %s, %s, %d" % (sKm, sKm, SLOT),
       "s_add_u32 %s, %s, %d" % (sVoff, sVoff, SLOT), "s_mov_b32 %s, %s" % (sVm, sVbeg), "s_mov_b32 %s, 1" % sIT]
if STAMP == 7: BP += stamp(7)
if STAMP == 3:
    pre3 = ["s_mov_b32 m0, s13", "s_add_u32 s13, s13, 1", "v_writelane_b32 v15, s88, m0", "s_memrealtime s[88:89]"]
    BP = ["s_mov_b32 s13, 0", "s_mov_b32 s88, 0"] + pre3 + BP; B0 = pre3 + B0; B1 = pre3 + B1

T = []
A = T.append
T += stamp(3)
if STAMP == 3:
    T += pre3 + ["s_waitcnt lgkmcnt(0)"] + pre3[:3]
    A("v_mbcnt_lo_u32_b32 v16, -1, 0"); A("v_mbcnt_hi_u32_b32 v16, -1, v16"); A("v_lshlrev_b32 v16, 2, v16")
    A("s_lshl_b32 s3, s2, 2"); A("s_add_u32 s3, s3, %s" % sWave); A("s_lshl_b32 s3, s3, 8"); A("s_add_u32 s3, s3, 65536")
    A("buffer_store_dword v15, v16, %s, s3 offen" % sW)
eW = [16, 17, 18, 19]; eR = vQW; eS = vQG
for a_ in vKA: A("v_subrev_u32 %s, %d, %s" % (V(a_), 2 * SLOT, V(a_)))
def R4(x): return "%s[%d:%d]" % (x[0], x[1], x[1] + 3)
def R2(x, h): return "%s[%d:%d]" % (x[0], x[1] + 2 * h, x[1] + 2 * h + 1)
def vrd(dst, tile, db):
    return ["ds_read_b64_tr_b16 %s, %s offset:%d" % (R2(dst, i), V(vVA[db & 3]), {13: 3, 14: 1, 15: 4}[tile] * SLOT + (db >> 2) * 4096 + i * 2048) for i in range(2)]
X15 = {0: X[4][0], 1: X[5][0], 2: G[5][0], 3: X[0][0], 4: X[4][1], 5: X[5][1]}
G15 = {0: G[0][1], 1: G[1][1], 2: G[2][1], 3: G[1][0], 4: G[1][1], 5: G[2][0]}
def fs(rb, t): return [(G[rb][0] if t == 14 else G15[rb]) + i for i in range(4)] + [(X[rb][0] if t == 14 else X15[rb]) + i for i in range(4)]
def fsm(rb, t, half):
    ops = []; s_ = fs(rb, t)
    for i in (4 * half, 4 * half + 2):
        ops += ["v_exp_f32 %s, %s" % (V(s_[i]), V(s_[i])), "v_exp_f32 %s, %s" % (V(s_[i + 1]), V(s_[i + 1])),
                "v_add_f32 %s, %s, %s" % (V(vL[rb]), V(vL[rb]), V(s_[i])), "v_add_f32 %s, %s, %s" % (V(vL[rb]), V(vL[rb]), V(s_[i + 1])),
                "v_cvt_pk_bf16_f32 %s, %s, %s" % (V(s_[i // 2]), V(s_[i]), V(s_[i + 1]))]
    return ops
def qp(p): return [("a", rb * 24 + 8 * p + 4 * k) for rb in range(3) for k in range(2)]
def sb(*l): return [("a", 96 + 4 * i) for i in l]
vres = qp(0) + sb(4, 5) + qp(1) + sb(6, 7, 0, 1) + qp(2)
def v13(db): return ("v", 192 + 4 * db)
def phase_mf(rb):
    o = ["%s %s, %s, %s, %s" % (MF, O4(rb, db), R4(v13(db)), V(G[rb][1], 4), O4(rb, db)) for db in range(12)] if rb >= 3 else []
    return o + ["%s %s, %s, %s, %s" % (MF, O4(rb, db), R4(vres[12 * t + db]), V(fs(rb, 14 + t)[0], 4), O4(rb, db)) for t in range(2) for db in range(12)]
def lfin(rb):
    tmp = X15[rb]; l = vL[rb]; o = []
    for sw in ("v_permlane32_swap_b32", "v_permlane16_swap_b32"):
        o += ["v_mov_b32 v%d, v%d" % (tmp, l), "%s v%d, v%d" % (sw, l, tmp), "v_add_f32 v%d, v%d, v%d" % (l, l, tmp)]
    o += ["v_cmp_nle_f32 vcc, %s, v%d" % (sLo, l), "v_cmp_nge_f32 %s, %s, v%d" % (sB2, sHi, l), "v_rcp_f32 v%d, v%d" % (l, l)]
    return [Op(t) for t in o]
def wreg(n):
    fl, i0 = Oreg(n // 3, 4 * (n % 3))
    return i0 if fl == "v" else 96 + 16 * (n % 6)
def stg(n): return (n % 3) * 2048
def ep_st(n, rh):
    rb, cb = divmod(n, 3)
    return "buffer_store_dwordx4 %s, v%d, %s, %s offen offset:%d %s" % (V(wreg(n) + 8 + 4 * rh, 4), eS, sO, sRB(rb), rh * 3072 + cb * 128, "" if n >= int(opts.get("plain", 99)) else "nt sc1" if str(rb) in opts.get("ntrb", "") or ("nth" in opts and rh == 1 and rb < int(opts["nth"])) else SPOL)
def ep_rd(n):
    return ["ds_read_b128 %s, v%d offset:%d" % (V(wreg(n) + 8, 4), eR, stg(n))] + \
           ["ds_read_b64 %s, v%d offset:%d" % (V(wreg(n) + 12 + 2 * k, 2), eR, stg(n) + 1024 + 8 * (1 - k)) for k in range(2)]
ROWS = int(opts.get("rows", 0))
def burst(rb):
    A("s_or_b64 %s, %s, vcc" % (sBad, sBad)); A("s_or_b64 %s, %s, %s" % (sBad, sBad, sB2))
    lp = vL[rb] & ~1; sel = vL[rb] & 1
    for cb in range(3):
        n = 3 * rb + cb
        fl, i0 = Oreg(rb, 4 * cb); w = wreg(n)
        if fl == "a":
            for i in range(16):
                if rb < 5 or 4 * cb + i // 4 >= PRE5: A("v_accvgpr_read_b32 %s, %s" % (V(w + i), Ac(i0 + i)))
        for i in range(0, 16, 2):
            A("v_pk_mul_f32 %s, %s, %s op_sel:[0,%d] op_sel_hi:[1,%d]" % (V(w + i, 2), V(w + i, 2), V(lp, 2), sel, sel))
        if cb == 2 and not ROWS: A("s_waitcnt lgkmcnt(4)"); A(ep_st(n - 2, 0))
        for i in range(8): A("v_cvt_pk_bf16_f32 %s, %s, %s" % (V(w + i), V(w + 2 * i), V(w + 2 * i + 1)))
        if cb == 2 and not ROWS: A(ep_st(n - 2, 1))
        if cb >= 1:
            for t in ep_rd(n - 1): A(t)
        for x in range(4):
            A("ds_write_b64 v%d, %s offset:%d" % (eW[x], V(w + 2 * x, 2), stg(n)))
def group_block(rbs, buf, qf, first):
    mf = []; frag = []
    for t in ((14, 13, 15) if first else (14, 15)):
        if t == 13:
            for db in range(12):
                b = buf[len(frag) % 8]; frag.append((len(mf), vrd(b, 13, db), len(mf) + 2))
                mf += ["%s %s, %s, %s, %s" % (MF, O4(rb, db), R4(b), V(G[rb][1], 4), O4(rb, db)) for rb in rbs]
        else:
            for g in range(6):
                p, hf = (g >> 1, g & 1) if (t == 15 and first) else (g % 3, g // 3)
                bs = [buf[(len(frag) + k) % 8] for k in range(2)]
                for k in range(2): frag.append((len(mf), [k_read(R4(bs[k]), t - 12, 2 * p + k, hf)], len(mf) + 5))
                for rb in rbs:
                    for k in range(2):
                        d = V(fs(rb, t)[4 * hf], 4)
                        mf.append("%s %s, %s, %s, %s" % (MF, d, R4(bs[k]), qf(rb, 2 * p + k), "0" if p + k == 0 else d))
    return mf + phase_mf(rbs[0]), frag
def place(pinned, g, ins):
    while len(pinned.get(g, [])) + len(ins) > 2 or any(t.startswith("buffer") for t in pinned.get(g, [])): g += 1
    pinned.setdefault(g, []).extend(ins); return g
def block_stream(mf, rbs, lag):
    st = []
    r0_, r1_, r2_ = rbs
    for rb, t, h in ((r0_, 14, 0), (r1_, 14, 0), (r2_, 14, 0), (r0_, 14, 1), (r1_, 14, 1), (r2_, 14, 1), (r0_, 15, 0), (r0_, 15, 1), (-1, 0, 0), (r1_, 15, 0)):
        if rb < 0: st += lfin(r0_); continue
        ready = last_write_slot(mf[:108], "v%d" % fs(rb, t)[4 * h]) + lag
        dead = 131 if rb != r0_ else (105 if t == 14 else 117)
        st += [Op(x, ready, dead) for x in fsm(rb, t, h)]
    return st
def leftovers(n):
    rd = ep_rd(n)
    if ROWS:
        d = {4: rd[:2], 5: rd[2:]}
        for i in range(6): d[11 + i + (i // 3) * int(opts.get("rgap", 2))] = [ep_st(n - 2 + i % 3, i // 3)]
        return d
    return {1: [ep_st(n - 1, 0)], 4: [ep_st(n - 1, 1)], 7: rd[:2], 8: rd[2:], 17: [ep_st(n, 0)], 20: [ep_st(n, 1)]}
def small_phase(rb, nxt, extra=()):
    scal = [(0, ["s_waitcnt lgkmcnt(4)"], True), (16, ["s_waitcnt lgkmcnt(0)"], True)] if not ROWS else [(10, ["s_waitcnt lgkmcnt(0)"], True)]
    st = [Op(t, 0, 10) for t in fsm(rb, 15, 1)] + lfin(rb)
    if nxt is not None: st += [Op(t) for t in fsm(nxt, 15, 0)]
    pinned = leftovers(3 * rb - 1)
    for g, ins in extra: pinned[g] = ins
    if extra: scal[1] = (16, ["s_waitcnt lgkmcnt(%d)" % sum(len(ins) for g, ins in extra if g < 16)], True)
    blk, _ = schedule(phase_mf(rb), pinned, scal, st, [], "phase%d" % rb, excl=True)
    return blk
bufA = [("a", 96 + 4 * i) for i in range(8)]
mf, frag = group_block([0, 1, 2], bufA, Qf, True)
pinned = {}
for i, (use, ins, _) in enumerate(frag):
    if i < 2: continue
    place(pinned, max(0 if i < 8 else frag[i - 8][2], use - 15 + (i & 1)), ins)
g = 80; gv = {}
for n in range(24):
    free = 1 + max(k for k, t in enumerate(mf[:108]) if ("a%d" % vres[n][1]) in Ins(t).rd)
    g = place(pinned, max(g, free), vrd(vres[n], 14 + n // 12, n % 12))
    gv[n] = g; g += (1 if n < 17 else 2)
place(pinned, 124, ["ds_read_b64 v[16:17], v%d offset:%d" % (vQA, 2 * QRB)])
scal = [(51, ["s_waitcnt vmcnt(12)", "s_barrier"], False), (74, ["s_waitcnt vmcnt(9)", "s_barrier"], False), (90, ["s_waitcnt vmcnt(0)", "s_barrier"], False)]
st = [Op(t) for h in range(2) for t in sm(4, 1, h)] + block_stream(mf, [0, 1, 2], 5)
blk, _ = schedule(mf, pinned, scal, st, q0, "blockA", excl=True)
T += blk
if "fine" in opts: T += stamp(1)
A("s_waitcnt lgkmcnt(0)")
A("v_mov_b32 v%d, v17" % eR)
for x in (1, 2, 3): A("v_xor_b32 v%d, %d, v16" % (eW[x], 32 * x))
burst(0)
T += small_phase(1, 2); burst(1)
bufB = [("v", 96 + 4 * i) for i in range(8)]
def qfB(rb, ks): return Qf(rb, ks) if rb < 4 else V(128 + 24 * (rb - 4) + 4 * ks, 4)
mfB, fragB = group_block([3, 4, 5], bufB, qfB, False)
pre = [fragB[i][1][0] for i in range(4)] + [q_read(qfB(rb, k), rb - 4, k) for k in range(6) for rb in LATE]
T += small_phase(2, None, [(g, pre[2 * i:2 * i + 2]) for i, g in enumerate((11, 14, 18, 19, 21, 22, 23))])
for t in pre[14:]: A(t)
for x in range(4): A("v_mov_b32 v%d, v%d" % (G[0][0] + x, eW[x]))
eW = [G[0][0] + x for x in range(4)]
burst(2)
if "fine" in opts: T += stamp(2)
pinned = leftovers(8)
for i, (use, ins, _) in enumerate(fragB):
    if i < 4: continue
    g = place(pinned, max(0 if i < 8 else fragB[i - 8][2], use - 15 + (i & 1)), ins)
g = 22
for db in range(12): g = place(pinned, g, vrd(v13(db), 13, db)) + 3
if ROWS:
    later = sum(1 for g in range(6, 10) for t in pinned.get(g, []) if t.startswith("ds_")) + len(pinned[5]) - 1
    scal = [(10, ["s_waitcnt lgkmcnt(%d)" % later], True)]
else:
    later = sum(1 for g in range(9, 16) for t in pinned.get(g, []) if t.startswith("ds_")) + len(pinned[8]) - 1
    scal = [(0, ["s_waitcnt lgkmcnt(4)"], True), (16, ["s_waitcnt lgkmcnt(%d)" % later], True)]
st = [Op(t, 0, 50) for h in range(2) for t in sm(5, 1, h)]
for rb, t, h, dead in ((3, 14, 0, 81), (4, 14, 0, 107), (5, 14, 0, 107), (3, 14, 1, 81), (4, 14, 1, 107), (3, 15, 0, 93), (3, 15, 1, 93), (-1, 0, 0, 0), (5, 14, 1, 107)):
    if rb < 0: st += lfin(3); continue
    st += [Op(x, last_write_slot(mfB[:72], "v%d" % fs(rb, t)[4 * h]) + 7, dead) for x in fsm(rb, t, h)]
if ROWS: A("s_waitcnt lgkmcnt(7)")
blk, _ = schedule(mfB, pinned, scal, st, [], "blockB", excl=True)
T += blk
if "fine" in opts: T += stamp(0)
burst(3)
scal = [(0, ["s_waitcnt lgkmcnt(4)"], True), (16, ["s_waitcnt lgkmcnt(0)"], True)] if not ROWS else [(10, ["s_waitcnt lgkmcnt(0)"], True)]
st = [Op(t, 0, 22) for h in range(2) for t in fsm(4, 15, h)] + lfin(4) + [Op(t) for h in range(2) for t in fsm(5, 15, h)]
blk, _ = schedule(phase_mf(4), leftovers(11), scal, st, [], "phase4", excl=True)
T += blk
burst(4)
m5 = phase_mf(5); m5 = [m5[12 * t + db] for db in range(12) for t in range(3)]
st = lfin(5)
PRE5 = 9
for db in range(PRE5):
    st += [Op("v_accvgpr_read_b32 %s, %s" % (V(wreg(15 + db // 4) + 4 * (db % 4) + i), Ac(Oreg(5, db)[1] + i)), 3 * db + 2 + 5) for i in range(4)]
blk, _ = schedule(m5, leftovers(14), scal, st, [], "phase5", excl=True)
T += blk
T += stamp(4)
burst(5)
if not ROWS:
    A("s_waitcnt lgkmcnt(4)")
    A(ep_st(16, 0)); A(ep_st(16, 1))
for t in ep_rd(17): A(t)
A("s_cmp_eq_u64 %s, 0" % sBad)
A("s_cbranch_scc1 L_good")
A("v_mov_b32 v2, %d" % FLAG); A("v_mov_b32 v3, 1")
A("ds_write_b32 v2, v3")
A("L_good:")
A("s_waitcnt lgkmcnt(0)")
if ROWS:
    for i in range(6): A(ep_st(15 + i % 3, i // 3))
else: A(ep_st(17, 0)); A(ep_st(17, 1))
if STAMP:
    T += stamp(5)
    A("s_waitcnt vmcnt(0)")
    T += stamp(6)
    A("s_waitcnt lgkmcnt(0)")
    if "probe" in opts:
        pi, pj = [int(x) for x in opts["probe"].split(",")]
        A("s_sub_u32 s84, s%d, s%d" % (60 + 2 * pj, 60 + 2 * pi))
        if "pneg" in opts: A("s_sub_u32 s84, %s, s84" % opts["pneg"])
        if STAMP == 6:
            A("s_min_u32 s84, s84, 40000"); A("s_memrealtime s[72:73]"); A("s_waitcnt lgkmcnt(0)")
        else:
            A("s_min_u32 s84, s84, 10000")
            A("s_lshl_b32 s84, s84, 2")
        if "pcls" in opts:
            A("s_bfe_u32 s85, s2, 0x%x" % int(opts["pbits"], 16)); A("s_cmp_eq_u32 s85, %s" % opts["pcls"]); A("s_cselect_b32 s84, s84, 0")
        A("L_spin:"); A("s_sleep 2"); A("s_memrealtime s[82:83]"); A("s_waitcnt lgkmcnt(0)")
        A("s_sub_u32 s85, s82, s72"); A("s_cmp_lt_u32 s85, s84"); A("s_cbranch_scc1 L_spin")
    A("s_lshl_b32 s3, s2, 2"); A("s_add_u32 s3, s3, %s" % sWave); A("s_lshl_b32 s3, s3, 6")
    A("v_mov_b32 v10, s3")
    for i in range(16): A("v_mov_b32 v%d, s%d" % (16 + i, 60 + i))
    for i in range(4): A("buffer_store_dwordx4 v[%d:%d], v10, %s, 0 offen offset:%d" % (16 + 4 * i, 19 + 4 * i, sW, 16 * i))
A("s_barrier")
A("v_mov_b32 v0, %d" % FLAG)
A("ds_read_b32 v0, v0")
A("s_waitcnt lgkmcnt(0)")
A("v_readfirstlane_b32 %s, v0" % sTmp)
A("s_cmp_eq_u32 %s, 0" % sTmp)
A("s_cbranch_scc0 L_redo")
A("L_end:")
A("s_endpgm")
if "rel" in opts:
    for par in range(2): A("L_rel%d:" % par); A("s_sleep %d" % int(opts["rel"])); A("s_branch L_relback%d" % par)
A("L_hotend:")
A("L_redo:")
A("s_waitcnt vmcnt(0)")
A("s_barrier")
A("v_mbcnt_lo_u32_b32 v0, -1, 0"); A("v_mbcnt_hi_u32_b32 v0, -1, v0")
A("s_lshl_b32 %s, %s, 6" % (sTmp, sWave))
A("v_add_u32 v0, %s, v0" % sTmp)

if "cap" in opts:
    T2 = []
    for t in T:
        if t.startswith("buffer_store") and sO in t: T2.append("s_waitcnt vmcnt(%d)" % int(opts["cap"]))
        T2.append(t)
    T = T2
if "skiprb" in opts:
    sk = [sRB(int(x)) for x in opts["skiprb"].split(",")]
    T = [t for t in T if not (t.startswith("buffer_store") and sO in t and any((", %s offen" % x) in t for x in sk))]
if "nost" in opts: T = [t for t in T if not (t.startswith("buffer_store") and sO in t)]
if "nowr" in opts: T = [t for t in T if not t.startswith("ds_write_b64")]
def I(l): return [Ins(t) for t in l if not t.startswith("HOPS")]
seq = I(P + BP + B1 + B0 + ["s_cbranch_scc1 L_loop"] + B1 + B0 + ["s_cbranch_scc1 L_loop"] + T)
errs = check_hazards(seq, "main") + check_waits(seq, "main") + check_scc(seq, "main")
for e in errs[:30]: sys.stderr.write(e + "\n")
if errs and "nost" not in opts and "skiprb" not in opts:
    print("!!! %d hazard problems" % len(errs)); sys.exit(1)
S, lds2, e2_ = gen_safe.build_safe({"qd": "3", "nt": NT})
assert lds2 <= LDS_BYTES and e2_ == 0

hdr = open("standalone__gqa_softmax__near_ridge.s.ref").read().split("; Override")[0]
code = P + ["; ---- iteration 0 (also completes the first K/V prefetch)"] + BP + ["; ---- iterations 1..12: QK(j+1) | PV(j)", ".p2align 3", "L_loop:"] + B1 + B0 + ["s_cbranch_scc1 L_loop",
       "; ---- tiles 13..15: row blocks 0-2 to the end, then 3-5; normalise, stage through LDS, store"] + T + ["; ---- online-max path (taken only when a row sum left the checked range)"]
NH = 8
DOC = """;
; Attention forward, one workgroup per (batch, head): 4 waves x 96 query rows, 16x16x32 bf16 MFMA, 32-key tiles.
;   S^T = K Q^T and O^T = V^T P^T, so a lane owns one query row; K/V tiles stream HBM -> LDS (LDS-DMA, XOR-swizzled),
;   softmax VALU work is interleaved with the MFMAs of the neighbouring tile.
; Fast path: Q is scaled by log2(e)/sqrt(192) once, p = 2^s is taken against the reference point 0 (softmax is shift
;   invariant).  Every row sum is checked against [2^-20, 2^24] (NaN and inf fail the check); if any row of the head
;   fails, the whole workgroup recomputes the head on the path labelled S_* which subtracts the running row maximum.
; Workgroups on even compute dies hold their first loads to four in flight per wave, which lets the odd dies (slower
;   to load and to compute) finish Q first; this changes speed only.
; The last tiles are processed row block by row block so that output stores overlap the remaining matrix work.
; Generated by the author's own script (instruction scheduling and hazard checking included).""".split("\n")
def render(code, nh):
    out = [hdr.rstrip(), "; @launch grid=(256,1,1) block=(256,1,1) lds=%d" % LDS_BYTES] + DOC + [
           '.amdgcn_target "amdgcn-amd-amdhsa--gfx950"', ".text", ".globl %s" % KN, ".p2align 8", ".type %s,@function" % KN, "%s:" % KN, "L_start:"]
    for t in code + S:
        if t.startswith("HOPS"):
            if not HOP: continue
            r_ = int(t[4:])
            out += ["; visit the first line of later code pages (no lane active, no memory instruction on that path)", "    s_mov_b64 exec, 0"]
            if opts.get("pages", "3,4,5,6") == "3,4,5,6":
                for w in range(3): out += ["    s_cmp_eq_u32 %s, %d" % (sWave, w), "    s_cbranch_scc1 %s" % ("L_hop%d" % (w + 1) if w + 1 < nh else "L_hopback0")]
                out += ["    s_cmp_eq_u32 %s, 0" % sCls, "    s_cbranch_scc1 %s" % ("L_hop0" if nh else "L_hopback0")]
            else:
                for w in range(4):
                    k = 4 * r_ + w
                    out += ["    s_cmp_eq_u32 %s, %d" % (sWave, w), "    s_cbranch_scc1 %s" % ("L_hop%d" % k if k < nh else "L_hopback%d" % r_)]
            out += ["L_hopback%d:" % r_, "    s_mov_b64 exec, -1"]
            continue
        t = t.replace("CODELEN", "L_hotend-L_main" if HOP else "L_hotend-L_pc").replace("CODEOFF", "L_main-L_pc+4" if HOP else "0")
        out.append(t if t.endswith(":") or t.startswith((".", ";")) else "    " + t)
    out += ['.section .rodata,"a"', ".p2align 6", ".amdhsa_kernel %s" % KN, "  .amdhsa_next_free_vgpr 512", "  .amdhsa_next_free_sgpr 96",
            "  .amdhsa_accum_offset 256", "  .amdhsa_group_segment_fixed_size 0", "  .amdhsa_kernarg_size 48", "  .amdhsa_user_sgpr_count 2",
            "  .amdhsa_user_sgpr_kernarg_segment_ptr 1", "  .amdhsa_system_sgpr_workgroup_id_x 1", ".end_amdhsa_kernel", ""]
    return "\n".join(out)
import subprocess, re as _re
def addresses(code, nh):
    marked = []
    for i, t in enumerate(code): marked += ["M_%d:" % i, t]
    open("_g7.s", "w").write(render(marked, nh))
    subprocess.run(["clang", "-x", "assembler", "-target", "amdgcn-amd-amdhsa", "-mcpu=gfx950", "-c", "_g7.s", "-o", "_g7.o"], check=True)
    sy = subprocess.run(["llvm-objdump", "-t", "_g7.o"], capture_output=True, text=True).stdout
    ad = {m.group(2): int(m.group(1), 16) for m in _re.finditer(r"^([0-9a-f]+) .* (\S+)$", sy, _re.M)}
    return [ad["M_%d" % i] - ad["L_main"] for i in range(len(code))]
nh = 0
if HOP:
    STEP = int(opts.get("hstep", 4096))
    while nh < NH:
        ad = addresses(code, nh)
        pages = [int(x) for x in opts.get("pages", "3,4,5,6").split(",") if x] or list(range(1 + int(opts.get("hskip", 3)), 20))
        if nh >= len(pages): break
        lo = STEP * pages[nh]
        if lo >= ad[code.index("L_end:")]: break
        cand = [i for i in range(1, len(code)) if lo <= ad[i] < lo + 56]
        good = [i for i in cand if code[i - 1].startswith("v_mfma") and not code[i].startswith("s_")]
        i = (good or cand)[0]
        code[i:i] = ["L_hop%d:" % nh, "s_cbranch_execz L_hopback%d" % (nh // 4), "s_nop 0"][:2 + (1 if "L_loop:" in code[:i] and "s_cbranch_scc1 L_loop" in code[i:] and False else 0)]
        nh += 1
    sys.stderr.write("hops: %d\n" % nh)
open(sys.argv[1], "w").write(render(code, nh))
```
